```python
import torch

def _softmax(x, axis=-1):
    return torch.softmax(x, dim=axis)
def _gelu(x):
    return torch.nn.functional.gelu(x, approximate="tanh")
def _silu(x):
    return torch.nn.functional.silu(x)
def _sigmoid(x):
    return torch.sigmoid(x)
def _layernorm(x, axis=-1, eps=1e-5):
    m = x.mean(dim=axis, keepdim=True)
    v = x.var(dim=axis, keepdim=True, unbiased=False)
    return (x - m) / torch.sqrt(v + eps)
def _scatter_add(tgt, idx, src, axis=0):
    return tgt.clone().index_add_(axis, idx, src)
def _segment_sum(src, seg, n):
    out = torch.zeros((n,) + src.shape[1:], dtype=src.dtype)
    return out.index_add_(0, seg, src)
def _pad(x, pw):
    flat = tuple(v for pair in reversed(pw) for v in pair)
    return torch.nn.functional.pad(x, flat)

kernel_name = 'gather_scatter__edge_featured_mpnn_egc__graph'

def setup_inputs():

    _w = (lambda a: (lambda t: t.to(torch.bfloat16) if t.is_floating_point() else t)(torch.as_tensor(a)))
    N, deg, D, De = 10000, 32, 128, max(16, 1)
    E = N * deg
    return {
        "x": _w((lambda *s: torch.randn(*s, dtype=torch.bfloat16) * 0.2)(N, D)),
        "e_attr": _w((lambda *s: torch.randn(*s, dtype=torch.bfloat16) * 0.2)(E, De)),
        "src": _w((lambda lo, hi, *s: torch.randint(lo, hi, s))(0, N, E).to(torch.int64)),
        "dst": _w((lambda lo, hi, *s: torch.randint(lo, hi, s))(0, N, E).to(torch.int64)),
        "u_w": _w((lambda *s: torch.randn(*s, dtype=torch.bfloat16) * 0.05)(D, D)),
        "v_w": _w((lambda *s: torch.randn(*s, dtype=torch.bfloat16) * 0.05)(D, D)),
        "g_w": _w((lambda *s: torch.randn(*s, dtype=torch.bfloat16) * 0.2)(2 * D + De, D)),
    }

def reference(x, e_attr, src, dst, u_w, v_w, g_w):
    N, D = x.shape
    g_in = torch.concatenate([x[dst], x[src], e_attr], axis=-1)
    eta = _sigmoid(g_in @ g_w)
    hv = x @ v_w
    msg = eta * hv[src]
    agg = _segment_sum(msg, dst, N)
    return _silu(x @ u_w + agg)
```

```python
import sys, struct

NAME = "gather_scatter__edge_featured_mpnn_egc__graph"
N = 10000; E = 320000
NB = 250; NPB = 40
NC = 250; CE = 1280
KSH = 26
def f2u(x): return struct.unpack('<I', struct.pack('<f', x))[0]
NEG_LOG2E = f2u(-1.4426950408889634)
C_2MK = f2u(2.0 ** -KSH)
C_2PK = f2u(2.0 ** KSH)
BF16_NEGK = 0xC1D0
assert KSH == 26

T_OFF = 0;            T_BYTES = (N + 1) * 512
ENT_OFF = 0x500000
OFFS_OFF = 0x640000
WF_OFF = 0x680000
CF_OFF = 0x690000
WS_END = 0x6A0000

NT_WG = 314
BIN0 = NT_WG
WF0 = BIN0 + NC
CF0 = WF0 + 8
K1_WGS = CF0 + 1
K1_LDS = 128 * 288

class Asm:
    def __init__(self): self.lines = []
    def __call__(self, s):
        for l in s.split("\n"):
            l = l.strip()
            if l: self.lines.append("    " + l)
    def label(self, n): self.lines.append(n + ":")
    def raw(self, s): self.lines.append(s)
    def text(self): return "\n".join(self.lines) + "\n"

def vr(i, n=1): return f"v{i}" if n == 1 else f"v[{i}:{i+n-1}]"
def sr(i, n=1): return f"s{i}" if n == 1 else f"s[{i}:{i+n-1}]"

def srd(a, d, base, nbytes):
    a(f"s_mov_b32 s{d}, s{base}")
    a(f"s_and_b32 s{d+1}, s{base+1}, 0xffff")
    a(f"s_mov_b32 s{d+2}, {nbytes}")
    a(f"s_mov_b32 s{d+3}, 0x00020000")

def wave_scan(a, v):
    for sh in (1, 2, 4, 8):
        a("s_nop 1")
        a(f"v_add_u32_dpp v{v}, v{v}, v{v} row_shr:{sh} row_mask:0xf bank_mask:0xf bound_ctrl:1")
    a("s_nop 1")
    a(f"v_add_u32_dpp v{v}, v{v}, v{v} row_bcast:15 row_mask:0xa bank_mask:0xf")
    a("s_nop 1")
    a(f"v_add_u32_dpp v{v}, v{v}, v{v} row_bcast:31 row_mask:0xc bank_mask:0xf")

def k1_table(a):
    a.label("K1_TABLE")
    a("s_and_b32 s3, s2, 1")
    a("s_lshr_b32 s28, s2, 1")
    a("s_cmp_eq_u32 s3, 0")
    a("s_cselect_b32 s20, s16, s14")
    a("s_cselect_b32 s21, s17, s15")
    a("s_cselect_b32 s29, 32768, 0")
    a(f"s_cselect_b32 s30, {hex(NEG_LOG2E)}, 1.0")
    a("s_and_b32 s21, s21, 0xffff")
    a("s_mov_b32 s22, 69632")
    a("s_mov_b32 s23, 0x00020000")
    srd(a, 24, 4, N * 256)
    srd(a, 32, 18, T_BYTES)
    a("v_lshlrev_b32 v1, 4, v0")
    for i in range(8):
        a(f"buffer_load_dwordx4 {vr(8+4*i,4)}, v1, s[20:23], s29 offen")
        if i < 7: a("s_add_u32 s29, s29, 4096")
    a("v_and_b32 v2, 15, v0")
    a("v_bfe_u32 v3, v0, 4, 2")
    a("v_lshrrev_b32 v4, 6, v0")
    a("s_lshl_b32 s31, s28, 6")
    a("v_lshl_add_u32 v5, v4, 4, s31")
    a("v_add_u32 v6, v5, v2")
    a("v_lshlrev_b32 v6, 8, v6")
    a("v_lshl_add_u32 v6, v3, 4, v6")
    for ks in range(4):
        a(f"buffer_load_dwordx4 {vr(40+4*ks,4)}, v6, s[24:27], 0 offen offset:{64*ks}")
    a("v_lshrrev_b32 v7, 4, v0")
    a("v_mul_u32_u24 v7, 288, v7")
    a("v_lshl_add_u32 v7, v2, 4, v7")
    for i in range(8):
        a(f"s_waitcnt vmcnt({11-i})")
        a(f"ds_write_b128 v7, {vr(8+4*i,4)} offset:{4608*i}")
    a("v_lshrrev_b32 v7, 2, v2")
    a("v_lshl_add_u32 v7, v3, 3, v7")
    a("v_mul_u32_u24 v7, 288, v7")
    a("v_and_b32 v1, 3, v0")
    a("v_lshl_add_u32 v7, v1, 3, v7")
    a("v_lshl_add_u32 v1, v3, 2, v5")
    a("v_lshlrev_b32 v1, 9, v1")
    a("v_lshl_add_u32 v1, v2, 4, v1")
    a("s_lshl_b32 s3, s3, 8")
    a("v_add_u32 v1, s3, v1")
    a("s_waitcnt vmcnt(0) lgkmcnt(0)")
    a("s_barrier")
    ACC = 64
    BF = [8, 24]
    def reads(t):
        b = BF[t & 1]
        for ks in range(4):
            a(f"ds_read_b64_tr_b16 {vr(b+4*ks,2)}, v7 offset:{9216*ks + 32*t}")
            a(f"ds_read_b64_tr_b16 {vr(b+4*ks+2,2)}, v7 offset:{9216*ks + 32*t + 1152}")
    reads(0)
    for t in range(8):
        if t < 7:
            reads(t + 1)
            a("s_waitcnt lgkmcnt(8)")
        else:
            a("s_waitcnt lgkmcnt(0)")
        b = BF[t & 1]
        for ks in range(4):
            c = "0" if ks == 0 else vr(ACC+4*t, 4)
            a(f"v_mfma_f32_16x16x32_bf16 {vr(ACC+4*t,4)}, {vr(40+4*ks,4)}, {vr(b+4*ks,4)}, {c}")
    a("s_mov_b32 s36, 0x00800000")
    a("s_mov_b32 s37, 0x7fff0000")
    a("s_nop 7")
    for r in range(4):
        W = 8 + 4 * (r & 1) * 2
        for p in range(4):
            lo, hi = ACC + 4*(2*p) + r, ACC + 4*(2*p+1) + r
            a(f"v_mul_f32 v{lo}, s30, v{lo}")
            a(f"v_mul_f32 v{hi}, s30, v{hi}")
        for p in range(4):
            lo, hi = ACC + 4*(2*p) + r, ACC + 4*(2*p+1) + r
            a(f"v_cvt_pk_bf16_f32 v{W+p}, v{lo}, v{hi}")
            a(f"v_max_f32_e64 v{hi}, |v{hi}|, s36")
        for p in range(4):
            hi = ACC + 4*(2*p+1) + r
            a(f"v_add_u32 v{hi}, 0x8000, v{hi}")
        for p in range(4):
            hi = ACC + 4*(2*p+1) + r
            a(f"v_sub_u32_sdwa v{hi}, v{hi}, v{W+p} dst_sel:DWORD dst_unused:UNUSED_PAD src0_sel:DWORD src1_sel:WORD_0")
        a("s_nop 0")
        for p in range(4):
            hi = ACC + 4*(2*p+1) + r
            a(f"v_bfi_b32 v{W+p}, s37, v{hi}, v{W+p}")
        a(f"buffer_store_dwordx4 {vr(W,4)}, v1, s[32:35], 0 offen offset:{512*r}")
    a("s_endpgm")

def k1_bin(a):
    HIST, OFF2, SORT = 0, 1024, 2048
    a.label("K1_BIN")
    a(f"s_sub_u32 s3, s2, {BIN0}")
    srd(a, 20, 8, E * 4)
    srd(a, 24, 10, E * 4)
    srd(a, 28, 18, WS_END)
    a("v_lshlrev_b32 v1, 2, v0")
    a("s_mul_i32 s32, s3, 5120")
    a("v_mov_b32 v2, 0")
    a(f"ds_write_b32 v1, v2 offset:{HIST}")
    DST, SRC = 8, 16
    for m in range(5):
        a(f"buffer_load_dword v{DST+m}, v1, s[24:27], s32 offen offset:{1024*m if m<4 else 0}" if m < 4 else
          f"s_add_u32 s33, s32, 4096\nbuffer_load_dword v{DST+m}, v1, s[24:27], s33 offen")
    for m in range(5):
        a(f"buffer_load_dword v{SRC+m}, v1, s[20:23], s32 offen offset:{1024*m}" if m < 4 else
          f"buffer_load_dword v{SRC+m}, v1, s[20:23], s33 offen")
    a("s_mov_b32 s34, 52429")
    a("s_waitcnt lgkmcnt(0)")
    a("s_barrier")
    BINR, RANK = 24, 32
    a("v_mov_b32 v3, 1")
    for m in range(5):
        a(f"s_waitcnt vmcnt({9-m})")
        a(f"v_mul_u32_u24 v{BINR+m}, s34, v{DST+m}")
        a(f"v_lshrrev_b32 v{BINR+m}, 21, v{BINR+m}")
        a(f"v_mul_u32_u24 v4, 40, v{BINR+m}")
        a(f"v_sub_u32 v{DST+m}, v{DST+m}, v4")
        a(f"v_lshlrev_b32 v{BINR+m}, 2, v{BINR+m}")
        a(f"ds_add_rtn_u32 v{RANK+m}, v{BINR+m}, v3 offset:{HIST}")
    for m in range(5):
        a(f"s_waitcnt vmcnt({4-m})")
        a(f"v_lshl_or_b32 v{SRC+m}, v{DST+m}, 14, v{SRC+m}")
        a(f"v_add_u32 v4, {256*m}, v0")
        a(f"v_lshl_or_b32 v{SRC+m}, v4, 20, v{SRC+m}")
    a("s_waitcnt lgkmcnt(0)")
    a("s_barrier")
    a("v_and_b32 v5, 63, v0")
    a("v_lshlrev_b32 v5, 4, v5")
    a(f"ds_read_b128 v[40:43], v5 offset:{HIST}")
    a("s_waitcnt lgkmcnt(0)")
    a("v_add_u32 v44, v40, v41")
    a("v_add_u32 v45, v42, v43")
    a("v_add_u32 v46, v44, v45")
    a("v_mov_b32 v47, v46")
    wave_scan(a, 47)
    a("v_sub_u32 v48, v47, v46")
    a("v_add_u32 v49, v48, v40")
    a("v_add_u32 v50, v48, v44")
    a("v_add_u32 v51, v50, v42")
    a(f"ds_write_b128 v5, v[48:51] offset:{OFF2}")
    a("v_readfirstlane_b32 s35, v0")
    a("s_lshl_b32 s36, s3, 10")
    a(f"s_add_u32 s36, s36, {OFFS_OFF}")
    a("s_cmp_ge_u32 s35, 64")
    a("s_cbranch_scc1 K1_BIN_NOPUB")
    for i in range(4):
        a(f"v_lshl_or_b32 v{52+i}, v{40+i}, 16, v{48+i}")
    a("buffer_store_dwordx4 v[52:55], v5, s[28:31], s36 offen")
    a.label("K1_BIN_NOPUB")
    a("s_waitcnt lgkmcnt(0)")
    for m in range(5):
        a(f"ds_read_b32 v{40+m}, v{BINR+m} offset:{OFF2}")
    for m in range(5):
        a(f"s_waitcnt lgkmcnt({4-m})")
        a(f"v_add_lshl_u32 v{40+m}, v{40+m}, v{RANK+m}, 2")
        a(f"ds_write_b32 v{40+m}, v{SRC+m} offset:{SORT}")
    a("s_waitcnt lgkmcnt(0)")
    a("s_barrier")
    a("v_lshlrev_b32 v5, 4, v0")
    a(f"ds_read_b128 v[40:43], v5 offset:{SORT}")
    a(f"s_add_u32 s36, s32, {ENT_OFF}")
    a("v_cmp_gt_u32 vcc, 64, v0")
    a("s_waitcnt lgkmcnt(0)")
    a("buffer_store_dwordx4 v[40:43], v5, s[28:31], s36 offen")
    a("s_and_saveexec_b64 s[38:39], vcc")
    a("s_cbranch_execz K1_BIN_END")
    a(f"ds_read_b128 v[44:47], v5 offset:{SORT+4096}")
    a("s_add_u32 s36, s36, 4096")
    a("s_waitcnt lgkmcnt(0)")
    a("buffer_store_dwordx4 v[44:47], v5, s[28:31], s36 offen")
    a.label("K1_BIN_END")
    a("s_endpgm")

def k1_wf(a):
    a.label("K1_WF")
    a(f"s_sub_u32 s3, s2, {WF0}")
    a("v_lshrrev_b32 v1, 6, v0")
    a("s_nop 0")
    a("v_readfirstlane_b32 s28, v1")
    a("s_lshl_b32 s3, s3, 2")
    a("s_add_u32 s3, s3, s28")
    a("s_lshr_b32 s29, s3, 1")
    a("s_and_b32 s30, s3, 1")
    a("s_cmp_lt_u32 s29, 8")
    a("s_cselect_b32 s20, s16, s12")
    a("s_cselect_b32 s21, s17, s13")
    a("s_and_b32 s21, s21, 0xffff")
    a("s_mov_b32 s22, 32768")
    a("s_mov_b32 s23, 0x00020000")
    srd(a, 24, 18, WS_END)
    a("v_and_b32 v2, 15, v0")
    a("v_bfe_u32 v3, v0, 4, 2")
    a("s_and_b32 s31, s29, 7")
    a("s_lshl_b32 s31, s31, 5")
    a("s_lshl_b32 s32, s30, 14")
    a("s_add_u32 s31, s31, s32")
    a("v_lshlrev_b32 v4, 11, v3")
    a("v_lshl_add_u32 v4, v2, 1, v4")
    a("s_add_u32 s33, s31, 8192")
    for f in range(2):
        for m in range(8):
            a(f"buffer_load_ushort v{8+8*f+m}, v4, s[20:23], s{31 if f==0 else 33} offen offset:{256*m}")
    a("v_and_b32 v5, 63, v0")
    a("v_lshlrev_b32 v5, 4, v5")
    a("s_lshl_b32 s34, s3, 11")
    a(f"s_add_u32 s34, s34, {WF_OFF}")
    for f in range(2):
        a(f"s_waitcnt vmcnt({8 if f==0 else 1})")
        for p in range(4):
            a(f"v_lshl_or_b32 v{24+4*f+p}, v{8+8*f+2*p+1}, 16, v{8+8*f+2*p}")
        a(f"buffer_store_dwordx4 {vr(24+4*f,4)}, v5, s[24:27], s34 offen offset:{1024*f}")
    a("s_endpgm")

def k1_cf(a):
    a.label("K1_CF")
    a("v_lshrrev_b32 v1, 6, v0")
    a("s_nop 0")
    a("v_readfirstlane_b32 s28, v1")
    srd(a, 20, 16, 69632)
    srd(a, 24, 18, WS_END)
    a("v_and_b32 v2, 15, v0")
    a("v_bfe_u32 v3, v0, 4, 2")
    a("v_and_b32 v4, 1, v3")
    a("v_lshlrev_b32 v4, 11, v4")
    a("v_lshl_add_u32 v4, v2, 1, v4")
    a("s_lshl_b32 s29, s28, 6")
    a("s_add_u32 s29, s29, 65536")
    for f in range(2):
        for m in range(8):
            a(f"buffer_load_ushort v{8+8*f+m}, v4, s[20:23], s29 offen offset:{256*m + 32*f}")
    a("v_and_b32 v5, 63, v0")
    a("v_lshlrev_b32 v5, 4, v5")
    a("s_lshl_b32 s34, s28, 11")
    a(f"s_add_u32 s34, s34, {CF_OFF}")
    a(f"s_mov_b32 s30, {hex(NEG_LOG2E)}")
    a("v_cmp_gt_u32 vcc, 2, v3")
    a("v_cmp_eq_u32 s[32:33], 2, v3")
    a(f"v_mov_b32 v6, {hex(BF16_NEGK)}")
    a("v_mov_b32 v7, 0")
    a("s_waitcnt vmcnt(0)")
    for f in range(2):
        for m in range(8):
            a(f"v_lshlrev_b32 v{8+8*f+m}, 16, v{8+8*f+m}")
            a(f"v_mul_f32 v{8+8*f+m}, s30, v{8+8*f+m}")
        for p in range(4):
            a(f"v_cvt_pk_bf16_f32 v{24+4*f+p}, v{8+8*f+2*p}, v{8+8*f+2*p+1}")
        a(f"v_cndmask_b32 v30, v7, v6, s[32:33]" if False else "")
        a(f"v_cndmask_b32 v32, v7, v6, s[32:33]")
        a(f"v_cndmask_b32 v{24+4*f+0}, v7, v{24+4*f+0}, vcc")
        a(f"v_cndmask_b32 v{24+4*f+1}, v7, v{24+4*f+1}, vcc")
        a(f"v_cndmask_b32 v{24+4*f+2}, v32, v{24+4*f+2}, vcc")
        a(f"v_cndmask_b32 v{24+4*f+3}, v7, v{24+4*f+3}, vcc")
        a(f"buffer_store_dwordx4 {vr(24+4*f,4)}, v5, s[24:27], s34 offen offset:{1024*f}")
    a("s_endpgm")

def k1(a):
    a.raw(".p2align 8")
    a.raw(".type egc_prep_kernel,@function")
    a.label("egc_prep_kernel")
    a(f"s_cmp_ge_u32 s2, {K1_WGS}")
    a("s_cbranch_scc1 K1_EXIT")
    a("s_load_dwordx2 s[4:5], s[0:1], 0")
    a("s_load_dwordx4 s[8:11], s[0:1], 16")
    a("s_load_dwordx4 s[12:15], s[0:1], 32")
    a("s_load_dwordx2 s[16:17], s[0:1], 48")
    a("s_load_dwordx2 s[18:19], s[0:1], 72")
    a("s_waitcnt lgkmcnt(0)")
    a(f"s_cmp_lt_u32 s2, {BIN0}")
    a("s_cbranch_scc1 K1_TABLE")
    a(f"s_cmp_lt_u32 s2, {WF0}")
    a("s_cbranch_scc1 K1_BIN")
    a(f"s_cmp_lt_u32 s2, {CF0}")
    a("s_cbranch_scc1 K1_WF")
    a("s_branch K1_CF")
    a.label("K1_EXIT")
    a("s_endpgm")
    k1_table(a)
    k1_bin(a)
    k1_wf(a)
    k1_cf(a)

RND = 20
SCAP = 5136
L_CNT = 0; L_MAXC = 256
L_ROW = 512
L_E = L_ROW + SCAP * 4
L_AGG = L_E + SCAP * 4
L_PPK = L_AGG + 20480
L_GN = L_PPK + 20480
L_XS = L_GN + 5152
L_CS = L_XS + 48 * 272
K2_LDS = L_CS + 8192

vQ16 = 0; vE = 1; vG = 2; vGn = 3; vP = 4
vT1 = 6; vT2 = 7
Q = 8; H = 24; D = 40; B = 72; A = 104; U = 108; T = 116; R = 120
vT3 = 124; vT4 = 125; vJ16 = 126; vJ4 = 127
sX = 12; sE = 16; sO = 20; sWS = 24
sB = 2
sWV = 28
sLO = 30
sHI = 32
sCC = 34
sT = 36; sNT = 37; sTN = 38
sRND = 39
sMAXC = 40
sM = 44
sTMP = 56

def P2(x): return f"v[{x}:{x+1}]"

def pair_code(ta, tb, h, shl):
    s = []
    if shl:
        for r in range(4):
            s.append(f"v_lshlrev_b32 v{h[r]}, 16, v{h[r]}")
            s.append(f"v_lshlrev_b32 v{h[r]+1}, 16, v{h[r]+1}")
    for r in range(4):
        s.append(f"v_exp_f32_e64 v{U+2*r}, v{D+4*ta+r} clamp")
        s.append(f"v_exp_f32_e64 v{U+2*r+1}, v{D+4*tb+r} clamp")
    for r in range(4):
        s.append(f"v_pk_add_f32 {P2(U+2*r)}, {P2(U+2*r)}, s[{sCC}:{sCC+1}]")
    d0, d1, d2, d3 = U, U+2, U+4, U+6
    s += [f"v_pk_mul_f32 {P2(T)}, {P2(h[0])}, {P2(d1)}",
          f"v_pk_mul_f32 {P2(T+2)}, {P2(h[2])}, {P2(d3)}",
          f"v_pk_fma_f32 {P2(T)}, {P2(h[1])}, {P2(d0)}, {P2(T)}",
          f"v_pk_fma_f32 {P2(T+2)}, {P2(h[3])}, {P2(d2)}, {P2(T+2)}",
          "HFREE",
          f"v_pk_mul_f32 {P2(d0)}, {P2(d0)}, {P2(d1)}",
          f"v_pk_mul_f32 {P2(d2)}, {P2(d2)}, {P2(d3)}",
          f"v_pk_mul_f32 {P2(T)}, {P2(T)}, {P2(d2)}",
          f"v_pk_mul_f32 {P2(d1)}, {P2(d0)}, {P2(d2)}",
          f"v_pk_fma_f32 {P2(T)}, {P2(T+2)}, {P2(d0)}, {P2(T)}",
          f"v_rcp_f32 v{d1}, v{d1}",
          f"v_rcp_f32 v{d1+1}, v{d1+1}",
          "s_nop 0",
          f"v_pk_mul_f32 {P2(T)}, {P2(T)}, {P2(d1)}",
          f"ds_add_f32 v{vG}, v{T} offset:{L_AGG + 64*ta}",
          f"ds_add_f32 v{vG}, v{T+1} offset:{L_AGG + 64*tb}"]
    return s

def list_reads(a):
    a(f"ds_read_b128 {vr(R,4)}, v{vT1} offset:{L_ROW}")
    a(f"ds_read_b32 v{vE}, v{vT2} offset:{L_E}")
    a(f"ds_read_b32 v{vGn}, v{vT3}")
    a(f"ds_read_b64 {vr(vP,2)}, v{vT4}")

def issue_q_e_p(a):
    for r in range(4):
        a(f"v_add_u32 v{R+r}, v{R+r}, v{vJ16}")
    a(f"v_add_u32 v{vE}, v{vE}, v{vQ16}")
    a(f"v_add_u32 v{vP}, v{vP}, v{vJ4}")
    a(f"v_add_u32 v{vP+1}, v{vP+1}, v{vJ4}")
    for r in range(4):
        a(f"buffer_load_dwordx4 {vr(Q+4*r,4)}, v{R+r}, {sr(sWS,4)}, 0 offen")
    a(f"s_mov_b64 exec, {sr(sLO,2)}")
    a(f"buffer_load_dwordx4 {vr(A,4)}, v{vE}, {sr(sE,4)}, 0 offen")
    a(f"s_mov_b64 exec, {sr(sHI,2)}")
    for t in range(8):
        a(f"ds_read_b32 v{B+4*t}, v{vP} offset:{L_PPK + 64*t}")
        a(f"ds_read_b32 v{B+4*t+1}, v{vP+1} offset:{L_PPK + 64*t}")
    a("s_mov_b64 exec, -1")
    a(f"v_add_u32 v{vT1}, 1024, v{vT1}")
    a(f"v_add_u32 v{vT2}, 1024, v{vT2}")
    a(f"v_add_u32 v{vT3}, 256, v{vT3}")
    a(f"v_add_u32 v{vT4}, 256, v{vT4}")

def h_loads(a):
    for r in range(4):
        a(f"buffer_load_dwordx4 {vr(H+4*r,4)}, v{R+r}, {sr(sWS,4)}, 0 offen offset:256")

def tile_body(a, has_next):
    if has_next: list_reads(a)
    a("s_waitcnt vmcnt(4)")
    order = [1, 3, 0, 2, 5, 7, 4, 6]
    def prep(t):
        p = t // 2
        if t & 1:
            for rr in (0, 2):
                b0 = Q + 4*rr + (p & ~1); b1 = Q + 4*(rr+1) + (p & ~1)
                a(f"v_pk_mov_b32 {P2(D+4*t+rr)}, {P2(b0)}, {P2(b1)} op_sel:[{p&1},{p&1}]")
        else:
            for r in range(4):
                a(f"v_lshlrev_b32 v{D+4*t+r}, 16, v{Q+4*r+p}")
    for t in order: prep(t)
    a(f"s_waitcnt lgkmcnt({4 if has_next else 0})")
    for t in order:
        a(f"v_mfma_f32_16x16x32_bf16 {vr(D+4*t,4)}, {vr(A,4)}, {vr(B+4*t,4)}, {vr(D+4*t,4)}")
    if has_next:
        a("s_waitcnt lgkmcnt(0)")
        issue_q_e_p(a)
        a("s_waitcnt vmcnt(5)")
    else:
        a("s_waitcnt vmcnt(0)")
        a("s_nop 3")
    h01 = [H + 4*r for r in range(4)]; h23 = [H + 4*r + 2 for r in range(4)]
    for i, (ta, tb, h, shl) in enumerate([(1, 3, h01, False), (0, 2, h01, True), (5, 7, h23, False), (4, 6, h23, True)]):
        for ins in pair_code(ta, tb, h, shl):
            if ins == "HFREE":
                if i == 3 and has_next: h_loads(a)
            else:
                a(ins)
    if has_next:
        a(f"v_add_u32 v{vG}, v{vGn}, v{vJ4}")

def k2(a):
    a.raw(".p2align 8")
    a.raw(".type egc_main_kernel,@function")
    a.label("egc_main_kernel")
    a(f"s_cmp_ge_u32 s2, {NB}")
    a("s_cbranch_scc1 K2_EXIT")
    a("s_load_dwordx4 s[4:7], s[0:1], 0")
    a("s_load_dwordx2 s[8:9], s[0:1], 56")
    a("s_load_dwordx2 s[10:11], s[0:1], 72")
    a("v_lshrrev_b32 v1, 6, v0")
    a("v_and_b32 v9, 15, v0")
    a("v_readfirstlane_b32 s28, v1")
    a("v_bfe_u32 v10, v0, 4, 2")
    a(f"v_lshlrev_b32 v{vJ16}, 4, v9")
    a(f"v_lshlrev_b32 v{vJ4}, 2, v9")
    a("s_waitcnt lgkmcnt(0)")
    srd(a, sX, 4, N * 256)
    srd(a, sE, 6, E * 32)
    srd(a, sO, 8, N * 256)
    srd(a, sWS, 10, WS_END)
    a("v_lshrrev_b32 v11, 2, v0")
    a("v_lshlrev_b32 v12, 10, v11")
    a(f"s_lshl_b32 s{sTMP}, s2, 2")
    a(f"s_add_u32 s{sTMP}, s{sTMP}, {OFFS_OFF}")
    a(f"buffer_load_dword v13, v12, {sr(sWS,4)}, s{sTMP} offen")
    a("v_lshlrev_b32 v14, 4, v0")
    a(f"s_mul_i32 s{sTMP+1}, s2, {NPB*256}")
    a(f"buffer_load_dwordx4 v[20:23], v14, {sr(sX,4)}, s{sTMP+1} offen")
    a("v_and_b32 v15, 0x1ff0, v14")
    a(f"s_mov_b32 s{sTMP+2}, {CF_OFF}")
    a(f"buffer_load_dwordx4 v[68:71], v15, {sr(sWS,4)}, s{sTMP+2} offen")
    a("v_and_b32 v16, 63, v0")
    a("v_lshlrev_b32 v16, 4, v16")
    a(f"s_lshl_b32 s{sTMP+3}, s28, 12")
    a(f"s_add_u32 s{sTMP+3}, s{sTMP+3}, {WF_OFF}")
    for ks in range(4):
        a(f"buffer_load_dwordx4 {vr(24+4*ks,4)}, v16, {sr(sWS,4)}, s{sTMP+3} offen offset:{1024*ks}")
    a(f"s_mov_b64 {sr(sLO,2)}, 0xffffffff")
    a(f"s_mov_b32 s{sHI}, 0")
    a(f"s_mov_b32 s{sHI+1}, -1")
    a(f"s_mov_b32 s{sCC}, {hex(C_2MK)}")
    a(f"s_mov_b32 s{sCC+1}, {hex(C_2MK)}")
    a(f"s_mov_b32 s{sRND}, 0")
    a("v_mov_b32 v17, 0")
    a("v_lshlrev_b32 v18, 2, v0")
    a("v_cmp_gt_u32 vcc, 128, v0")
    a(f"s_and_saveexec_b64 s[54:55], vcc")
    a("s_cbranch_execz K2_NOZ")
    a(f"ds_write_b32 v18, v17 offset:{L_CNT}")
    a.label("K2_NOZ")
    a("s_mov_b64 exec, -1")
    vC = 56; vS = 57; vSub = 58; vWb = 59; vEA = 60
    a(f"v_and_b32 v{vSub}, 3, v0")
    a(f"v_mul_u32_u24 v{vWb}, {CE*32}, v11")
    a(f"v_mul_u32_u24 v{vEA}, {CE*4}, v11")
    a("v_cmp_gt_u32 vcc, 250, v11")
    a("s_waitcnt vmcnt(6)")
    a(f"v_lshrrev_b32 v{vC}, 16, v13")
    a(f"v_and_b32 v{vS}, 0xffff, v13")
    a(f"v_cndmask_b32 v{vC}, 0, v{vC}, vcc")
    a(f"v_cndmask_b32 v{vS}, 0, v{vS}, vcc")
    a(f"v_lshl_add_u32 v{vEA}, v{vS}, 2, v{vEA}")
    EN = 8
    vA1 = 61; vA2 = 62
    def entry_loads():
        a(f"v_lshl_add_u32 v{vA1}, v{vSub}, 4, v{vEA}")
        a(f"v_lshl_add_u32 v{vA2}, v{vSub}, 2, v{vEA}")
        a(f"s_lshl_b32 s{sTMP+4}, s{sRND}, 2")
        a(f"s_add_u32 s{sTMP+4}, s{sTMP+4}, {ENT_OFF}")
        a(f"buffer_load_dwordx4 {vr(EN,4)}, v{vA1}, {sr(sWS,4)}, s{sTMP+4} offen")
        a(f"buffer_load_dword v{EN+4}, v{vA2}, {sr(sWS,4)}, s{sTMP+4} offen offset:64")
    entry_loads()
    a("v_lshrrev_b32 v19, 4, v0")
    a("v_mul_u32_u24 v19, 272, v19")
    a("v_and_b32 v63, 15, v0")
    a("v_lshl_add_u32 v19, v63, 4, v19")
    a(f"v_add_u32 v19, {L_XS}, v19")
    a(f"v_add_u32 v15, {L_CS}, v15")
    a("v_cmp_gt_u32 vcc, 768, v0")
    a("s_and_saveexec_b64 s[54:55], vcc")
    a("s_waitcnt vmcnt(7)")
    a("ds_write_b128 v19, v[20:23]")
    a("s_mov_b64 exec, -1")
    a("v_cmp_gt_u32 vcc, 512, v0")
    a("s_and_saveexec_b64 s[54:55], vcc")
    a("s_waitcnt vmcnt(6)")
    a("ds_write_b128 v15, v[68:71]")
    a("s_mov_b64 exec, -1")
    a("s_waitcnt lgkmcnt(0)")
    a("s_barrier")
    a(f"v_cmp_lt_u32 vcc, {RND}, v{vC}")
    a("s_and_saveexec_b64 s[54:55], vcc")
    a("s_cbranch_execz K2_NOMAX")
    a(f"v_mov_b32 v63, {L_MAXC}")
    a(f"ds_max_u32 v63, v{vC}")
    a.label("K2_NOMAX")
    a("s_mov_b64 exec, -1")
    a("v_and_b32 v64, 15, v0")
    a("v_bfe_u32 v65, v0, 4, 2")
    a("v_mul_u32_u24 v66, 272, v64")
    a("v_lshl_add_u32 v66, v65, 4, v66")
    a(f"v_add_u32 v66, {L_XS}, v66")
    AF = 40; ACC = 72
    for rho in range(3):
        for ks in range(4):
            a(f"ds_read_b128 {vr(AF+4*ks,4)}, v66 offset:{rho*16*272 + ks*64}")
        if rho == 0: a("s_waitcnt vmcnt(2)")
        for ks in range(4):
            a(f"s_waitcnt lgkmcnt({3-ks})")
            c = "0" if ks == 0 else vr(ACC+4*rho, 4)
            a(f"v_mfma_f32_16x16x32_bf16 {vr(ACC+4*rho,4)}, {vr(AF+4*ks,4)}, {vr(24+4*ks,4)}, {c}")
        if rho < 2: a("s_nop 1")
    a("v_lshlrev_b32 v67, 11, v65")
    a("v_lshl_add_u32 v67, v64, 2, v67")
    a(f"s_and_b32 s{sTMP}, s28, 7")
    a(f"s_lshl_b32 s{sTMP}, s{sTMP}, 6")
    a(f"v_add_u32 v67, s{sTMP}, v67")
    a("s_nop 4")
    a("s_cmp_ge_u32 s28, 8")
    a("s_cbranch_scc1 K2_XU")
    a(f"s_mov_b32 s{sTMP}, {hex(NEG_LOG2E)}")
    a(f"v_add_u32 v67, {L_PPK}, v67")
    def pval(x):
        a(f"v_mul_f32 v{x}, s{sTMP}, v{x}")
        a(f"v_cvt_pk_bf16_f32 v40, v{x}, v{x}")
        a("v_lshlrev_b32 v40, 16, v40")
        a(f"v_sub_f32 v{x}, v{x}, v40")
        a(f"v_cvt_pk_bf16_f32 v{x}, v40, v{x}")
    for rho in range(3):
        if rho == 2: a(f"s_mov_b64 exec, {sr(sLO,2)}")
        for r in range(4):
            pval(ACC+4*rho+r)
            a(f"ds_write_b32 v67, v{ACC+4*rho+r} offset:{rho*8192 + r*512}")
    a("s_mov_b64 exec, -1")
    a("s_branch K2_GEMM_DONE")
    a.label("K2_XU")
    a(f"s_mov_b32 s{sTMP}, {hex(C_2PK)}")
    for rho in range(3):
        if rho == 2: a(f"s_mov_b64 exec, {sr(sLO,2)}")
        for r in range(4):
            a(f"v_mul_f32 v{ACC+4*rho+r}, s{sTMP}, v{ACC+4*rho+r}")
            a(f"ds_write_b32 v67, v{ACC+4*rho+r} offset:{L_AGG + rho*8192 + r*512}")
    a("s_mov_b64 exec, -1")
    a.label("K2_GEMM_DONE")
    a("v_and_b32 v16, 63, v0")
    a("v_lshlrev_b32 v16, 4, v16")
    a(f"v_add_u32 v16, {L_CS}, v16")
    a("s_waitcnt lgkmcnt(0)")
    for t in range(8):
        a(f"ds_read_b128 {vr(B+4*t,4)}, v16 offset:{1024*t}")
    a("v_lshrrev_b32 v66, 2, v64")
    a("v_subrev_u32 v67, 2, v65")
    a("v_lshlrev_b32 v67, 1, v67")
    a("v_mov_b32 v68, 0x3f803f80")
    a("v_mov_b32 v69, 0")
    a("v_cmp_eq_u32 vcc, v66, v67")
    a("v_add_u32 v67, 1, v67")
    a("v_cmp_eq_u32 s[54:55], v66, v67")
    a(f"v_cndmask_b32 v{A}, v69, v68, vcc")
    a("v_mov_b32 v70, 0x3f80")
    a(f"v_cndmask_b32 v{A+1}, v69, v68, s[54:55]")
    a("v_cmp_eq_u32 vcc, 2, v65")
    a(f"v_mov_b32 v{A+3}, 0")
    a("s_nop 0")
    a(f"v_cndmask_b32 v{A+2}, v69, v70, vcc")
    a.label("K2_ROUND")
    RK = 14
    ND = 19
    vCm = 63
    a(f"v_subrev_u32 v{vCm}, s{sRND}, v{vC}")
    a(f"v_lshlrev_b32 v64, 2, v{vSub}")
    a(f"v_sub_u32 v64, v{vCm}, v64")
    a(f"v_sub_u32 v65, v{vCm}, v{vSub}")
    for i in range(4):
        a(f"v_cmp_lt_i32 {sr(sM+2*i,2)}, {i}, v64")
    a(f"v_cmp_lt_i32 {sr(sM+8,2)}, 16, v65")
    a("v_mov_b32 v66, 1")
    a("s_waitcnt vmcnt(0)")
    for i in range(5):
        a(f"v_bfe_u32 v{ND+i}, v{EN+i}, 14, 6")
        a(f"v_lshlrev_b32 v{ND+i}, 2, v{ND+i}")
    for i in range(5):
        a(f"s_mov_b64 exec, {sr(sM+2*i,2)}")
        a(f"s_cbranch_execz K2_RK{i}")
        a(f"ds_add_rtn_u32 v{RK+i}, v{ND+i}, v66 offset:{L_CNT}")
        a.label(f"K2_RK{i}")
    a("s_mov_b64 exec, -1")
    a("s_waitcnt lgkmcnt(0)")
    a("s_barrier")
    a("v_and_b32 v64, 63, v0")
    a("v_lshlrev_b32 v64, 2, v64")
    a(f"ds_read_b32 v65, v64 offset:{L_CNT}")
    a(f"v_mov_b32 v67, {L_MAXC}")
    a("ds_read_b32 v67, v67")
    a("s_waitcnt lgkmcnt(0)")
    a(f"v_readfirstlane_b32 s{sMAXC}, v67")
    a("v_add_u32 v66, 3, v65")
    a("v_and_b32 v66, -4, v66")
    a("v_mov_b32 v67, v66")
    wave_scan(a, 67)
    a("v_sub_u32 v68, v67, v66")
    a("s_nop 0")
    a(f"v_readlane_b32 s{sNT}, v67, 63")
    for i in range(5):
        a(f"ds_bpermute_b32 v{24+i}, v{ND+i}, v68")
    for i in range(5):
        a(f"v_and_b32 v{30+i}, 0x3fff, v{EN+i}")
        a(f"v_lshlrev_b32 v{30+i}, 9, v{30+i}")
        a(f"v_lshrrev_b32 v{EN+i}, 20, v{EN+i}")
        a(f"v_lshl_add_u32 v{EN+i}, v{EN+i}, 5, v{vWb}")
        a(f"v_lshlrev_b32 v{ND+i}, 7, v{ND+i}")
    for i in range(5):
        a(f"s_waitcnt lgkmcnt({4-i})")
        a(f"v_add_u32 v{24+i}, v{24+i}, v{RK+i}")
        a(f"v_and_b32 v{RK+i}, 3, v{RK+i}")
    for i in range(5):
        a(f"s_mov_b64 exec, {sr(sM+2*i,2)}")
        a(f"s_cbranch_execz K2_PL{i}")
        a(f"v_lshlrev_b32 v35, 2, v{24+i}")
        a(f"v_cmp_eq_u32 vcc, 0, v{RK+i}")
        a(f"ds_write_b32 v35, v{30+i} offset:{L_ROW}")
        a(f"ds_write_b32 v35, v{EN+i} offset:{L_E}")
        a(f"v_add_u32 v36, {L_GN}, v{24+i}")
        a("s_and_b64 exec, exec, vcc")
        a(f"s_cbranch_execz K2_PL{i}")
        a(f"ds_write_b32 v36, v{ND+i}")
        a.label(f"K2_PL{i}")
    a("s_mov_b64 exec, -1")
    a(f"v_mov_b32 v37, {N*512}")
    a("v_mov_b32 v38, 0")
    a("s_cmp_eq_u32 s28, 0")
    a("s_cbranch_scc0 K2_NOPAD")
    a("v_add_u32 v35, v68, v65")
    for m in range(3):
        a("s_mov_b64 exec, -1")
        a("v_cmp_lt_u32 vcc, v35, v67")
        a("s_and_b64 exec, exec, vcc")
        a(f"s_cbranch_execz K2_PAD{m}")
        a("v_lshlrev_b32 v36, 2, v35")
        a(f"ds_write_b32 v36, v37 offset:{L_ROW}")
        a(f"ds_write_b32 v36, v38 offset:{L_E}")
        a.label(f"K2_PAD{m}")
        a("s_mov_b64 exec, -1")
        a("v_add_u32 v35, 1, v35")
    a.label("K2_NOPAD")
    a("s_mov_b64 exec, -1")
    a(f"s_add_u32 s{sTMP}, s{sNT}, 15")
    a(f"s_lshr_b32 s{sTMP+1}, s{sTMP}, 4")
    a("s_cmp_eq_u32 s28, 1")
    a("s_cbranch_scc0 K2_NOTAIL")
    a("v_and_b32 v35, 63, v0")
    a(f"v_add_u32 v35, s{sNT}, v35")
    a(f"s_lshl_b32 s{sTMP+2}, s{sTMP+1}, 4")
    a(f"v_cmp_gt_u32 vcc, s{sTMP+2}, v35")
    a("s_and_b64 exec, exec, vcc")
    a("s_cbranch_execz K2_NOTAIL")
    a("v_lshlrev_b32 v36, 2, v35")
    a(f"ds_write_b32 v36, v37 offset:{L_ROW}")
    a(f"ds_write_b32 v36, v38 offset:{L_E}")
    a("v_and_b32 v36, 3, v35")
    a("v_cmp_eq_u32 vcc, 0, v36")
    a(f"v_add_u32 v36, {L_GN}, v35")
    a("s_and_b64 exec, exec, vcc")
    a("s_cbranch_execz K2_NOTAIL")
    a("ds_write_b32 v36, v38")
    a.label("K2_NOTAIL")
    a("s_mov_b64 exec, -1")
    a(f"s_mov_b32 s{sNT}, s{sTMP+1}")
    a("s_waitcnt lgkmcnt(0)")
    a("s_barrier")
    a("s_cmp_eq_u32 s28, 0")
    a("s_cbranch_scc0 K2_NOZ2")
    a("v_and_b32 v35, 63, v0")
    a("v_lshlrev_b32 v35, 2, v35")
    a(f"ds_write_b32 v35, v38 offset:{L_CNT}")
    a.label("K2_NOZ2")
    a("v_and_b32 v64, 15, v0")
    a("v_bfe_u32 v65, v0, 4, 2")
    a(f"s_lshl_b32 s{sTMP}, s28, 6")
    a(f"s_lshl_b32 s{sTMP+1}, s28, 4")
    a(f"v_lshlrev_b32 v{vT1}, 4, v65")
    a(f"v_add_u32 v{vT1}, s{sTMP}, v{vT1}")
    a(f"v_lshl_add_u32 v{vT2}, v64, 2, s{sTMP}")
    a(f"s_add_u32 s{sTMP+1}, s{sTMP+1}, {L_GN}")
    a(f"v_lshl_add_u32 v{vT3}, v65, 2, s{sTMP+1}")
    a("v_and_b32 v66, 1, v65")
    a(f"v_lshl_add_u32 v{vT4}, v66, 3, s{sTMP+1}")
    a(f"v_lshlrev_b32 v{vQ16}, 4, v66")
    a(f"s_mov_b32 s{sT}, s28")
    a(f"s_cmp_ge_u32 s{sT}, s{sNT}")
    a("s_cbranch_scc1 K2_LOOP_DONE")
    list_reads(a)
    a("s_waitcnt lgkmcnt(0)")
    issue_q_e_p(a)
    h_loads(a)
    a(f"v_add_u32 v{vG}, v{vGn}, v{vJ4}")
    a.label("K2_LOOP")
    a(f"s_add_u32 s{sTN}, s{sT}, 16")
    a(f"s_cmp_ge_u32 s{sTN}, s{sNT}")
    a("s_cbranch_scc1 K2_LAST")
    tile_body(a, True)
    a(f"s_mov_b32 s{sT}, s{sTN}")
    a("s_branch K2_LOOP")
    a.label("K2_LAST")
    tile_body(a, False)
    a.label("K2_LOOP_DONE")
    a("v_mbcnt_lo_u32_b32 v0, -1, 0")
    a("v_mbcnt_hi_u32_b32 v0, -1, v0")
    a(f"s_lshl_b32 s{sTMP}, s28, 6")
    a(f"v_add_u32 v0, s{sTMP}, v0")
    a("s_waitcnt lgkmcnt(0)")
    a("s_barrier")
    a(f"s_add_u32 s{sRND}, s{sRND}, {RND}")
    a(f"s_cmp_lt_u32 s{sRND}, s{sMAXC}")
    a("s_cbranch_scc0 K2_EPI")
    a("v_lshrrev_b32 v11, 2, v0")
    a("v_lshlrev_b32 v12, 10, v11")
    a(f"s_lshl_b32 s{sTMP}, s2, 2")
    a(f"s_add_u32 s{sTMP}, s{sTMP}, {OFFS_OFF}")
    a(f"buffer_load_dword v13, v12, {sr(sWS,4)}, s{sTMP} offen")
    a(f"v_and_b32 v{vSub}, 3, v0")
    a(f"v_mul_u32_u24 v{vWb}, {CE*32}, v11")
    a(f"v_mul_u32_u24 v{vEA}, {CE*4}, v11")
    a("v_cmp_gt_u32 vcc, 250, v11")
    a("s_waitcnt vmcnt(0)")
    a(f"v_lshrrev_b32 v{vC}, 16, v13")
    a(f"v_and_b32 v{vS}, 0xffff, v13")
    a(f"v_cndmask_b32 v{vC}, 0, v{vC}, vcc")
    a(f"v_cndmask_b32 v{vS}, 0, v{vS}, vcc")
    a(f"v_lshl_add_u32 v{vEA}, v{vS}, 2, v{vEA}")
    entry_loads()
    a("s_branch K2_ROUND")
    a.label("K2_EPI")
    a("v_cmp_gt_u32 vcc, 640, v0")
    a("s_and_saveexec_b64 s[54:55], vcc")
    a("s_cbranch_execz K2_EXIT")
    a("v_lshlrev_b32 v1, 5, v0")
    a(f"ds_read_b128 v[8:11], v1 offset:{L_AGG}")
    a(f"ds_read_b128 v[12:15], v1 offset:{L_AGG+16}")
    a(f"s_mov_b32 s{sTMP}, {hex(C_2MK)}")
    a(f"s_mov_b32 s{sTMP+1}, {hex(NEG_LOG2E)}")
    a("s_waitcnt lgkmcnt(0)")
    for i in range(8):
        a(f"v_mul_f32 v{8+i}, s{sTMP}, v{8+i}")
    for i in range(8):
        a(f"v_mul_f32 v{16+i}, s{sTMP+1}, v{8+i}")
    for i in range(8):
        a(f"v_exp_f32 v{16+i}, v{16+i}")
    for i in range(8):
        a(f"v_add_f32 v{16+i}, 1.0, v{16+i}")
    for i in range(8):
        a(f"v_rcp_f32 v{16+i}, v{16+i}")
    a("s_nop 0")
    for i in range(8):
        a(f"v_mul_f32 v{8+i}, v{8+i}, v{16+i}")
    for i in range(4):
        a(f"v_cvt_pk_bf16_f32 v{24+i}, v{8+2*i}, v{9+2*i}")
    a("v_lshlrev_b32 v2, 4, v0")
    a(f"s_mul_i32 s{sTMP}, s2, {NPB*256}")
    a(f"buffer_store_dwordx4 v[24:27], v2, {sr(sO,4)}, s{sTMP} offen")
    a.label("K2_EXIT")
    a("s_endpgm")

HEADER = f"""; EGC edge-gated message passing: out = silu(x@U + segsum_dst(sigmoid([x_dst,x_src,e]@G) * (x@V)[src]))
; @launch kernel=egc_prep_kernel grid=({K1_WGS},1,1) block=(256,1,1) lds={K1_LDS}
; @launch kernel=egc_main_kernel grid=({NB},1,1) block=(1024,1,1) lds={K2_LDS}
.amdgcn_target "amdgcn-amd-amdhsa--gfx950"
.text
"""

def kd(name, vgpr, sgpr):
    return f""".amdhsa_kernel {name}
  .amdhsa_next_free_vgpr {vgpr}
  .amdhsa_next_free_sgpr {sgpr}
  .amdhsa_accum_offset {((vgpr+3)//4)*4}
  .amdhsa_group_segment_fixed_size 0
  .amdhsa_kernarg_size 80
  .amdhsa_user_sgpr_count 2
  .amdhsa_user_sgpr_kernarg_segment_ptr 1
  .amdhsa_system_sgpr_workgroup_id_x 1
.end_amdhsa_kernel
"""

def main():
    a = Asm()
    a.raw(".globl egc_prep_kernel")
    k1(a)
    a.raw(".globl egc_main_kernel")
    k2(a)
    out = HEADER + a.text()
    out += '.section .rodata,"a"\n.p2align 6\n' + kd("egc_prep_kernel", 96, 64) + ".p2align 6\n" + kd("egc_main_kernel", 128, 64)
    path = sys.argv[1] if len(sys.argv) > 1 else f"cdna_kernels/{NAME}.s"
    open(path, "w").write(out)
    print("wrote", path, len(out), "bytes")

if __name__ == "__main__":
    main()
```

```python
import sys, struct, os
OPT = set(os.environ.get("OPT","").split(","))

NAME = "gather_scatter__edge_featured_mpnn_egc__graph"
N = 10000; E = 320000
NB = 250; NPB = 40
NC = 250; CE = 1280
KSH = 26
def f2u(x): return struct.unpack('<I', struct.pack('<f', x))[0]
NEG_LOG2E = f2u(-1.4426950408889634)
C_2MK = f2u(2.0 ** -KSH)
C_2PK = f2u(2.0 ** KSH)
BF16_NEGK = 0xC1D0
assert KSH == 26

T_OFF = 0;            T_BYTES = (N + 1) * 512
ENT_OFF = 0x500000
OFFS_OFF = 0x640000
WF_OFF = 0x680000
CF_OFF = 0x690000
WS_END = 0x6A0000

NT_WG = 314
BIN0 = NT_WG
WF0 = BIN0 + NC
CF0 = WF0 + 8
K1_WGS = CF0 + 1
K1_LDS = 128 * 288

class Asm:
    def __init__(self): self.lines = []
    def __call__(self, s):
        for l in s.split("\n"):
            l = l.strip()
            if l: self.lines.append("    " + l)
    def label(self, n): self.lines.append(n + ":")
    def raw(self, s): self.lines.append(s)
    def text(self): return "\n".join(self.lines) + "\n"

def vr(i, n=1): return f"v{i}" if n == 1 else f"v[{i}:{i+n-1}]"
def sr(i, n=1): return f"s{i}" if n == 1 else f"s[{i}:{i+n-1}]"

def srd(a, d, base, nbytes):
    a(f"s_mov_b32 s{d}, s{base}")
    a(f"s_and_b32 s{d+1}, s{base+1}, 0xffff")
    a(f"s_mov_b32 s{d+2}, {nbytes}")
    a(f"s_mov_b32 s{d+3}, 0x00020000")

def wave_scan(a, v):
    for sh in (1, 2, 4, 8):
        a("s_nop 1")
        a(f"v_add_u32_dpp v{v}, v{v}, v{v} row_shr:{sh} row_mask:0xf bank_mask:0xf bound_ctrl:1")
    a("s_nop 1")
    a(f"v_add_u32_dpp v{v}, v{v}, v{v} row_bcast:15 row_mask:0xa bank_mask:0xf")
    a("s_nop 1")
    a(f"v_add_u32_dpp v{v}, v{v}, v{v} row_bcast:31 row_mask:0xc bank_mask:0xf")

def k1_table(a):
    a.label("K1_TABLE")
    a("s_and_b32 s3, s2, 1")
    a("s_lshr_b32 s28, s2, 1")
    a("s_cmp_eq_u32 s3, 0")
    a("s_cselect_b32 s20, s16, s14")
    a("s_cselect_b32 s21, s17, s15")
    a("s_cselect_b32 s29, 32768, 0")
    a(f"s_cselect_b32 s30, {hex(NEG_LOG2E)}, 1.0")
    a("s_and_b32 s21, s21, 0xffff")
    a("s_mov_b32 s22, 69632")
    a("s_mov_b32 s23, 0x00020000")
    srd(a, 24, 4, N * 256)
    srd(a, 32, 18, T_BYTES)
    a("v_lshlrev_b32 v1, 4, v0")
    for i in range(8):
        a(f"buffer_load_dwordx4 {vr(8+4*i,4)}, v1, s[20:23], s29 offen")
        if i < 7: a("s_add_u32 s29, s29, 4096")
    a("v_and_b32 v2, 15, v0")
    a("v_bfe_u32 v3, v0, 4, 2")
    a("v_lshrrev_b32 v4, 6, v0")
    a("s_lshl_b32 s31, s28, 6")
    a("v_lshl_add_u32 v5, v4, 4, s31")
    a("v_add_u32 v6, v5, v2")
    a("v_lshlrev_b32 v6, 8, v6")
    a("v_lshl_add_u32 v6, v3, 4, v6")
    for ks in range(4):
        a(f"buffer_load_dwordx4 {vr(40+4*ks,4)}, v6, s[24:27], 0 offen offset:{64*ks}")
    a("v_lshrrev_b32 v7, 4, v0")
    a("v_mul_u32_u24 v7, 288, v7")
    a("v_lshl_add_u32 v7, v2, 4, v7")
    for i in range(8):
        a(f"s_waitcnt vmcnt({11-i})")
        a(f"ds_write_b128 v7, {vr(8+4*i,4)} offset:{4608*i}")
    a("v_lshrrev_b32 v7, 2, v2")
    a("v_lshl_add_u32 v7, v3, 3, v7")
    a("v_mul_u32_u24 v7, 288, v7")
    a("v_and_b32 v1, 3, v0")
    a("v_lshl_add_u32 v7, v1, 3, v7")
    a("v_lshl_add_u32 v1, v3, 2, v5")
    a("v_lshlrev_b32 v1, 9, v1")
    a("v_lshl_add_u32 v1, v2, 4, v1")
    a("s_lshl_b32 s3, s3, 8")
    a("v_add_u32 v1, s3, v1")
    a("s_waitcnt vmcnt(0) lgkmcnt(0)")
    a("s_barrier")
    ACC = 64
    BF = [8, 24]
    def reads(t):
        b = BF[t & 1]
        for ks in range(4):
            a(f"ds_read_b64_tr_b16 {vr(b+4*ks,2)}, v7 offset:{9216*ks + 32*t}")
            a(f"ds_read_b64_tr_b16 {vr(b+4*ks+2,2)}, v7 offset:{9216*ks + 32*t + 1152}")
    reads(0)
    for t in range(8):
        if t < 7:
            reads(t + 1)
            a("s_waitcnt lgkmcnt(8)")
        else:
            a("s_waitcnt lgkmcnt(0)")
        b = BF[t & 1]
        for ks in range(4):
            c = "0" if ks == 0 else vr(ACC+4*t, 4)
            a(f"v_mfma_f32_16x16x32_bf16 {vr(ACC+4*t,4)}, {vr(40+4*ks,4)}, {vr(b+4*ks,4)}, {c}")
    a("s_mov_b32 s36, 0x00800000")
    a("s_mov_b32 s37, 0x7fff0000")
    a("s_nop 7")
    for r in range(4):
        W = 8 + 4 * (r & 1) * 2
        for p in range(4):
            lo, hi = ACC + 4*(2*p) + r, ACC + 4*(2*p+1) + r
            a(f"v_mul_f32 v{lo}, s30, v{lo}")
            a(f"v_mul_f32 v{hi}, s30, v{hi}")
        for p in range(4):
            lo, hi = ACC + 4*(2*p) + r, ACC + 4*(2*p+1) + r
            a(f"v_cvt_pk_bf16_f32 v{W+p}, v{lo}, v{hi}")
            a(f"v_max_f32_e64 v{hi}, |v{hi}|, s36")
        for p in range(4):
            hi = ACC + 4*(2*p+1) + r
            a(f"v_add_u32 v{hi}, 0x8000, v{hi}")
        for p in range(4):
            hi = ACC + 4*(2*p+1) + r
            a(f"v_sub_u32_sdwa v{hi}, v{hi}, v{W+p} dst_sel:DWORD dst_unused:UNUSED_PAD src0_sel:DWORD src1_sel:WORD_0")
        a("s_nop 0")
        for p in range(4):
            hi = ACC + 4*(2*p+1) + r
            a(f"v_bfi_b32 v{W+p}, s37, v{hi}, v{W+p}")
        a(f"buffer_store_dwordx4 {vr(W,4)}, v1, s[32:35], 0 offen offset:{512*r}")
    a("s_endpgm")

def k1_bin(a):
    HIST, OFF2, SORT = 0, 1024, 2048
    a.label("K1_BIN")
    a(f"s_sub_u32 s3, s2, {BIN0}")
    srd(a, 20, 8, E * 4)
    srd(a, 24, 10, E * 4)
    srd(a, 28, 18, WS_END)
    a("v_lshlrev_b32 v1, 2, v0")
    a("s_mul_i32 s32, s3, 5120")
    a("v_mov_b32 v2, 0")
    a(f"ds_write_b32 v1, v2 offset:{HIST}")
    DST, SRC = 8, 16
    for m in range(5):
        a(f"buffer_load_dword v{DST+m}, v1, s[24:27], s32 offen offset:{1024*m if m<4 else 0}" if m < 4 else
          f"s_add_u32 s33, s32, 4096\nbuffer_load_dword v{DST+m}, v1, s[24:27], s33 offen")
    for m in range(5):
        a(f"buffer_load_dword v{SRC+m}, v1, s[20:23], s32 offen offset:{1024*m}" if m < 4 else
          f"buffer_load_dword v{SRC+m}, v1, s[20:23], s33 offen")
    a("s_mov_b32 s34, 52429")
    a("s_waitcnt lgkmcnt(0)")
    a("s_barrier")
    BINR, RANK = 24, 32
    a("v_mov_b32 v3, 1")
    for m in range(5):
        a(f"s_waitcnt vmcnt({9-m})")
        a(f"v_mul_u32_u24 v{BINR+m}, s34, v{DST+m}")
        a(f"v_lshrrev_b32 v{BINR+m}, 21, v{BINR+m}")
        a(f"v_mul_u32_u24 v4, 40, v{BINR+m}")
        a(f"v_sub_u32 v{DST+m}, v{DST+m}, v4")
        a(f"v_lshlrev_b32 v{BINR+m}, 2, v{BINR+m}")
        a(f"ds_add_rtn_u32 v{RANK+m}, v{BINR+m}, v3 offset:{HIST}")
    for m in range(5):
        a(f"s_waitcnt vmcnt({4-m})")
        a(f"v_lshl_or_b32 v{SRC+m}, v{DST+m}, 14, v{SRC+m}")
        a(f"v_add_u32 v4, {256*m}, v0")
        a(f"v_lshl_or_b32 v{SRC+m}, v4, 20, v{SRC+m}")
    a("s_waitcnt lgkmcnt(0)")
    a("s_barrier")
    a("v_and_b32 v5, 63, v0")
    a("v_lshlrev_b32 v5, 4, v5")
    a(f"ds_read_b128 v[40:43], v5 offset:{HIST}")
    a("s_waitcnt lgkmcnt(0)")
    a("v_add_u32 v44, v40, v41")
    a("v_add_u32 v45, v42, v43")
    a("v_add_u32 v46, v44, v45")
    a("v_mov_b32 v47, v46")
    wave_scan(a, 47)
    a("v_sub_u32 v48, v47, v46")
    a("v_add_u32 v49, v48, v40")
    a("v_add_u32 v50, v48, v44")
    a("v_add_u32 v51, v50, v42")
    a(f"ds_write_b128 v5, v[48:51] offset:{OFF2}")
    a("v_readfirstlane_b32 s35, v0")
    a("s_lshl_b32 s36, s3, 10")
    a(f"s_add_u32 s36, s36, {OFFS_OFF}")
    a("s_cmp_ge_u32 s35, 64")
    a("s_cbranch_scc1 K1_BIN_NOPUB")
    for i in range(4):
        a(f"v_lshl_or_b32 v{52+i}, v{40+i}, 16, v{48+i}")
    a("buffer_store_dwordx4 v[52:55], v5, s[28:31], s36 offen")
    a.label("K1_BIN_NOPUB")
    a("s_waitcnt lgkmcnt(0)")
    for m in range(5):
        a(f"ds_read_b32 v{40+m}, v{BINR+m} offset:{OFF2}")
    for m in range(5):
        a(f"s_waitcnt lgkmcnt({4-m})")
        a(f"v_add_lshl_u32 v{40+m}, v{40+m}, v{RANK+m}, 2")
        a(f"ds_write_b32 v{40+m}, v{SRC+m} offset:{SORT}")
    a("s_waitcnt lgkmcnt(0)")
    a("s_barrier")
    a("v_lshlrev_b32 v5, 4, v0")
    a(f"ds_read_b128 v[40:43], v5 offset:{SORT}")
    a(f"s_add_u32 s36, s32, {ENT_OFF}")
    a("v_cmp_gt_u32 vcc, 64, v0")
    a("s_waitcnt lgkmcnt(0)")
    a("buffer_store_dwordx4 v[40:43], v5, s[28:31], s36 offen")
    a("s_and_saveexec_b64 s[38:39], vcc")
    a("s_cbranch_execz K1_BIN_END")
    a(f"ds_read_b128 v[44:47], v5 offset:{SORT+4096}")
    a("s_add_u32 s36, s36, 4096")
    a("s_waitcnt lgkmcnt(0)")
    a("buffer_store_dwordx4 v[44:47], v5, s[28:31], s36 offen")
    a.label("K1_BIN_END")
    a("s_endpgm")

def k1_wf(a):
    a.label("K1_WF")
    a(f"s_sub_u32 s3, s2, {WF0}")
    a("v_lshrrev_b32 v1, 6, v0")
    a("s_nop 0")
    a("v_readfirstlane_b32 s28, v1")
    a("s_lshl_b32 s3, s3, 2")
    a("s_add_u32 s3, s3, s28")
    a("s_lshr_b32 s29, s3, 1")
    a("s_and_b32 s30, s3, 1")
    a("s_cmp_lt_u32 s29, 8")
    a("s_cselect_b32 s20, s16, s12")
    a("s_cselect_b32 s21, s17, s13")
    a("s_and_b32 s21, s21, 0xffff")
    a("s_mov_b32 s22, 32768")
    a("s_mov_b32 s23, 0x00020000")
    srd(a, 24, 18, WS_END)
    a("v_and_b32 v2, 15, v0")
    a("v_bfe_u32 v3, v0, 4, 2")
    a("s_and_b32 s31, s29, 7")
    a("s_lshl_b32 s31, s31, 5")
    a("s_lshl_b32 s32, s30, 14")
    a("s_add_u32 s31, s31, s32")
    a("v_lshlrev_b32 v4, 11, v3")
    a("v_lshl_add_u32 v4, v2, 1, v4")
    a("s_add_u32 s33, s31, 8192")
    for f in range(2):
        for m in range(8):
            a(f"buffer_load_ushort v{8+8*f+m}, v4, s[20:23], s{31 if f==0 else 33} offen offset:{256*m}")
    a("v_and_b32 v5, 63, v0")
    a("v_lshlrev_b32 v5, 4, v5")
    a("s_lshl_b32 s34, s3, 11")
    a(f"s_add_u32 s34, s34, {WF_OFF}")
    for f in range(2):
        a(f"s_waitcnt vmcnt({8 if f==0 else 1})")
        for p in range(4):
            a(f"v_lshl_or_b32 v{24+4*f+p}, v{8+8*f+2*p+1}, 16, v{8+8*f+2*p}")
        a(f"buffer_store_dwordx4 {vr(24+4*f,4)}, v5, s[24:27], s34 offen offset:{1024*f}")
    a("s_endpgm")

def k1_cf(a):
    a.label("K1_CF")
    a("v_lshrrev_b32 v1, 6, v0")
    a("s_nop 0")
    a("v_readfirstlane_b32 s28, v1")
    srd(a, 20, 16, 69632)
    srd(a, 24, 18, WS_END)
    a("v_and_b32 v2, 15, v0")
    a("v_bfe_u32 v3, v0, 4, 2")
    a("v_and_b32 v4, 1, v3")
    a("v_lshlrev_b32 v4, 11, v4")
    a("v_lshl_add_u32 v4, v2, 1, v4")
    a("s_lshl_b32 s29, s28, 6")
    a("s_add_u32 s29, s29, 65536")
    for f in range(2):
        for m in range(8):
            a(f"buffer_load_ushort v{8+8*f+m}, v4, s[20:23], s29 offen offset:{256*m + 32*f}")
    a("v_and_b32 v5, 63, v0")
    a("v_lshlrev_b32 v5, 4, v5")
    a("s_lshl_b32 s34, s28, 11")
    a(f"s_add_u32 s34, s34, {CF_OFF}")
    a(f"s_mov_b32 s30, {hex(NEG_LOG2E)}")
    a("v_cmp_gt_u32 vcc, 2, v3")
    a("v_cmp_eq_u32 s[32:33], 2, v3")
    a(f"v_mov_b32 v6, {hex(BF16_NEGK)}")
    a("v_mov_b32 v7, 0")
    a("s_waitcnt vmcnt(0)")
    for f in range(2):
        for m in range(8):
            a(f"v_lshlrev_b32 v{8+8*f+m}, 16, v{8+8*f+m}")
            a(f"v_mul_f32 v{8+8*f+m}, s30, v{8+8*f+m}")
        for p in range(4):
            a(f"v_cvt_pk_bf16_f32 v{24+4*f+p}, v{8+8*f+2*p}, v{8+8*f+2*p+1}")
        a(f"v_cndmask_b32 v30, v7, v6, s[32:33]" if False else "")
        a(f"v_cndmask_b32 v32, v7, v6, s[32:33]")
        a(f"v_cndmask_b32 v{24+4*f+0}, v7, v{24+4*f+0}, vcc")
        a(f"v_cndmask_b32 v{24+4*f+1}, v7, v{24+4*f+1}, vcc")
        a(f"v_cndmask_b32 v{24+4*f+2}, v32, v{24+4*f+2}, vcc")
        a(f"v_cndmask_b32 v{24+4*f+3}, v7, v{24+4*f+3}, vcc")
        a(f"buffer_store_dwordx4 {vr(24+4*f,4)}, v5, s[24:27], s34 offen offset:{1024*f}")
    a("s_endpgm")

def k1(a):
    a.raw(".p2align 8")
    a.raw(".type egc_prep_kernel,@function")
    a.label("egc_prep_kernel")
    a(f"s_cmp_ge_u32 s2, {K1_WGS}")
    a("s_cbranch_scc1 K1_EXIT")
    a("s_load_dwordx2 s[4:5], s[0:1], 0")
    a("s_load_dwordx4 s[8:11], s[0:1], 16")
    a("s_load_dwordx4 s[12:15], s[0:1], 32")
    a("s_load_dwordx2 s[16:17], s[0:1], 48")
    a("s_load_dwordx2 s[18:19], s[0:1], 72")
    a("s_waitcnt lgkmcnt(0)")
    a(f"s_cmp_lt_u32 s2, {BIN0}")
    a("s_cbranch_scc1 K1_TABLE")
    a(f"s_cmp_lt_u32 s2, {WF0}")
    a("s_cbranch_scc1 K1_BIN")
    a(f"s_cmp_lt_u32 s2, {CF0}")
    a("s_cbranch_scc1 K1_WF")
    a("s_branch K1_CF")
    a.label("K1_EXIT")
    a("s_endpgm")
    k1_table(a)
    k1_bin(a)
    k1_wf(a)
    k1_cf(a)

RND = 20
SCAP = 5136
L_CNT = 0; L_MAXC = 256
L_ROW = 512
L_E = L_ROW + SCAP * 4
L_PPK = L_E + SCAP * 4
L_AGG = L_PPK + 20480
L_GN = L_AGG + 40960
L_XS = L_GN + 5152
L_CS = L_XS + 48 * 272
K2_LDS = L_CS + 8192

vQ16 = 0; vE = 1; vG = 2; vGn = 3; vP = 4
vT1 = 6; vT2 = 7
Q = 8; H = 24; D = 40; B = 72; A = 104; U = 108; T = 116; R = 120
vT3 = 124; vT4 = 125; vJ16 = 126; vJ4 = 127
sX = 12; sE = 16; sO = 20; sWS = 24
sB = 2
sWV = 28
sLO = 30
sHI = 32
sCC = 34
sT = 36; sNT = 37; sTN = 38
sRND = 39
sMAXC = 40
sM = 44
sTMP = 56

STAMP_OFF = 0x700000
def stamp(a, i):
    if "stamp" in OPT:
        a(f"s_memtime s[{64+2*i}:{65+2*i}]")
        a("s_waitcnt lgkmcnt(0)")
def stamp_out(a, n):
    if "stamp" in OPT:
        a("s_cmp_eq_u32 s28, 0")
        a("s_cbranch_scc0 STAMP_SKIP")
        a("s_mov_b64 exec, -1")
        a("s_mov_b32 s26, 0x800000")
        for i in range(n):
            a(f"v_mov_b32 v100, s{64+2*i}")
            a(f"v_mov_b32 v101, s{65+2*i}")
            a(f"s_lshl_b32 s60, s2, 7")
            a(f"s_add_u32 s60, s60, {STAMP_OFF + 8*i}")
            a("v_mov_b32 v102, 0")
            a(f"buffer_store_dwordx2 v[100:101], v102, {sr(sWS,4)}, s60 offen")
            a("s_nop 1")
        a.label("STAMP_SKIP")
def P2(x): return f"v[{x}:{x+1}]"

def pair_code(ta, tb, h, shl):
    s = []
    if shl:
        for r in range(4):
            s.append(f"v_lshlrev_b32 v{h[r]}, 16, v{h[r]}")
            s.append(f"v_lshlrev_b32 v{h[r]+1}, 16, v{h[r]+1}")
    for r in range(4):
        s.append(f"v_exp_f32_e64 v{U+2*r}, v{D+4*ta+r} clamp")
        s.append(f"v_exp_f32_e64 v{U+2*r+1}, v{D+4*tb+r} clamp")
    for r in range(4):
        s.append(f"v_pk_add_f32 {P2(U+2*r)}, {P2(U+2*r)}, s[{sCC}:{sCC+1}]")
    d0, d1, d2, d3 = U, U+2, U+4, U+6
    s += [f"v_pk_mul_f32 {P2(T)}, {P2(h[0])}, {P2(d1)}",
          f"v_pk_mul_f32 {P2(T+2)}, {P2(h[2])}, {P2(d3)}",
          f"v_pk_fma_f32 {P2(T)}, {P2(h[1])}, {P2(d0)}, {P2(T)}",
          f"v_pk_fma_f32 {P2(T+2)}, {P2(h[3])}, {P2(d2)}, {P2(T+2)}",
          "HFREE",
          f"v_pk_mul_f32 {P2(d0)}, {P2(d0)}, {P2(d1)}",
          f"v_pk_mul_f32 {P2(d2)}, {P2(d2)}, {P2(d3)}",
          f"v_pk_mul_f32 {P2(T)}, {P2(T)}, {P2(d2)}",
          f"v_pk_mul_f32 {P2(d1)}, {P2(d0)}, {P2(d2)}",
          f"v_pk_fma_f32 {P2(T)}, {P2(T+2)}, {P2(d0)}, {P2(T)}",
          f"v_rcp_f32 v{d1}, v{d1}",
          f"v_rcp_f32 v{d1+1}, v{d1+1}",
          "s_nop 0",
          f"v_pk_mul_f32 {P2(T)}, {P2(T)}, {P2(d1)}",
          ]
    if "noadd" not in OPT:
        s += [f"v_cvt_f64_f32 {P2(U)}, v{T}",
              f"v_cvt_f64_f32 {P2(U+4)}, v{T+1}",
              f"ds_add_f64 v{vG}, {P2(U)} offset:{L_AGG + 128*ta}",
              f"ds_add_f64 v{vG}, {P2(U+4)} offset:{L_AGG + 128*tb}"]
    return s

def list_reads(a):
    a(f"ds_read_b128 {vr(R,4)}, v{vT1} offset:{L_ROW}")
    a(f"ds_read_b32 v{vE}, v{vT2} offset:{L_E}")
    a(f"ds_read_b32 v{vGn}, v{vT3}")
    a(f"ds_read_b64 {vr(vP,2)}, v{vT4}")

def issue_q_e_p(a):
    for r in range(4):
        a(f"v_add_u32 v{R+r}, v{R+r}, v{vJ16}")
    a(f"v_add_u32 v{vE}, v{vE}, v{vQ16}")
    a(f"v_add_u32 v{vP}, v{vP}, v{vJ4}")
    a(f"v_add_u32 v{vP+1}, v{vP+1}, v{vJ4}")
    for r in range(4):
        a(f"buffer_load_dwordx4 {vr(Q+4*r,4)}, v{R+r}, {sr(sWS,4)}, 0 offen")
    a(f"s_mov_b64 exec, {sr(sLO,2)}")
    a(f"buffer_load_dwordx4 {vr(A,4)}, v{vE}, {sr(sE,4)}, 0 offen")
    a(f"s_mov_b64 exec, {sr(sHI,2)}")
    for t in range(8):
        a(f"ds_read_b32 v{B+4*t}, v{vP} offset:{L_PPK + 64*t}")
        a(f"ds_read_b32 v{B+4*t+1}, v{vP+1} offset:{L_PPK + 64*t}")
    a("s_mov_b64 exec, -1")
    a(f"v_add_u32 v{vT1}, 1024, v{vT1}")
    a(f"v_add_u32 v{vT2}, 1024, v{vT2}")
    a(f"v_add_u32 v{vT3}, 256, v{vT3}")
    a(f"v_add_u32 v{vT4}, 256, v{vT4}")

def h_loads(a):
    for r in range(4):
        a(f"buffer_load_dwordx4 {vr(H+4*r,4)}, v{R+r}, {sr(sWS,4)}, 0 offen offset:256")

def tile_body(a, has_next):
    if has_next: list_reads(a)
    a("s_waitcnt vmcnt(4)")
    order = [1, 3, 0, 2, 5, 7, 4, 6]
    def prep(t):
        p = t // 2
        if t & 1:
            for rr in (0, 2):
                b0 = Q + 4*rr + (p & ~1); b1 = Q + 4*(rr+1) + (p & ~1)
                a(f"v_pk_mov_b32 {P2(D+4*t+rr)}, {P2(b0)}, {P2(b1)} op_sel:[{p&1},{p&1}]")
        else:
            for r in range(4):
                a(f"v_lshlrev_b32 v{D+4*t+r}, 16, v{Q+4*r+p}")
    for t in order: prep(t)
    a(f"s_waitcnt lgkmcnt({4 if has_next else 0})")
    for t in order:
        a(f"v_mfma_f32_16x16x32_bf16 {vr(D+4*t,4)}, {vr(A,4)}, {vr(B+4*t,4)}, {vr(D+4*t,4)}")
    if has_next:
        a("s_waitcnt lgkmcnt(0)")
        issue_q_e_p(a)
        a("s_waitcnt vmcnt(5)")
    else:
        a("s_waitcnt vmcnt(0)")
        a("s_nop 3")
    h01 = [H + 4*r for r in range(4)]; h23 = [H + 4*r + 2 for r in range(4)]
    for i, (ta, tb, h, shl) in enumerate([(1, 3, h01, False), (0, 2, h01, True), (5, 7, h23, False), (4, 6, h23, True)]):
        for ins in pair_code(ta, tb, h, shl):
            if ins == "HFREE":
                if i == 3 and has_next: h_loads(a)
            else:
                a(ins)
    if has_next:
        a(f"v_add_lshl_u32 v{vG}, v{vGn}, v{vJ4}, 1")

def k2(a):
    a.raw(".p2align 8")
    a.raw(".type egc_main_kernel,@function")
    a.label("egc_main_kernel")
    a(f"s_cmp_ge_u32 s2, {NB}")
    a("s_cbranch_scc1 K2_EXIT")
    stamp(a, 0)
    a("s_load_dwordx4 s[4:7], s[0:1], 0")
    a("s_load_dwordx2 s[8:9], s[0:1], 56")
    a("s_load_dwordx2 s[10:11], s[0:1], 72")
    a("v_lshrrev_b32 v1, 6, v0")
    a("v_and_b32 v9, 15, v0")
    a("v_readfirstlane_b32 s28, v1")
    a("v_bfe_u32 v10, v0, 4, 2")
    a(f"v_lshlrev_b32 v{vJ16}, 4, v9")
    a(f"v_lshlrev_b32 v{vJ4}, 2, v9")
    a("s_waitcnt lgkmcnt(0)")
    srd(a, sX, 4, N * 256)
    srd(a, sE, 6, E * 32)
    srd(a, sO, 8, N * 256)
    srd(a, sWS, 10, WS_END)
    a("v_lshrrev_b32 v11, 2, v0")
    a("v_lshlrev_b32 v12, 10, v11")
    a(f"s_lshl_b32 s{sTMP}, s2, 2")
    a(f"s_add_u32 s{sTMP}, s{sTMP}, {OFFS_OFF}")
    a(f"buffer_load_dword v13, v12, {sr(sWS,4)}, s{sTMP} offen")
    a("v_lshlrev_b32 v14, 4, v0")
    a(f"s_mul_i32 s{sTMP+1}, s2, {NPB*256}")
    a(f"buffer_load_dwordx4 v[20:23], v14, {sr(sX,4)}, s{sTMP+1} offen")
    a("v_and_b32 v15, 0x1ff0, v14")
    a(f"s_mov_b32 s{sTMP+2}, {CF_OFF}")
    a(f"buffer_load_dwordx4 v[68:71], v15, {sr(sWS,4)}, s{sTMP+2} offen")
    a("v_and_b32 v16, 63, v0")
    a("v_lshlrev_b32 v16, 4, v16")
    a(f"s_lshl_b32 s{sTMP+3}, s28, 12")
    a(f"s_add_u32 s{sTMP+3}, s{sTMP+3}, {WF_OFF}")
    for ks in range(4):
        a(f"buffer_load_dwordx4 {vr(24+4*ks,4)}, v16, {sr(sWS,4)}, s{sTMP+3} offen offset:{1024*ks}")
    a(f"s_mov_b64 {sr(sLO,2)}, 0xffffffff")
    a(f"s_mov_b32 s{sHI}, 0")
    a(f"s_mov_b32 s{sHI+1}, -1")
    a(f"s_mov_b32 s{sCC}, {hex(C_2MK)}")
    a(f"s_mov_b32 s{sCC+1}, {hex(C_2MK)}")
    a(f"s_mov_b32 s{sRND}, 0")
    a("v_mov_b32 v17, 0")
    a("v_lshlrev_b32 v18, 2, v0")
    a("v_cmp_gt_u32 vcc, 128, v0")
    a(f"s_and_saveexec_b64 s[54:55], vcc")
    a("s_cbranch_execz K2_NOZ")
    a(f"ds_write_b32 v18, v17 offset:{L_CNT}")
    a.label("K2_NOZ")
    a("s_mov_b64 exec, -1")
    vC = 56; vS = 57; vSub = 58; vWb = 59; vEA = 60
    a(f"v_and_b32 v{vSub}, 3, v0")
    a(f"v_mul_u32_u24 v{vWb}, {CE*32}, v11")
    a(f"v_mul_u32_u24 v{vEA}, {CE*4}, v11")
    a("v_cmp_gt_u32 vcc, 250, v11")
    a("s_waitcnt vmcnt(6)")
    a(f"v_lshrrev_b32 v{vC}, 16, v13")
    a(f"v_and_b32 v{vS}, 0xffff, v13")
    a(f"v_cndmask_b32 v{vC}, 0, v{vC}, vcc")
    a(f"v_cndmask_b32 v{vS}, 0, v{vS}, vcc")
    a(f"v_lshl_add_u32 v{vEA}, v{vS}, 2, v{vEA}")
    EN = 8
    vA1 = 61; vA2 = 62
    def entry_loads():
        a(f"v_lshl_add_u32 v{vA1}, v{vSub}, 4, v{vEA}")
        a(f"v_lshl_add_u32 v{vA2}, v{vSub}, 2, v{vEA}")
        a(f"s_lshl_b32 s{sTMP+4}, s{sRND}, 2")
        a(f"s_add_u32 s{sTMP+4}, s{sTMP+4}, {ENT_OFF}")
        a(f"buffer_load_dwordx4 {vr(EN,4)}, v{vA1}, {sr(sWS,4)}, s{sTMP+4} offen")
        a(f"buffer_load_dword v{EN+4}, v{vA2}, {sr(sWS,4)}, s{sTMP+4} offen offset:64")
    entry_loads()
    a("v_lshrrev_b32 v19, 4, v0")
    a("v_mul_u32_u24 v19, 272, v19")
    a("v_and_b32 v63, 15, v0")
    a("v_lshl_add_u32 v19, v63, 4, v19")
    a(f"v_add_u32 v19, {L_XS}, v19")
    a(f"v_add_u32 v15, {L_CS}, v15")
    a("v_cmp_gt_u32 vcc, 768, v0")
    a("s_and_saveexec_b64 s[54:55], vcc")
    a("s_waitcnt vmcnt(7)")
    a("ds_write_b128 v19, v[20:23]")
    a("s_mov_b64 exec, -1")
    a("v_cmp_gt_u32 vcc, 512, v0")
    a("s_and_saveexec_b64 s[54:55], vcc")
    a("s_waitcnt vmcnt(6)")
    a("ds_write_b128 v15, v[68:71]")
    a("s_mov_b64 exec, -1")
    a("s_waitcnt lgkmcnt(0)")
    a("s_barrier")
    stamp(a, 1)
    a(f"v_cmp_lt_u32 vcc, {RND}, v{vC}")
    a("s_and_saveexec_b64 s[54:55], vcc")
    a("s_cbranch_execz K2_NOMAX")
    a(f"v_mov_b32 v63, {L_MAXC}")
    a(f"ds_max_u32 v63, v{vC}")
    a.label("K2_NOMAX")
    a("s_mov_b64 exec, -1")
    a("v_and_b32 v64, 15, v0")
    a("v_bfe_u32 v65, v0, 4, 2")
    a("v_mul_u32_u24 v66, 272, v64")
    a("v_lshl_add_u32 v66, v65, 4, v66")
    a(f"v_add_u32 v66, {L_XS}, v66")
    AF = 40; ACC = 72
    for rho in range(3):
        for ks in range(4):
            a(f"ds_read_b128 {vr(AF+4*ks,4)}, v66 offset:{rho*16*272 + ks*64}")
        if rho == 0: a("s_waitcnt vmcnt(2)")
        for ks in range(4):
            a(f"s_waitcnt lgkmcnt({3-ks})")
            c = "0" if ks == 0 else vr(ACC+4*rho, 4)
            a(f"v_mfma_f32_16x16x32_bf16 {vr(ACC+4*rho,4)}, {vr(AF+4*ks,4)}, {vr(24+4*ks,4)}, {c}")
        if rho < 2: a("s_nop 1")
    a("v_lshlrev_b32 v67, 11, v65")
    a("v_lshl_add_u32 v67, v64, 2, v67")
    a(f"s_and_b32 s{sTMP}, s28, 7")
    a(f"s_lshl_b32 s{sTMP}, s{sTMP}, 6")
    a(f"v_add_u32 v67, s{sTMP}, v67")
    a("s_nop 4")
    a("s_cmp_ge_u32 s28, 8")
    a("s_cbranch_scc1 K2_XU")
    a(f"s_mov_b32 s{sTMP}, {hex(NEG_LOG2E)}")
    a(f"v_add_u32 v67, {L_PPK}, v67")
    def pval(x):
        a(f"v_mul_f32 v{x}, s{sTMP}, v{x}")
        a(f"v_cvt_pk_bf16_f32 v40, v{x}, v{x}")
        a("v_lshlrev_b32 v40, 16, v40")
        a(f"v_sub_f32 v{x}, v{x}, v40")
        a(f"v_cvt_pk_bf16_f32 v{x}, v40, v{x}")
    for rho in range(3):
        if rho == 2: a(f"s_mov_b64 exec, {sr(sLO,2)}")
        for r in range(4):
            pval(ACC+4*rho+r)
            a(f"ds_write_b32 v67, v{ACC+4*rho+r} offset:{rho*8192 + r*512}")
    a("s_mov_b64 exec, -1")
    a("s_branch K2_GEMM_DONE")
    a.label("K2_XU")
    a(f"s_mov_b32 s{sTMP}, {hex(C_2PK)}")
    a("v_lshlrev_b32 v67, 1, v67")
    a(f"v_add_u32 v67, {L_AGG}, v67")
    for rho in range(3):
        if rho == 2: a(f"s_mov_b64 exec, {sr(sLO,2)}")
        for r in range(4):
            a(f"v_mul_f32 v{ACC+4*rho+r}, s{sTMP}, v{ACC+4*rho+r}")
            a(f"v_cvt_f64_f32 v[{40+2*r}:{41+2*r}], v{ACC+4*rho+r}")
            a(f"ds_write_b64 v67, v[{40+2*r}:{41+2*r}] offset:{rho*16384 + r*1024}")
    a("s_mov_b64 exec, -1")
    a.label("K2_GEMM_DONE")
    a("v_and_b32 v16, 63, v0")
    a("v_lshlrev_b32 v16, 4, v16")
    a(f"v_add_u32 v16, {L_CS}, v16")
    a("s_waitcnt lgkmcnt(0)")
    for t in range(8):
        a(f"ds_read_b128 {vr(B+4*t,4)}, v16 offset:{1024*t}")
    a("v_lshrrev_b32 v66, 2, v64")
    a("v_subrev_u32 v67, 2, v65")
    a("v_lshlrev_b32 v67, 1, v67")
    a("v_mov_b32 v68, 0x3f803f80")
    a("v_mov_b32 v69, 0")
    a("v_cmp_eq_u32 vcc, v66, v67")
    a("v_add_u32 v67, 1, v67")
    a("v_cmp_eq_u32 s[54:55], v66, v67")
    a(f"v_cndmask_b32 v{A}, v69, v68, vcc")
    a("v_mov_b32 v70, 0x3f80")
    a(f"v_cndmask_b32 v{A+1}, v69, v68, s[54:55]")
    a("v_cmp_eq_u32 vcc, 2, v65")
    a(f"v_mov_b32 v{A+3}, 0")
    a("s_nop 0")
    a(f"v_cndmask_b32 v{A+2}, v69, v70, vcc")
    a.label("K2_ROUND")
    RK = 14
    ND = 19
    vCm = 63
    a(f"v_subrev_u32 v{vCm}, s{sRND}, v{vC}")
    a(f"v_lshlrev_b32 v64, 2, v{vSub}")
    a(f"v_sub_u32 v64, v{vCm}, v64")
    a(f"v_sub_u32 v65, v{vCm}, v{vSub}")
    for i in range(4):
        a(f"v_cmp_lt_i32 {sr(sM+2*i,2)}, {i}, v64")
    a(f"v_cmp_lt_i32 {sr(sM+8,2)}, 16, v65")
    a("v_mov_b32 v66, 1")
    a("s_waitcnt vmcnt(0)")
    for i in range(5):
        a(f"v_bfe_u32 v{ND+i}, v{EN+i}, 14, 6")
        a(f"v_lshlrev_b32 v{ND+i}, 2, v{ND+i}")
    for i in range(5):
        a(f"s_mov_b64 exec, {sr(sM+2*i,2)}")
        a(f"s_cbranch_execz K2_RK{i}")
        a(f"ds_add_rtn_u32 v{RK+i}, v{ND+i}, v66 offset:{L_CNT}")
        a.label(f"K2_RK{i}")
    a("s_mov_b64 exec, -1")
    a("s_waitcnt lgkmcnt(0)")
    stamp(a, 2)
    a("s_barrier")
    a("v_and_b32 v64, 63, v0")
    a("v_lshlrev_b32 v64, 2, v64")
    a(f"ds_read_b32 v65, v64 offset:{L_CNT}")
    a(f"v_mov_b32 v67, {L_MAXC}")
    a("ds_read_b32 v67, v67")
    a("s_waitcnt lgkmcnt(0)")
    a(f"v_readfirstlane_b32 s{sMAXC}, v67")
    a("v_add_u32 v66, 3, v65")
    a("v_and_b32 v66, -4, v66")
    a("v_mov_b32 v67, v66")
    wave_scan(a, 67)
    a("v_sub_u32 v68, v67, v66")
    a("s_nop 0")
    a(f"v_readlane_b32 s{sNT}, v67, 63")
    for i in range(5):
        a(f"ds_bpermute_b32 v{24+i}, v{ND+i}, v68")
    for i in range(5):
        a(f"v_and_b32 v{30+i}, 0x3fff, v{EN+i}")
        a(f"v_lshlrev_b32 v{30+i}, 9, v{30+i}")
        a(f"v_lshrrev_b32 v{EN+i}, 20, v{EN+i}")
        a(f"v_lshl_add_u32 v{EN+i}, v{EN+i}, 5, v{vWb}")
        a(f"v_lshlrev_b32 v{ND+i}, 7, v{ND+i}")
    for i in range(5):
        a(f"s_waitcnt lgkmcnt({4-i})")
        a(f"v_add_u32 v{24+i}, v{24+i}, v{RK+i}")
        a(f"v_and_b32 v{RK+i}, 3, v{RK+i}")
    for i in range(5):
        a(f"s_mov_b64 exec, {sr(sM+2*i,2)}")
        a(f"s_cbranch_execz K2_PL{i}")
        a(f"v_lshlrev_b32 v35, 2, v{24+i}")
        a(f"v_cmp_eq_u32 vcc, 0, v{RK+i}")
        a(f"ds_write_b32 v35, v{30+i} offset:{L_ROW}")
        a(f"ds_write_b32 v35, v{EN+i} offset:{L_E}")
        a(f"v_add_u32 v36, {L_GN}, v{24+i}")
        a("s_and_b64 exec, exec, vcc")
        a(f"s_cbranch_execz K2_PL{i}")
        a(f"ds_write_b32 v36, v{ND+i}")
        a.label(f"K2_PL{i}")
    a("s_mov_b64 exec, -1")
    a(f"v_mov_b32 v37, {N*512}")
    a("v_mov_b32 v38, 0")
    a("s_cmp_eq_u32 s28, 0")
    a("s_cbranch_scc0 K2_NOPAD")
    a("v_add_u32 v35, v68, v65")
    for m in range(3):
        a("s_mov_b64 exec, -1")
        a("v_cmp_lt_u32 vcc, v35, v67")
        a("s_and_b64 exec, exec, vcc")
        a(f"s_cbranch_execz K2_PAD{m}")
        a("v_lshlrev_b32 v36, 2, v35")
        a(f"ds_write_b32 v36, v37 offset:{L_ROW}")
        a(f"ds_write_b32 v36, v38 offset:{L_E}")
        a.label(f"K2_PAD{m}")
        a("s_mov_b64 exec, -1")
        a("v_add_u32 v35, 1, v35")
    a.label("K2_NOPAD")
    a("s_mov_b64 exec, -1")
    a(f"s_add_u32 s{sTMP}, s{sNT}, 15")
    a(f"s_lshr_b32 s{sTMP+1}, s{sTMP}, 4")
    a("s_cmp_eq_u32 s28, 1")
    a("s_cbranch_scc0 K2_NOTAIL")
    a("v_and_b32 v35, 63, v0")
    a(f"v_add_u32 v35, s{sNT}, v35")
    a(f"s_lshl_b32 s{sTMP+2}, s{sTMP+1}, 4")
    a(f"v_cmp_gt_u32 vcc, s{sTMP+2}, v35")
    a("s_and_b64 exec, exec, vcc")
    a("s_cbranch_execz K2_NOTAIL")
    a("v_lshlrev_b32 v36, 2, v35")
    a(f"ds_write_b32 v36, v37 offset:{L_ROW}")
    a(f"ds_write_b32 v36, v38 offset:{L_E}")
    a("v_and_b32 v36, 3, v35")
    a("v_cmp_eq_u32 vcc, 0, v36")
    a(f"v_add_u32 v36, {L_GN}, v35")
    a("s_and_b64 exec, exec, vcc")
    a("s_cbranch_execz K2_NOTAIL")
    a("ds_write_b32 v36, v38")
    a.label("K2_NOTAIL")
    a("s_mov_b64 exec, -1")
    a(f"s_mov_b32 s{sNT}, s{sTMP+1}")
    a("s_waitcnt lgkmcnt(0)")
    a("s_barrier")
    stamp(a, 3)
    a("s_cmp_eq_u32 s28, 0")
    a("s_cbranch_scc0 K2_NOZ2")
    a("v_and_b32 v35, 63, v0")
    a("v_lshlrev_b32 v35, 2, v35")
    a(f"ds_write_b32 v35, v38 offset:{L_CNT}")
    a.label("K2_NOZ2")
    a("v_and_b32 v64, 15, v0")
    a("v_bfe_u32 v65, v0, 4, 2")
    a(f"s_lshl_b32 s{sTMP}, s28, 6")
    a(f"s_lshl_b32 s{sTMP+1}, s28, 4")
    a(f"v_lshlrev_b32 v{vT1}, 4, v65")
    a(f"v_add_u32 v{vT1}, s{sTMP}, v{vT1}")
    a(f"v_lshl_add_u32 v{vT2}, v64, 2, s{sTMP}")
    a(f"s_add_u32 s{sTMP+1}, s{sTMP+1}, {L_GN}")
    a(f"v_lshl_add_u32 v{vT3}, v65, 2, s{sTMP+1}")
    a("v_and_b32 v66, 1, v65")
    a(f"v_lshl_add_u32 v{vT4}, v66, 3, s{sTMP+1}")
    a(f"v_lshlrev_b32 v{vQ16}, 4, v66")
    a(f"s_mov_b32 s{sT}, s28")
    a(f"s_cmp_ge_u32 s{sT}, s{sNT}")
    a("s_cbranch_scc1 K2_LOOP_DONE")
    list_reads(a)
    a("s_waitcnt lgkmcnt(0)")
    issue_q_e_p(a)
    h_loads(a)
    a(f"v_add_lshl_u32 v{vG}, v{vGn}, v{vJ4}, 1")
    a.label("K2_LOOP")
    a(f"s_add_u32 s{sTN}, s{sT}, 16")
    a(f"s_cmp_ge_u32 s{sTN}, s{sNT}")
    a("s_cbranch_scc1 K2_LAST")
    tile_body(a, True)
    a(f"s_mov_b32 s{sT}, s{sTN}")
    a("s_branch K2_LOOP")
    a.label("K2_LAST")
    tile_body(a, False)
    a.label("K2_LOOP_DONE")
    stamp(a, 4)
    a("v_mbcnt_lo_u32_b32 v0, -1, 0")
    a("v_mbcnt_hi_u32_b32 v0, -1, v0")
    a(f"s_lshl_b32 s{sTMP}, s28, 6")
    a(f"v_add_u32 v0, s{sTMP}, v0")
    a("s_waitcnt lgkmcnt(0)")
    a("s_barrier")
    stamp(a, 5)
    a(f"s_add_u32 s{sRND}, s{sRND}, {RND}")
    a(f"s_cmp_lt_u32 s{sRND}, s{sMAXC}")
    a("s_cbranch_scc0 K2_EPI")
    a("v_lshrrev_b32 v11, 2, v0")
    a("v_lshlrev_b32 v12, 10, v11")
    a(f"s_lshl_b32 s{sTMP}, s2, 2")
    a(f"s_add_u32 s{sTMP}, s{sTMP}, {OFFS_OFF}")
    a(f"buffer_load_dword v13, v12, {sr(sWS,4)}, s{sTMP} offen")
    a(f"v_and_b32 v{vSub}, 3, v0")
    a(f"v_mul_u32_u24 v{vWb}, {CE*32}, v11")
    a(f"v_mul_u32_u24 v{vEA}, {CE*4}, v11")
    a("v_cmp_gt_u32 vcc, 250, v11")
    a("s_waitcnt vmcnt(0)")
    a(f"v_lshrrev_b32 v{vC}, 16, v13")
    a(f"v_and_b32 v{vS}, 0xffff, v13")
    a(f"v_cndmask_b32 v{vC}, 0, v{vC}, vcc")
    a(f"v_cndmask_b32 v{vS}, 0, v{vS}, vcc")
    a(f"v_lshl_add_u32 v{vEA}, v{vS}, 2, v{vEA}")
    entry_loads()
    a("s_branch K2_ROUND")
    a.label("K2_EPI")
    a("v_cmp_gt_u32 vcc, 640, v0")
    a("s_and_saveexec_b64 s[54:55], vcc")
    a("s_cbranch_execz K2_EXIT")
    a("v_lshlrev_b32 v1, 6, v0")
    for i in range(4):
        a(f"ds_read_b128 {vr(32+4*i,4)}, v1 offset:{L_AGG+16*i}")
    a(f"s_mov_b32 s{sTMP}, {hex(C_2MK)}")
    a(f"s_mov_b32 s{sTMP+1}, {hex(NEG_LOG2E)}")
    a("s_waitcnt lgkmcnt(0)")
    for i in range(8):
        a(f"v_cvt_f32_f64 v{8+i}, v[{32+2*i}:{33+2*i}]")
    for i in range(8):
        a(f"v_mul_f32 v{8+i}, s{sTMP}, v{8+i}")
    for i in range(8):
        a(f"v_mul_f32 v{16+i}, s{sTMP+1}, v{8+i}")
    for i in range(8):
        a(f"v_exp_f32 v{16+i}, v{16+i}")
    for i in range(8):
        a(f"v_add_f32 v{16+i}, 1.0, v{16+i}")
    for i in range(8):
        a(f"v_rcp_f32 v{16+i}, v{16+i}")
    a("s_nop 0")
    for i in range(8):
        a(f"v_mul_f32 v{8+i}, v{8+i}, v{16+i}")
    for i in range(4):
        a(f"v_cvt_pk_bf16_f32 v{24+i}, v{8+2*i}, v{9+2*i}")
    a("v_lshlrev_b32 v2, 4, v0")
    a(f"s_mul_i32 s{sTMP}, s2, {NPB*256}")
    a(f"buffer_store_dwordx4 v[24:27], v2, {sr(sO,4)}, s{sTMP} offen")
    if "stamp" in OPT:
        a("s_waitcnt vmcnt(0)")
        stamp(a, 6)
        stamp_out(a, 7)
    a.label("K2_EXIT")
    a("s_endpgm")

HEADER = f"""; EGC edge-gated message passing: out = silu(x@U + segsum_dst(sigmoid([x_dst,x_src,e]@G) * (x@V)[src]))
; @launch kernel=egc_prep_kernel grid=({K1_WGS},1,1) block=(256,1,1) lds={K1_LDS}
; @launch kernel=egc_main_kernel grid=({NB},1,1) block=(1024,1,1) lds={K2_LDS}
.amdgcn_target "amdgcn-amd-amdhsa--gfx950"
.text
"""

def kd(name, vgpr, sgpr):
    return f""".amdhsa_kernel {name}
  .amdhsa_next_free_vgpr {vgpr}
  .amdhsa_next_free_sgpr {sgpr}
  .amdhsa_accum_offset {((vgpr+3)//4)*4}
  .amdhsa_group_segment_fixed_size 0
  .amdhsa_kernarg_size 80
  .amdhsa_user_sgpr_count 2
  .amdhsa_user_sgpr_kernarg_segment_ptr 1
  .amdhsa_system_sgpr_workgroup_id_x 1
.end_amdhsa_kernel
"""

def main():
    a = Asm()
    a.raw(".globl egc_prep_kernel")
    k1(a)
    a.raw(".globl egc_main_kernel")
    k2(a)
    out = HEADER + a.text()
    out += '.section .rodata,"a"\n.p2align 6\n' + kd("egc_prep_kernel", 96, 64) + ".p2align 6\n" + kd("egc_main_kernel", 128, 96)
    path = sys.argv[1] if len(sys.argv) > 1 else f"cdna_kernels/{NAME}.s"
    open(path, "w").write(out)
    print("wrote", path, len(out), "bytes")

if __name__ == "__main__":
    main()
```

```python
import sys, struct, os
OPT = set(os.environ.get("OPT","").split(","))

NAME = "gather_scatter__edge_featured_mpnn_egc__graph"
N = 10000; E = 320000
NB = 250; NPB = 40
NC = 250; CE = 1280
KSH = 26
def f2u(x): return struct.unpack('<I', struct.pack('<f', x))[0]
NEG_LOG2E = f2u(-1.4426950408889634)
C_2MK = f2u(2.0 ** -KSH)
C_2PK = f2u(2.0 ** KSH)
BF16_NEGK = 0xC1D0
assert KSH == 26

HALF_STRIDE = (N + 1) * 256
T_OFF = 0;            T_BYTES = 2 * HALF_STRIDE
ENT_OFF = 0x500000
OFFS_OFF = 0x640000
WF_OFF = 0x680000
CF_OFF = 0x690000
E2_OFF = 0x800000
WS_END = 0x1200000

NT_WG = 314
BIN0 = NT_WG
WF0 = BIN0 + NC
CF0 = WF0 + 8
K1_WGS = CF0 + 1
K1_LDS = 7168 + 40960

class Asm:
    def __init__(self): self.lines = []
    def __call__(self, s):
        for l in s.split("\n"):
            l = l.strip()
            if l: self.lines.append("    " + l)
    def label(self, n): self.lines.append(n + ":")
    def raw(self, s): self.lines.append(s)
    def text(self): return "\n".join(self.lines) + "\n"

def vr(i, n=1): return f"v{i}" if n == 1 else f"v[{i}:{i+n-1}]"
def sr(i, n=1): return f"s{i}" if n == 1 else f"s[{i}:{i+n-1}]"

def srd(a, d, base, nbytes):
    a(f"s_mov_b32 s{d}, s{base}")
    a(f"s_and_b32 s{d+1}, s{base+1}, 0xffff")
    a(f"s_mov_b32 s{d+2}, {nbytes}")
    a(f"s_mov_b32 s{d+3}, 0x00020000")

def wave_scan(a, v):
    for sh in (1, 2, 4, 8):
        a("s_nop 1")
        a(f"v_add_u32_dpp v{v}, v{v}, v{v} row_shr:{sh} row_mask:0xf bank_mask:0xf bound_ctrl:1")
    a("s_nop 1")
    a(f"v_add_u32_dpp v{v}, v{v}, v{v} row_bcast:15 row_mask:0xa bank_mask:0xf")
    a("s_nop 1")
    a(f"v_add_u32_dpp v{v}, v{v}, v{v} row_bcast:31 row_mask:0xc bank_mask:0xf")

def k1_table(a):
    a.label("K1_TABLE")
    a("s_and_b32 s3, s2, 1")
    a("s_lshr_b32 s28, s2, 1")
    srd(a, 20, 16, 69632)
    srd(a, 36, 14, 32768)
    srd(a, 24, 4, N * 256)
    srd(a, 32, 18, 2 * HALF_STRIDE)
    a("s_lshl_b32 s29, s3, 7")
    a("s_add_u32 s30, s29, 32768")
    a("v_lshrrev_b32 v1, 3, v0")
    a("v_and_b32 v2, 7, v0")
    a("v_lshlrev_b32 v3, 8, v1")
    a("v_lshl_add_u32 v3, v2, 4, v3")
    for i in range(4):
        a(f"buffer_load_dwordx4 {vr(8+4*i,4)}, v3, s[20:23], s30 offen")
        if i < 3: a("s_add_u32 s30, s30, 8192")
    for i in range(4):
        a(f"buffer_load_dwordx4 {vr(24+4*i,4)}, v3, s[36:39], s29 offen")
        if i < 3: a("s_add_u32 s29, s29, 8192")
    a("v_mul_u32_u24 v7, 288, v1")
    a("v_lshl_add_u32 v7, v2, 4, v7")
    a("v_and_b32 v2, 15, v0")
    a("v_bfe_u32 v3, v0, 4, 2")
    a("v_lshrrev_b32 v4, 6, v0")
    a("s_lshl_b32 s31, s28, 6")
    a("v_lshl_add_u32 v5, v4, 4, s31")
    a("v_add_u32 v6, v5, v2")
    a("v_lshlrev_b32 v6, 8, v6")
    a("v_lshl_add_u32 v6, v3, 4, v6")
    for ks in range(4):
        a(f"buffer_load_dwordx4 {vr(40+4*ks,4)}, v6, s[24:27], 0 offen offset:{64*ks}")
    for i in range(8):
        a(f"s_waitcnt vmcnt({11-i})")
        a(f"ds_write_b128 v7, {vr(8+4*i,4)} offset:{9216*(i&3) + 128*(i>>2)}")
    a("v_lshrrev_b32 v7, 2, v2")
    a("v_lshl_add_u32 v7, v3, 3, v7")
    a("v_mul_u32_u24 v7, 288, v7")
    a("v_and_b32 v1, 3, v0")
    a("v_lshl_add_u32 v7, v1, 3, v7")
    a("v_lshl_add_u32 v1, v3, 2, v5")
    a("v_lshlrev_b32 v6, 8, v1")
    a("v_lshl_add_u32 v6, v2, 4, v6")
    a(f"s_mul_i32 s3, s3, {HALF_STRIDE}")
    a("s_waitcnt vmcnt(0) lgkmcnt(0)")
    a("s_barrier")
    ACC = 64
    BF = [8, 24]
    def reads(t):
        b = BF[t & 1]
        for ks in range(4):
            a(f"ds_read_b64_tr_b16 {vr(b+4*ks,2)}, v7 offset:{9216*ks + 32*t}")
            a(f"ds_read_b64_tr_b16 {vr(b+4*ks+2,2)}, v7 offset:{9216*ks + 32*t + 1152}")
    reads(0)
    for t in range(8):
        if t < 7:
            reads(t + 1)
            a("s_waitcnt lgkmcnt(8)")
        else:
            a("s_waitcnt lgkmcnt(0)")
        b = BF[t & 1]
        for ks in range(4):
            c = "0" if ks == 0 else vr(ACC+4*t, 4)
            a(f"v_mfma_f32_16x16x32_bf16 {vr(ACC+4*t,4)}, {vr(40+4*ks,4)}, {vr(b+4*ks,4)}, {c}")
    a("s_mov_b32 s40, 0x00800000")
    a("s_mov_b32 s41, 0x7fff0000")
    a(f"s_mov_b32 s42, {hex(NEG_LOG2E)}")
    a(f"s_movk_i32 s43, {N}")
    a("s_nop 6")
    for r in range(4):
        W = 8 + 8 * (r & 1)
        for t in range(4):
            a(f"v_mul_f32 v{ACC+4*t+r}, s42, v{ACC+4*t+r}")
        for p in range(4):
            lo, hi = ACC + 4*(2*p) + r, ACC + 4*(2*p+1) + r
            a(f"v_cvt_pk_bf16_f32 v{W+p}, v{lo}, v{hi}")
            a(f"v_max_f32_e64 v{hi}, |v{hi}|, s40")
        for p in range(4):
            hi = ACC + 4*(2*p+1) + r
            a(f"v_add_u32 v{hi}, 0x8000, v{hi}")
        for p in range(4):
            hi = ACC + 4*(2*p+1) + r
            a(f"v_sub_u32_sdwa v{hi}, v{hi}, v{W+p} dst_sel:DWORD dst_unused:UNUSED_PAD src0_sel:DWORD src1_sel:WORD_0")
        a(f"v_add_u32 v2, {r}, v1")
        a("v_cmp_ge_u32 vcc, s43, v2")
        for p in range(4):
            hi = ACC + 4*(2*p+1) + r
            a(f"v_bfi_b32 v{W+p}, s41, v{hi}, v{W+p}")
        a("s_and_saveexec_b64 s[44:45], vcc")
        a(f"s_cbranch_execz K1_TAB_SKIP{r}")
        a(f"buffer_store_dwordx4 {vr(W,4)}, v6, s[32:35], s3 offen offset:{256*r} sc1")
        a.label(f"K1_TAB_SKIP{r}")
        a("s_mov_b64 exec, s[44:45]")
    a("s_endpgm")

def k1_bin(a):
    HIST, OFF2, SORT, ESORT = 0, 1024, 2048, 7168
    a.label("K1_BIN")
    a(f"s_sub_u32 s3, s2, {BIN0}")
    srd(a, 20, 8, E * 4)
    srd(a, 24, 10, E * 4)
    srd(a, 28, 18, WS_END)
    a("v_lshlrev_b32 v1, 2, v0")
    a("s_mul_i32 s32, s3, 5120")
    a("v_mov_b32 v2, 0")
    a(f"ds_write_b32 v1, v2 offset:{HIST}")
    DST, SRC = 8, 16
    for m in range(5):
        a(f"buffer_load_dword v{DST+m}, v1, s[24:27], s32 offen offset:{1024*m if m<4 else 0}" if m < 4 else
          f"s_add_u32 s33, s32, 4096\nbuffer_load_dword v{DST+m}, v1, s[24:27], s33 offen")
    for m in range(5):
        a(f"buffer_load_dword v{SRC+m}, v1, s[20:23], s32 offen offset:{1024*m}" if m < 4 else
          f"buffer_load_dword v{SRC+m}, v1, s[20:23], s33 offen")
    srd(a, 40, 6, E * 32)
    a("v_lshlrev_b32 v6, 5, v0")
    a("s_mul_i32 s44, s3, 40960")
    ER = 56
    for m in range(5):
        a(f"buffer_load_dwordx4 {vr(ER+8*m,4)}, v6, s[40:43], s44 offen")
        a(f"buffer_load_dwordx4 {vr(ER+8*m+4,4)}, v6, s[40:43], s44 offen offset:16")
        if m < 4: a("s_add_u32 s44, s44, 8192")
    a("s_mov_b32 s34, 52429")
    a("s_waitcnt lgkmcnt(0)")
    a("s_barrier")
    BINR, RANK = 24, 32
    a("v_mov_b32 v3, 1")
    for m in range(5):
        a(f"s_waitcnt vmcnt({19-m})")
        a(f"v_mul_u32_u24 v{BINR+m}, s34, v{DST+m}")
        a(f"v_lshrrev_b32 v{BINR+m}, 21, v{BINR+m}")
        a(f"v_mul_u32_u24 v4, 40, v{BINR+m}")
        a(f"v_sub_u32 v{DST+m}, v{DST+m}, v4")
        a(f"v_lshlrev_b32 v{BINR+m}, 2, v{BINR+m}")
        a(f"ds_add_rtn_u32 v{RANK+m}, v{BINR+m}, v3 offset:{HIST}")
    for m in range(5):
        a(f"s_waitcnt vmcnt({14-m})")
        a(f"v_lshl_or_b32 v{SRC+m}, v{DST+m}, 14, v{SRC+m}")
    a("s_waitcnt lgkmcnt(0)")
    a("s_barrier")
    a("v_and_b32 v5, 63, v0")
    a("v_lshlrev_b32 v5, 4, v5")
    a(f"ds_read_b128 v[40:43], v5 offset:{HIST}")
    a("s_waitcnt lgkmcnt(0)")
    a("v_add_u32 v44, v40, v41")
    a("v_add_u32 v45, v42, v43")
    a("v_add_u32 v46, v44, v45")
    a("v_mov_b32 v47, v46")
    wave_scan(a, 47)
    a("v_sub_u32 v48, v47, v46")
    a("v_add_u32 v49, v48, v40")
    a("v_add_u32 v50, v48, v44")
    a("v_add_u32 v51, v50, v42")
    a(f"ds_write_b128 v5, v[48:51] offset:{OFF2}")
    a("v_readfirstlane_b32 s35, v0")
    a("s_lshl_b32 s36, s3, 10")
    a(f"s_add_u32 s36, s36, {OFFS_OFF}")
    a("s_cmp_ge_u32 s35, 64")
    a("s_cbranch_scc1 K1_BIN_NOPUB")
    for i in range(4):
        a(f"v_lshl_or_b32 v{52+i}, v{40+i}, 16, v{48+i}")
    a("buffer_store_dwordx4 v[52:55], v5, s[28:31], s36 offen sc1")
    a.label("K1_BIN_NOPUB")
    a("s_waitcnt lgkmcnt(0)")
    for m in range(5):
        a(f"ds_read_b32 v{40+m}, v{BINR+m} offset:{OFF2}")
    for m in range(5):
        a(f"s_waitcnt lgkmcnt({4-m})")
        a(f"v_add_lshl_u32 v{40+m}, v{40+m}, v{RANK+m}, 2")
        a(f"ds_write_b32 v{40+m}, v{SRC+m} offset:{SORT}")
    for m in range(5):
        a(f"v_lshlrev_b32 v{40+m}, 3, v{40+m}")
        a(f"s_waitcnt vmcnt({9 - 2*m})")
        a(f"ds_write_b128 v{40+m}, {vr(ER+8*m,4)} offset:{ESORT}")
        a(f"s_waitcnt vmcnt({8 - 2*m})")
        a(f"ds_write_b128 v{40+m}, {vr(ER+8*m+4,4)} offset:{ESORT+16}")
    a("s_waitcnt lgkmcnt(0)")
    a("s_barrier")
    a("v_lshlrev_b32 v5, 4, v0")
    a(f"ds_read_b128 v[40:43], v5 offset:{SORT}")
    a(f"s_add_u32 s36, s32, {ENT_OFF}")
    a("v_cmp_gt_u32 vcc, 64, v0")
    a("s_waitcnt lgkmcnt(0)")
    a("buffer_store_dwordx4 v[40:43], v5, s[28:31], s36 offen sc1")
    a("s_and_saveexec_b64 s[38:39], vcc")
    a("s_cbranch_execz K1_BIN_END")
    a(f"ds_read_b128 v[44:47], v5 offset:{SORT+4096}")
    a("s_add_u32 s36, s36, 4096")
    a("s_waitcnt lgkmcnt(0)")
    a("buffer_store_dwordx4 v[44:47], v5, s[28:31], s36 offen sc1")
    a.label("K1_BIN_END")
    a("s_mov_b64 exec, -1")
    a("s_mul_i32 s36, s3, 40960")
    a(f"s_add_u32 s36, s36, {E2_OFF}")
    for i in range(10):
        a(f"ds_read_b128 {vr(ER+4*i,4)}, v5 offset:{ESORT + 4096*i}")
    for i in range(10):
        a(f"s_waitcnt lgkmcnt({9-i})")
        a(f"buffer_store_dwordx4 {vr(ER+4*i,4)}, v5, s[28:31], s36 offen sc1")
        if i < 9: a("s_add_u32 s36, s36, 4096")
    a("s_endpgm")

def k1_wf(a):
    a.label("K1_WF")
    a(f"s_sub_u32 s3, s2, {WF0}")
    a("v_lshrrev_b32 v1, 6, v0")
    a("s_nop 0")
    a("v_readfirstlane_b32 s28, v1")
    a("s_lshl_b32 s3, s3, 2")
    a("s_add_u32 s3, s3, s28")
    a("s_lshr_b32 s29, s3, 1")
    a("s_and_b32 s30, s3, 1")
    a("s_cmp_lt_u32 s29, 8")
    a("s_cselect_b32 s20, s16, s12")
    a("s_cselect_b32 s21, s17, s13")
    a("s_and_b32 s21, s21, 0xffff")
    a("s_mov_b32 s22, 32768")
    a("s_mov_b32 s23, 0x00020000")
    srd(a, 24, 18, WS_END)
    a("v_and_b32 v2, 15, v0")
    a("v_bfe_u32 v3, v0, 4, 2")
    a("s_and_b32 s31, s29, 7")
    a("s_lshl_b32 s31, s31, 5")
    a("s_lshl_b32 s32, s30, 14")
    a("s_add_u32 s31, s31, s32")
    a("v_lshlrev_b32 v4, 11, v3")
    a("v_lshl_add_u32 v4, v2, 1, v4")
    a("s_add_u32 s33, s31, 8192")
    for f in range(2):
        for m in range(8):
            a(f"buffer_load_ushort v{8+8*f+m}, v4, s[20:23], s{31 if f==0 else 33} offen offset:{256*m}")
    a("v_and_b32 v5, 63, v0")
    a("v_lshlrev_b32 v5, 4, v5")
    a("s_lshl_b32 s34, s3, 11")
    a(f"s_add_u32 s34, s34, {WF_OFF}")
    for f in range(2):
        a(f"s_waitcnt vmcnt({8 if f==0 else 1})")
        for p in range(4):
            a(f"v_lshl_or_b32 v{24+4*f+p}, v{8+8*f+2*p+1}, 16, v{8+8*f+2*p}")
        a(f"buffer_store_dwordx4 {vr(24+4*f,4)}, v5, s[24:27], s34 offen offset:{1024*f} sc1")
    a("s_endpgm")

def k1_cf(a):
    a.label("K1_CF")
    a("v_lshrrev_b32 v1, 6, v0")
    a("s_nop 0")
    a("v_readfirstlane_b32 s28, v1")
    srd(a, 20, 16, 69632)
    srd(a, 24, 18, WS_END)
    a("v_and_b32 v2, 15, v0")
    a("v_bfe_u32 v3, v0, 4, 2")
    a("v_and_b32 v4, 1, v3")
    a("v_lshlrev_b32 v4, 11, v4")
    a("v_lshl_add_u32 v4, v2, 1, v4")
    a("s_lshl_b32 s29, s28, 6")
    a("s_add_u32 s29, s29, 65536")
    for f in range(2):
        for m in range(8):
            a(f"buffer_load_ushort v{8+8*f+m}, v4, s[20:23], s29 offen offset:{256*m + 32*f}")
    a("v_and_b32 v5, 63, v0")
    a("v_lshlrev_b32 v5, 4, v5")
    a("s_lshl_b32 s34, s28, 11")
    a(f"s_add_u32 s34, s34, {CF_OFF}")
    a(f"s_mov_b32 s30, {hex(NEG_LOG2E)}")
    a("v_cmp_gt_u32 vcc, 2, v3")
    a("v_cmp_eq_u32 s[32:33], 2, v3")
    a(f"v_mov_b32 v6, {hex(BF16_NEGK)}")
    a("v_mov_b32 v7, 0")
    a("s_waitcnt vmcnt(0)")
    for f in range(2):
        for m in range(8):
            a(f"v_lshlrev_b32 v{8+8*f+m}, 16, v{8+8*f+m}")
            a(f"v_mul_f32 v{8+8*f+m}, s30, v{8+8*f+m}")
        for p in range(4):
            a(f"v_cvt_pk_bf16_f32 v{24+4*f+p}, v{8+8*f+2*p}, v{8+8*f+2*p+1}")
        a(f"v_cndmask_b32 v30, v7, v6, s[32:33]" if False else "")
        a(f"v_cndmask_b32 v32, v7, v6, s[32:33]")
        a(f"v_cndmask_b32 v{24+4*f+0}, v7, v{24+4*f+0}, vcc")
        a(f"v_cndmask_b32 v{24+4*f+1}, v7, v{24+4*f+1}, vcc")
        a(f"v_cndmask_b32 v{24+4*f+2}, v32, v{24+4*f+2}, vcc")
        a(f"v_cndmask_b32 v{24+4*f+3}, v7, v{24+4*f+3}, vcc")
        a(f"buffer_store_dwordx4 {vr(24+4*f,4)}, v5, s[24:27], s34 offen offset:{1024*f} sc1")
    a("s_cmp_eq_u32 s28, 0")
    a("s_cbranch_scc0 K1_CF_END")
    a("v_lshrrev_b32 v8, 2, v2")
    a("v_subrev_u32 v9, 2, v3")
    a("v_lshlrev_b32 v9, 1, v9")
    a("v_mov_b32 v10, 0x3f803f80")
    a("v_cmp_eq_u32 vcc, v8, v9")
    a("v_add_u32 v9, 1, v9")
    a("v_cmp_eq_u32 s[36:37], v8, v9")
    a("v_cndmask_b32 v12, v7, v10, vcc")
    a("v_mov_b32 v11, 0x3f80")
    a("v_cndmask_b32 v13, v7, v10, s[36:37]")
    a("v_cndmask_b32 v14, v7, v11, s[32:33]")
    a("v_mov_b32 v15, 0")
    a(f"s_mov_b32 s34, {CF_OFF + 8192}")
    a("buffer_store_dwordx4 v[12:15], v5, s[24:27], s34 offen sc1")
    a.label("K1_CF_END")
    a("s_endpgm")

def k1(a):
    a.raw(".p2align 8")
    a.raw(".type egc_prep_kernel,@function")
    a.label("egc_prep_kernel")
    a(f"s_cmp_ge_u32 s2, {K1_WGS}")
    a("s_cbranch_scc1 K1_EXIT")
    a("s_load_dwordx4 s[4:7], s[0:1], 0")
    a("s_load_dwordx4 s[8:11], s[0:1], 16")
    a("s_load_dwordx4 s[12:15], s[0:1], 32")
    a("s_load_dwordx2 s[16:17], s[0:1], 48")
    a("s_load_dwordx2 s[18:19], s[0:1], 72")
    a("s_waitcnt lgkmcnt(0)")
    a(f"s_cmp_lt_u32 s2, {BIN0}")
    a("s_cbranch_scc1 K1_TABLE")
    a(f"s_cmp_lt_u32 s2, {WF0}")
    a("s_cbranch_scc1 K1_BIN")
    a(f"s_cmp_lt_u32 s2, {CF0}")
    a("s_cbranch_scc1 K1_WF")
    a("s_branch K1_CF")
    a.label("K1_EXIT")
    a("s_endpgm")
    k1_table(a)
    k1_bin(a)
    k1_wf(a)
    k1_cf(a)

CAPE = 1500
SCAP = 1632
L_CNT = 0; L_TOT = 256
L_ROW = 512
L_GN = L_ROW + SCAP * 4
L_EO = L_GN + SCAP * 4
L_PPK = L_EO + SCAP * 4
L_CS = L_PPK + 20480
L_AGG = L_CS + 8192
L_XS = L_AGG + 40960
L_ES = L_XS + 48 * 272
L_RAW = L_ES
K2_LDS = L_ES + SCAP * 32
assert K2_LDS <= 163840 and L_AGG + 512 < 65536

QH = [8, 24, 40]; D = 56; B = 72; A = 88; U = 92; T = 100; R = 104; G = 108
vG = 112; vGn = 113; vTa = 114; vTe = 115; vJ16 = 116; vJ4 = 117; vTa0 = 118; vTe0 = 119; vCS = 120
vDUM = 124
vTd = 122; vEo = 123; vH16 = 125
sX = 12; sE = 16; sO = 20; sWS = 24
sWV = 28
sLO = 30
sHI = 32
sCC = 34
sN = 36; sNIT = 37; sL = 38
sLI = 39
sAI = 40
sHL = 41
sHG = 42
sTOT = 43
sWIN = 44
sDI = 45
sM0 = 62
sBIN = 29
sE2 = 63
sM = 46
sTMP = 56

STAMP_OFF = 0x1300000
def fstamp(a, i):
    if "fine" in OPT:
        a(f"s_memtime s[{64+2*i}:{65+2*i}]")
        a("s_waitcnt lgkmcnt(0)")
def stamp(a, i):
    if "fine" in OPT and i in (1,2,3,4,5,6): return
    if "stamp" in OPT:
        a(f"s_memtime s[{64+2*i}:{65+2*i}]")
        a("s_waitcnt lgkmcnt(0)")
def stamp_out(a, n):
    if "stamp" in OPT:
        a("s_cmp_eq_u32 s28, 0")
        a("s_cbranch_scc0 STAMP_SKIP")
        a("s_mov_b64 exec, -1")
        a("s_mov_b32 s26, 0x1400000")
        for i in range(n):
            a(f"v_mov_b32 v100, s{64+2*i}")
            a(f"v_mov_b32 v101, s{65+2*i}")
            a(f"s_lshl_b32 s60, s2, 7")
            a(f"s_add_u32 s60, s60, {STAMP_OFF + 8*i}")
            a("v_mov_b32 v102, 0")
            a(f"buffer_store_dwordx2 v[100:101], v102, {sr(sWS,4)}, s60 offen")
            a("s_nop 1")
        a.label("STAMP_SKIP")
def P2(x): return f"v[{x}:{x+1}]"

def pair_code(ta, tb, h, shl):
    s = []
    if shl:
        for r in range(4):
            s.append(f"v_lshlrev_b32 v{h[r]}, 16, v{h[r]}")
            s.append(f"v_lshlrev_b32 v{h[r]+1}, 16, v{h[r]+1}")
    for r in range(4):
        s.append(f"v_exp_f32_e64 v{U+2*r}, v{D+4*ta+r} clamp")
        s.append(f"v_exp_f32_e64 v{U+2*r+1}, v{D+4*tb+r} clamp")
    for r in range(4):
        s.append(f"v_pk_add_f32 {P2(U+2*r)}, {P2(U+2*r)}, s[{sCC}:{sCC+1}]")
    d0, d1, d2, d3 = U, U+2, U+4, U+6
    s += [f"v_pk_mul_f32 {P2(T)}, {P2(h[0])}, {P2(d1)}",
          f"v_pk_mul_f32 {P2(T+2)}, {P2(h[2])}, {P2(d3)}",
          f"v_pk_fma_f32 {P2(T)}, {P2(h[1])}, {P2(d0)}, {P2(T)}",
          f"v_pk_fma_f32 {P2(T+2)}, {P2(h[3])}, {P2(d2)}, {P2(T+2)}",
          f"v_pk_mul_f32 {P2(d0)}, {P2(d0)}, {P2(d1)}",
          f"v_pk_mul_f32 {P2(d2)}, {P2(d2)}, {P2(d3)}",
          f"v_pk_mul_f32 {P2(T)}, {P2(T)}, {P2(d2)}",
          f"v_pk_mul_f32 {P2(d1)}, {P2(d0)}, {P2(d2)}",
          f"v_pk_fma_f32 {P2(T)}, {P2(T+2)}, {P2(d0)}, {P2(T)}",
          f"v_rcp_f32 v{d1}, v{d1}",
          f"v_rcp_f32 v{d1+1}, v{d1+1}",
          "s_nop 0",
          f"v_pk_mul_f32 {P2(T)}, {P2(T)}, {P2(d1)}"]
    if "noadd" not in OPT:
        s += [f"v_cvt_f64_f32 {P2(U)}, v{T}",
              f"v_cvt_f64_f32 {P2(U+4)}, v{T+1}",
              f"ds_add_f64 v{vG}, {P2(U)} offset:{L_AGG + 128*ta}",
              f"ds_add_f64 v{vG}, {P2(U+4)} offset:{L_AGG + 128*tb}"]
    return s

uid = [0]
def lab(p):
    uid[0] += 1
    return f"{p}_{uid[0]}"

def list_stage(a):
    l0 = lab("K2_NE")
    a(f"s_cmp_lt_u32 s{sDI}, s{sL}")
    a(f"s_cbranch_scc0 {l0}")
    eo_read(a)
    a.label(l0)
    a(f"ds_read_b128 {vr(R,4)}, v{vTa} offset:{L_ROW}")
    a(f"ds_read_b96 {vr(G,3)}, v{vTa} offset:{L_GN}")
    a(f"s_mov_b32 s{sHG}, s{sHL}")
    a(f"v_add_u32 v{vTa}, 64, v{vTa}")
    a(f"s_add_u32 s{sLI}, s{sLI}, 1")
    a(f"s_cmp_lg_u32 s{sLI}, s{sL}")
    l = lab("K2_LW")
    a(f"s_cbranch_scc1 {l}")
    a(f"s_mov_b32 s{sLI}, 0")
    a(f"s_mov_b32 s{sHL}, {HALF_STRIDE}")
    a(f"v_mov_b32 v{vTa}, v{vTa0}")
    a.label(l)

def eo_read(a):
    a(f"ds_read_b32 v{vEo}, v{vTd} offset:{L_EO}")
    a(f"v_add_u32 v{vTd}, 64, v{vTd}")

def e_dma(a):
    a(f"s_mov_b32 m0, s{sM0}")
    a(f"v_add_u32 v{vEo}, v{vEo}, v{vH16}")
    if "samee" in OPT: a(f"v_and_b32 v{vEo}, 0x1f, v{vEo}")
    a(f"s_add_u32 s{sM0}, s{sM0}, 512")
    a(f"s_add_u32 s{sDI}, s{sDI}, 1")
    a(f"s_mov_b64 exec, {sr(sLO,2)}")
    a(f"buffer_load_dwordx4 v{vEo}, {sr(sWS,4)}, s{sE2} offen lds")
    a("s_mov_b64 exec, -1")

def gather_stage(a, buf):
    for r in range(4):
        a(f"v_add_u32 v{R+r}, v{R+r}, v{vJ16}")
    if "samerow" in OPT:
        for r in range(4): a(f"v_and_b32 v{R+r}, 0xff, v{R+r}")
    for r in range(4):
        a(f"buffer_load_dwordx4 {vr(buf+4*r,4)}, v{R+r}, {sr(sWS,4)}, s{sHG} offen")
    l = lab("K2_ND")
    a(f"s_cmp_lt_u32 s{sDI}, s{sL}")
    a(f"s_cbranch_scc0 {l}")
    e_dma(a)
    a.label(l)

def ap_stage(a, dstG, G=G):
    l = lab("K2_AW")
    a(f"s_cmp_lg_u32 s{sAI}, s{sL}")
    a(f"s_cbranch_scc1 {l}")
    a(f"s_mov_b32 s{sAI}, 0")
    if "noprio" not in OPT: a("s_setprio 0")
    a(f"v_add_u32 v{vJ4}, 256, v{vJ4}")
    a(f"v_mov_b32 v{vTe}, v{vTe0}")
    for t in range(4):
        a(f"ds_read_b128 {vr(B+4*t,4)}, v{vCS} offset:{L_CS + 1024*(4+t)}")
    a.label(l)
    a(f"s_add_u32 s{sAI}, s{sAI}, 1")
    a(f"v_add_lshl_u32 v{dstG}, v{G}, v{vJ4}, 1")
    a(f"v_add_u32 v{G+1}, v{G+1}, v{vJ4}")
    a(f"v_add_u32 v{G+2}, v{G+2}, v{vJ4}")
    a(f"s_mov_b64 exec, {sr(sLO,2)}")
    a(f"ds_read_b128 {vr(A,4)}, v{vTe}")
    a(f"s_mov_b64 exec, {sr(sHI,2)}")
    for t in range(4 if "nop" not in OPT else 0):
        a(f"ds_read_b32 v{B+4*t}, v{G+1} offset:{L_PPK + 64*t}")
        a(f"ds_read_b32 v{B+4*t+1}, v{G+2} offset:{L_PPK + 64*t}")
    a("s_mov_b64 exec, -1")
    a(f"v_add_u32 v{vTe}, 512, v{vTe}")

def tile_body(a, k):
    buf = QH[k]; nbuf = QH[(k + 2) % 3]
    l1, l2, l3 = lab("K2_W"), lab("K2_W"), lab("K2_W")
    a(f"s_add_u32 s{sTMP+1}, s{sN}, 3")
    a(f"s_add_u32 s{sTMP}, s{sN}, 1")
    a(f"s_cmp_lt_u32 s{sTMP+1}, s{sL}")
    a(f"s_cbranch_scc1 {l2}")
    a(f"s_cmp_lt_u32 s{sTMP}, s{sNIT}")
    a(f"s_cbranch_scc1 {l1}")
    a("s_waitcnt vmcnt(0)")
    a.label(l1)
    a("s_waitcnt vmcnt(4)")
    a.label(l2)
    a("s_waitcnt vmcnt(6)")
    for t in (1, 3):
        p = t >> 1
        for rr in (0, 2):
            a(f"v_pk_mov_b32 {P2(D+4*t+rr)}, {P2(buf+4*rr)}, {P2(buf+4*(rr+1))} op_sel:[{p},{p}]")
    for t in (0, 2):
        p = t >> 1
        for r in range(4):
            a(f"v_lshlrev_b32 v{D+4*t+r}, 16, v{buf+4*r+p}")
    a("s_waitcnt lgkmcnt(4)")
    for t in (1, 3, 0, 2):
        a(f"v_mfma_f32_16x16x32_bf16 {vr(D+4*t,4)}, {vr(A,4)}, {vr(B+4*t,4)}, {vr(D+4*t,4)}")
    le = lab("K2_E")
    a(f"s_cmp_lt_u32 s{sTMP}, s{sNIT}")
    a(f"s_cbranch_scc0 {le}")
    ap_stage(a, vGn)
    a.label(le)
    lf = lab("K2_F")
    a(f"s_add_u32 s{sTMP}, s{sN}, 2")
    a(f"s_cmp_lt_u32 s{sTMP}, s{sNIT}")
    a(f"s_cbranch_scc0 {lf}")
    list_stage(a)
    a.label(lf)
    a("s_nop 2")
    h = [buf + 4*r + 2 for r in range(4)]
    for ins in pair_code(1, 3, h, False): a(ins)
    lh = lab("K2_H")
    a(f"s_cmp_lt_u32 s{sTMP}, s{sNIT}")
    a(f"s_cbranch_scc0 {lh}")
    a("s_waitcnt lgkmcnt(3)" if "noadd" not in OPT else "s_waitcnt lgkmcnt(1)")
    gather_stage(a, nbuf)
    a.label(lh)
    for ins in pair_code(0, 2, h, True): a(ins)
    a(f"v_mov_b32 v{vG}, v{vGn}")
    a(f"s_add_u32 s{sN}, s{sN}, 1")
    a(f"s_cmp_ge_u32 s{sN}, s{sNIT}")
    a("s_cbranch_scc1 K2_LOOP_DONE")

def table_prefetch(a, vL16):
    if "nopf" in OPT: return
    a(f"s_lshr_b32 s{sTMP+5}, s2, 3")
    a(f"s_mul_i32 s{sTMP+5}, s{sTMP+5}, 81920")
    a(f"s_lshl_b32 s{sTMP+6}, s28, 13")
    a(f"s_add_u32 s{sTMP+5}, s{sTMP+5}, s{sTMP+6}")
    a(f"s_cmp_lt_u32 s28, 10")
    a(f"s_cselect_b32 s{sTMP+5}, s{sTMP+5}, {WS_END}")
    a(f"v_lshlrev_b32 v{vDUM}, 3, v{vL16}")
    a(f"buffer_load_dword v{vDUM}, v{vDUM}, {sr(sWS,4)}, s{sTMP+5} offen")

def node_gemm(a, vJ, vQ):
    WF = 40; AF = 56; ACC = 92
    a(f"v_mul_u32_u24 v4, 272, v{vJ}")
    a(f"v_lshl_add_u32 v4, v{vQ}, 4, v4")
    a(f"v_add_u32 v4, {L_XS}, v4")
    for rho in range(3):
        for ks in range(4):
            a(f"ds_read_b128 {vr(AF+4*ks,4)}, v4 offset:{rho*16*272 + ks*64}")
        for ks in range(4):
            a(f"s_waitcnt lgkmcnt({3-ks})")
            c = "0" if ks == 0 else vr(ACC+4*rho, 4)
            a(f"v_mfma_f32_16x16x32_bf16 {vr(ACC+4*rho,4)}, {vr(AF+4*ks,4)}, {vr(WF+4*ks,4)}, {c}")
    a(f"v_lshlrev_b32 v5, 11, v{vQ}")
    a(f"v_lshl_add_u32 v5, v{vJ}, 2, v5")
    a(f"s_and_b32 s{sTMP}, s28, 7")
    a(f"s_lshl_b32 s{sTMP}, s{sTMP}, 6")
    a(f"v_add_u32 v5, s{sTMP}, v5")
    a("s_cmp_ge_u32 s28, 8")
    a("s_cbranch_scc1 K2_XU")
    a(f"s_mov_b32 s{sTMP}, {hex(NEG_LOG2E)}")
    a("s_nop 0")
    for rho in range(3):
        if rho == 2: a(f"s_mov_b64 exec, {sr(sLO,2)}")
        for r in range(4):
            a(f"v_mul_f32 v{ACC+4*rho+r}, s{sTMP}, v{ACC+4*rho+r}")
        for r in range(4):
            a(f"v_cvt_pk_bf16_f32 v{ACC+4*rho+r}, v{ACC+4*rho+r}, 0")
        for r in range(4):
            a(f"ds_write_b32 v5, v{ACC+4*rho+r} offset:{L_PPK + rho*8192 + r*512}")
    a("s_mov_b64 exec, -1")
    a("s_branch K2_GEMM_DONE")
    a.label("K2_XU")
    a(f"s_mov_b32 s{sTMP}, {hex(C_2PK)}")
    a("v_lshlrev_b32 v5, 1, v5")
    a(f"v_add_u32 v5, {L_AGG}, v5")
    for rho in range(3):
        if rho == 2: a(f"s_mov_b64 exec, {sr(sLO,2)}")
        for r in range(4):
            a(f"v_mul_f32 v{ACC+4*rho+r}, s{sTMP}, v{ACC+4*rho+r}")
        for r in range(4):
            a(f"v_cvt_f64_f32 v[{56+2*r}:{57+2*r}], v{ACC+4*rho+r}")
        for r in range(4):
            a(f"ds_write_b64 v5, v[{56+2*r}:{57+2*r}] offset:{rho*16384 + r*1024}")
    a("s_mov_b64 exec, -1")
    a.label("K2_GEMM_DONE")

def k2(a):
    a.raw(".p2align 8")
    a.raw(".type egc_main_kernel,@function")
    a.label("egc_main_kernel")
    a(f"s_cmp_ge_u32 s2, {NB}")
    a("s_cbranch_scc1 K2_EXIT")
    stamp(a, 0)
    if "stamp" in OPT:
        a("s_memrealtime s[80:81]")
        a("s_waitcnt lgkmcnt(0)")
    a("s_load_dwordx2 s[4:5], s[0:1], 0")
    a("s_load_dwordx2 s[8:9], s[0:1], 56")
    a("s_load_dwordx2 s[10:11], s[0:1], 72")
    a("s_and_b32 s46, s2, 7")
    a("s_lshr_b32 s47, s2, 3")
    a("s_sub_u32 s48, s46, 2")
    a("s_max_i32 s48, s48, 0")
    a("s_lshl_b32 s46, s46, 5")
    a("s_sub_u32 s46, s46, s48")
    a(f"s_add_u32 s{sBIN}, s46, s47")
    a("v_lshrrev_b32 v1, 6, v0")
    a("v_mov_b32 v2, 0")
    a("v_readfirstlane_b32 s28, v1")
    a("v_lshlrev_b32 v3, 2, v0")
    a("v_cmp_gt_u32 vcc, 128, v0")
    a("s_and_saveexec_b64 s[54:55], vcc")
    a(f"ds_write_b32 v3, v2 offset:{L_CNT}")
    a("s_mov_b64 exec, -1")
    vW = 1; vOA = 2; vT16 = 3; vOf = 4
    a(f"v_lshrrev_b32 v{vW}, 2, v0")
    a(f"v_lshlrev_b32 v{vOA}, 10, v{vW}")
    a(f"v_lshlrev_b32 v{vT16}, 4, v0")
    a(f"v_and_b32 v{vCS}, 0x3f0, v{vT16}")
    a(f"s_lshl_b32 s{sTMP}, s{sBIN}, 2")
    a(f"s_add_u32 s{sTMP}, s{sTMP}, {OFFS_OFF}")
    a(f"s_mul_i32 s{sTMP+1}, s{sBIN}, {NPB*256}")
    a(f"s_mov_b32 s{sTMP+2}, {CF_OFF}")
    a(f"s_lshl_b32 s{sTMP+3}, s28, 12")
    a(f"s_add_u32 s{sTMP+3}, s{sTMP+3}, {WF_OFF}")
    a(f"s_mov_b32 s{sTMP+4}, {ENT_OFF}")
    a(f"s_mov_b32 s{sTMP+5}, {CF_OFF + 8192}")
    a("s_waitcnt lgkmcnt(0)")
    srd(a, sWS, 10, WS_END)
    a(f"buffer_load_dword v{vOf}, v{vOA}, {sr(sWS,4)}, s{sTMP} offen")
    srd(a, sX, 4, N * 256)
    XR = 8; CSR = 12; WF = 40
    a(f"buffer_load_dwordx4 {vr(XR,4)}, v{vT16}, {sr(sX,4)}, s{sTMP+1} offen")
    a(f"v_and_b32 v6, 0x1ff0, v{vT16}")
    a(f"buffer_load_dwordx4 {vr(CSR,4)}, v6, {sr(sWS,4)}, s{sTMP+2} offen")
    a(f"buffer_load_dwordx4 {vr(A,4)}, v{vCS}, {sr(sWS,4)}, s{sTMP+5} offen")
    a("s_barrier")
    vC = 32; vSub = 33; vWb = 34; vEA = 35; vPw = 36; vKB = 37; vSg = 39
    a(f"v_and_b32 v{vSub}, 3, v0")
    a(f"v_mul_u32_u24 v{vSg}, {CE}, v{vW}")
    a(f"v_cmp_gt_u32 vcc, 250, v{vW}")
    a(f"v_cmp_eq_u32 s[54:55], 0, v{vSub}")
    a(f"v_mov_b32 v16, {L_TOT}")
    a(f"s_mov_b64 {sr(sLO,2)}, 0xffffffff")
    a(f"s_mov_b32 s{sHI}, 0")
    a(f"s_mov_b32 s{sHI+1}, -1")
    a(f"s_mov_b32 s{sCC}, {hex(C_2MK)}")
    a(f"s_mov_b32 s{sCC+1}, {hex(C_2MK)}")
    a(f"s_mov_b32 s{sWIN}, 0")
    a(f"s_mov_b32 s{sE2}, {E2_OFF}")
    a("s_waitcnt vmcnt(3)")
    a(f"v_lshrrev_b32 v{vC}, 16, v{vOf}")
    a(f"v_and_b32 v{vOf}, 0xffff, v{vOf}")
    a(f"v_cndmask_b32 v{vC}, 0, v{vC}, vcc")
    a(f"v_add_u32 v{vSg}, v{vSg}, v{vOf}")
    a(f"v_lshlrev_b32 v{vEA}, 2, v{vSub}")
    a(f"v_add_lshl_u32 v{vEA}, v{vEA}, v{vSg}, 2")
    EN = 56
    def entry_loads(soff):
        a(f"buffer_load_dwordx4 {vr(EN,4)}, v{vEA}, {sr(sWS,4)}, s{soff} offen")
        a(f"v_mad_i32_i24 v38, v{vSub}, -12, v{vEA}")
        a(f"buffer_load_dword v{EN+4}, v38, {sr(sWS,4)}, s{soff} offen offset:64")
    entry_loads(sTMP+4)
    a("s_mov_b64 exec, s[54:55]")
    a(f"ds_add_rtn_u32 v{vPw}, v16, v{vC}")
    a("s_mov_b64 exec, -1")
    for ks in range(4):
        a(f"buffer_load_dwordx4 {vr(WF+4*ks,4)}, v{vCS}, {sr(sWS,4)}, s{sTMP+3} offen offset:{1024*ks}")
    srd(a, sO, 8, N * 256)
    a("v_lshrrev_b32 v17, 4, v0")
    a("v_mul_u32_u24 v17, 272, v17")
    a(f"v_bfe_u32 v18, v{vCS}, 4, 4")
    a("v_lshl_add_u32 v17, v18, 4, v17")
    a(f"v_add_u32 v17, {L_XS}, v17")
    a("v_cmp_gt_u32 vcc, 768, v0")
    a(f"v_lshlrev_b32 v{vJ16}, 4, v18")
    a("s_and_saveexec_b64 s[54:55], vcc")
    a("s_waitcnt vmcnt(8)")
    a(f"ds_write_b128 v17, {vr(XR,4)}")
    a("s_mov_b64 exec, -1")
    a("v_cmp_gt_u32 vcc, 512, v0")
    a("s_and_saveexec_b64 s[54:55], vcc")
    a("s_waitcnt vmcnt(7)")
    a(f"ds_write_b128 v6, {vr(CSR,4)} offset:{L_CS}")
    a("s_mov_b64 exec, -1")
    a(f"v_mov_b32 v{vKB}, 0")
    a("s_waitcnt lgkmcnt(0)")
    a(f"v_mov_b32_dpp v{vPw}, v{vPw} quad_perm:[0,0,0,0] row_mask:0xf bank_mask:0xf")
    a("s_waitcnt vmcnt(4)")
    a(f"v_mov_b32 v121, v{vPw}")
    stamp(a, 1)
    a.label("K2_WINDOW")
    vKE = 64; vRA = 65
    a(f"s_add_u32 s{sTMP}, s{sWIN}, {CAPE}")
    a(f"v_sub_u32 v{vKE}, s{sTMP}, v{vPw}")
    a(f"v_min_i32 v{vKE}, v{vKE}, v{vC}")
    a(f"v_sub_u32 v{vWb}, v{vSg}, v{vPw}")
    a(f"v_add_lshl_u32 v{vWb}, v{vWb}, s{sWIN}, 5")
    a.label("K2_COPY")
    a(f"v_add_u32 v{vRA}, v{vPw}, v{vKB}")
    a(f"v_subrev_u32 v{vRA}, s{sWIN}, v{vRA}")
    a(f"v_sub_u32 v66, v{vKE}, v{vKB}")
    a(f"v_lshlrev_b32 v67, 2, v{vSub}")
    a("v_sub_u32 v61, v66, v67")
    a(f"v_sub_u32 v62, v66, v{vSub}")
    a(f"v_add_u32 v67, v{vRA}, v67")
    a(f"v_lshlrev_b32 v67, 3, v67")
    a(f"v_add_u32 v67, {L_RAW}, v67")
    a(f"v_add_lshl_u32 v63, v{vRA}, v{vSub}, 3")
    a(f"v_add_u32 v63, {L_RAW + 128}, v63")
    for i in range(4):
        a(f"v_cmp_lt_i32 {sr(sM+2*i,2)}, {i}, v61")
    a(f"v_cmp_lt_i32 {sr(sM+8,2)}, 16, v62")
    for i in range(5):
        l = lab("K2_CP")
        a(f"s_mov_b64 exec, {sr(sM+2*i,2)}")
        a(f"s_cbranch_execz {l}")
        if i < 4:
            a(f"ds_write2_b32 v67, v{EN+i}, v{vWb} offset0:{2*i} offset1:{2*i+1}")
        else:
            a(f"ds_write2_b32 v63, v{EN+4}, v{vWb} offset0:0 offset1:1")
        a.label(l)
    a("s_mov_b64 exec, -1")
    a(f"v_add_u32 v{vKB}, 20, v{vKB}")
    a(f"v_cmp_lt_i32 vcc, v{vKB}, v{vKE}")
    a("s_cmp_eq_u64 vcc, 0")
    a("s_cbranch_scc1 K2_COPIED")
    a(f"v_add_u32 v{vEA}, 80, v{vEA}")
    a(f"s_mov_b32 s{sTMP+4}, {ENT_OFF}")
    entry_loads(sTMP+4)
    a("s_waitcnt vmcnt(0)")
    a("s_branch K2_COPY")
    a.label("K2_COPIED")
    a("s_waitcnt lgkmcnt(0)")
    a("s_barrier")
    stamp(a, 2)
    a(f"v_mov_b32 v70, {L_TOT}")
    a("ds_read_b32 v70, v70")
    a("s_waitcnt vmcnt(0)")
    table_prefetch(a, vCS)
    a("s_waitcnt lgkmcnt(0)")
    a(f"v_readfirstlane_b32 s{sTOT}, v70")
    a("s_nop 3")
    a(f"s_sub_u32 s{sTMP}, s{sTOT}, s{sWIN}")
    a(f"s_min_u32 s{sTMP}, s{sTMP}, {CAPE}")
    RE = 56
    ND = 60; RK = 62
    a("v_lshlrev_b32 v64, 3, v0")
    a(f"v_add_u32 v64, {L_RAW}, v64")
    a(f"v_cmp_gt_u32 {sr(sM,2)}, s{sTMP}, v0")
    a("v_add_u32 v65, 1024, v0")
    a(f"v_cmp_gt_u32 {sr(sM+2,2)}, s{sTMP}, v65")
    a(f"ds_read_b64 {P2(RE)}, v64")
    a(f"ds_read_b64 {P2(RE+2)}, v64 offset:8192")
    a("v_mov_b32 v66, 1")
    for i in range(2):
        l = lab("K2_RK")
        a(f"s_waitcnt lgkmcnt({1-i})" if i == 0 else "s_waitcnt lgkmcnt(0)")
        a(f"v_bfe_u32 v{ND+i}, v{RE+2*i}, 14, 6")
        a(f"v_lshlrev_b32 v{ND+i}, 2, v{ND+i}")
        a(f"s_mov_b64 exec, {sr(sM+2*i,2)}")
        a(f"s_cbranch_execz {l}")
        a(f"ds_add_rtn_u32 v{RK+i}, v{ND+i}, v66 offset:{L_CNT}")
        a.label(l)
        a("s_mov_b64 exec, -1")
    a("s_waitcnt lgkmcnt(0)")
    a("s_barrier")
    stamp(a, 3)
    a(f"v_lshrrev_b32 v64, 2, v{vCS}")
    a(f"ds_read_b32 v65, v64 offset:{L_CNT}")
    a("s_waitcnt lgkmcnt(0)")
    a("v_add_u32 v66, 3, v65")
    a("v_and_b32 v66, -4, v66")
    a("v_mov_b32 v67, v66")
    wave_scan(a, 67)
    a("v_sub_u32 v68, v67, v66")
    a("s_nop 0")
    a(f"v_readlane_b32 s{sNIT}, v67, 63")
    for i in range(2):
        a(f"ds_bpermute_b32 v{70+i}, v{ND+i}, v68")
    for i in range(2):
        e = RE + 2*i
        if i == 0:
            a(f"v_lshl_add_u32 v{e+1}, v0, 5, v{e+1}")
        else:
            a(f"v_lshl_add_u32 v{e+1}, v0, 5, v{e+1}")
            a(f"v_add_u32 v{e+1}, {1024*32}, v{e+1}")
        a(f"v_and_b32 v{e}, 0x3fff, v{e}")
        a(f"v_lshlrev_b32 v{e}, 8, v{e}")
        a(f"v_lshlrev_b32 v{ND+i}, 7, v{ND+i}")
    for i in range(2):
        e = RE + 2*i
        l = lab("K2_PL")
        a(f"s_waitcnt lgkmcnt({1-i})")
        a(f"s_mov_b64 exec, {sr(sM+2*i,2)}")
        a(f"s_cbranch_execz {l}")
        a(f"v_add_u32 v{70+i}, v{70+i}, v{RK+i}")
        a(f"v_and_b32 v{RK+i}, 3, v{RK+i}")
        a(f"v_lshlrev_b32 v64, 2, v{70+i}")
        a(f"v_cmp_eq_u32 vcc, 0, v{RK+i}")
        a(f"ds_write_b32 v64, v{e} offset:{L_ROW}")
        a(f"ds_write_b32 v64, v{e+1} offset:{L_EO}")
        a("s_and_b64 exec, exec, vcc")
        a(f"s_cbranch_execz {l}")
        a(f"ds_write_b32 v64, v{ND+i} offset:{L_GN}")
        a(f"v_and_b32 v69, 0xffffffc0, v64")
        a(f"v_bfe_u32 v{RK+i}, v64, 5, 1")
        a(f"v_lshl_add_u32 v69, v{RK+i}, 4, v69")
        a(f"v_bfe_u32 v{RK+i}, v64, 4, 1")
        a(f"v_lshl_add_u32 v69, v{RK+i}, 2, v69")
        a(f"ds_write_b32 v69, v{ND+i} offset:{L_GN + 32 + 4}")
        a.label(l)
        a("s_mov_b64 exec, -1")
    a(f"v_mov_b32 v72, {N*256}")
    a("v_mov_b32 v73, 0")
    a("s_cmp_eq_u32 s28, 0")
    a("s_cbranch_scc0 K2_NOPAD")
    a("v_add_u32 v64, v68, v65")
    for m in range(3):
        l = lab("K2_PAD")
        a("v_cmp_lt_u32 vcc, v64, v67")
        a("s_and_b64 exec, exec, vcc")
        a(f"s_cbranch_execz K2_NOPAD")
        a("v_lshlrev_b32 v69, 2, v64")
        a(f"ds_write_b32 v69, v72 offset:{L_ROW}")
        a(f"ds_write_b32 v69, v73 offset:{L_EO}")
        a("v_add_u32 v64, 1, v64")
    a.label("K2_NOPAD")
    a("s_mov_b64 exec, -1")
    a(f"s_add_u32 s{sTMP}, s{sNIT}, 15")
    a(f"s_lshr_b32 s{sTMP+1}, s{sTMP}, 4")
    a("s_cmp_eq_u32 s28, 1")
    a("s_cbranch_scc0 K2_NOTAIL")
    a(f"v_lshrrev_b32 v64, 4, v{vCS}")
    a(f"v_add_u32 v64, s{sNIT}, v64")
    a(f"s_lshl_b32 s{sTMP+2}, s{sTMP+1}, 4")
    a(f"v_cmp_gt_u32 vcc, s{sTMP+2}, v64")
    a("s_and_b64 exec, exec, vcc")
    a("s_cbranch_execz K2_NOTAIL")
    a("v_lshlrev_b32 v69, 2, v64")
    a(f"ds_write_b32 v69, v72 offset:{L_ROW}")
    a(f"ds_write_b32 v69, v73 offset:{L_EO}")
    a("v_and_b32 v70, 3, v64")
    a("v_cmp_eq_u32 vcc, 0, v70")
    a("s_and_b64 exec, exec, vcc")
    a("s_cbranch_execz K2_NOTAIL")
    a(f"ds_write_b32 v69, v73 offset:{L_GN}")
    a(f"v_and_b32 v70, 0xffffffc0, v69")
    a("v_bfe_u32 v71, v69, 5, 1")
    a("v_lshl_add_u32 v70, v71, 4, v70")
    a("v_bfe_u32 v71, v69, 4, 1")
    a("v_lshl_add_u32 v70, v71, 2, v70")
    a(f"ds_write_b32 v70, v73 offset:{L_GN + 32 + 4}")
    a.label("K2_NOTAIL")
    a("s_mov_b64 exec, -1")
    a(f"s_mul_i32 s{sTMP+2}, s28, s{sTMP+1}")
    a(f"s_add_u32 s{sTMP+3}, s{sTMP+2}, s{sTMP+1}")
    a(f"s_lshr_b32 s{sTMP+2}, s{sTMP+2}, 4")
    a(f"s_lshr_b32 s{sTMP+3}, s{sTMP+3}, 4")
    a(f"s_sub_u32 s{sL}, s{sTMP+3}, s{sTMP+2}")
    a(f"s_lshl_b32 s{sNIT}, s{sL}, 1")
    a("s_waitcnt lgkmcnt(0)")
    a("s_barrier")
    stamp(a, 4)
    a("s_cmp_eq_u32 s28, 0")
    a("s_cbranch_scc0 K2_NOZ2")
    a(f"v_lshrrev_b32 v64, 2, v{vCS}")
    a(f"ds_write_b32 v64, v73 offset:{L_CNT}")
    a.label("K2_NOZ2")
    a(f"s_cmp_eq_u32 s{sL}, 0")
    a("s_cbranch_scc1 K2_SETUP_DONE")
    fstamp(a, 1)
    for t in range(4):
        a(f"ds_read_b128 {vr(B+4*t,4)}, v{vCS} offset:{L_CS + 1024*t}")
    if "noprio" not in OPT: a("s_setprio 2")
    a(f"v_lshrrev_b32 v64, 5, v{vCS}")
    a(f"s_lshl_b32 s{sTMP+4}, s{sTMP+2}, 4")
    a(f"v_add_lshl_u32 v{vTd}, v64, s{sTMP+4}, 2")
    a(f"v_and_b32 v{vH16}, 16, v{vCS}")
    a(f"s_lshl_b32 s{sM0}, s{sTMP+2}, 9")
    a(f"s_add_u32 s{sM0}, s{sM0}, {L_ES}")
    a(f"s_mov_b32 s{sDI}, 0")
    eo_read(a)
    a("s_waitcnt lgkmcnt(0)")
    e_dma(a)
    a(f"s_cmp_lt_u32 s{sDI}, s{sL}")
    a("s_cbranch_scc0 K2_ND1")
    eo_read(a)
    a("s_waitcnt lgkmcnt(0)")
    e_dma(a)
    a.label("K2_ND1")
    fstamp(a, 2)
    a(f"v_lshrrev_b32 v64, 8, v{vCS}")
    a(f"v_bfe_u32 v65, v{vCS}, 4, 4")
    a(f"v_lshlrev_b32 v{vJ4}, 2, v65")
    a(f"s_lshl_b32 s{sTMP+4}, s{sTMP+2}, 6")
    a(f"v_lshl_add_u32 v{vTa0}, v64, 4, s{sTMP+4}")
    a(f"s_lshl_b32 s{sTMP+4}, s{sTMP+2}, 9")
    a(f"s_add_u32 s{sTMP+4}, s{sTMP+4}, {L_ES}")
    a(f"v_lshlrev_b32 v66, 5, v65")
    a(f"v_lshl_add_u32 v66, v64, 4, v66")
    a(f"v_add_u32 v{vTe0}, s{sTMP+4}, v66")
    a(f"v_mov_b32 v{vTa}, v{vTa0}")
    a(f"v_mov_b32 v{vTe}, v{vTe0}")
    a(f"s_mov_b32 s{sN}, 0")
    a(f"s_mov_b32 s{sLI}, 0")
    a(f"s_mov_b32 s{sAI}, 0")
    a(f"s_mov_b32 s{sHL}, 0")
    list_stage(a)
    a("s_waitcnt lgkmcnt(0)")
    gather_stage(a, QH[0])
    fstamp(a, 3)
    for i in range(3):
        a(f"v_mov_b32 v{1+i}, v{G+i}")
    list_stage(a)
    a("s_waitcnt lgkmcnt(0)")
    gather_stage(a, QH[1])
    a.label("K2_SETUP_DONE")
    fstamp(a, 4)
    a(f"s_cmp_eq_u32 s{sWIN}, 0")
    a("s_cbranch_scc0 K2_NOGEMM")
    a(f"v_lshrrev_b32 v6, 8, v{vCS}")
    a(f"v_bfe_u32 v7, v{vCS}, 4, 4")
    node_gemm(a, 7, 6)
    a.label("K2_NOGEMM")
    fstamp(a, 5)
    a("s_waitcnt lgkmcnt(0)")
    a("s_barrier")
    stamp(a, 5)
    fstamp(a, 6)
    a(f"s_cmp_eq_u32 s{sL}, 0")
    a("s_cbranch_scc1 K2_LOOP_DONE")
    a("s_waitcnt vmcnt(8)")
    ap_stage(a, vG, 1)
    a("s_waitcnt lgkmcnt(0)")
    a.label("K2_LOOP")
    for k in range(3):
        tile_body(a, k)
    a("s_branch K2_LOOP")
    a.label("K2_LOOP_DONE")
    a("s_setprio 0")
    stamp(a, 6)
    a(f"s_lshl_b32 s{sTMP}, s28, 6")
    a(f"v_lshrrev_b32 v0, 4, v{vCS}")
    a(f"v_add_u32 v0, s{sTMP}, v0")
    a("s_waitcnt lgkmcnt(0)")
    a("s_barrier")
    a(f"s_add_u32 s{sWIN}, s{sWIN}, {CAPE}")
    a(f"s_cmp_lt_u32 s{sWIN}, s{sTOT}")
    a("s_cbranch_scc0 K2_EPI")
    a(f"v_lshrrev_b32 v{vW}, 2, v0")
    a(f"v_lshlrev_b32 v{vOA}, 10, v{vW}")
    a(f"s_lshl_b32 s{sTMP}, s{sBIN}, 2")
    a(f"s_add_u32 s{sTMP}, s{sTMP}, {OFFS_OFF}")
    a(f"buffer_load_dword v{vOf}, v{vOA}, {sr(sWS,4)}, s{sTMP} offen")
    a(f"v_and_b32 v{vSub}, 3, v0")
    a(f"v_mul_u32_u24 v{vSg}, {CE}, v{vW}")
    a(f"v_cmp_gt_u32 vcc, 250, v{vW}")
    a(f"v_mov_b32 v{vPw}, v121")
    a("s_waitcnt vmcnt(0)")
    a(f"v_lshrrev_b32 v{vC}, 16, v{vOf}")
    a(f"v_and_b32 v{vOf}, 0xffff, v{vOf}")
    a(f"v_cndmask_b32 v{vC}, 0, v{vC}, vcc")
    a(f"v_add_u32 v{vSg}, v{vSg}, v{vOf}")
    a(f"v_sub_u32 v{vKB}, s{sWIN}, v{vPw}")
    a(f"v_max_i32 v{vKB}, 0, v{vKB}")
    a(f"v_lshlrev_b32 v{vEA}, 2, v{vSub}")
    a(f"v_add3_u32 v{vEA}, v{vEA}, v{vSg}, v{vKB}")
    a(f"v_lshlrev_b32 v{vEA}, 2, v{vEA}")
    a(f"s_mov_b32 s{sTMP+4}, {ENT_OFF}")
    entry_loads(sTMP+4)
    a("s_waitcnt vmcnt(0)")
    a("s_branch K2_WINDOW")
    a.label("K2_EPI")
    a("v_cmp_gt_u32 vcc, 640, v0")
    a("s_and_saveexec_b64 s[54:55], vcc")
    a("s_cbranch_execz K2_EXIT")
    a("v_lshlrev_b32 v1, 6, v0")
    for i in range(4):
        a(f"ds_read_b128 {vr(32+4*i,4)}, v1 offset:{L_AGG+16*i}")
    a(f"s_mov_b32 s{sTMP}, {hex(C_2MK)}")
    a(f"s_mov_b32 s{sTMP+1}, {hex(NEG_LOG2E)}")
    a("s_waitcnt lgkmcnt(0)")
    for i in range(8):
        a(f"v_cvt_f32_f64 v{8+i}, v[{32+2*i}:{33+2*i}]")
    for i in range(8):
        a(f"v_mul_f32 v{8+i}, s{sTMP}, v{8+i}")
    for i in range(8):
        a(f"v_mul_f32 v{16+i}, s{sTMP+1}, v{8+i}")
    for i in range(8):
        a(f"v_exp_f32 v{16+i}, v{16+i}")
    for i in range(8):
        a(f"v_add_f32 v{16+i}, 1.0, v{16+i}")
    for i in range(8):
        a(f"v_rcp_f32 v{16+i}, v{16+i}")
    a("s_nop 0")
    for i in range(8):
        a(f"v_mul_f32 v{8+i}, v{8+i}, v{16+i}")
    for i in range(4):
        a(f"v_cvt_pk_bf16_f32 v{24+i}, v{8+2*i}, v{9+2*i}")
    a("v_lshlrev_b32 v2, 4, v0")
    a(f"s_mul_i32 s{sTMP}, s{sBIN}, {NPB*256}")
    a(f"buffer_store_dwordx4 v[24:27], v2, {sr(sO,4)}, s{sTMP} offen")
    if "stamp" in OPT:
        a("s_waitcnt vmcnt(0)")
        stamp(a, 7)
        a("s_memrealtime s[82:83]")
        a("s_waitcnt lgkmcnt(0)")
        stamp_out(a, 10)
    a.label("K2_EXIT")
    a("s_endpgm")

HEADER = f"""; EGC edge-gated message passing: out = silu(x@U + segsum_dst(sigmoid([x_dst,x_src,e]@G) * (x@V)[src]))
; @launch kernel=egc_prep_kernel grid=({K1_WGS},1,1) block=(256,1,1) lds={K1_LDS}
; @launch kernel=egc_main_kernel grid=({NB},1,1) block=(1024,1,1) lds={K2_LDS}
.amdgcn_target "amdgcn-amd-amdhsa--gfx950"
.text
"""

def kd(name, vgpr, sgpr):
    return f""".amdhsa_kernel {name}
  .amdhsa_next_free_vgpr {vgpr}
  .amdhsa_next_free_sgpr {sgpr}
  .amdhsa_accum_offset {((vgpr+3)//4)*4}
  .amdhsa_group_segment_fixed_size 0
  .amdhsa_kernarg_size 80
  .amdhsa_user_sgpr_count 2
  .amdhsa_user_sgpr_kernarg_segment_ptr 1
  .amdhsa_system_sgpr_workgroup_id_x 1
.end_amdhsa_kernel
"""

def main():
    a = Asm()
    a.raw(".globl egc_prep_kernel")
    k1(a)
    a.raw(".globl egc_main_kernel")
    k2(a)
    out = HEADER + a.text()
    out += '.section .rodata,"a"\n.p2align 6\n' + kd("egc_prep_kernel", 96, 64) + ".p2align 6\n" + kd("egc_main_kernel", 128, 96)
    path = sys.argv[1] if len(sys.argv) > 1 else f"cdna_kernels/{NAME}.s"
    open(path, "w").write(out)
    print("wrote", path, len(out), "bytes")

if __name__ == "__main__":
    main()
```

```python
import sys, struct, os
OPT = set(os.environ.get("OPT","").split(","))

NAME = "gather_scatter__edge_featured_mpnn_egc__graph"
N = 10000; E = 320000
NB = 250; NPB = 40
NC = 250; CE = 1280
KSH = 26
def f2u(x): return struct.unpack('<I', struct.pack('<f', x))[0]
NEG_LOG2E = f2u(-1.4426950408889634)
C_2MK = f2u(2.0 ** -KSH)
C_2PK = f2u(2.0 ** KSH)
BF16_NEGK = 0xC1D0
assert KSH == 26

HALF_STRIDE = (N + 1) * 256
T_OFF = 0;            T_BYTES = 2 * HALF_STRIDE
ENT_OFF = 0x500000
OFFS_OFF = 0x640000
WF_OFF = 0x680000
CF_OFF = 0x690000
WS_END = 0x6A0000

NT_WG = 314
BIN0 = NT_WG
WF0 = BIN0 + NC
CF0 = WF0 + 8
K1_WGS = CF0 + 1
K1_LDS = 128 * 288

class Asm:
    def __init__(self): self.lines = []
    def __call__(self, s):
        for l in s.split("\n"):
            l = l.strip()
            if l: self.lines.append("    " + l)
    def label(self, n): self.lines.append(n + ":")
    def raw(self, s): self.lines.append(s)
    def text(self): return "\n".join(self.lines) + "\n"

def vr(i, n=1): return f"v{i}" if n == 1 else f"v[{i}:{i+n-1}]"
def sr(i, n=1): return f"s{i}" if n == 1 else f"s[{i}:{i+n-1}]"

def srd(a, d, base, nbytes):
    a(f"s_mov_b32 s{d}, s{base}")
    a(f"s_and_b32 s{d+1}, s{base+1}, 0xffff")
    a(f"s_mov_b32 s{d+2}, {nbytes}")
    a(f"s_mov_b32 s{d+3}, 0x00020000")

def wave_scan(a, v):
    for sh in (1, 2, 4, 8):
        a("s_nop 1")
        a(f"v_add_u32_dpp v{v}, v{v}, v{v} row_shr:{sh} row_mask:0xf bank_mask:0xf bound_ctrl:1")
    a("s_nop 1")
    a(f"v_add_u32_dpp v{v}, v{v}, v{v} row_bcast:15 row_mask:0xa bank_mask:0xf")
    a("s_nop 1")
    a(f"v_add_u32_dpp v{v}, v{v}, v{v} row_bcast:31 row_mask:0xc bank_mask:0xf")

def k1_table(a):
    a.label("K1_TABLE")
    a("s_and_b32 s3, s2, 1")
    a("s_lshr_b32 s28, s2, 1")
    srd(a, 20, 16, 69632)
    srd(a, 36, 14, 32768)
    srd(a, 24, 4, N * 256)
    srd(a, 32, 18, 2 * HALF_STRIDE)
    a("s_lshl_b32 s29, s3, 7")
    a("s_add_u32 s30, s29, 32768")
    a("v_lshrrev_b32 v1, 3, v0")
    a("v_and_b32 v2, 7, v0")
    a("v_lshlrev_b32 v3, 8, v1")
    a("v_lshl_add_u32 v3, v2, 4, v3")
    for i in range(4):
        a(f"buffer_load_dwordx4 {vr(8+4*i,4)}, v3, s[20:23], s30 offen")
        if i < 3: a("s_add_u32 s30, s30, 8192")
    for i in range(4):
        a(f"buffer_load_dwordx4 {vr(24+4*i,4)}, v3, s[36:39], s29 offen")
        if i < 3: a("s_add_u32 s29, s29, 8192")
    a("v_mul_u32_u24 v7, 288, v1")
    a("v_lshl_add_u32 v7, v2, 4, v7")
    a("v_and_b32 v2, 15, v0")
    a("v_bfe_u32 v3, v0, 4, 2")
    a("v_lshrrev_b32 v4, 6, v0")
    a("s_lshl_b32 s31, s28, 6")
    a("v_lshl_add_u32 v5, v4, 4, s31")
    a("v_add_u32 v6, v5, v2")
    a("v_lshlrev_b32 v6, 8, v6")
    a("v_lshl_add_u32 v6, v3, 4, v6")
    for ks in range(4):
        a(f"buffer_load_dwordx4 {vr(40+4*ks,4)}, v6, s[24:27], 0 offen offset:{64*ks}")
    for i in range(8):
        a(f"s_waitcnt vmcnt({11-i})")
        a(f"ds_write_b128 v7, {vr(8+4*i,4)} offset:{9216*(i&3) + 128*(i>>2)}")
    a("v_lshrrev_b32 v7, 2, v2")
    a("v_lshl_add_u32 v7, v3, 3, v7")
    a("v_mul_u32_u24 v7, 288, v7")
    a("v_and_b32 v1, 3, v0")
    a("v_lshl_add_u32 v7, v1, 3, v7")
    a("v_lshl_add_u32 v1, v3, 2, v5")
    a("v_lshlrev_b32 v6, 8, v1")
    a("v_lshl_add_u32 v6, v2, 4, v6")
    a(f"s_mul_i32 s3, s3, {HALF_STRIDE}")
    a("s_waitcnt vmcnt(0) lgkmcnt(0)")
    a("s_barrier")
    ACC = 64
    BF = [8, 24]
    def reads(t):
        b = BF[t & 1]
        for ks in range(4):
            a(f"ds_read_b64_tr_b16 {vr(b+4*ks,2)}, v7 offset:{9216*ks + 32*t}")
            a(f"ds_read_b64_tr_b16 {vr(b+4*ks+2,2)}, v7 offset:{9216*ks + 32*t + 1152}")
    reads(0)
    for t in range(8):
        if t < 7:
            reads(t + 1)
            a("s_waitcnt lgkmcnt(8)")
        else:
            a("s_waitcnt lgkmcnt(0)")
        b = BF[t & 1]
        for ks in range(4):
            c = "0" if ks == 0 else vr(ACC+4*t, 4)
            a(f"v_mfma_f32_16x16x32_bf16 {vr(ACC+4*t,4)}, {vr(40+4*ks,4)}, {vr(b+4*ks,4)}, {c}")
    a("s_mov_b32 s40, 0x00800000")
    a("s_mov_b32 s41, 0x7fff0000")
    a(f"s_mov_b32 s42, {hex(NEG_LOG2E)}")
    a(f"s_movk_i32 s43, {N}")
    a("s_nop 6")
    for r in range(4):
        W = 8 + 8 * (r & 1)
        for t in range(4):
            a(f"v_mul_f32 v{ACC+4*t+r}, s42, v{ACC+4*t+r}")
        for p in range(4):
            lo, hi = ACC + 4*(2*p) + r, ACC + 4*(2*p+1) + r
            a(f"v_cvt_pk_bf16_f32 v{W+p}, v{lo}, v{hi}")
            a(f"v_max_f32_e64 v{hi}, |v{hi}|, s40")
        for p in range(4):
            hi = ACC + 4*(2*p+1) + r
            a(f"v_add_u32 v{hi}, 0x8000, v{hi}")
        for p in range(4):
            hi = ACC + 4*(2*p+1) + r
            a(f"v_sub_u32_sdwa v{hi}, v{hi}, v{W+p} dst_sel:DWORD dst_unused:UNUSED_PAD src0_sel:DWORD src1_sel:WORD_0")
        a(f"v_add_u32 v2, {r}, v1")
        a("v_cmp_ge_u32 vcc, s43, v2")
        for p in range(4):
            hi = ACC + 4*(2*p+1) + r
            a(f"v_bfi_b32 v{W+p}, s41, v{hi}, v{W+p}")
        a("s_and_saveexec_b64 s[44:45], vcc")
        a(f"s_cbranch_execz K1_TAB_SKIP{r}")
        a(f"buffer_store_dwordx4 {vr(W,4)}, v6, s[32:35], s3 offen offset:{256*r}")
        a.label(f"K1_TAB_SKIP{r}")
        a("s_mov_b64 exec, s[44:45]")
    a("s_endpgm")

def k1_bin(a):
    HIST, OFF2, SORT = 0, 1024, 2048
    a.label("K1_BIN")
    a(f"s_sub_u32 s3, s2, {BIN0}")
    srd(a, 20, 8, E * 4)
    srd(a, 24, 10, E * 4)
    srd(a, 28, 18, WS_END)
    a("v_lshlrev_b32 v1, 2, v0")
    a("s_mul_i32 s32, s3, 5120")
    a("v_mov_b32 v2, 0")
    a(f"ds_write_b32 v1, v2 offset:{HIST}")
    DST, SRC = 8, 16
    for m in range(5):
        a(f"buffer_load_dword v{DST+m}, v1, s[24:27], s32 offen offset:{1024*m if m<4 else 0}" if m < 4 else
          f"s_add_u32 s33, s32, 4096\nbuffer_load_dword v{DST+m}, v1, s[24:27], s33 offen")
    for m in range(5):
        a(f"buffer_load_dword v{SRC+m}, v1, s[20:23], s32 offen offset:{1024*m}" if m < 4 else
          f"buffer_load_dword v{SRC+m}, v1, s[20:23], s33 offen")
    a("s_mov_b32 s34, 52429")
    a("s_waitcnt lgkmcnt(0)")
    a("s_barrier")
    BINR, RANK = 24, 32
    a("v_mov_b32 v3, 1")
    for m in range(5):
        a(f"s_waitcnt vmcnt({9-m})")
        a(f"v_mul_u32_u24 v{BINR+m}, s34, v{DST+m}")
        a(f"v_lshrrev_b32 v{BINR+m}, 21, v{BINR+m}")
        a(f"v_mul_u32_u24 v4, 40, v{BINR+m}")
        a(f"v_sub_u32 v{DST+m}, v{DST+m}, v4")
        a(f"v_lshlrev_b32 v{BINR+m}, 2, v{BINR+m}")
        a(f"ds_add_rtn_u32 v{RANK+m}, v{BINR+m}, v3 offset:{HIST}")
    for m in range(5):
        a(f"s_waitcnt vmcnt({4-m})")
        a(f"v_lshl_or_b32 v{SRC+m}, v{DST+m}, 14, v{SRC+m}")
        a(f"v_add_u32 v4, {256*m}, v0")
        a(f"v_lshl_or_b32 v{SRC+m}, v4, 20, v{SRC+m}")
    a("s_waitcnt lgkmcnt(0)")
    a("s_barrier")
    a("v_and_b32 v5, 63, v0")
    a("v_lshlrev_b32 v5, 4, v5")
    a(f"ds_read_b128 v[40:43], v5 offset:{HIST}")
    a("s_waitcnt lgkmcnt(0)")
    a("v_add_u32 v44, v40, v41")
    a("v_add_u32 v45, v42, v43")
    a("v_add_u32 v46, v44, v45")
    a("v_mov_b32 v47, v46")
    wave_scan(a, 47)
    a("v_sub_u32 v48, v47, v46")
    a("v_add_u32 v49, v48, v40")
    a("v_add_u32 v50, v48, v44")
    a("v_add_u32 v51, v50, v42")
    a(f"ds_write_b128 v5, v[48:51] offset:{OFF2}")
    a("v_readfirstlane_b32 s35, v0")
    a("s_lshl_b32 s36, s3, 10")
    a(f"s_add_u32 s36, s36, {OFFS_OFF}")
    a("s_cmp_ge_u32 s35, 64")
    a("s_cbranch_scc1 K1_BIN_NOPUB")
    for i in range(4):
        a(f"v_lshl_or_b32 v{52+i}, v{40+i}, 16, v{48+i}")
    a("buffer_store_dwordx4 v[52:55], v5, s[28:31], s36 offen")
    a.label("K1_BIN_NOPUB")
    a("s_waitcnt lgkmcnt(0)")
    for m in range(5):
        a(f"ds_read_b32 v{40+m}, v{BINR+m} offset:{OFF2}")
    for m in range(5):
        a(f"s_waitcnt lgkmcnt({4-m})")
        a(f"v_add_lshl_u32 v{40+m}, v{40+m}, v{RANK+m}, 2")
        a(f"ds_write_b32 v{40+m}, v{SRC+m} offset:{SORT}")
    a("s_waitcnt lgkmcnt(0)")
    a("s_barrier")
    a("v_lshlrev_b32 v5, 4, v0")
    a(f"ds_read_b128 v[40:43], v5 offset:{SORT}")
    a(f"s_add_u32 s36, s32, {ENT_OFF}")
    a("v_cmp_gt_u32 vcc, 64, v0")
    a("s_waitcnt lgkmcnt(0)")
    a("buffer_store_dwordx4 v[40:43], v5, s[28:31], s36 offen")
    a("s_and_saveexec_b64 s[38:39], vcc")
    a("s_cbranch_execz K1_BIN_END")
    a(f"ds_read_b128 v[44:47], v5 offset:{SORT+4096}")
    a("s_add_u32 s36, s36, 4096")
    a("s_waitcnt lgkmcnt(0)")
    a("buffer_store_dwordx4 v[44:47], v5, s[28:31], s36 offen")
    a.label("K1_BIN_END")
    a("s_endpgm")

def k1_wf(a):
    a.label("K1_WF")
    a(f"s_sub_u32 s3, s2, {WF0}")
    a("v_lshrrev_b32 v1, 6, v0")
    a("s_nop 0")
    a("v_readfirstlane_b32 s28, v1")
    a("s_lshl_b32 s3, s3, 2")
    a("s_add_u32 s3, s3, s28")
    a("s_lshr_b32 s29, s3, 1")
    a("s_and_b32 s30, s3, 1")
    a("s_cmp_lt_u32 s29, 8")
    a("s_cselect_b32 s20, s16, s12")
    a("s_cselect_b32 s21, s17, s13")
    a("s_and_b32 s21, s21, 0xffff")
    a("s_mov_b32 s22, 32768")
    a("s_mov_b32 s23, 0x00020000")
    srd(a, 24, 18, WS_END)
    a("v_and_b32 v2, 15, v0")
    a("v_bfe_u32 v3, v0, 4, 2")
    a("s_and_b32 s31, s29, 7")
    a("s_lshl_b32 s31, s31, 5")
    a("s_lshl_b32 s32, s30, 14")
    a("s_add_u32 s31, s31, s32")
    a("v_lshlrev_b32 v4, 11, v3")
    a("v_lshl_add_u32 v4, v2, 1, v4")
    a("s_add_u32 s33, s31, 8192")
    for f in range(2):
        for m in range(8):
            a(f"buffer_load_ushort v{8+8*f+m}, v4, s[20:23], s{31 if f==0 else 33} offen offset:{256*m}")
    a("v_and_b32 v5, 63, v0")
    a("v_lshlrev_b32 v5, 4, v5")
    a("s_lshl_b32 s34, s3, 11")
    a(f"s_add_u32 s34, s34, {WF_OFF}")
    for f in range(2):
        a(f"s_waitcnt vmcnt({8 if f==0 else 1})")
        for p in range(4):
            a(f"v_lshl_or_b32 v{24+4*f+p}, v{8+8*f+2*p+1}, 16, v{8+8*f+2*p}")
        a(f"buffer_store_dwordx4 {vr(24+4*f,4)}, v5, s[24:27], s34 offen offset:{1024*f}")
    a("s_endpgm")

def k1_cf(a):
    a.label("K1_CF")
    a("v_lshrrev_b32 v1, 6, v0")
    a("s_nop 0")
    a("v_readfirstlane_b32 s28, v1")
    srd(a, 20, 16, 69632)
    srd(a, 24, 18, WS_END)
    a("v_and_b32 v2, 15, v0")
    a("v_bfe_u32 v3, v0, 4, 2")
    a("v_and_b32 v4, 1, v3")
    a("v_lshlrev_b32 v4, 11, v4")
    a("v_lshl_add_u32 v4, v2, 1, v4")
    a("s_lshl_b32 s29, s28, 6")
    a("s_add_u32 s29, s29, 65536")
    for f in range(2):
        for m in range(8):
            a(f"buffer_load_ushort v{8+8*f+m}, v4, s[20:23], s29 offen offset:{256*m + 32*f}")
    a("v_and_b32 v5, 63, v0")
    a("v_lshlrev_b32 v5, 4, v5")
    a("s_lshl_b32 s34, s28, 11")
    a(f"s_add_u32 s34, s34, {CF_OFF}")
    a(f"s_mov_b32 s30, {hex(NEG_LOG2E)}")
    a("v_cmp_gt_u32 vcc, 2, v3")
    a("v_cmp_eq_u32 s[32:33], 2, v3")
    a(f"v_mov_b32 v6, {hex(BF16_NEGK)}")
    a("v_mov_b32 v7, 0")
    a("s_waitcnt vmcnt(0)")
    for f in range(2):
        for m in range(8):
            a(f"v_lshlrev_b32 v{8+8*f+m}, 16, v{8+8*f+m}")
            a(f"v_mul_f32 v{8+8*f+m}, s30, v{8+8*f+m}")
        for p in range(4):
            a(f"v_cvt_pk_bf16_f32 v{24+4*f+p}, v{8+8*f+2*p}, v{8+8*f+2*p+1}")
        a(f"v_cndmask_b32 v30, v7, v6, s[32:33]" if False else "")
        a(f"v_cndmask_b32 v32, v7, v6, s[32:33]")
        a(f"v_cndmask_b32 v{24+4*f+0}, v7, v{24+4*f+0}, vcc")
        a(f"v_cndmask_b32 v{24+4*f+1}, v7, v{24+4*f+1}, vcc")
        a(f"v_cndmask_b32 v{24+4*f+2}, v32, v{24+4*f+2}, vcc")
        a(f"v_cndmask_b32 v{24+4*f+3}, v7, v{24+4*f+3}, vcc")
        a(f"buffer_store_dwordx4 {vr(24+4*f,4)}, v5, s[24:27], s34 offen offset:{1024*f}")
    a("s_endpgm")

def k1(a):
    a.raw(".p2align 8")
    a.raw(".type egc_prep_kernel,@function")
    a.label("egc_prep_kernel")
    a(f"s_cmp_ge_u32 s2, {K1_WGS}")
    a("s_cbranch_scc1 K1_EXIT")
    a("s_load_dwordx2 s[4:5], s[0:1], 0")
    a("s_load_dwordx4 s[8:11], s[0:1], 16")
    a("s_load_dwordx4 s[12:15], s[0:1], 32")
    a("s_load_dwordx2 s[16:17], s[0:1], 48")
    a("s_load_dwordx2 s[18:19], s[0:1], 72")
    a("s_waitcnt lgkmcnt(0)")
    a(f"s_cmp_lt_u32 s2, {BIN0}")
    a("s_cbranch_scc1 K1_TABLE")
    a(f"s_cmp_lt_u32 s2, {WF0}")
    a("s_cbranch_scc1 K1_BIN")
    a(f"s_cmp_lt_u32 s2, {CF0}")
    a("s_cbranch_scc1 K1_WF")
    a("s_branch K1_CF")
    a.label("K1_EXIT")
    a("s_endpgm")
    k1_table(a)
    k1_bin(a)
    k1_wf(a)
    k1_cf(a)

CAPE = 1900
L_CNT = 0; L_TOT = 256
L_ROW = 512
L_GN = L_ROW + 8192
L_EO = L_GN + 8192
L_PPK = L_EO + 8192
L_CS = L_PPK + 20480
L_AGG = L_CS + 8192
L_ES = L_AGG + 40960
L_RAW = L_ES
L_XS = L_ES + 16384
K2_LDS = L_ES + 65536
assert K2_LDS <= 163840

QH = [8, 24, 40]; D = 56; B = 72; A = 88; U = 92; T = 100; R = 104; G = 108
vG = 112; vGn = 113; vTa = 114; vTe = 115; vJ16 = 116; vJ4 = 117; vTa0 = 118; vTe0 = 119; vCS = 120
vDUM = 124
vTd = 122; vEo = 123; vH16 = 125
sX = 12; sE = 16; sO = 20; sWS = 24
sWV = 28
sLO = 30
sHI = 32
sCC = 34
sN = 36; sNIT = 37; sL = 38
sLI = 39
sAI = 40
sHL = 41
sHG = 42
sTOT = 43
sWIN = 44
sDI = 45
sM0 = 62
sM = 46
sTMP = 56

STAMP_OFF = 0x700000
def stamp(a, i):
    if "stamp" in OPT:
        a(f"s_memtime s[{64+2*i}:{65+2*i}]")
        a("s_waitcnt lgkmcnt(0)")
def stamp_out(a, n):
    if "stamp" in OPT:
        a("s_cmp_eq_u32 s28, 0")
        a("s_cbranch_scc0 STAMP_SKIP")
        a("s_mov_b64 exec, -1")
        a("s_mov_b32 s26, 0x800000")
        for i in range(n):
            a(f"v_mov_b32 v100, s{64+2*i}")
            a(f"v_mov_b32 v101, s{65+2*i}")
            a(f"s_lshl_b32 s60, s2, 7")
            a(f"s_add_u32 s60, s60, {STAMP_OFF + 8*i}")
            a("v_mov_b32 v102, 0")
            a(f"buffer_store_dwordx2 v[100:101], v102, {sr(sWS,4)}, s60 offen")
            a("s_nop 1")
        a.label("STAMP_SKIP")
def P2(x): return f"v[{x}:{x+1}]"

def pair_code(ta, tb, h, shl):
    s = []
    if shl:
        for r in range(4):
            s.append(f"v_lshlrev_b32 v{h[r]}, 16, v{h[r]}")
            s.append(f"v_lshlrev_b32 v{h[r]+1}, 16, v{h[r]+1}")
    for r in range(4):
        s.append(f"v_exp_f32_e64 v{U+2*r}, v{D+4*ta+r} clamp")
        s.append(f"v_exp_f32_e64 v{U+2*r+1}, v{D+4*tb+r} clamp")
    for r in range(4):
        s.append(f"v_pk_add_f32 {P2(U+2*r)}, {P2(U+2*r)}, s[{sCC}:{sCC+1}]")
    d0, d1, d2, d3 = U, U+2, U+4, U+6
    s += [f"v_pk_mul_f32 {P2(T)}, {P2(h[0])}, {P2(d1)}",
          f"v_pk_mul_f32 {P2(T+2)}, {P2(h[2])}, {P2(d3)}",
          f"v_pk_fma_f32 {P2(T)}, {P2(h[1])}, {P2(d0)}, {P2(T)}",
          f"v_pk_fma_f32 {P2(T+2)}, {P2(h[3])}, {P2(d2)}, {P2(T+2)}",
          f"v_pk_mul_f32 {P2(d0)}, {P2(d0)}, {P2(d1)}",
          f"v_pk_mul_f32 {P2(d2)}, {P2(d2)}, {P2(d3)}",
          f"v_pk_mul_f32 {P2(T)}, {P2(T)}, {P2(d2)}",
          f"v_pk_mul_f32 {P2(d1)}, {P2(d0)}, {P2(d2)}",
          f"v_pk_fma_f32 {P2(T)}, {P2(T+2)}, {P2(d0)}, {P2(T)}",
          f"v_rcp_f32 v{d1}, v{d1}",
          f"v_rcp_f32 v{d1+1}, v{d1+1}",
          "s_nop 0",
          f"v_pk_mul_f32 {P2(T)}, {P2(T)}, {P2(d1)}"]
    if "noadd" not in OPT:
        s += [f"v_cvt_f64_f32 {P2(U)}, v{T}",
              f"v_cvt_f64_f32 {P2(U+4)}, v{T+1}",
              f"ds_add_f64 v{vG}, {P2(U)} offset:{L_AGG + 128*ta}",
              f"ds_add_f64 v{vG}, {P2(U+4)} offset:{L_AGG + 128*tb}"]
    return s

uid = [0]
def lab(p):
    uid[0] += 1
    return f"{p}_{uid[0]}"

def list_stage(a):
    l0 = lab("K2_NE")
    a(f"s_cmp_lt_u32 s{sDI}, s{sL}")
    a(f"s_cbranch_scc0 {l0}")
    eo_read(a)
    a.label(l0)
    a(f"ds_read_b128 {vr(R,4)}, v{vTa} offset:{L_ROW}")
    a(f"ds_read_b96 {vr(G,3)}, v{vTa} offset:{L_GN}")
    a(f"s_mov_b32 s{sHG}, s{sHL}")
    a(f"v_add_u32 v{vTa}, 64, v{vTa}")
    a(f"s_add_u32 s{sLI}, s{sLI}, 1")
    a(f"s_cmp_lg_u32 s{sLI}, s{sL}")
    l = lab("K2_LW")
    a(f"s_cbranch_scc1 {l}")
    a(f"s_mov_b32 s{sLI}, 0")
    a(f"s_mov_b32 s{sHL}, {HALF_STRIDE}")
    a(f"v_mov_b32 v{vTa}, v{vTa0}")
    a.label(l)

def eo_read(a):
    a(f"ds_read_b32 v{vEo}, v{vTd} offset:{L_EO}")
    a(f"v_add_u32 v{vTd}, 64, v{vTd}")

def e_dma(a):
    a(f"s_mov_b32 m0, s{sM0}")
    a(f"v_add_u32 v{vEo}, v{vEo}, v{vH16}")
    if "samee" in OPT: a(f"v_and_b32 v{vEo}, 0x1f, v{vEo}")
    a(f"s_add_u32 s{sM0}, s{sM0}, 512")
    a(f"s_add_u32 s{sDI}, s{sDI}, 1")
    a(f"s_mov_b64 exec, {sr(sLO,2)}")
    a(f"buffer_load_dwordx4 v{vEo}, {sr(sE,4)}, 0 offen lds")
    a("s_mov_b64 exec, -1")

def gather_stage(a, buf):
    for r in range(4):
        a(f"v_add_u32 v{R+r}, v{R+r}, v{vJ16}")
    if "samerow" in OPT:
        for r in range(4): a(f"v_and_b32 v{R+r}, 0xff, v{R+r}")
    for r in range(4):
        a(f"buffer_load_dwordx4 {vr(buf+4*r,4)}, v{R+r}, {sr(sWS,4)}, s{sHG} offen")
    l = lab("K2_ND")
    a(f"s_cmp_lt_u32 s{sDI}, s{sL}")
    a(f"s_cbranch_scc0 {l}")
    e_dma(a)
    a.label(l)

def ap_stage(a, dstG):
    l = lab("K2_AW")
    a(f"s_cmp_lg_u32 s{sAI}, s{sL}")
    a(f"s_cbranch_scc1 {l}")
    a(f"s_mov_b32 s{sAI}, 0")
    if "noprio" not in OPT: a("s_setprio 0")
    a(f"v_add_u32 v{vJ4}, 256, v{vJ4}")
    a(f"v_mov_b32 v{vTe}, v{vTe0}")
    for t in range(4):
        a(f"ds_read_b128 {vr(B+4*t,4)}, v{vCS} offset:{L_CS + 1024*(4+t)}")
    a.label(l)
    a(f"s_add_u32 s{sAI}, s{sAI}, 1")
    a(f"v_add_lshl_u32 v{dstG}, v{G}, v{vJ4}, 1")
    a(f"v_add_u32 v{G+1}, v{G+1}, v{vJ4}")
    a(f"v_add_u32 v{G+2}, v{G+2}, v{vJ4}")
    a(f"s_mov_b64 exec, {sr(sLO,2)}")
    a(f"ds_read_b128 {vr(A,4)}, v{vTe}")
    a(f"s_mov_b64 exec, {sr(sHI,2)}")
    for t in range(4 if "nop" not in OPT else 0):
        a(f"ds_read_b32 v{B+4*t}, v{G+1} offset:{L_PPK + 64*t}")
        a(f"ds_read_b32 v{B+4*t+1}, v{G+2} offset:{L_PPK + 64*t}")
    a("s_mov_b64 exec, -1")
    a(f"v_add_u32 v{vTe}, 512, v{vTe}")

def tile_body(a, k):
    buf = QH[k]; nbuf = QH[(k + 2) % 3]
    l1, l2, l3 = lab("K2_W"), lab("K2_W"), lab("K2_W")
    a(f"s_add_u32 s{sTMP+1}, s{sN}, 3")
    a(f"s_add_u32 s{sTMP}, s{sN}, 1")
    a(f"s_cmp_lt_u32 s{sTMP+1}, s{sL}")
    a(f"s_cbranch_scc1 {l2}")
    a(f"s_cmp_lt_u32 s{sTMP}, s{sNIT}")
    a(f"s_cbranch_scc1 {l1}")
    a("s_waitcnt vmcnt(0)")
    a.label(l1)
    a("s_waitcnt vmcnt(4)")
    a.label(l2)
    a("s_waitcnt vmcnt(6)")
    for t in (1, 3):
        p = t >> 1
        for rr in (0, 2):
            a(f"v_pk_mov_b32 {P2(D+4*t+rr)}, {P2(buf+4*rr)}, {P2(buf+4*(rr+1))} op_sel:[{p},{p}]")
    for t in (0, 2):
        p = t >> 1
        for r in range(4):
            a(f"v_lshlrev_b32 v{D+4*t+r}, 16, v{buf+4*r+p}")
    a("s_waitcnt lgkmcnt(4)")
    for t in (1, 3, 0, 2):
        a(f"v_mfma_f32_16x16x32_bf16 {vr(D+4*t,4)}, {vr(A,4)}, {vr(B+4*t,4)}, {vr(D+4*t,4)}")
    le = lab("K2_E")
    a(f"s_cmp_lt_u32 s{sTMP}, s{sNIT}")
    a(f"s_cbranch_scc0 {le}")
    ap_stage(a, vGn)
    a.label(le)
    lf = lab("K2_F")
    a(f"s_add_u32 s{sTMP}, s{sN}, 2")
    a(f"s_cmp_lt_u32 s{sTMP}, s{sNIT}")
    a(f"s_cbranch_scc0 {lf}")
    list_stage(a)
    a.label(lf)
    a("s_nop 2")
    h = [buf + 4*r + 2 for r in range(4)]
    for ins in pair_code(1, 3, h, False): a(ins)
    lh = lab("K2_H")
    a(f"s_cmp_lt_u32 s{sTMP}, s{sNIT}")
    a(f"s_cbranch_scc0 {lh}")
    a("s_waitcnt lgkmcnt(3)" if "noadd" not in OPT else "s_waitcnt lgkmcnt(1)")
    gather_stage(a, nbuf)
    a.label(lh)
    for ins in pair_code(0, 2, h, True): a(ins)
    a(f"v_mov_b32 v{vG}, v{vGn}")
    a(f"s_add_u32 s{sN}, s{sN}, 1")
    a(f"s_cmp_ge_u32 s{sN}, s{sNIT}")
    a("s_cbranch_scc1 K2_LOOP_DONE")

def table_prefetch(a, vL16):
    if "nopf" in OPT: return
    a(f"s_lshr_b32 s{sTMP+5}, s2, 3")
    a(f"s_mul_i32 s{sTMP+5}, s{sTMP+5}, 81920")
    a(f"s_lshl_b32 s{sTMP+6}, s28, 13")
    a(f"s_add_u32 s{sTMP+5}, s{sTMP+5}, s{sTMP+6}")
    a(f"s_cmp_lt_u32 s28, 10")
    a(f"s_cselect_b32 s{sTMP+5}, s{sTMP+5}, {WS_END}")
    a(f"v_lshlrev_b32 v{vDUM}, 3, v{vL16}")
    a(f"buffer_load_dword v{vDUM}, v{vDUM}, {sr(sWS,4)}, s{sTMP+5} offen")

def k2(a):
    a.raw(".p2align 8")
    a.raw(".type egc_main_kernel,@function")
    a.label("egc_main_kernel")
    a(f"s_cmp_ge_u32 s2, {NB}")
    a("s_cbranch_scc1 K2_EXIT")
    stamp(a, 0)
    if "stamp" in OPT:
        a("s_memrealtime s[78:79]")
        a("s_waitcnt lgkmcnt(0)")
    a("s_load_dwordx4 s[4:7], s[0:1], 0")
    a("s_load_dwordx2 s[8:9], s[0:1], 56")
    a("s_load_dwordx2 s[10:11], s[0:1], 72")
    a("v_lshrrev_b32 v1, 6, v0")
    a("v_mov_b32 v2, 0")
    a("v_readfirstlane_b32 s28, v1")
    a("v_lshlrev_b32 v3, 2, v0")
    a("v_cmp_gt_u32 vcc, 128, v0")
    a("s_and_saveexec_b64 s[54:55], vcc")
    a(f"ds_write_b32 v3, v2 offset:{L_CNT}")
    a("s_mov_b64 exec, -1")
    vW = 1; vOA = 2; vT16 = 3; vOf = 4; vL16 = 5
    a(f"v_lshrrev_b32 v{vW}, 2, v0")
    a(f"v_lshlrev_b32 v{vOA}, 10, v{vW}")
    a(f"v_lshlrev_b32 v{vT16}, 4, v0")
    a(f"v_and_b32 v{vL16}, 0x3f0, v{vT16}")
    a(f"s_lshl_b32 s{sTMP}, s2, 2")
    a(f"s_add_u32 s{sTMP}, s{sTMP}, {OFFS_OFF}")
    a(f"s_mul_i32 s{sTMP+1}, s2, {NPB*256}")
    a(f"s_mov_b32 s{sTMP+2}, {CF_OFF}")
    a(f"s_lshl_b32 s{sTMP+3}, s28, 12")
    a(f"s_add_u32 s{sTMP+3}, s{sTMP+3}, {WF_OFF}")
    a("s_waitcnt lgkmcnt(0)")
    srd(a, sWS, 10, WS_END)
    a(f"buffer_load_dword v{vOf}, v{vOA}, {sr(sWS,4)}, s{sTMP} offen")
    srd(a, sX, 4, N * 256)
    XR = 8; CSR = 12; WF = 16
    a(f"buffer_load_dwordx4 {vr(XR,4)}, v{vT16}, {sr(sX,4)}, s{sTMP+1} offen")
    a(f"v_and_b32 v6, 0x1ff0, v{vT16}")
    a(f"buffer_load_dwordx4 {vr(CSR,4)}, v6, {sr(sWS,4)}, s{sTMP+2} offen")
    for ks in range(4):
        a(f"buffer_load_dwordx4 {vr(WF+4*ks,4)}, v{vL16}, {sr(sWS,4)}, s{sTMP+3} offen offset:{1024*ks}")
    srd(a, sE, 6, E * 32)
    srd(a, sO, 8, N * 256)
    a("s_barrier")
    a(f"s_mov_b64 {sr(sLO,2)}, 0xffffffff")
    a(f"s_mov_b32 s{sHI}, 0")
    a(f"s_mov_b32 s{sHI+1}, -1")
    a(f"s_mov_b32 s{sCC}, {hex(C_2MK)}")
    a(f"s_mov_b32 s{sCC+1}, {hex(C_2MK)}")
    a(f"s_mov_b32 s{sWIN}, 0")
    vC = 32; vSub = 33; vWb = 34; vEA = 35; vPw = 36; vKB = 37
    a(f"v_and_b32 v{vSub}, 3, v0")
    a(f"v_mul_u32_u24 v{vWb}, {CE*32}, v{vW}")
    a(f"v_mul_u32_u24 v{vEA}, {CE*4}, v{vW}")
    a(f"v_cmp_gt_u32 vcc, 250, v{vW}")
    a(f"v_lshl_add_u32 v{vEA}, v{vSub}, 4, v{vEA}")
    a("s_waitcnt vmcnt(6)")
    a(f"v_lshrrev_b32 v{vC}, 16, v{vOf}")
    a(f"v_and_b32 v{vOf}, 0xffff, v{vOf}")
    a(f"v_cndmask_b32 v{vC}, 0, v{vC}, vcc")
    a(f"v_lshl_add_u32 v{vEA}, v{vOf}, 2, v{vEA}")
    EN = 40
    def entry_loads(soff):
        a(f"buffer_load_dwordx4 {vr(EN,4)}, v{vEA}, {sr(sWS,4)}, s{soff} offen")
        a(f"v_mad_i32_i24 v38, v{vSub}, -12, v{vEA}")
        a(f"buffer_load_dword v{EN+4}, v38, {sr(sWS,4)}, s{soff} offen offset:64")
    a(f"s_mov_b32 s{sTMP+4}, {ENT_OFF}")
    entry_loads(sTMP+4)
    if "pfearly" in OPT: table_prefetch(a, vL16)
    a(f"v_cmp_eq_u32 vcc, 0, v{vSub}")
    a(f"v_mov_b32 v47, {L_TOT}")
    a("s_and_saveexec_b64 s[54:55], vcc")
    a(f"ds_add_rtn_u32 v{vPw}, v47, v{vC}")
    a("s_mov_b64 exec, -1")
    a("v_lshrrev_b32 v48, 4, v0")
    a("v_mul_u32_u24 v48, 272, v48")
    a("v_and_b32 v49, 15, v0")
    a("v_lshl_add_u32 v48, v49, 4, v48")
    a(f"v_add_u32 v48, {L_XS}, v48")
    a("v_cmp_gt_u32 vcc, 768, v0")
    a("s_and_saveexec_b64 s[54:55], vcc")
    PE = 1 if ("pfearly" in OPT and "nopf" not in OPT) else 0
    a(f"s_waitcnt vmcnt({7+PE})")
    a(f"ds_write_b128 v48, {vr(XR,4)}")
    a("s_mov_b64 exec, -1")
    a("v_cmp_gt_u32 vcc, 512, v0")
    a("s_and_saveexec_b64 s[54:55], vcc")
    a(f"s_waitcnt vmcnt({6+PE})")
    a(f"ds_write_b128 v6, {vr(CSR,4)} offset:{L_CS}")
    a("s_mov_b64 exec, -1")
    a("v_bfe_u32 v50, v0, 4, 2")
    a("v_mul_u32_u24 v51, 272, v49")
    a("v_lshl_add_u32 v51, v50, 4, v51")
    a(f"v_add_u32 v51, {L_XS}, v51")
    a("s_waitcnt lgkmcnt(0)")
    a(f"v_mov_b32_dpp v{vPw}, v{vPw} quad_perm:[0,0,0,0] row_mask:0xf bank_mask:0xf")
    a("s_nop 0")
    a(f"v_mov_b32 v121, v{vPw}")
    a("s_barrier")
    stamp(a, 1)
    AF = 56; ACC = 72
    for rho in range(3):
        for ks in range(4):
            a(f"ds_read_b128 {vr(AF+4*ks,4)}, v51 offset:{rho*16*272 + ks*64}")
        if rho == 0:
            a(f"v_mov_b32 v52, {L_TOT}")
            a("ds_read_b32 v52, v52")
            a(f"s_waitcnt vmcnt({2+PE})")
        for ks in range(4):
            a(f"s_waitcnt lgkmcnt({(4 if rho==0 else 3)-ks})")
            c = "0" if ks == 0 else vr(ACC+4*rho, 4)
            a(f"v_mfma_f32_16x16x32_bf16 {vr(ACC+4*rho,4)}, {vr(AF+4*ks,4)}, {vr(WF+4*ks,4)}, {c}")
    a("v_lshlrev_b32 v53, 11, v50")
    a("v_lshl_add_u32 v53, v49, 2, v53")
    a(f"s_and_b32 s{sTMP}, s28, 7")
    a(f"s_lshl_b32 s{sTMP}, s{sTMP}, 6")
    a(f"v_add_u32 v53, s{sTMP}, v53")
    a("s_waitcnt lgkmcnt(0)")
    a(f"v_readfirstlane_b32 s{sTOT}, v52")
    a("s_cmp_ge_u32 s28, 8")
    a("s_cbranch_scc1 K2_XU")
    a(f"s_mov_b32 s{sTMP}, {hex(NEG_LOG2E)}")
    for rho in range(3):
        if rho == 2: a(f"s_mov_b64 exec, {sr(sLO,2)}")
        for r in range(4):
            a(f"v_mul_f32 v{ACC+4*rho+r}, s{sTMP}, v{ACC+4*rho+r}")
        for r in range(4):
            a(f"v_cvt_pk_bf16_f32 v{ACC+4*rho+r}, v{ACC+4*rho+r}, 0")
        for r in range(4):
            a(f"ds_write_b32 v53, v{ACC+4*rho+r} offset:{L_PPK + rho*8192 + r*512}")
    a("s_mov_b64 exec, -1")
    a("s_branch K2_GEMM_DONE")
    a.label("K2_XU")
    a(f"s_mov_b32 s{sTMP}, {hex(C_2PK)}")
    a("v_lshlrev_b32 v53, 1, v53")
    a(f"v_add_u32 v53, {L_AGG}, v53")
    for rho in range(3):
        if rho == 2: a(f"s_mov_b64 exec, {sr(sLO,2)}")
        for r in range(4):
            a(f"v_mul_f32 v{ACC+4*rho+r}, s{sTMP}, v{ACC+4*rho+r}")
        for r in range(4):
            a(f"v_cvt_f64_f32 v[{56+2*r}:{57+2*r}], v{ACC+4*rho+r}")
        for r in range(4):
            a(f"ds_write_b64 v53, v[{56+2*r}:{57+2*r}] offset:{rho*16384 + r*1024}")
    a("s_mov_b64 exec, -1")
    a.label("K2_GEMM_DONE")
    a("v_lshrrev_b32 v56, 2, v49")
    a("v_subrev_u32 v57, 2, v50")
    a("v_lshlrev_b32 v57, 1, v57")
    a("v_mov_b32 v58, 0x3f803f80")
    a("v_mov_b32 v59, 0")
    a("v_cmp_eq_u32 vcc, v56, v57")
    a("v_add_u32 v57, 1, v57")
    a("v_cmp_eq_u32 s[54:55], v56, v57")
    a(f"v_cndmask_b32 v{A}, v59, v58, vcc")
    a("v_mov_b32 v60, 0x3f80")
    a(f"v_cndmask_b32 v{A+1}, v59, v58, s[54:55]")
    a("v_cmp_eq_u32 vcc, 2, v50")
    a(f"v_mov_b32 v{A+3}, 0")
    a(f"v_lshlrev_b32 v{vJ16}, 4, v49")
    a(f"v_cndmask_b32 v{A+2}, v59, v60, vcc")
    a(f"v_mov_b32 v{vCS}, v{vL16}")
    a(f"v_mov_b32 v{vKB}, 0")
    a(f"s_waitcnt vmcnt({PE})")
    if "pfearly" not in OPT: table_prefetch(a, vCS)
    a.label("K2_WINDOW")
    vKE = 45; vRA = 46
    a(f"s_add_u32 s{sTMP}, s{sWIN}, {CAPE}")
    a(f"v_sub_u32 v{vKE}, s{sTMP}, v{vPw}")
    a(f"v_min_i32 v{vKE}, v{vKE}, v{vC}")
    a.label("K2_COPY")
    a(f"v_add_u32 v{vRA}, v{vPw}, v{vKB}")
    a(f"v_subrev_u32 v{vRA}, s{sWIN}, v{vRA}")
    a(f"v_sub_u32 v47, v{vKE}, v{vKB}")
    a(f"v_lshlrev_b32 v48, 2, v{vSub}")
    a("v_sub_u32 v61, v47, v48")
    a(f"v_sub_u32 v62, v47, v{vSub}")
    a(f"v_add_u32 v48, v{vRA}, v48")
    a(f"v_lshlrev_b32 v48, 3, v48")
    a(f"v_add_u32 v48, {L_RAW}, v48")
    a(f"v_add_lshl_u32 v63, v{vRA}, v{vSub}, 3")
    a(f"v_add_u32 v63, {L_RAW + 128}, v63")
    for i in range(4):
        a(f"v_cmp_lt_i32 {sr(sM+2*i,2)}, {i}, v61")
    a(f"v_cmp_lt_i32 {sr(sM+8,2)}, 16, v62")
    for i in range(5):
        l = lab("K2_CP")
        a(f"s_mov_b64 exec, {sr(sM+2*i,2)}")
        a(f"s_cbranch_execz {l}")
        if i < 4:
            a(f"ds_write2_b32 v48, v{EN+i}, v{vWb} offset0:{2*i} offset1:{2*i+1}")
        else:
            a(f"ds_write2_b32 v63, v{EN+4}, v{vWb} offset0:0 offset1:1")
        a.label(l)
    a("s_mov_b64 exec, -1")
    a(f"v_add_u32 v{vKB}, 20, v{vKB}")
    a(f"v_cmp_lt_i32 vcc, v{vKB}, v{vKE}")
    a("s_cmp_eq_u64 vcc, 0")
    a("s_cbranch_scc1 K2_COPIED")
    a(f"v_add_u32 v{vEA}, 80, v{vEA}")
    a(f"s_mov_b32 s{sTMP+4}, {ENT_OFF}")
    entry_loads(sTMP+4)
    a("s_waitcnt vmcnt(0)")
    a("s_branch K2_COPY")
    a.label("K2_COPIED")
    a("s_waitcnt lgkmcnt(0)")
    a("s_barrier")
    stamp(a, 2)
    a(f"s_sub_u32 s{sTMP}, s{sTOT}, s{sWIN}")
    a(f"s_min_u32 s{sTMP}, s{sTMP}, {CAPE}")
    RE = 56
    ND = 60; RK = 62
    a("v_lshlrev_b32 v64, 3, v0")
    a(f"v_add_u32 v64, {L_RAW}, v64")
    a(f"v_cmp_gt_u32 {sr(sM,2)}, s{sTMP}, v0")
    a("v_add_u32 v65, 1024, v0")
    a(f"v_cmp_gt_u32 {sr(sM+2,2)}, s{sTMP}, v65")
    a(f"ds_read_b64 {P2(RE)}, v64")
    a(f"ds_read_b64 {P2(RE+2)}, v64 offset:8192")
    a("v_mov_b32 v66, 1")
    for i in range(2):
        l = lab("K2_RK")
        a(f"s_waitcnt lgkmcnt({1-i})" if i == 0 else "s_waitcnt lgkmcnt(0)")
        a(f"v_bfe_u32 v{ND+i}, v{RE+2*i}, 14, 6")
        a(f"v_lshlrev_b32 v{ND+i}, 2, v{ND+i}")
        a(f"s_mov_b64 exec, {sr(sM+2*i,2)}")
        a(f"s_cbranch_execz {l}")
        a(f"ds_add_rtn_u32 v{RK+i}, v{ND+i}, v66 offset:{L_CNT}")
        a.label(l)
        a("s_mov_b64 exec, -1")
    a("s_waitcnt lgkmcnt(0)")
    a("s_barrier")
    stamp(a, 3)
    a(f"v_lshrrev_b32 v64, 2, v{vCS}")
    a(f"ds_read_b32 v65, v64 offset:{L_CNT}")
    a("s_waitcnt lgkmcnt(0)")
    a("v_add_u32 v66, 3, v65")
    a("v_and_b32 v66, -4, v66")
    a("v_mov_b32 v67, v66")
    wave_scan(a, 67)
    a("v_sub_u32 v68, v67, v66")
    a("s_nop 0")
    a(f"v_readlane_b32 s{sNIT}, v67, 63")
    for i in range(2):
        a(f"ds_bpermute_b32 v{70+i}, v{ND+i}, v68")
    for i in range(2):
        e = RE + 2*i
        a(f"v_lshrrev_b32 v{64+0}, 20, v{e}")
        a(f"v_lshl_add_u32 v{e+1}, v64, 5, v{e+1}")
        a(f"v_and_b32 v{e}, 0x3fff, v{e}")
        a(f"v_lshlrev_b32 v{e}, 8, v{e}")
        a(f"v_lshlrev_b32 v{ND+i}, 7, v{ND+i}")
    for i in range(2):
        e = RE + 2*i
        l = lab("K2_PL")
        a(f"s_waitcnt lgkmcnt({1-i})")
        a(f"s_mov_b64 exec, {sr(sM+2*i,2)}")
        a(f"s_cbranch_execz {l}")
        a(f"v_add_u32 v{70+i}, v{70+i}, v{RK+i}")
        a(f"v_and_b32 v{RK+i}, 3, v{RK+i}")
        a(f"v_lshlrev_b32 v64, 2, v{70+i}")
        a(f"v_cmp_eq_u32 vcc, 0, v{RK+i}")
        a(f"ds_write_b32 v64, v{e} offset:{L_ROW}")
        a(f"ds_write_b32 v64, v{e+1} offset:{L_EO}")
        a("s_and_b64 exec, exec, vcc")
        a(f"s_cbranch_execz {l}")
        a(f"ds_write_b32 v64, v{ND+i} offset:{L_GN}")
        a(f"v_and_b32 v69, 0xffffffc0, v64")
        a(f"v_bfe_u32 v{RK+i}, v64, 5, 1")
        a(f"v_lshl_add_u32 v69, v{RK+i}, 4, v69")
        a(f"v_bfe_u32 v{RK+i}, v64, 4, 1")
        a(f"v_lshl_add_u32 v69, v{RK+i}, 2, v69")
        a(f"ds_write_b32 v69, v{ND+i} offset:{L_GN + 32 + 4}")
        a.label(l)
        a("s_mov_b64 exec, -1")
    a(f"v_mov_b32 v72, {N*256}")
    a("v_mov_b32 v73, 0")
    a("s_cmp_eq_u32 s28, 0")
    a("s_cbranch_scc0 K2_NOPAD")
    a("v_add_u32 v64, v68, v65")
    for m in range(3):
        l = lab("K2_PAD")
        a("v_cmp_lt_u32 vcc, v64, v67")
        a("s_and_b64 exec, exec, vcc")
        a(f"s_cbranch_execz K2_NOPAD")
        a("v_lshlrev_b32 v69, 2, v64")
        a(f"ds_write_b32 v69, v72 offset:{L_ROW}")
        a(f"ds_write_b32 v69, v73 offset:{L_EO}")
        a("v_add_u32 v64, 1, v64")
    a.label("K2_NOPAD")
    a("s_mov_b64 exec, -1")
    a(f"s_add_u32 s{sTMP}, s{sNIT}, 15")
    a(f"s_lshr_b32 s{sTMP+1}, s{sTMP}, 4")
    a("s_cmp_eq_u32 s28, 1")
    a("s_cbranch_scc0 K2_NOTAIL")
    a(f"v_lshrrev_b32 v64, 4, v{vCS}")
    a(f"v_add_u32 v64, s{sNIT}, v64")
    a(f"s_lshl_b32 s{sTMP+2}, s{sTMP+1}, 4")
    a(f"v_cmp_gt_u32 vcc, s{sTMP+2}, v64")
    a("s_and_b64 exec, exec, vcc")
    a("s_cbranch_execz K2_NOTAIL")
    a("v_lshlrev_b32 v69, 2, v64")
    a(f"ds_write_b32 v69, v72 offset:{L_ROW}")
    a(f"ds_write_b32 v69, v73 offset:{L_EO}")
    a("v_and_b32 v70, 3, v64")
    a("v_cmp_eq_u32 vcc, 0, v70")
    a("s_and_b64 exec, exec, vcc")
    a("s_cbranch_execz K2_NOTAIL")
    a(f"ds_write_b32 v69, v73 offset:{L_GN}")
    a(f"v_and_b32 v70, 0xffffffc0, v69")
    a("v_bfe_u32 v71, v69, 5, 1")
    a("v_lshl_add_u32 v70, v71, 4, v70")
    a("v_bfe_u32 v71, v69, 4, 1")
    a("v_lshl_add_u32 v70, v71, 2, v70")
    a(f"ds_write_b32 v70, v73 offset:{L_GN + 32 + 4}")
    a.label("K2_NOTAIL")
    a("s_mov_b64 exec, -1")
    a(f"s_mul_i32 s{sTMP+2}, s28, s{sTMP+1}")
    a(f"s_add_u32 s{sTMP+3}, s{sTMP+2}, s{sTMP+1}")
    a(f"s_lshr_b32 s{sTMP+2}, s{sTMP+2}, 4")
    a(f"s_lshr_b32 s{sTMP+3}, s{sTMP+3}, 4")
    a(f"s_sub_u32 s{sL}, s{sTMP+3}, s{sTMP+2}")
    a(f"s_lshl_b32 s{sNIT}, s{sL}, 1")
    a("s_waitcnt lgkmcnt(0)")
    a("s_barrier")
    stamp(a, 4)
    a("s_cmp_eq_u32 s28, 0")
    a("s_cbranch_scc0 K2_NOZ2")
    a(f"v_lshrrev_b32 v64, 2, v{vCS}")
    a(f"ds_write_b32 v64, v73 offset:{L_CNT}")
    a.label("K2_NOZ2")
    a(f"s_cmp_eq_u32 s{sL}, 0")
    a("s_cbranch_scc1 K2_LOOP_DONE")
    for t in range(4):
        a(f"ds_read_b128 {vr(B+4*t,4)}, v{vCS} offset:{L_CS + 1024*t}")
    if "noprio" not in OPT: a("s_setprio 2")
    a(f"v_lshrrev_b32 v64, 5, v{vCS}")
    a(f"s_lshl_b32 s{sTMP+4}, s{sTMP+2}, 4")
    a(f"v_add_lshl_u32 v{vTd}, v64, s{sTMP+4}, 2")
    a(f"v_and_b32 v{vH16}, 16, v{vCS}")
    a(f"s_lshl_b32 s{sM0}, s{sTMP+2}, 9")
    a(f"s_add_u32 s{sM0}, s{sM0}, {L_ES}")
    a(f"s_mov_b32 s{sDI}, 0")
    eo_read(a)
    a("s_waitcnt lgkmcnt(0)")
    e_dma(a)
    a(f"s_cmp_lt_u32 s{sDI}, s{sL}")
    a("s_cbranch_scc0 K2_ND1")
    eo_read(a)
    a("s_waitcnt lgkmcnt(0)")
    e_dma(a)
    a.label("K2_ND1")
    a(f"v_lshrrev_b32 v64, 8, v{vCS}")
    a(f"v_bfe_u32 v65, v{vCS}, 4, 4")
    a(f"v_lshlrev_b32 v{vJ4}, 2, v65")
    a(f"s_lshl_b32 s{sTMP+4}, s{sTMP+2}, 6")
    a(f"v_lshl_add_u32 v{vTa0}, v64, 4, s{sTMP+4}")
    a(f"s_lshl_b32 s{sTMP+4}, s{sTMP+2}, 9")
    a(f"s_add_u32 s{sTMP+4}, s{sTMP+4}, {L_ES}")
    a(f"v_lshlrev_b32 v66, 5, v65")
    a(f"v_lshl_add_u32 v66, v64, 4, v66")
    a(f"v_add_u32 v{vTe0}, s{sTMP+4}, v66")
    a(f"v_mov_b32 v{vTa}, v{vTa0}")
    a(f"v_mov_b32 v{vTe}, v{vTe0}")
    a(f"s_mov_b32 s{sN}, 0")
    a(f"s_mov_b32 s{sLI}, 0")
    a(f"s_mov_b32 s{sAI}, 0")
    a(f"s_mov_b32 s{sHL}, 0")
    list_stage(a)
    a("s_waitcnt lgkmcnt(0)")
    gather_stage(a, QH[0])
    a(f"s_cmp_lt_u32 2, s{sL}")
    a("s_cbranch_scc1 K2_W0")
    a("s_waitcnt vmcnt(4)")
    a.label("K2_W0")
    a("s_waitcnt vmcnt(5)")
    ap_stage(a, vG)
    list_stage(a)
    a("s_waitcnt lgkmcnt(0)")
    gather_stage(a, QH[1])
    a.label("K2_LOOP")
    for k in range(3):
        tile_body(a, k)
    a("s_branch K2_LOOP")
    a.label("K2_LOOP_DONE")
    a("s_setprio 0")
    stamp(a, 5)
    a(f"s_lshl_b32 s{sTMP}, s28, 6")
    a(f"v_lshrrev_b32 v0, 4, v{vCS}")
    a(f"v_add_u32 v0, s{sTMP}, v0")
    a("s_waitcnt lgkmcnt(0)")
    a("s_barrier")
    a(f"s_add_u32 s{sWIN}, s{sWIN}, {CAPE}")
    a(f"s_cmp_lt_u32 s{sWIN}, s{sTOT}")
    a("s_cbranch_scc0 K2_EPI")
    a(f"v_lshrrev_b32 v{vW}, 2, v0")
    a(f"v_lshlrev_b32 v{vOA}, 10, v{vW}")
    a(f"s_lshl_b32 s{sTMP}, s2, 2")
    a(f"s_add_u32 s{sTMP}, s{sTMP}, {OFFS_OFF}")
    a(f"buffer_load_dword v{vOf}, v{vOA}, {sr(sWS,4)}, s{sTMP} offen")
    a(f"v_and_b32 v{vSub}, 3, v0")
    a(f"v_mul_u32_u24 v{vWb}, {CE*32}, v{vW}")
    a(f"v_mul_u32_u24 v{vEA}, {CE*4}, v{vW}")
    a(f"v_cmp_gt_u32 vcc, 250, v{vW}")
    a(f"v_lshl_add_u32 v{vEA}, v{vSub}, 4, v{vEA}")
    a("s_waitcnt vmcnt(0)")
    a(f"v_lshrrev_b32 v{vC}, 16, v{vOf}")
    a(f"v_and_b32 v{vOf}, 0xffff, v{vOf}")
    a(f"v_cndmask_b32 v{vC}, 0, v{vC}, vcc")
    a(f"v_lshl_add_u32 v{vEA}, v{vOf}, 2, v{vEA}")
    a(f"v_mov_b32 v{vPw}, v121")
    a(f"v_sub_u32 v{vKB}, s{sWIN}, v{vPw}")
    a(f"v_max_i32 v{vKB}, 0, v{vKB}")
    a(f"v_lshl_add_u32 v{vEA}, v{vKB}, 2, v{vEA}")
    a(f"s_mov_b32 s{sTMP+4}, {ENT_OFF}")
    entry_loads(sTMP+4)
    a("s_waitcnt vmcnt(0)")
    a("s_branch K2_WINDOW")
    a.label("K2_EPI")
    a("v_cmp_gt_u32 vcc, 640, v0")
    a("s_and_saveexec_b64 s[54:55], vcc")
    a("s_cbranch_execz K2_EXIT")
    a("v_lshlrev_b32 v1, 6, v0")
    for i in range(4):
        a(f"ds_read_b128 {vr(32+4*i,4)}, v1 offset:{L_AGG+16*i}")
    a(f"s_mov_b32 s{sTMP}, {hex(C_2MK)}")
    a(f"s_mov_b32 s{sTMP+1}, {hex(NEG_LOG2E)}")
    a("s_waitcnt lgkmcnt(0)")
    for i in range(8):
        a(f"v_cvt_f32_f64 v{8+i}, v[{32+2*i}:{33+2*i}]")
    for i in range(8):
        a(f"v_mul_f32 v{8+i}, s{sTMP}, v{8+i}")
    for i in range(8):
        a(f"v_mul_f32 v{16+i}, s{sTMP+1}, v{8+i}")
    for i in range(8):
        a(f"v_exp_f32 v{16+i}, v{16+i}")
    for i in range(8):
        a(f"v_add_f32 v{16+i}, 1.0, v{16+i}")
    for i in range(8):
        a(f"v_rcp_f32 v{16+i}, v{16+i}")
    a("s_nop 0")
    for i in range(8):
        a(f"v_mul_f32 v{8+i}, v{8+i}, v{16+i}")
    for i in range(4):
        a(f"v_cvt_pk_bf16_f32 v{24+i}, v{8+2*i}, v{9+2*i}")
    a("v_lshlrev_b32 v2, 4, v0")
    a(f"s_mul_i32 s{sTMP}, s2, {NPB*256}")
    a(f"buffer_store_dwordx4 v[24:27], v2, {sr(sO,4)}, s{sTMP} offen")
    if "stamp" in OPT:
        a("s_waitcnt vmcnt(0)")
        stamp(a, 6)
        a("s_memrealtime s[80:81]")
        a("s_waitcnt lgkmcnt(0)")
        stamp_out(a, 9)
    a.label("K2_EXIT")
    a("s_endpgm")

HEADER = f"""; EGC edge-gated message passing: out = silu(x@U + segsum_dst(sigmoid([x_dst,x_src,e]@G) * (x@V)[src]))
; @launch kernel=egc_prep_kernel grid=({K1_WGS},1,1) block=(256,1,1) lds={K1_LDS}
; @launch kernel=egc_main_kernel grid=({NB},1,1) block=(1024,1,1) lds={K2_LDS}
.amdgcn_target "amdgcn-amd-amdhsa--gfx950"
.text
"""

def kd(name, vgpr, sgpr):
    return f""".amdhsa_kernel {name}
  .amdhsa_next_free_vgpr {vgpr}
  .amdhsa_next_free_sgpr {sgpr}
  .amdhsa_accum_offset {((vgpr+3)//4)*4}
  .amdhsa_group_segment_fixed_size 0
  .amdhsa_kernarg_size 80
  .amdhsa_user_sgpr_count 2
  .amdhsa_user_sgpr_kernarg_segment_ptr 1
  .amdhsa_system_sgpr_workgroup_id_x 1
.end_amdhsa_kernel
"""

def main():
    a = Asm()
    a.raw(".globl egc_prep_kernel")
    k1(a)
    a.raw(".globl egc_main_kernel")
    k2(a)
    out = HEADER + a.text()
    out += '.section .rodata,"a"\n.p2align 6\n' + kd("egc_prep_kernel", 96, 64) + ".p2align 6\n" + kd("egc_main_kernel", 128, 96)
    path = sys.argv[1] if len(sys.argv) > 1 else f"cdna_kernels/{NAME}.s"
    open(path, "w").write(out)
    print("wrote", path, len(out), "bytes")

if __name__ == "__main__":
    main()
```

```python
import sys, struct, os
OPT = set(os.environ.get("OPT","").split(","))

NAME = "gather_scatter__edge_featured_mpnn_egc__graph"
N = 10000; E = 320000
NB = 250; NPB = 40
NC = 250; CE = 1280
KSH = 26
def f2u(x): return struct.unpack('<I', struct.pack('<f', x))[0]
NEG_LOG2E = f2u(-1.4426950408889634)
C_2MK = f2u(2.0 ** -KSH)
C_2PK = f2u(2.0 ** KSH)
BF16_NEGK = 0xC1D0
assert KSH == 26

HALF_STRIDE = (N + 1) * 256
T_OFF = 0;            T_BYTES = 2 * HALF_STRIDE
ENT_OFF = 0x500000
OFFS_OFF = 0x640000
WF_OFF = 0x680000
CF_OFF = 0x690000
E2_OFF = 0x800000
WS_END = 0x1200000

NT_WG = 314
BIN0 = NT_WG
WF0 = BIN0 + NC
CF0 = WF0 + 8
K1_WGS = CF0 + 1
K1_LDS = (7168 + 40960) if 'ecopy' in OPT else 128 * 288

class Asm:
    def __init__(self): self.lines = []
    def __call__(self, s):
        for l in s.split("\n"):
            l = l.strip()
            if l: self.lines.append("    " + l)
    def label(self, n): self.lines.append(n + ":")
    def raw(self, s): self.lines.append(s)
    def text(self): return "\n".join(self.lines) + "\n"

def vr(i, n=1): return f"v{i}" if n == 1 else f"v[{i}:{i+n-1}]"
def sr(i, n=1): return f"s{i}" if n == 1 else f"s[{i}:{i+n-1}]"

def srd(a, d, base, nbytes):
    a(f"s_mov_b32 s{d}, s{base}")
    a(f"s_and_b32 s{d+1}, s{base+1}, 0xffff")
    a(f"s_mov_b32 s{d+2}, {nbytes}")
    a(f"s_mov_b32 s{d+3}, 0x00020000")

def stamp1(a, i):
    if "stamp1" in OPT:
        a(f"s_memrealtime s[{64+2*i}:{65+2*i}]")
        a("s_waitcnt lgkmcnt(0)")
def stamp1_out(a, n, ws_srd, wgreg, lbl):
    if "stamp1" in OPT:
        a("s_waitcnt vmcnt(0)")
        stamp1(a, n-1)
        a("v_readfirstlane_b32 s60, v0")
        a("s_cmp_eq_u32 s60, 0")
        a(f"s_cbranch_scc0 {lbl}")
        a(f"s_mov_b32 s{ws_srd+2}, 0x1400000")
        for i in range(n):
            a(f"v_mov_b32 v100, s{64+2*i}")
            a(f"v_mov_b32 v101, s{65+2*i}")
            a(f"s_lshl_b32 s60, s{wgreg}, 7")
            a(f"s_add_u32 s60, s60, {0x1310000 + 8*i}")
            a("v_mov_b32 v102, 0")
            a(f"buffer_store_dwordx2 v[100:101], v102, s[{ws_srd}:{ws_srd+3}], s60 offen")
            a("s_nop 1")
        a.label(lbl)

def wave_scan(a, v):
    for sh in (1, 2, 4, 8):
        a("s_nop 1")
        a(f"v_add_u32_dpp v{v}, v{v}, v{v} row_shr:{sh} row_mask:0xf bank_mask:0xf bound_ctrl:1")
    a("s_nop 1")
    a(f"v_add_u32_dpp v{v}, v{v}, v{v} row_bcast:15 row_mask:0xa bank_mask:0xf")
    a("s_nop 1")
    a(f"v_add_u32_dpp v{v}, v{v}, v{v} row_bcast:31 row_mask:0xc bank_mask:0xf")

def k1_table(a):
    a.label("K1_TABLE")
    stamp1(a, 0)
    a("s_and_b32 s3, s2, 1")
    a("s_lshr_b32 s28, s2, 1")
    srd(a, 20, 16, 69632)
    srd(a, 36, 14, 32768)
    srd(a, 24, 4, N * 256)
    srd(a, 32, 18, 2 * HALF_STRIDE)
    a("s_lshl_b32 s29, s3, 7")
    a("s_add_u32 s30, s29, 32768")
    a("v_lshrrev_b32 v1, 3, v0")
    a("v_and_b32 v2, 7, v0")
    a("v_lshlrev_b32 v3, 8, v1")
    a("v_lshl_add_u32 v3, v2, 4, v3")
    for i in range(4):
        a(f"buffer_load_dwordx4 {vr(8+4*i,4)}, v3, s[20:23], s30 offen")
        if i < 3: a("s_add_u32 s30, s30, 8192")
    for i in range(4):
        a(f"buffer_load_dwordx4 {vr(24+4*i,4)}, v3, s[36:39], s29 offen")
        if i < 3: a("s_add_u32 s29, s29, 8192")
    a("v_mul_u32_u24 v7, 288, v1")
    a("v_lshl_add_u32 v7, v2, 4, v7")
    a("v_and_b32 v2, 15, v0")
    a("v_bfe_u32 v3, v0, 4, 2")
    a("v_lshrrev_b32 v4, 6, v0")
    a("s_lshl_b32 s31, s28, 6")
    a("v_lshl_add_u32 v5, v4, 4, s31")
    a("v_add_u32 v6, v5, v2")
    a("v_lshlrev_b32 v6, 8, v6")
    a("v_lshl_add_u32 v6, v3, 4, v6")
    for ks in range(4):
        a(f"buffer_load_dwordx4 {vr(40+4*ks,4)}, v6, s[24:27], 0 offen offset:{64*ks}")
    for i in range(8):
        a(f"s_waitcnt vmcnt({11-i})")
        a(f"ds_write_b128 v7, {vr(8+4*i,4)} offset:{9216*(i&3) + 128*(i>>2)}")
    a("v_lshrrev_b32 v7, 2, v2")
    a("v_lshl_add_u32 v7, v3, 3, v7")
    a("v_mul_u32_u24 v7, 288, v7")
    a("v_and_b32 v1, 3, v0")
    a("v_lshl_add_u32 v7, v1, 3, v7")
    a("v_lshl_add_u32 v1, v3, 2, v5")
    a("v_lshlrev_b32 v6, 8, v1")
    a("v_lshl_add_u32 v6, v2, 4, v6")
    a(f"s_mul_i32 s3, s3, {HALF_STRIDE}")
    a("s_waitcnt vmcnt(0) lgkmcnt(0)")
    stamp1(a, 1)
    a("s_barrier")
    stamp1(a, 2)
    ACC = 64
    BF = [8, 24]
    def reads(t):
        b = BF[t & 1]
        for ks in range(4):
            a(f"ds_read_b64_tr_b16 {vr(b+4*ks,2)}, v7 offset:{9216*ks + 32*t}")
            a(f"ds_read_b64_tr_b16 {vr(b+4*ks+2,2)}, v7 offset:{9216*ks + 32*t + 1152}")
    reads(0)
    for t in range(8):
        if t < 7:
            reads(t + 1)
            a("s_waitcnt lgkmcnt(8)")
        else:
            a("s_waitcnt lgkmcnt(0)")
        b = BF[t & 1]
        for ks in range(4):
            c = "0" if ks == 0 else vr(ACC+4*t, 4)
            a(f"v_mfma_f32_16x16x32_bf16 {vr(ACC+4*t,4)}, {vr(40+4*ks,4)}, {vr(b+4*ks,4)}, {c}")
    stamp1(a, 3)
    a("s_mov_b32 s40, 0x00800000")
    a("s_mov_b32 s41, 0x7fff0000")
    a(f"s_mov_b32 s42, {hex(NEG_LOG2E)}")
    a(f"s_movk_i32 s43, {N}")
    a("s_nop 6")
    for r in range(4):
        W = 8 + 8 * (r & 1)
        for t in range(4):
            a(f"v_mul_f32 v{ACC+4*t+r}, s42, v{ACC+4*t+r}")
        for p in range(4):
            lo, hi = ACC + 4*(2*p) + r, ACC + 4*(2*p+1) + r
            a(f"v_cvt_pk_bf16_f32 v{W+p}, v{lo}, v{hi}")
            a(f"v_max_f32_e64 v{hi}, |v{hi}|, s40")
        for p in range(4):
            hi = ACC + 4*(2*p+1) + r
            a(f"v_add_u32 v{hi}, 0x8000, v{hi}")
        for p in range(4):
            hi = ACC + 4*(2*p+1) + r
            a(f"v_sub_u32_sdwa v{hi}, v{hi}, v{W+p} dst_sel:DWORD dst_unused:UNUSED_PAD src0_sel:DWORD src1_sel:WORD_0")
        a(f"v_add_u32 v2, {r}, v1")
        a("v_cmp_ge_u32 vcc, s43, v2")
        for p in range(4):
            hi = ACC + 4*(2*p+1) + r
            a(f"v_bfi_b32 v{W+p}, s41, v{hi}, v{W+p}")
        a("s_and_saveexec_b64 s[44:45], vcc")
        a(f"s_cbranch_execz K1_TAB_SKIP{r}")
        a(f"buffer_store_dwordx4 {vr(W,4)}, v6, s[32:35], s3 offen offset:{256*r} sc1")
        a.label(f"K1_TAB_SKIP{r}")
        a("s_mov_b64 exec, s[44:45]")
    stamp1(a, 4)
    stamp1(a, 5)
    stamp1_out(a, 7, 32, 2, "K1_ST_TAB")
    a("s_endpgm")

def k1_bin(a):
    HIST, OFF2, SORT, ESORT = 0, 1024, 2048, 7168
    a.label("K1_BIN")
    stamp1(a, 0)
    a(f"s_sub_u32 s3, s2, {BIN0}")
    srd(a, 20, 8, E * 4)
    srd(a, 24, 10, E * 4)
    srd(a, 28, 18, WS_END)
    a("v_lshlrev_b32 v1, 2, v0")
    a("s_mul_i32 s32, s3, 5120")
    a("v_mov_b32 v2, 0")
    a(f"ds_write_b32 v1, v2 offset:{HIST}")
    DST, SRC = 8, 16
    for m in range(5):
        a(f"buffer_load_dword v{DST+m}, v1, s[24:27], s32 offen offset:{1024*m if m<4 else 0}" if m < 4 else
          f"s_add_u32 s33, s32, 4096\nbuffer_load_dword v{DST+m}, v1, s[24:27], s33 offen")
    for m in range(5):
        a(f"buffer_load_dword v{SRC+m}, v1, s[20:23], s32 offen offset:{1024*m}" if m < 4 else
          f"buffer_load_dword v{SRC+m}, v1, s[20:23], s33 offen")
    ECOPY = "ecopy" in OPT
    NE = 10 if ECOPY else 0
    srd(a, 40, 6, E * 32)
    a("v_lshlrev_b32 v6, 5, v0")
    a("s_mul_i32 s44, s3, 40960")
    ER = 56
    if "noeload" in OPT: a("s_mov_b32 s42, 0")
    NT = " nt" if "ent" in OPT else ""
    for m in range(5 if ECOPY else 0):
        a(f"buffer_load_dwordx4 {vr(ER+8*m,4)}, v6, s[40:43], s44 offen{NT}")
        a(f"buffer_load_dwordx4 {vr(ER+8*m+4,4)}, v6, s[40:43], s44 offen offset:16{NT}")
        if m < 4: a("s_add_u32 s44, s44, 8192")
    a("s_mov_b32 s34, 52429")
    a("s_waitcnt lgkmcnt(0)")
    a("s_barrier")
    BINR, RANK = 24, 32
    if "stamp1" in OPT:
        a(f"s_waitcnt vmcnt({9+NE})")
        stamp1(a, 1)
    a("v_mov_b32 v3, 1")
    for m in range(5):
        a(f"s_waitcnt vmcnt({9+NE-m})")
        a(f"v_mul_u32_u24 v{BINR+m}, s34, v{DST+m}")
        a(f"v_lshrrev_b32 v{BINR+m}, 21, v{BINR+m}")
        a(f"v_mul_u32_u24 v4, 40, v{BINR+m}")
        a(f"v_sub_u32 v{DST+m}, v{DST+m}, v4")
        a(f"v_lshlrev_b32 v{BINR+m}, 2, v{BINR+m}")
        a(f"ds_add_rtn_u32 v{RANK+m}, v{BINR+m}, v3 offset:{HIST}")
    for m in range(5):
        a(f"s_waitcnt vmcnt({4+NE-m})")
        a(f"v_lshl_or_b32 v{SRC+m}, v{DST+m}, 14, v{SRC+m}")
        if not ECOPY:
            a(f"v_add_u32 v4, {256*m}, v0")
            a(f"v_lshl_or_b32 v{SRC+m}, v4, 20, v{SRC+m}")
    a("s_waitcnt lgkmcnt(0)")
    a("s_barrier")
    stamp1(a, 2)
    a("v_and_b32 v5, 63, v0")
    a("v_lshlrev_b32 v5, 4, v5")
    a(f"ds_read_b128 v[40:43], v5 offset:{HIST}")
    a("s_waitcnt lgkmcnt(0)")
    a("v_add_u32 v44, v40, v41")
    a("v_add_u32 v45, v42, v43")
    a("v_add_u32 v46, v44, v45")
    a("v_mov_b32 v47, v46")
    wave_scan(a, 47)
    a("v_sub_u32 v48, v47, v46")
    a("v_add_u32 v49, v48, v40")
    a("v_add_u32 v50, v48, v44")
    a("v_add_u32 v51, v50, v42")
    a(f"ds_write_b128 v5, v[48:51] offset:{OFF2}")
    a("v_readfirstlane_b32 s35, v0")
    a("s_lshl_b32 s36, s3, 10")
    a(f"s_add_u32 s36, s36, {OFFS_OFF}")
    a("s_cmp_ge_u32 s35, 64")
    a("s_cbranch_scc1 K1_BIN_NOPUB")
    for i in range(4):
        a(f"v_lshl_or_b32 v{52+i}, v{40+i}, 16, v{48+i}")
    a("buffer_store_dwordx4 v[52:55], v5, s[28:31], s36 offen sc1")
    a.label("K1_BIN_NOPUB")
    a("s_waitcnt lgkmcnt(0)")
    for m in range(5):
        a(f"ds_read_b32 v{40+m}, v{BINR+m} offset:{OFF2}")
    for m in range(5):
        a(f"s_waitcnt lgkmcnt({4-m})")
        a(f"v_add_lshl_u32 v{40+m}, v{40+m}, v{RANK+m}, 2")
        a(f"ds_write_b32 v{40+m}, v{SRC+m} offset:{SORT}")
    stamp1(a, 3)
    for m in range(5 if ECOPY else 0):
        a(f"v_lshlrev_b32 v{40+m}, 3, v{40+m}")
        a(f"s_waitcnt vmcnt({9 - 2*m})")
        a(f"ds_write_b128 v{40+m}, {vr(ER+8*m,4)} offset:{ESORT}")
        a(f"s_waitcnt vmcnt({8 - 2*m})")
        a(f"ds_write_b128 v{40+m}, {vr(ER+8*m+4,4)} offset:{ESORT+16}")
    a("s_waitcnt lgkmcnt(0)")
    a("s_barrier")
    stamp1(a, 4)
    a("v_lshlrev_b32 v5, 4, v0")
    a(f"ds_read_b128 v[40:43], v5 offset:{SORT}")
    a(f"s_add_u32 s36, s32, {ENT_OFF}")
    a("v_cmp_gt_u32 vcc, 64, v0")
    a("s_waitcnt lgkmcnt(0)")
    a("buffer_store_dwordx4 v[40:43], v5, s[28:31], s36 offen sc1")
    a("s_and_saveexec_b64 s[38:39], vcc")
    a("s_cbranch_execz K1_BIN_END")
    a(f"ds_read_b128 v[44:47], v5 offset:{SORT+4096}")
    a("s_add_u32 s36, s36, 4096")
    a("s_waitcnt lgkmcnt(0)")
    a("buffer_store_dwordx4 v[44:47], v5, s[28:31], s36 offen sc1")
    a.label("K1_BIN_END")
    a("s_mov_b64 exec, -1")
    a("s_mul_i32 s36, s3, 40960")
    a(f"s_add_u32 s36, s36, {E2_OFF}")
    for i in range(NE):
        a(f"ds_read_b128 {vr(ER+4*i,4)}, v5 offset:{ESORT + 4096*i}")
    for i in range(NE):
        a(f"s_waitcnt lgkmcnt({9-i})")
        pol = "" if "eplain" in OPT else (" nt" if "estnt" in OPT else " sc1")
        if "noestore" not in OPT: a(f"buffer_store_dwordx4 {vr(ER+4*i,4)}, v5, s[28:31], s36 offen{pol}")
        if i < 9: a("s_add_u32 s36, s36, 4096")
    stamp1(a, 5)
    stamp1_out(a, 7, 28, 2, "K1_ST_BIN")
    a("s_endpgm")

def k1_wf(a):
    a.label("K1_WF")
    a(f"s_sub_u32 s3, s2, {WF0}")
    a("v_lshrrev_b32 v1, 6, v0")
    a("s_nop 0")
    a("v_readfirstlane_b32 s28, v1")
    a("s_lshl_b32 s3, s3, 2")
    a("s_add_u32 s3, s3, s28")
    a("s_lshr_b32 s29, s3, 1")
    a("s_and_b32 s30, s3, 1")
    a("s_cmp_lt_u32 s29, 8")
    a("s_cselect_b32 s20, s16, s12")
    a("s_cselect_b32 s21, s17, s13")
    a("s_and_b32 s21, s21, 0xffff")
    a("s_mov_b32 s22, 32768")
    a("s_mov_b32 s23, 0x00020000")
    srd(a, 24, 18, WS_END)
    a("v_and_b32 v2, 15, v0")
    a("v_bfe_u32 v3, v0, 4, 2")
    a("s_and_b32 s31, s29, 7")
    a("s_lshl_b32 s31, s31, 5")
    a("s_lshl_b32 s32, s30, 14")
    a("s_add_u32 s31, s31, s32")
    a("v_lshlrev_b32 v4, 11, v3")
    a("v_lshl_add_u32 v4, v2, 1, v4")
    a("s_add_u32 s33, s31, 8192")
    for f in range(2):
        for m in range(8):
            a(f"buffer_load_ushort v{8+8*f+m}, v4, s[20:23], s{31 if f==0 else 33} offen offset:{256*m}")
    a("v_and_b32 v5, 63, v0")
    a("v_lshlrev_b32 v5, 4, v5")
    a("s_lshl_b32 s34, s3, 11")
    a(f"s_add_u32 s34, s34, {WF_OFF}")
    for f in range(2):
        a(f"s_waitcnt vmcnt({8 if f==0 else 1})")
        for p in range(4):
            a(f"v_lshl_or_b32 v{24+4*f+p}, v{8+8*f+2*p+1}, 16, v{8+8*f+2*p}")
        a(f"buffer_store_dwordx4 {vr(24+4*f,4)}, v5, s[24:27], s34 offen offset:{1024*f} sc1")
    a("s_endpgm")

def k1_cf(a):
    a.label("K1_CF")
    a("v_lshrrev_b32 v1, 6, v0")
    a("s_nop 0")
    a("v_readfirstlane_b32 s28, v1")
    srd(a, 20, 16, 69632)
    srd(a, 24, 18, WS_END)
    a("v_and_b32 v2, 15, v0")
    a("v_bfe_u32 v3, v0, 4, 2")
    a("v_and_b32 v4, 1, v3")
    a("v_lshlrev_b32 v4, 11, v4")
    a("v_lshl_add_u32 v4, v2, 1, v4")
    a("s_lshl_b32 s29, s28, 6")
    a("s_add_u32 s29, s29, 65536")
    for f in range(2):
        for m in range(8):
            a(f"buffer_load_ushort v{8+8*f+m}, v4, s[20:23], s29 offen offset:{256*m + 32*f}")
    a("v_and_b32 v5, 63, v0")
    a("v_lshlrev_b32 v5, 4, v5")
    a("s_lshl_b32 s34, s28, 11")
    a(f"s_add_u32 s34, s34, {CF_OFF}")
    a(f"s_mov_b32 s30, {hex(NEG_LOG2E)}")
    a("v_cmp_gt_u32 vcc, 2, v3")
    a("v_cmp_eq_u32 s[32:33], 2, v3")
    a(f"v_mov_b32 v6, {hex(BF16_NEGK)}")
    a("v_mov_b32 v7, 0")
    a("s_waitcnt vmcnt(0)")
    for f in range(2):
        for m in range(8):
            a(f"v_lshlrev_b32 v{8+8*f+m}, 16, v{8+8*f+m}")
            a(f"v_mul_f32 v{8+8*f+m}, s30, v{8+8*f+m}")
        for p in range(4):
            a(f"v_cvt_pk_bf16_f32 v{24+4*f+p}, v{8+8*f+2*p}, v{8+8*f+2*p+1}")
        a(f"v_cndmask_b32 v30, v7, v6, s[32:33]" if False else "")
        a(f"v_cndmask_b32 v32, v7, v6, s[32:33]")
        a(f"v_cndmask_b32 v{24+4*f+0}, v7, v{24+4*f+0}, vcc")
        a(f"v_cndmask_b32 v{24+4*f+1}, v7, v{24+4*f+1}, vcc")
        a(f"v_cndmask_b32 v{24+4*f+2}, v32, v{24+4*f+2}, vcc")
        a(f"v_cndmask_b32 v{24+4*f+3}, v7, v{24+4*f+3}, vcc")
        a(f"buffer_store_dwordx4 {vr(24+4*f,4)}, v5, s[24:27], s34 offen offset:{1024*f} sc1")
    a("s_cmp_eq_u32 s28, 0")
    a("s_cbranch_scc0 K1_CF_END")
    a("v_lshrrev_b32 v8, 2, v2")
    a("v_subrev_u32 v9, 2, v3")
    a("v_lshlrev_b32 v9, 1, v9")
    a("v_mov_b32 v10, 0x3f803f80")
    a("v_cmp_eq_u32 vcc, v8, v9")
    a("v_add_u32 v9, 1, v9")
    a("v_cmp_eq_u32 s[36:37], v8, v9")
    a("v_cndmask_b32 v12, v7, v10, vcc")
    a("v_mov_b32 v11, 0x3f80")
    a("v_cndmask_b32 v13, v7, v10, s[36:37]")
    a("v_cndmask_b32 v14, v7, v11, s[32:33]")
    a("v_mov_b32 v15, 0")
    a(f"s_mov_b32 s34, {CF_OFF + 8192}")
    a("buffer_store_dwordx4 v[12:15], v5, s[24:27], s34 offen sc1")
    a.label("K1_CF_END")
    a("s_endpgm")

def k1(a):
    a.raw(".p2align 8")
    a.raw(".type egc_prep_kernel,@function")
    a.label("egc_prep_kernel")
    a(f"s_cmp_ge_u32 s2, {K1_WGS}")
    a("s_cbranch_scc1 K1_EXIT")
    a("s_load_dwordx4 s[4:7], s[0:1], 0")
    a("s_load_dwordx4 s[8:11], s[0:1], 16")
    a("s_load_dwordx4 s[12:15], s[0:1], 32")
    a("s_load_dwordx2 s[16:17], s[0:1], 48")
    a("s_load_dwordx2 s[18:19], s[0:1], 72")
    a("s_waitcnt lgkmcnt(0)")
    a(f"s_cmp_lt_u32 s2, {BIN0}")
    a("s_cbranch_scc1 K1_TABLE")
    a(f"s_cmp_lt_u32 s2, {WF0}")
    a("s_cbranch_scc1 K1_BIN")
    a(f"s_cmp_lt_u32 s2, {CF0}")
    a("s_cbranch_scc1 K1_WF")
    a("s_branch K1_CF")
    a.label("K1_EXIT")
    a("s_endpgm")
    k1_table(a)
    k1_bin(a)
    k1_wf(a)
    k1_cf(a)

CAPE = 1500
SCAP = 1632
L_CNT = 0; L_TOT = 256
L_ROW = 512
L_GN = L_ROW + SCAP * 4
L_EO = L_GN + SCAP * 4
L_PPK = L_EO + SCAP * 4
L_CS = L_PPK + 20480
L_AGG = L_CS + 9216
L_XS = L_AGG + 40960
L_ES = L_XS + 48 * 272
L_RAW = L_ES
K2_LDS = L_ES + SCAP * 32
assert K2_LDS <= 163840 and L_AGG + 512 < 65536

QH = [8, 24, 40]; D = 56; B = 72; A = 88; U = 92; T = 100; R = 104; G = 108
vG = 112; vGn = 113; vTa = 114; vTe = 115; vJ16 = 116; vJ4 = 117; vTa0 = 118; vTe0 = 119; vCS = 120
vDUM = 124
vTd = 122; vEo = 123; vH16 = 125
sX = 12; sE = 16; sO = 20; sWS = 24
sWV = 28
sLO = 30
sHI = 32
sCC = 34
sN = 36; sNIT = 37; sL = 38
sLI = 39
sAI = 40
sHL = 41
sHG = 42
sTOT = 43
sWIN = 44
sDI = 45
sM0 = 62
sBIN = 29
sE2 = 63
sM = 46
sTMP = 56

STAMP_OFF = 0x1300000
def fstamp(a, i):
    if "fine" in OPT:
        a(f"s_memtime s[{64+2*i}:{65+2*i}]")
        a("s_waitcnt lgkmcnt(0)")
def gstamp(a, i):
    if "gst" in OPT:
        a(f"s_memtime s[{64+2*i}:{65+2*i}]")
        a("s_waitcnt lgkmcnt(0)")
def stamp(a, i):
    if ("fine" in OPT or "gst" in OPT) and i in (1,2,3,4,5,6): return
    if "stamp" in OPT:
        a(f"s_memtime s[{64+2*i}:{65+2*i}]")
        a("s_waitcnt lgkmcnt(0)")
def stamp_out(a, n):
    if "stamp" in OPT:
        a(f"s_cmp_eq_u32 s28, {8 if 'gst' in OPT else 0}")
        a("s_cbranch_scc0 STAMP_SKIP")
        a("s_mov_b64 exec, -1")
        a("s_mov_b32 s26, 0x1400000")
        for i in range(n):
            a(f"v_mov_b32 v100, s{64+2*i}")
            a(f"v_mov_b32 v101, s{65+2*i}")
            a(f"s_lshl_b32 s60, s2, 7")
            a(f"s_add_u32 s60, s60, {STAMP_OFF + 8*i}")
            a("v_mov_b32 v102, 0")
            a(f"buffer_store_dwordx2 v[100:101], v102, {sr(sWS,4)}, s60 offen")
            a("s_nop 1")
        a.label("STAMP_SKIP")
def P2(x): return f"v[{x}:{x+1}]"

def pair_code(ta, tb, h, shl):
    s = []
    if shl:
        for r in range(4):
            s.append(f"v_lshlrev_b32 v{h[r]}, 16, v{h[r]}")
            s.append(f"v_lshlrev_b32 v{h[r]+1}, 16, v{h[r]+1}")
    for r in range(4):
        s.append(f"v_exp_f32_e64 v{U+2*r}, v{D+4*ta+r} clamp")
        s.append(f"v_exp_f32_e64 v{U+2*r+1}, v{D+4*tb+r} clamp")
    for r in range(4):
        s.append(f"v_pk_add_f32 {P2(U+2*r)}, {P2(U+2*r)}, s[{sCC}:{sCC+1}]")
    d0, d1, d2, d3 = U, U+2, U+4, U+6
    s += [f"v_pk_mul_f32 {P2(T)}, {P2(h[0])}, {P2(d1)}",
          f"v_pk_mul_f32 {P2(T+2)}, {P2(h[2])}, {P2(d3)}",
          f"v_pk_fma_f32 {P2(T)}, {P2(h[1])}, {P2(d0)}, {P2(T)}",
          f"v_pk_fma_f32 {P2(T+2)}, {P2(h[3])}, {P2(d2)}, {P2(T+2)}",
          f"v_pk_mul_f32 {P2(d0)}, {P2(d0)}, {P2(d1)}",
          f"v_pk_mul_f32 {P2(d2)}, {P2(d2)}, {P2(d3)}",
          f"v_pk_mul_f32 {P2(T)}, {P2(T)}, {P2(d2)}",
          f"v_pk_mul_f32 {P2(d1)}, {P2(d0)}, {P2(d2)}",
          f"v_pk_fma_f32 {P2(T)}, {P2(T+2)}, {P2(d0)}, {P2(T)}",
          f"v_rcp_f32 v{d1}, v{d1}",
          f"v_rcp_f32 v{d1+1}, v{d1+1}",
          "s_nop 0",
          f"v_pk_mul_f32 {P2(T)}, {P2(T)}, {P2(d1)}"]
    if "noadd" not in OPT:
        s += [f"v_cvt_f64_f32 {P2(U)}, v{T}",
              f"v_cvt_f64_f32 {P2(U+4)}, v{T+1}",
              f"ds_add_f64 v{vG}, {P2(U)} offset:{L_AGG + 128*ta}",
              f"ds_add_f64 v{vG}, {P2(U+4)} offset:{L_AGG + 128*tb}"]
    return s

uid = [0]
def lab(p):
    uid[0] += 1
    return f"{p}_{uid[0]}"

def list_stage(a):
    l0 = lab("K2_NE")
    a(f"s_cmp_lt_u32 s{sDI}, s{sL}")
    a(f"s_cbranch_scc0 {l0}")
    eo_read(a)
    a.label(l0)
    a(f"ds_read_b128 {vr(R,4)}, v{vTa} offset:{L_ROW}")
    a(f"ds_read_b96 {vr(G,3)}, v{vTa} offset:{L_GN}")
    a(f"s_mov_b32 s{sHG}, s{sHL}")
    a(f"v_add_u32 v{vTa}, 64, v{vTa}")
    a(f"s_add_u32 s{sLI}, s{sLI}, 1")
    a(f"s_cmp_lg_u32 s{sLI}, s{sL}")
    l = lab("K2_LW")
    a(f"s_cbranch_scc1 {l}")
    a(f"s_mov_b32 s{sLI}, 0")
    a(f"s_mov_b32 s{sHL}, {HALF_STRIDE}")
    a(f"v_mov_b32 v{vTa}, v{vTa0}")
    a.label(l)

def eo_read(a):
    a(f"ds_read_b32 v{vEo}, v{vTd} offset:{L_EO}")
    a(f"v_add_u32 v{vTd}, 64, v{vTd}")

def e_dma(a):
    a(f"s_mov_b32 m0, s{sM0}")
    a(f"v_add_u32 v{vEo}, v{vEo}, v{vH16}")
    if "samee" in OPT: a(f"v_and_b32 v{vEo}, 0x1f, v{vEo}")
    a(f"s_add_u32 s{sM0}, s{sM0}, 512")
    a(f"s_add_u32 s{sDI}, s{sDI}, 1")
    a(f"s_mov_b64 exec, {sr(sLO,2)}")
    a(f"buffer_load_dwordx4 v{vEo}, {sr(sWS if 'ecopy' in OPT else sE,4)}, s{sE2} offen lds" + (" nt" if "edmant" in OPT else ""))
    a("s_mov_b64 exec, -1")

def gather_stage(a, buf):
    for r in range(4):
        a(f"v_add_u32 v{R+r}, v{R+r}, v{vJ16}")
    if "samerow" in OPT:
        for r in range(4): a(f"v_and_b32 v{R+r}, 0xff, v{R+r}")
    for r in range(4):
        a(f"buffer_load_dwordx4 {vr(buf+4*r,4)}, v{R+r}, {sr(sWS,4)}, s{sHG} offen")
    l = lab("K2_ND")
    a(f"s_cmp_lt_u32 s{sDI}, s{sL}")
    a(f"s_cbranch_scc0 {l}")
    e_dma(a)
    a.label(l)

def ap_stage(a, dstG, G=G):
    l = lab("K2_AW")
    a(f"s_cmp_lg_u32 s{sAI}, s{sL}")
    a(f"s_cbranch_scc1 {l}")
    a(f"s_mov_b32 s{sAI}, 0")
    if "noprio" not in OPT: a("s_setprio 0")
    a(f"v_add_u32 v{vJ4}, 256, v{vJ4}")
    a(f"v_mov_b32 v{vTe}, v{vTe0}")
    for t in range(4):
        a(f"ds_read_b128 {vr(B+4*t,4)}, v{vCS} offset:{L_CS + 1024*(4+t)}")
    a.label(l)
    a(f"s_add_u32 s{sAI}, s{sAI}, 1")
    a(f"v_add_lshl_u32 v{dstG}, v{G}, v{vJ4}, 1")
    a(f"v_add_u32 v{G+1}, v{G+1}, v{vJ4}")
    a(f"v_add_u32 v{G+2}, v{G+2}, v{vJ4}")
    a(f"s_mov_b64 exec, {sr(sLO,2)}")
    a(f"ds_read_b128 {vr(A,4)}, v{vTe}")
    a(f"s_mov_b64 exec, {sr(sHI,2)}")
    for t in range(4 if "nop" not in OPT else 0):
        a(f"ds_read_b32 v{B+4*t}, v{G+1} offset:{L_PPK + 64*t}")
        a(f"ds_read_b32 v{B+4*t+1}, v{G+2} offset:{L_PPK + 64*t}")
    a("s_mov_b64 exec, -1")
    a(f"v_add_u32 v{vTe}, 512, v{vTe}")

def tile_body(a, k):
    buf = QH[k]; nbuf = QH[(k + 2) % 3]
    l1, l2, l3 = lab("K2_W"), lab("K2_W"), lab("K2_W")
    a(f"s_add_u32 s{sTMP+1}, s{sN}, 3")
    a(f"s_add_u32 s{sTMP}, s{sN}, 1")
    a(f"s_cmp_lt_u32 s{sTMP+1}, s{sL}")
    a(f"s_cbranch_scc1 {l2}")
    a(f"s_cmp_lt_u32 s{sTMP}, s{sNIT}")
    a(f"s_cbranch_scc1 {l1}")
    a("s_waitcnt vmcnt(0)")
    a.label(l1)
    a("s_waitcnt vmcnt(4)")
    a.label(l2)
    a("s_waitcnt vmcnt(6)")
    for t in (1, 3):
        p = t >> 1
        for rr in (0, 2):
            a(f"v_pk_mov_b32 {P2(D+4*t+rr)}, {P2(buf+4*rr)}, {P2(buf+4*(rr+1))} op_sel:[{p},{p}]")
    for t in (0, 2):
        p = t >> 1
        for r in range(4):
            a(f"v_lshlrev_b32 v{D+4*t+r}, 16, v{buf+4*r+p}")
    a("s_waitcnt lgkmcnt(4)")
    for t in (1, 3, 0, 2):
        a(f"v_mfma_f32_16x16x32_bf16 {vr(D+4*t,4)}, {vr(A,4)}, {vr(B+4*t,4)}, {vr(D+4*t,4)}")
    le = lab("K2_E")
    a(f"s_cmp_lt_u32 s{sTMP}, s{sNIT}")
    a(f"s_cbranch_scc0 {le}")
    ap_stage(a, vGn)
    a.label(le)
    lf = lab("K2_F")
    a(f"s_add_u32 s{sTMP}, s{sN}, 2")
    a(f"s_cmp_lt_u32 s{sTMP}, s{sNIT}")
    a(f"s_cbranch_scc0 {lf}")
    list_stage(a)
    a.label(lf)
    a("s_nop 2")
    h = [buf + 4*r + 2 for r in range(4)]
    for ins in pair_code(1, 3, h, False): a(ins)
    lh = lab("K2_H")
    a(f"s_cmp_lt_u32 s{sTMP}, s{sNIT}")
    a(f"s_cbranch_scc0 {lh}")
    a("s_waitcnt lgkmcnt(3)" if "noadd" not in OPT else "s_waitcnt lgkmcnt(1)")
    gather_stage(a, nbuf)
    a.label(lh)
    for ins in pair_code(0, 2, h, True): a(ins)
    a(f"v_mov_b32 v{vG}, v{vGn}")
    a(f"s_add_u32 s{sN}, s{sN}, 1")
    a(f"s_cmp_ge_u32 s{sN}, s{sNIT}")
    a("s_cbranch_scc1 K2_LOOP_DONE")

def table_prefetch(a, vL16):
    if "nopf" in OPT: return
    a(f"s_lshr_b32 s{sTMP+5}, s2, 3")
    a(f"s_mul_i32 s{sTMP+5}, s{sTMP+5}, 81920")
    a(f"s_lshl_b32 s{sTMP+6}, s28, 13")
    a(f"s_add_u32 s{sTMP+5}, s{sTMP+5}, s{sTMP+6}")
    a(f"s_cmp_lt_u32 s28, 10")
    a(f"s_cselect_b32 s{sTMP+5}, s{sTMP+5}, {WS_END}")
    a(f"v_lshlrev_b32 v{vDUM}, 3, v{vL16}")
    a(f"buffer_load_dword v{vDUM}, v{vDUM}, {sr(sWS,4)}, s{sTMP+5} offen")

def k2(a):
    ECOPY = "ecopy" in OPT
    a.raw(".p2align 8")
    a.raw(".type egc_main_kernel,@function")
    a.label("egc_main_kernel")
    a(f"s_cmp_ge_u32 s2, {NB}")
    a("s_cbranch_scc1 K2_EXIT")
    stamp(a, 0)
    if "stamp" in OPT:
        a("s_memrealtime s[80:81]")
        a("s_waitcnt lgkmcnt(0)")
    a("s_load_dwordx4 s[4:7], s[0:1], 0")
    a("s_load_dwordx2 s[8:9], s[0:1], 56")
    a("s_load_dwordx2 s[10:11], s[0:1], 72")
    a("v_lshrrev_b32 v1, 6, v0")
    a("v_lshlrev_b32 v3, 4, v0")
    a("s_and_b32 s46, s2, 7")
    a("v_readfirstlane_b32 s28, v1")
    a("s_lshr_b32 s47, s2, 3")
    a("s_sub_u32 s48, s46, 2")
    a("s_max_i32 s48, s48, 0")
    a("s_lshl_b32 s46, s46, 5")
    a("s_sub_u32 s46, s46, s48")
    a(f"s_add_u32 s{sBIN}, s46, s47")
    a(f"v_and_b32 v{vCS}, 0x3f0, v3")
    a(f"s_mov_b64 {sr(sLO,2)}, 0xffffffff")
    a(f"s_mov_b32 s{sHI}, 0")
    a(f"s_mov_b32 s{sHI+1}, -1")
    a(f"s_mov_b32 s{sCC}, {hex(C_2MK)}")
    a(f"s_mov_b32 s{sCC+1}, {hex(C_2MK)}")
    a(f"s_mov_b32 s{sWIN}, 0")
    a(f"s_mov_b32 s{sE2}, {E2_OFF if ECOPY else 0}")
    a("s_cmp_ge_u32 s28, 8")
    a("s_cbranch_scc1 K2_G")
    vW = 1; vOA = 2; vOf = 4
    vC = 32; vSub = 33; vWb = 34; vEA = 35; vPw = 36; vKB = 37; vSg = 39; vEB = 38
    EN = 56
    a("v_mov_b32 v5, 0")
    a("v_lshrrev_b32 v6, 2, v3")
    a("v_cmp_gt_u32 vcc, 128, v0")
    a(f"v_lshrrev_b32 v{vW}, 1, v0")
    a("s_and_saveexec_b64 s[54:55], vcc")
    a(f"ds_write_b32 v6, v5 offset:{L_CNT}")
    a("s_mov_b64 exec, -1")
    a(f"v_lshlrev_b32 v{vOA}, 10, v{vW}")
    a(f"s_lshl_b32 s{sTMP}, s{sBIN}, 2")
    a(f"s_add_u32 s{sTMP}, s{sTMP}, {OFFS_OFF}")
    a(f"s_mov_b32 s{sTMP+4}, {ENT_OFF}")
    a("s_waitcnt lgkmcnt(0)")
    srd(a, sWS, 10, WS_END)
    a(f"buffer_load_dword v{vOf}, v{vOA}, {sr(sWS,4)}, s{sTMP} offen")
    a(f"v_and_b32 v{vSub}, 1, v0")
    a(f"v_mul_u32_u24 v{vSg}, {CE}, v{vW}")
    a(f"v_cmp_gt_u32 vcc, 250, v{vW}")
    a(f"v_cmp_eq_u32 s[54:55], 0, v{vSub}")
    a(f"v_mov_b32 v16, {L_TOT}")
    if not ECOPY: a(f"v_mul_u32_u24 v{vWb}, {CE*32}, v{vW}")
    srd(a, sE, 6, E * 32)
    srd(a, sO, 8, N * 256)
    a("s_waitcnt vmcnt(0)")
    a(f"v_lshrrev_b32 v{vC}, 16, v{vOf}")
    a(f"v_and_b32 v{vOf}, 0xffff, v{vOf}")
    a(f"v_cndmask_b32 v{vC}, 0, v{vC}, vcc")
    a(f"v_add_u32 v{vSg}, v{vSg}, v{vOf}")
    def entry_addr():
        a(f"v_lshlrev_b32 v{vEB}, 2, v{vSg}")
        a(f"v_lshl_add_u32 v{vEA}, v{vSub}, 5, v{vEB}")
        a(f"v_lshl_add_u32 v{vEB}, v{vSub}, 3, v{vEB}")
    def entry_loads(soff):
        a(f"buffer_load_dwordx4 {vr(EN,4)}, v{vEA}, {sr(sWS,4)}, s{soff} offen")
        a(f"buffer_load_dwordx4 {vr(EN+4,4)}, v{vEA}, {sr(sWS,4)}, s{soff} offen offset:16")
        a(f"buffer_load_dwordx2 {vr(EN+8,2)}, v{vEB}, {sr(sWS,4)}, s{soff} offen offset:64")
    entry_addr()
    entry_loads(sTMP+4)
    a("s_barrier")
    stamp(a, 1)
    a("s_mov_b64 exec, s[54:55]")
    a(f"ds_add_rtn_u32 v{vPw}, v16, v{vC}")
    a("s_mov_b64 exec, -1")
    a(f"v_mov_b32 v{vKB}, 0")
    a("s_waitcnt lgkmcnt(0)")
    a(f"v_mov_b32_dpp v{vPw}, v{vPw} quad_perm:[0,0,2,2] row_mask:0xf bank_mask:0xf")
    a("s_nop 0")
    a(f"v_mov_b32 v121, v{vPw}")
    a("s_waitcnt vmcnt(0)")
    a.label("K2_WINDOW")
    vKE = 66; vRA = 67
    a(f"s_add_u32 s{sTMP}, s{sWIN}, {CAPE}")
    a(f"v_sub_u32 v{vKE}, s{sTMP}, v{vPw}")
    a(f"v_min_i32 v{vKE}, v{vKE}, v{vC}")
    if ECOPY:
        a(f"v_sub_u32 v{vWb}, v{vSg}, v{vPw}")
        a(f"v_add_lshl_u32 v{vWb}, v{vWb}, s{sWIN}, 5")
    a.label("K2_COPY")
    a(f"v_add_u32 v{vRA}, v{vPw}, v{vKB}")
    a(f"v_subrev_u32 v{vRA}, s{sWIN}, v{vRA}")
    a(f"v_sub_u32 v68, v{vKE}, v{vKB}")
    a(f"v_lshlrev_b32 v69, 3, v{vSub}")
    a("v_sub_u32 v70, v68, v69")
    a(f"v_add_lshl_u32 v69, v{vRA}, v69, 3")
    a(f"v_add_u32 v69, {L_RAW}, v69")
    a(f"v_lshlrev_b32 v71, 1, v{vSub}")
    a("v_sub_u32 v68, v68, v71")
    a(f"v_add_lshl_u32 v71, v{vRA}, v71, 3")
    a(f"v_add_u32 v71, {L_RAW + 128}, v71")
    for i in range(8):
        a(f"v_cmp_lt_i32 vcc, {i}, v70")
        a("s_and_b64 exec, exec, vcc")
        a("s_cbranch_execz K2_CPA")
        a(f"ds_write2_b32 v69, v{EN+i}, v{vWb} offset0:{2*i} offset1:{2*i+1}")
    a.label("K2_CPA")
    a("s_mov_b64 exec, -1")
    for i in range(2):
        a(f"v_cmp_lt_i32 vcc, {16+i}, v68")
        a("s_and_b64 exec, exec, vcc")
        a("s_cbranch_execz K2_CPB")
        a(f"ds_write2_b32 v71, v{EN+8+i}, v{vWb} offset0:{2*i} offset1:{2*i+1}")
    a.label("K2_CPB")
    a("s_mov_b64 exec, -1")
    a(f"v_add_u32 v{vKB}, 20, v{vKB}")
    a(f"v_cmp_lt_i32 vcc, v{vKB}, v{vKE}")
    a("s_cmp_eq_u64 vcc, 0")
    a("s_cbranch_scc1 K2_COPIED")
    a(f"v_add_u32 v{vEA}, 80, v{vEA}")
    a(f"v_add_u32 v{vEB}, 80, v{vEB}")
    a(f"s_mov_b32 s{sTMP+4}, {ENT_OFF}")
    entry_loads(sTMP+4)
    a("s_waitcnt vmcnt(0)")
    a("s_branch K2_COPY")
    a.label("K2_COPIED")
    a(f"v_mov_b32 v70, {L_TOT}")
    a("s_waitcnt lgkmcnt(0)")
    a("s_barrier")
    stamp(a, 2)
    a("ds_read_b32 v70, v70")
    if "pf" in OPT:
        a(f"s_lshr_b32 s{sTMP}, s2, 3")
        a(f"s_mul_i32 s{sTMP}, s{sTMP}, 81920")
        a(f"s_lshl_b32 s{sTMP+1}, s28, 13")
        a(f"s_add_u32 s{sTMP+1}, s{sTMP+1}, s{sTMP}")
        a(f"v_lshlrev_b32 v{vDUM}, 3, v{vCS}")
        a(f"buffer_load_dword v126, v{vDUM}, {sr(sWS,4)}, s{sTMP+1} offen")
    RE = 56
    ND = 62; RK = 65
    a("v_lshlrev_b32 v68, 3, v0")
    a(f"v_add_u32 v68, {L_RAW}, v68")
    for i in range(3):
        a(f"ds_read_b64 {P2(RE+2*i)}, v68 offset:{4096*i}")
    a("v_mov_b32 v69, 1")
    a("s_waitcnt lgkmcnt(3)")
    a(f"v_readfirstlane_b32 s{sTOT}, v70")
    a("v_add_u32 v71, 512, v0")
    a("v_add_u32 v72, 1024, v0")
    a(f"s_sub_u32 s{sTMP}, s{sTOT}, s{sWIN}")
    a(f"s_min_u32 s{sTMP}, s{sTMP}, {CAPE}")
    a(f"v_cmp_gt_u32 {sr(sM,2)}, s{sTMP}, v0")
    a(f"v_cmp_gt_u32 {sr(sM+2,2)}, s{sTMP}, v71")
    a(f"v_cmp_gt_u32 {sr(sM+4,2)}, s{sTMP}, v72")
    for i in range(3):
        l = lab("K2_RK")
        a(f"s_waitcnt lgkmcnt({2-i if i == 0 else 0})" if i == 0 else "s_waitcnt lgkmcnt(0)" if i == 1 else "")
        a(f"v_bfe_u32 v{ND+i}, v{RE+2*i}, 14, 6")
        a(f"v_lshlrev_b32 v{ND+i}, 2, v{ND+i}")
        a(f"s_mov_b64 exec, {sr(sM+2*i,2)}")
        a(f"s_cbranch_execz {l}")
        a(f"ds_add_rtn_u32 v{RK+i}, v{ND+i}, v69 offset:{L_CNT}")
        a.label(l)
        a("s_mov_b64 exec, -1")
    a(f"v_lshrrev_b32 v68, 2, v{vCS}")
    a("s_waitcnt lgkmcnt(0)")
    a("s_barrier")
    stamp(a, 3)
    a(f"ds_read_b32 v69, v68 offset:{L_CNT}")
    for i in range(3):
        e = RE + 2*i
        if ECOPY:
            a(f"v_lshl_add_u32 v{e+1}, v0, 5, v{e+1}")
            if i: a(f"v_add_u32 v{e+1}, {512*32*i}, v{e+1}")
        else:
            a(f"v_lshrrev_b32 v70, 20, v{e}")
            a(f"v_lshl_add_u32 v{e+1}, v70, 5, v{e+1}")
        a(f"v_and_b32 v{e}, 0x3fff, v{e}")
        a(f"v_lshlrev_b32 v{e}, 8, v{e}")
    a("s_waitcnt lgkmcnt(0)")
    a("v_add_u32 v70, 3, v69")
    a("v_and_b32 v70, -4, v70")
    a("v_mov_b32 v71, v70")
    wave_scan(a, 71)
    a("v_sub_u32 v72, v71, v70")
    a("s_nop 0")
    a(f"v_readlane_b32 s{sNIT}, v71, 63")
    for i in range(3):
        a(f"ds_bpermute_b32 v{73+i}, v{ND+i}, v72")
    for i in range(3):
        a(f"v_lshlrev_b32 v{ND+i}, 7, v{ND+i}")
    for i in range(3):
        e = RE + 2*i
        l = lab("K2_PL")
        a(f"s_waitcnt lgkmcnt({2-i})" if i == 0 else "s_waitcnt lgkmcnt(0)" if i == 1 else "")
        a(f"s_mov_b64 exec, {sr(sM+2*i,2)}")
        a(f"s_cbranch_execz {l}")
        a(f"v_add_u32 v{73+i}, v{73+i}, v{RK+i}")
        a(f"v_and_b32 v{RK+i}, 3, v{RK+i}")
        a(f"v_lshlrev_b32 v76, 2, v{73+i}")
        a(f"v_cmp_eq_u32 vcc, 0, v{RK+i}")
        a(f"ds_write_b32 v76, v{e} offset:{L_ROW}")
        a(f"ds_write_b32 v76, v{e+1} offset:{L_EO}")
        a("s_and_b64 exec, exec, vcc")
        a(f"s_cbranch_execz {l}")
        a(f"ds_write_b32 v76, v{ND+i} offset:{L_GN}")
        a(f"v_and_b32 v77, 0xffffffc0, v76")
        a(f"v_bfe_u32 v{RK+i}, v76, 5, 1")
        a(f"v_lshl_add_u32 v77, v{RK+i}, 4, v77")
        a(f"v_bfe_u32 v{RK+i}, v76, 4, 1")
        a(f"v_lshl_add_u32 v77, v{RK+i}, 2, v77")
        a(f"ds_write_b32 v77, v{ND+i} offset:{L_GN + 32 + 4}")
        a.label(l)
        a("s_mov_b64 exec, -1")
    a(f"s_add_u32 s{sTMP}, s{sNIT}, 15")
    a(f"s_lshr_b32 s{sTMP+1}, s{sTMP}, 4")
    a("s_cmp_ge_u32 s28, 2")
    a("s_cbranch_scc1 K2_NOTAIL")
    a(f"v_mov_b32 v78, {N*256}")
    a("v_mov_b32 v79, 0")
    a("s_cmp_eq_u32 s28, 0")
    a("s_cbranch_scc0 K2_NOPAD")
    a(f"v_mov_b32 v76, s{sTMP+1}")
    a(f"v_mov_b32 v77, {L_TOT+4}")
    a("ds_write_b32 v77, v76")
    a("v_add_u32 v76, v72, v69")
    for m in range(3):
        a("v_cmp_lt_u32 vcc, v76, v71")
        a("s_and_b64 exec, exec, vcc")
        a(f"s_cbranch_execz K2_NOTAIL")
        a("v_lshlrev_b32 v77, 2, v76")
        a(f"ds_write_b32 v77, v78 offset:{L_ROW}")
        a(f"ds_write_b32 v77, v79 offset:{L_EO}")
        a("v_add_u32 v76, 1, v76")
    a("s_branch K2_NOTAIL")
    a.label("K2_NOPAD")
    a(f"v_lshrrev_b32 v76, 4, v{vCS}")
    a(f"v_add_u32 v76, s{sNIT}, v76")
    a(f"s_lshl_b32 s{sTMP+2}, s{sTMP+1}, 4")
    a(f"v_cmp_gt_u32 vcc, s{sTMP+2}, v76")
    a("s_and_b64 exec, exec, vcc")
    a("s_cbranch_execz K2_NOTAIL")
    a("v_lshlrev_b32 v77, 2, v76")
    a(f"ds_write_b32 v77, v78 offset:{L_ROW}")
    a(f"ds_write_b32 v77, v79 offset:{L_EO}")
    a("v_and_b32 v76, 3, v76")
    a("v_cmp_eq_u32 vcc, 0, v76")
    a("s_and_b64 exec, exec, vcc")
    a("s_cbranch_execz K2_NOTAIL")
    a(f"ds_write_b32 v77, v79 offset:{L_GN}")
    a(f"v_and_b32 v76, 0xffffffc0, v77")
    a("v_bfe_u32 v78, v77, 5, 1")
    a("v_lshl_add_u32 v76, v78, 4, v76")
    a("v_bfe_u32 v78, v77, 4, 1")
    a("v_lshl_add_u32 v76, v78, 2, v76")
    a(f"ds_write_b32 v76, v79 offset:{L_GN + 32 + 4}")
    a.label("K2_NOTAIL")
    a("s_mov_b64 exec, -1")
    a("s_waitcnt lgkmcnt(0)")
    a("s_barrier")
    a("s_branch K2_JOIN")
    a.label("K2_G")
    WP = 8; WU = 24; ACP = 56; ACU = 92; XR = 56; CR = 64
    AFS = [40, 68, 104]
    a("v_subrev_u32 v2, 0x2000, v3")
    a(f"s_sub_u32 s{sTMP+6}, s28, 8")
    a(f"s_mul_i32 s{sTMP+1}, s{sBIN}, {NPB*256}")
    a(f"s_add_u32 s{sTMP+2}, s{sTMP+1}, 8192")
    a(f"s_mov_b32 s{sTMP+3}, {CF_OFF}")
    a(f"s_mov_b32 s{sTMP+4}, {CF_OFF + 8192}")
    a(f"s_lshl_b32 s{sTMP+5}, s{sTMP+6}, 12")
    a(f"s_add_u32 s{sTMP+5}, s{sTMP+5}, {WF_OFF}")
    a("v_lshrrev_b32 v4, 8, v2")
    a("v_mul_u32_u24 v4, 272, v4")
    a(f"v_bfe_u32 v7, v{vCS}, 4, 4")
    a(f"v_lshrrev_b32 v6, 8, v{vCS}")
    a("v_lshl_add_u32 v4, v7, 4, v4")
    a(f"v_add_u32 v4, {L_XS}, v4")
    a("v_cmp_gt_u32 vcc, 0x1000, v2")
    a("s_waitcnt lgkmcnt(0)")
    srd(a, sX, 4, N * 256)
    a(f"buffer_load_dwordx4 {vr(XR,4)}, v2, {sr(sX,4)}, s{sTMP+1} offen")
    a(f"buffer_load_dwordx4 {vr(XR+4,4)}, v2, {sr(sX,4)}, s{sTMP+2} offen")
    srd(a, sWS, 10, WS_END)
    a(f"buffer_load_dwordx4 {vr(CR,4)}, v2, {sr(sWS,4)}, s{sTMP+3} offen")
    a(f"buffer_load_dwordx4 {vr(CR+4,4)}, v{vCS}, {sr(sWS,4)}, s{sTMP+4} offen")
    srd(a, sE, 6, E * 32)
    srd(a, sO, 8, N * 256)
    a("s_waitcnt vmcnt(3)")
    gstamp(a, 1)
    a(f"ds_write_b128 v4, {vr(XR,4)}")
    a("s_and_saveexec_b64 s[54:55], vcc")
    a("s_waitcnt vmcnt(2)")
    a(f"ds_write_b128 v4, {vr(XR+4,4)} offset:{32*272}")
    a("s_mov_b64 exec, -1")
    a("s_waitcnt vmcnt(1)")
    a(f"ds_write_b128 v2, {vr(CR,4)} offset:{L_CS}")
    a("s_waitcnt vmcnt(0)")
    a(f"s_cmp_eq_u32 s{sTMP+6}, 0")
    a("s_cbranch_scc0 K2_NOA")
    a(f"ds_write_b128 v{vCS}, {vr(CR+4,4)} offset:{L_CS+8192}")
    a.label("K2_NOA")
    a("v_mul_u32_u24 v4, 272, v7")
    a("v_lshl_add_u32 v4, v6, 4, v4")
    a(f"v_add_u32 v4, {L_XS}, v4")
    a("v_lshlrev_b32 v5, 11, v6")
    a("v_lshl_add_u32 v5, v7, 2, v5")
    a(f"s_lshl_b32 s{sTMP}, s{sTMP+6}, 6")
    a(f"v_add_u32 v5, s{sTMP}, v5")
    a("s_waitcnt lgkmcnt(0)")
    gstamp(a, 2)
    a("s_barrier")
    gstamp(a, 3)
    for ks in range(4):
        a(f"buffer_load_dwordx4 {vr(WP+4*ks,4)}, v{vCS}, {sr(sWS,4)}, s{sTMP+5} offen offset:{1024*ks}")
    a(f"s_add_u32 s{sTMP+5}, s{sTMP+5}, 32768")
    for ks in range(4):
        a(f"buffer_load_dwordx4 {vr(WU+4*ks,4)}, v{vCS}, {sr(sWS,4)}, s{sTMP+5} offen offset:{1024*ks}")
    for rho in range(3):
        for ks in range(4):
            a(f"ds_read_b128 {vr(AFS[rho]+4*ks,4)}, v4 offset:{rho*16*272 + ks*64}")
    a(f"s_mov_b32 s{sTMP}, {hex(NEG_LOG2E)}")
    a(f"s_mov_b32 s{sTMP+1}, {hex(C_2PK)}")
    a("v_lshlrev_b32 v4, 1, v5")
    a(f"v_add_u32 v4, {L_AGG}, v4")
    a(f"v_mov_b32 v1, {L_TOT}")
    gstamp(a, 4)
    a("s_barrier")
    a("ds_read_b32 v1, v1")
    a("s_waitcnt vmcnt(0) lgkmcnt(0)")
    a(f"v_readfirstlane_b32 s{sTOT}, v1")
    for rho in range(3):
        AF = AFS[rho]
        for ks in range(4):
            c = "0" if ks == 0 else vr(ACP+4*rho, 4)
            a(f"v_mfma_f32_16x16x32_bf16 {vr(ACP+4*rho,4)}, {vr(AF+4*ks,4)}, {vr(WP+4*ks,4)}, {c}")
            c = "0" if ks == 0 else vr(ACU+4*rho, 4)
            a(f"v_mfma_f32_16x16x32_bf16 {vr(ACU+4*rho,4)}, {vr(AF+4*ks,4)}, {vr(WU+4*ks,4)}, {c}")
    gstamp(a, 5)
    a("s_barrier")
    for rho in range(3):
        if rho == 2: a(f"s_mov_b64 exec, {sr(sLO,2)}")
        for r in range(4):
            a(f"v_mul_f32 v{ACP+4*rho+r}, s{sTMP}, v{ACP+4*rho+r}")
        for r in range(4):
            a(f"v_cvt_pk_bf16_f32 v{ACP+4*rho+r}, v{ACP+4*rho+r}, 0")
        for r in range(4):
            a(f"ds_write_b32 v5, v{ACP+4*rho+r} offset:{L_PPK + rho*8192 + r*512}")
    a("s_mov_b64 exec, -1")
    for rho in range(3):
        if rho == 2: a(f"s_mov_b64 exec, {sr(sLO,2)}")
        for r in range(4):
            a(f"v_mul_f32 v{ACU+4*rho+r}, s{sTMP+1}, v{ACU+4*rho+r}")
        for r in range(4):
            a(f"v_cvt_f64_f32 v[{40+2*r}:{41+2*r}], v{ACU+4*rho+r}")
        for r in range(4):
            a(f"ds_write_b64 v4, v[{40+2*r}:{41+2*r}] offset:{rho*16384 + r*1024}")
    a("s_mov_b64 exec, -1")
    a("s_waitcnt lgkmcnt(0)")
    gstamp(a, 6)
    a("s_barrier")
    a("s_branch K2_JOIN")
    a.label("K2_G_WINDOW")
    a("s_barrier")
    a("s_barrier")
    a("s_barrier")
    a.label("K2_JOIN")
    stamp(a, 4)
    a("s_cmp_eq_u32 s28, 0")
    a("s_cbranch_scc0 K2_NOZ2")
    a(f"v_lshrrev_b32 v68, 2, v{vCS}")
    a("v_mov_b32 v69, 0")
    a(f"ds_write_b32 v68, v69 offset:{L_CNT}")
    a("s_waitcnt lgkmcnt(0)")
    a.label("K2_NOZ2")
    a(f"v_mov_b32 v70, {L_TOT+4}")
    a("ds_read_b32 v70, v70")
    for t in range(4):
        a(f"ds_read_b128 {vr(B+4*t,4)}, v{vCS} offset:{L_CS + 1024*t}")
    a(f"ds_read_b128 {vr(A,4)}, v{vCS} offset:{L_CS + 8192}")
    a(f"v_lshrrev_b32 v64, 8, v{vCS}")
    a(f"v_bfe_u32 v65, v{vCS}, 4, 4")
    a(f"v_lshlrev_b32 v{vJ16}, 4, v65")
    a(f"v_lshlrev_b32 v{vJ4}, 2, v65")
    a(f"v_and_b32 v{vH16}, 16, v{vCS}")
    a(f"v_lshrrev_b32 v67, 5, v{vCS}")
    a("s_waitcnt lgkmcnt(5)")
    a(f"v_readfirstlane_b32 s{sTMP+1}, v70")
    a(f"v_lshlrev_b32 v66, 5, v65")
    a(f"v_lshl_add_u32 v66, v64, 4, v66")
    a(f"s_lshr_b32 s{sTMP+2}, s{sTMP+1}, 4")
    a(f"s_and_b32 s{sTMP+3}, s{sTMP+1}, 15")
    a(f"s_cmp_lt_u32 s28, s{sTMP+3}")
    a(f"s_cselect_b32 s{sL}, 1, 0")
    a(f"s_add_u32 s{sL}, s{sL}, s{sTMP+2}")
    a(f"s_mul_i32 s{sTMP+2}, s{sTMP+2}, s28")
    a(f"s_min_u32 s{sTMP+3}, s{sTMP+3}, s28")
    a(f"s_add_u32 s{sTMP+2}, s{sTMP+2}, s{sTMP+3}")
    a(f"s_lshl_b32 s{sNIT}, s{sL}, {2 if 'dbl' in OPT else 1}")
    a(f"s_cmp_eq_u32 s{sL}, 0")
    a("s_cbranch_scc1 K2_LOOP_DONE")
    if "noprio" not in OPT: a("s_setprio 2")
    a(f"s_lshl_b32 s{sTMP+4}, s{sTMP+2}, 4")
    a(f"v_add_lshl_u32 v{vTd}, v67, s{sTMP+4}, 2")
    a(f"s_lshl_b32 s{sM0}, s{sTMP+2}, 9")
    a(f"s_add_u32 s{sM0}, s{sM0}, {L_ES}")
    a(f"v_add_u32 v{vTe0}, s{sM0}, v66")
    a(f"s_lshl_b32 s{sTMP+4}, s{sTMP+2}, 6")
    a(f"v_lshl_add_u32 v{vTa0}, v64, 4, s{sTMP+4}")
    a(f"s_mov_b32 s{sDI}, 0")
    a(f"s_mov_b32 s{sN}, 0")
    a(f"s_mov_b32 s{sLI}, 0")
    a(f"s_mov_b32 s{sAI}, 0")
    a(f"s_mov_b32 s{sHL}, 0")
    eo_read(a)
    a(f"v_mov_b32 v{vTa}, v{vTa0}")
    a(f"v_mov_b32 v{vTe}, v{vTe0}")
    a("s_waitcnt lgkmcnt(0)")
    e_dma(a)
    a(f"s_cmp_lt_u32 s{sDI}, s{sL}")
    a("s_cbranch_scc0 K2_ND1")
    eo_read(a)
    a("s_waitcnt lgkmcnt(0)")
    e_dma(a)
    a.label("K2_ND1")
    list_stage(a)
    a("s_waitcnt lgkmcnt(0)")
    gather_stage(a, QH[0])
    for i in range(3):
        a(f"v_mov_b32 v{1+i}, v{G+i}")
    list_stage(a)
    a("s_waitcnt lgkmcnt(0)")
    gather_stage(a, QH[1])
    stamp(a, 5)
    a("s_waitcnt vmcnt(8)")
    ap_stage(a, vG, 1)
    a("s_waitcnt lgkmcnt(0)")
    a.label("K2_LOOP")
    for k in range(3):
        tile_body(a, k)
    a("s_branch K2_LOOP")
    a.label("K2_LOOP_DONE")
    a("s_setprio 0")
    stamp(a, 6)
    a("s_waitcnt lgkmcnt(0)")
    a("s_barrier")
    a(f"s_add_u32 s{sWIN}, s{sWIN}, {CAPE}")
    a(f"s_cmp_lt_u32 s{sWIN}, s{sTOT}")
    a("s_cbranch_scc0 K2_EPI")
    a("s_cmp_ge_u32 s28, 8")
    a("s_cbranch_scc1 K2_G_WINDOW")
    a(f"v_lshrrev_b32 v{vW}, 1, v0")
    a(f"v_lshlrev_b32 v{vOA}, 10, v{vW}")
    a(f"s_lshl_b32 s{sTMP}, s{sBIN}, 2")
    a(f"s_add_u32 s{sTMP}, s{sTMP}, {OFFS_OFF}")
    a(f"buffer_load_dword v{vOf}, v{vOA}, {sr(sWS,4)}, s{sTMP} offen")
    a(f"v_and_b32 v{vSub}, 1, v0")
    a(f"v_mul_u32_u24 v{vSg}, {CE}, v{vW}")
    a(f"v_cmp_gt_u32 vcc, 250, v{vW}")
    a(f"v_mov_b32 v{vPw}, v121")
    if not ECOPY: a(f"v_mul_u32_u24 v{vWb}, {CE*32}, v{vW}")
    a("s_waitcnt vmcnt(0)")
    a(f"v_lshrrev_b32 v{vC}, 16, v{vOf}")
    a(f"v_and_b32 v{vOf}, 0xffff, v{vOf}")
    a(f"v_cndmask_b32 v{vC}, 0, v{vC}, vcc")
    a(f"v_add_u32 v{vSg}, v{vSg}, v{vOf}")
    a(f"v_sub_u32 v{vKB}, s{sWIN}, v{vPw}")
    a(f"v_max_i32 v{vKB}, 0, v{vKB}")
    entry_addr()
    a(f"v_lshl_add_u32 v{vEA}, v{vKB}, 2, v{vEA}")
    a(f"v_lshl_add_u32 v{vEB}, v{vKB}, 2, v{vEB}")
    a(f"s_mov_b32 s{sTMP+4}, {ENT_OFF}")
    entry_loads(sTMP+4)
    a("s_waitcnt vmcnt(0)")
    a("s_branch K2_WINDOW")
    a.label("K2_EPI")
    a("v_cmp_gt_u32 vcc, 640, v0")
    a("s_and_saveexec_b64 s[54:55], vcc")
    a("s_cbranch_execz K2_EXIT")
    a("v_lshlrev_b32 v1, 6, v0")
    for i in range(4):
        a(f"ds_read_b128 {vr(32+4*i,4)}, v1 offset:{L_AGG+16*i}")
    a(f"s_mov_b32 s{sTMP}, {hex(C_2MK)}")
    a(f"s_mov_b32 s{sTMP+1}, {hex(NEG_LOG2E)}")
    a("s_waitcnt lgkmcnt(0)")
    for i in range(8):
        a(f"v_cvt_f32_f64 v{8+i}, v[{32+2*i}:{33+2*i}]")
    for i in range(8):
        a(f"v_mul_f32 v{8+i}, s{sTMP}, v{8+i}")
    for i in range(8):
        a(f"v_mul_f32 v{16+i}, s{sTMP+1}, v{8+i}")
    for i in range(8):
        a(f"v_exp_f32 v{16+i}, v{16+i}")
    for i in range(8):
        a(f"v_add_f32 v{16+i}, 1.0, v{16+i}")
    for i in range(8):
        a(f"v_rcp_f32 v{16+i}, v{16+i}")
    a("s_nop 0")
    for i in range(8):
        a(f"v_mul_f32 v{8+i}, v{8+i}, v{16+i}")
    for i in range(4):
        a(f"v_cvt_pk_bf16_f32 v{24+i}, v{8+2*i}, v{9+2*i}")
    a("v_lshlrev_b32 v2, 4, v0")
    a(f"s_mul_i32 s{sTMP}, s{sBIN}, {NPB*256}")
    a(f"buffer_store_dwordx4 v[24:27], v2, {sr(sO,4)}, s{sTMP} offen")
    if "stamp" in OPT:
        a("s_waitcnt vmcnt(0)")
        stamp(a, 7)
        a("s_memrealtime s[82:83]")
        a("s_waitcnt lgkmcnt(0)")
        stamp_out(a, 10)
    a.label("K2_EXIT")
    a("s_endpgm")

HEADER = f"""; EGC edge-gated message passing: out = silu(x@U + segsum_dst(sigmoid([x_dst,x_src,e]@G) * (x@V)[src]))
; launch 1 (prep): per-node tables Q'=-log2e*(x@B), H=x@V; edge binning by destination; weight fragment images
; @launch kernel=egc_prep_kernel grid=({K1_WGS},1,1) block=(256,1,1) lds={K1_LDS}
; @launch kernel=egc_main_kernel grid=({NB},1,1) block=(1024,1,1) lds={K2_LDS}
.amdgcn_target "amdgcn-amd-amdhsa--gfx950"
.text
"""

def kd(name, vgpr, sgpr):
    return f""".amdhsa_kernel {name}
  .amdhsa_next_free_vgpr {vgpr}
  .amdhsa_next_free_sgpr {sgpr}
  .amdhsa_accum_offset {((vgpr+3)//4)*4}
  .amdhsa_group_segment_fixed_size 0
  .amdhsa_kernarg_size 80
  .amdhsa_user_sgpr_count 2
  .amdhsa_user_sgpr_kernarg_segment_ptr 1
  .amdhsa_system_sgpr_workgroup_id_x 1
.end_amdhsa_kernel
"""

def main():
    a = Asm()
    a.raw(".globl egc_prep_kernel")
    k1(a)
    a.raw(".globl egc_main_kernel")
    k2(a)
    out = HEADER + a.text()
    out += '.section .rodata,"a"\n.p2align 6\n' + kd("egc_prep_kernel", 104 if "stamp1" in OPT else 96, 96) + ".p2align 6\n" + kd("egc_main_kernel", 128, 96)
    path = sys.argv[1] if len(sys.argv) > 1 else f"cdna_kernels/{NAME}.s"
    open(path, "w").write(out)
    print("wrote", path, len(out), "bytes")

if __name__ == "__main__":
    main()
```

```python
import sys, struct, os
OPT = set(os.environ.get("OPT","").split(","))

NAME = "gather_scatter__edge_featured_mpnn_egc__graph"
N = 10000; E = 320000
NB = 250; NPB = 40
NC = 250; CE = 1280
KSH = 26
def f2u(x): return struct.unpack('<I', struct.pack('<f', x))[0]
NEG_LOG2E = f2u(-1.4426950408889634)
C_2MK = f2u(2.0 ** -KSH)
C_2PK = f2u(2.0 ** KSH)
BF16_NEGK = 0xC1D0
assert KSH == 26

HALF_STRIDE = (N + 1) * 256
T_OFF = 0;            T_BYTES = 2 * HALF_STRIDE
ENT_OFF = 0x500000
OFFS_OFF = 0x640000
WF_OFF = 0x680000
CF_OFF = 0x690000
E2_OFF = 0x800000
WS_END = 0x1200000

NT_WG = 314
BIN0 = NT_WG
WF0 = BIN0 + NC
CF0 = WF0 + 8
K1_WGS = CF0 + 1
K1_LDS = (7168 + 40960) if 'ecopy' in OPT else 128 * 288

class Asm:
    def __init__(self): self.lines = []
    def __call__(self, s):
        for l in s.split("\n"):
            l = l.strip()
            if l: self.lines.append("    " + l)
    def label(self, n): self.lines.append(n + ":")
    def raw(self, s): self.lines.append(s)
    def text(self): return "\n".join(self.lines) + "\n"

def vr(i, n=1): return f"v{i}" if n == 1 else f"v[{i}:{i+n-1}]"
def sr(i, n=1): return f"s{i}" if n == 1 else f"s[{i}:{i+n-1}]"

def srd(a, d, base, nbytes):
    a(f"s_mov_b32 s{d}, s{base}")
    a(f"s_and_b32 s{d+1}, s{base+1}, 0xffff")
    a(f"s_mov_b32 s{d+2}, {nbytes}")
    a(f"s_mov_b32 s{d+3}, 0x00020000")

def stamp1(a, i):
    if "stamp1" in OPT:
        a(f"s_memrealtime s[{64+2*i}:{65+2*i}]")
        a("s_waitcnt lgkmcnt(0)")
def stamp1_out(a, n, ws_srd, wgreg, lbl):
    if "stamp1" in OPT:
        a("s_waitcnt vmcnt(0)")
        stamp1(a, n-1)
        a("v_readfirstlane_b32 s60, v0")
        a("s_cmp_eq_u32 s60, 0")
        a(f"s_cbranch_scc0 {lbl}")
        a(f"s_mov_b32 s{ws_srd+2}, 0x1400000")
        for i in range(n):
            a(f"v_mov_b32 v100, s{64+2*i}")
            a(f"v_mov_b32 v101, s{65+2*i}")
            a(f"s_lshl_b32 s60, s{wgreg}, 7")
            a(f"s_add_u32 s60, s60, {0x1310000 + 8*i}")
            a("v_mov_b32 v102, 0")
            a(f"buffer_store_dwordx2 v[100:101], v102, s[{ws_srd}:{ws_srd+3}], s60 offen")
            a("s_nop 1")
        a.label(lbl)

def wave_scan(a, v):
    for sh in (1, 2, 4, 8):
        a("s_nop 1")
        a(f"v_add_u32_dpp v{v}, v{v}, v{v} row_shr:{sh} row_mask:0xf bank_mask:0xf bound_ctrl:1")
    a("s_nop 1")
    a(f"v_add_u32_dpp v{v}, v{v}, v{v} row_bcast:15 row_mask:0xa bank_mask:0xf")
    a("s_nop 1")
    a(f"v_add_u32_dpp v{v}, v{v}, v{v} row_bcast:31 row_mask:0xc bank_mask:0xf")

def k1_table(a):
    a.label("K1_TABLE")
    stamp1(a, 0)
    a("s_and_b32 s3, s2, 1")
    a("s_lshr_b32 s28, s2, 1")
    srd(a, 20, 16, 69632)
    srd(a, 36, 14, 32768)
    srd(a, 24, 4, N * 256)
    srd(a, 32, 18, 2 * HALF_STRIDE)
    a("s_lshl_b32 s29, s3, 7")
    a("s_add_u32 s30, s29, 32768")
    a("v_lshrrev_b32 v1, 3, v0")
    a("v_and_b32 v2, 7, v0")
    a("v_lshlrev_b32 v3, 8, v1")
    a("v_lshl_add_u32 v3, v2, 4, v3")
    for i in range(4):
        a(f"buffer_load_dwordx4 {vr(8+4*i,4)}, v3, s[20:23], s30 offen")
        if i < 3: a("s_add_u32 s30, s30, 8192")
    for i in range(4):
        a(f"buffer_load_dwordx4 {vr(24+4*i,4)}, v3, s[36:39], s29 offen")
        if i < 3: a("s_add_u32 s29, s29, 8192")
    a("v_mul_u32_u24 v7, 288, v1")
    a("v_lshl_add_u32 v7, v2, 4, v7")
    a("v_and_b32 v2, 15, v0")
    a("v_bfe_u32 v3, v0, 4, 2")
    a("v_lshrrev_b32 v4, 6, v0")
    a("s_lshl_b32 s31, s28, 6")
    a("v_lshl_add_u32 v5, v4, 4, s31")
    a("v_add_u32 v6, v5, v2")
    a("v_lshlrev_b32 v6, 8, v6")
    a("v_lshl_add_u32 v6, v3, 4, v6")
    for ks in range(4):
        a(f"buffer_load_dwordx4 {vr(40+4*ks,4)}, v6, s[24:27], 0 offen offset:{64*ks}")
    for i in range(8):
        a(f"s_waitcnt vmcnt({11-i})")
        a(f"ds_write_b128 v7, {vr(8+4*i,4)} offset:{9216*(i&3) + 128*(i>>2)}")
    a("v_lshrrev_b32 v7, 2, v2")
    a("v_lshl_add_u32 v7, v3, 3, v7")
    a("v_mul_u32_u24 v7, 288, v7")
    a("v_and_b32 v1, 3, v0")
    a("v_lshl_add_u32 v7, v1, 3, v7")
    a("v_lshl_add_u32 v1, v3, 2, v5")
    a("v_lshlrev_b32 v6, 8, v1")
    a("v_lshl_add_u32 v6, v2, 4, v6")
    a(f"s_mul_i32 s3, s3, {HALF_STRIDE}")
    a("s_waitcnt vmcnt(0) lgkmcnt(0)")
    stamp1(a, 1)
    a("s_barrier")
    stamp1(a, 2)
    ACC = 64
    BF = [8, 24]
    def reads(t):
        b = BF[t & 1]
        for ks in range(4):
            a(f"ds_read_b64_tr_b16 {vr(b+4*ks,2)}, v7 offset:{9216*ks + 32*t}")
            a(f"ds_read_b64_tr_b16 {vr(b+4*ks+2,2)}, v7 offset:{9216*ks + 32*t + 1152}")
    reads(0)
    for t in range(8):
        if t < 7:
            reads(t + 1)
            a("s_waitcnt lgkmcnt(8)")
        else:
            a("s_waitcnt lgkmcnt(0)")
        b = BF[t & 1]
        for ks in range(4):
            c = "0" if ks == 0 else vr(ACC+4*t, 4)
            a(f"v_mfma_f32_16x16x32_bf16 {vr(ACC+4*t,4)}, {vr(40+4*ks,4)}, {vr(b+4*ks,4)}, {c}")
    stamp1(a, 3)
    a("s_mov_b32 s40, 0x00800000")
    a("s_mov_b32 s41, 0x7fff0000")
    a(f"s_mov_b32 s42, {hex(NEG_LOG2E)}")
    a(f"s_movk_i32 s43, {N}")
    a("s_nop 6")
    for r in range(4):
        W = 8 + 8 * (r & 1)
        for t in range(4):
            a(f"v_mul_f32 v{ACC+4*t+r}, s42, v{ACC+4*t+r}")
        for p in range(4):
            lo, hi = ACC + 4*(2*p) + r, ACC + 4*(2*p+1) + r
            a(f"v_cvt_pk_bf16_f32 v{W+p}, v{lo}, v{hi}")
            a(f"v_max_f32_e64 v{hi}, |v{hi}|, s40")
        for p in range(4):
            hi = ACC + 4*(2*p+1) + r
            a(f"v_add_u32 v{hi}, 0x8000, v{hi}")
        for p in range(4):
            hi = ACC + 4*(2*p+1) + r
            a(f"v_sub_u32_sdwa v{hi}, v{hi}, v{W+p} dst_sel:DWORD dst_unused:UNUSED_PAD src0_sel:DWORD src1_sel:WORD_0")
        a(f"v_add_u32 v2, {r}, v1")
        a("v_cmp_ge_u32 vcc, s43, v2")
        for p in range(4):
            hi = ACC + 4*(2*p+1) + r
            a(f"v_bfi_b32 v{W+p}, s41, v{hi}, v{W+p}")
        a("s_and_saveexec_b64 s[44:45], vcc")
        a(f"s_cbranch_execz K1_TAB_SKIP{r}")
        a(f"buffer_store_dwordx4 {vr(W,4)}, v6, s[32:35], s3 offen offset:{256*r} sc1")
        a.label(f"K1_TAB_SKIP{r}")
        a("s_mov_b64 exec, s[44:45]")
    stamp1(a, 4)
    stamp1(a, 5)
    stamp1_out(a, 7, 32, 2, "K1_ST_TAB")
    a("s_endpgm")

def k1_bin(a):
    HIST, OFF2, SORT, ESORT = 0, 1024, 2048, 7168
    a.label("K1_BIN")
    stamp1(a, 0)
    a(f"s_sub_u32 s3, s2, {BIN0}")
    srd(a, 20, 8, E * 4)
    srd(a, 24, 10, E * 4)
    srd(a, 28, 18, WS_END)
    a("v_lshlrev_b32 v1, 2, v0")
    a("s_mul_i32 s32, s3, 5120")
    a("v_mov_b32 v2, 0")
    a(f"ds_write_b32 v1, v2 offset:{HIST}")
    DST, SRC = 8, 16
    for m in range(5):
        a(f"buffer_load_dword v{DST+m}, v1, s[24:27], s32 offen offset:{1024*m if m<4 else 0}" if m < 4 else
          f"s_add_u32 s33, s32, 4096\nbuffer_load_dword v{DST+m}, v1, s[24:27], s33 offen")
    for m in range(5):
        a(f"buffer_load_dword v{SRC+m}, v1, s[20:23], s32 offen offset:{1024*m}" if m < 4 else
          f"buffer_load_dword v{SRC+m}, v1, s[20:23], s33 offen")
    ECOPY = "ecopy" in OPT
    NE = 10 if ECOPY else 0
    srd(a, 40, 6, E * 32)
    a("v_lshlrev_b32 v6, 5, v0")
    a("s_mul_i32 s44, s3, 40960")
    ER = 56
    if "noeload" in OPT: a("s_mov_b32 s42, 0")
    NT = " nt" if "ent" in OPT else ""
    for m in range(5 if ECOPY else 0):
        a(f"buffer_load_dwordx4 {vr(ER+8*m,4)}, v6, s[40:43], s44 offen{NT}")
        a(f"buffer_load_dwordx4 {vr(ER+8*m+4,4)}, v6, s[40:43], s44 offen offset:16{NT}")
        if m < 4: a("s_add_u32 s44, s44, 8192")
    a("s_mov_b32 s34, 52429")
    a("s_waitcnt lgkmcnt(0)")
    a("s_barrier")
    BINR, RANK = 24, 32
    if "stamp1" in OPT:
        a(f"s_waitcnt vmcnt({9+NE})")
        stamp1(a, 1)
    a("v_mov_b32 v3, 1")
    for m in range(5):
        a(f"s_waitcnt vmcnt({9+NE-m})")
        a(f"v_mul_u32_u24 v{BINR+m}, s34, v{DST+m}")
        a(f"v_lshrrev_b32 v{BINR+m}, 21, v{BINR+m}")
        a(f"v_mul_u32_u24 v4, 40, v{BINR+m}")
        a(f"v_sub_u32 v{DST+m}, v{DST+m}, v4")
        a(f"v_lshlrev_b32 v{BINR+m}, 2, v{BINR+m}")
        a(f"ds_add_rtn_u32 v{RANK+m}, v{BINR+m}, v3 offset:{HIST}")
    for m in range(5):
        a(f"s_waitcnt vmcnt({4+NE-m})")
        a(f"v_lshl_or_b32 v{SRC+m}, v{DST+m}, 14, v{SRC+m}")
        if not ECOPY:
            a(f"v_add_u32 v4, {256*m}, v0")
            a(f"v_lshl_or_b32 v{SRC+m}, v4, 20, v{SRC+m}")
    a("s_waitcnt lgkmcnt(0)")
    a("s_barrier")
    stamp1(a, 2)
    a("v_and_b32 v5, 63, v0")
    a("v_lshlrev_b32 v5, 4, v5")
    a(f"ds_read_b128 v[40:43], v5 offset:{HIST}")
    a("s_waitcnt lgkmcnt(0)")
    a("v_add_u32 v44, v40, v41")
    a("v_add_u32 v45, v42, v43")
    a("v_add_u32 v46, v44, v45")
    a("v_mov_b32 v47, v46")
    wave_scan(a, 47)
    a("v_sub_u32 v48, v47, v46")
    a("v_add_u32 v49, v48, v40")
    a("v_add_u32 v50, v48, v44")
    a("v_add_u32 v51, v50, v42")
    a(f"ds_write_b128 v5, v[48:51] offset:{OFF2}")
    a("v_readfirstlane_b32 s35, v0")
    a("s_lshl_b32 s36, s3, 10")
    a(f"s_add_u32 s36, s36, {OFFS_OFF}")
    a("s_cmp_ge_u32 s35, 64")
    a("s_cbranch_scc1 K1_BIN_NOPUB")
    for i in range(4):
        a(f"v_lshl_or_b32 v{52+i}, v{40+i}, 16, v{48+i}")
    a("buffer_store_dwordx4 v[52:55], v5, s[28:31], s36 offen sc1")
    a.label("K1_BIN_NOPUB")
    a("s_waitcnt lgkmcnt(0)")
    for m in range(5):
        a(f"ds_read_b32 v{40+m}, v{BINR+m} offset:{OFF2}")
    for m in range(5):
        a(f"s_waitcnt lgkmcnt({4-m})")
        a(f"v_add_lshl_u32 v{40+m}, v{40+m}, v{RANK+m}, 2")
        a(f"ds_write_b32 v{40+m}, v{SRC+m} offset:{SORT}")
    stamp1(a, 3)
    for m in range(5 if ECOPY else 0):
        a(f"v_lshlrev_b32 v{40+m}, 3, v{40+m}")
        a(f"s_waitcnt vmcnt({9 - 2*m})")
        a(f"ds_write_b128 v{40+m}, {vr(ER+8*m,4)} offset:{ESORT}")
        a(f"s_waitcnt vmcnt({8 - 2*m})")
        a(f"ds_write_b128 v{40+m}, {vr(ER+8*m+4,4)} offset:{ESORT+16}")
    a("s_waitcnt lgkmcnt(0)")
    a("s_barrier")
    stamp1(a, 4)
    a("v_lshlrev_b32 v5, 4, v0")
    a(f"ds_read_b128 v[40:43], v5 offset:{SORT}")
    a(f"s_add_u32 s36, s32, {ENT_OFF}")
    a("v_cmp_gt_u32 vcc, 64, v0")
    a("s_waitcnt lgkmcnt(0)")
    a("buffer_store_dwordx4 v[40:43], v5, s[28:31], s36 offen sc1")
    a("s_and_saveexec_b64 s[38:39], vcc")
    a("s_cbranch_execz K1_BIN_END")
    a(f"ds_read_b128 v[44:47], v5 offset:{SORT+4096}")
    a("s_add_u32 s36, s36, 4096")
    a("s_waitcnt lgkmcnt(0)")
    a("buffer_store_dwordx4 v[44:47], v5, s[28:31], s36 offen sc1")
    a.label("K1_BIN_END")
    a("s_mov_b64 exec, -1")
    a("s_mul_i32 s36, s3, 40960")
    a(f"s_add_u32 s36, s36, {E2_OFF}")
    for i in range(NE):
        a(f"ds_read_b128 {vr(ER+4*i,4)}, v5 offset:{ESORT + 4096*i}")
    for i in range(NE):
        a(f"s_waitcnt lgkmcnt({9-i})")
        pol = "" if "eplain" in OPT else (" nt" if "estnt" in OPT else " sc1")
        if "noestore" not in OPT: a(f"buffer_store_dwordx4 {vr(ER+4*i,4)}, v5, s[28:31], s36 offen{pol}")
        if i < 9: a("s_add_u32 s36, s36, 4096")
    stamp1(a, 5)
    stamp1_out(a, 7, 28, 2, "K1_ST_BIN")
    a("s_endpgm")

def k1_wf(a):
    a.label("K1_WF")
    a(f"s_sub_u32 s3, s2, {WF0}")
    a("v_lshrrev_b32 v1, 6, v0")
    a("s_nop 0")
    a("v_readfirstlane_b32 s28, v1")
    a("s_lshl_b32 s3, s3, 2")
    a("s_add_u32 s3, s3, s28")
    a("s_lshr_b32 s29, s3, 1")
    a("s_and_b32 s30, s3, 1")
    a("s_cmp_lt_u32 s29, 8")
    a("s_cselect_b32 s20, s16, s12")
    a("s_cselect_b32 s21, s17, s13")
    a("s_and_b32 s21, s21, 0xffff")
    a("s_mov_b32 s22, 32768")
    a("s_mov_b32 s23, 0x00020000")
    srd(a, 24, 18, WS_END)
    a("v_and_b32 v2, 15, v0")
    a("v_bfe_u32 v3, v0, 4, 2")
    a("s_and_b32 s31, s29, 7")
    a("s_lshl_b32 s31, s31, 5")
    a("s_lshl_b32 s32, s30, 14")
    a("s_add_u32 s31, s31, s32")
    a("v_lshlrev_b32 v4, 11, v3")
    a("v_lshl_add_u32 v4, v2, 1, v4")
    a("s_add_u32 s33, s31, 8192")
    for f in range(2):
        for m in range(8):
            a(f"buffer_load_ushort v{8+8*f+m}, v4, s[20:23], s{31 if f==0 else 33} offen offset:{256*m}")
    a("v_and_b32 v5, 63, v0")
    a("v_lshlrev_b32 v5, 4, v5")
    a("s_lshl_b32 s34, s3, 11")
    a(f"s_add_u32 s34, s34, {WF_OFF}")
    for f in range(2):
        a(f"s_waitcnt vmcnt({8 if f==0 else 1})")
        for p in range(4):
            a(f"v_lshl_or_b32 v{24+4*f+p}, v{8+8*f+2*p+1}, 16, v{8+8*f+2*p}")
        a(f"buffer_store_dwordx4 {vr(24+4*f,4)}, v5, s[24:27], s34 offen offset:{1024*f} sc1")
    a("s_endpgm")

def k1_cf(a):
    a.label("K1_CF")
    a("v_lshrrev_b32 v1, 6, v0")
    a("s_nop 0")
    a("v_readfirstlane_b32 s28, v1")
    srd(a, 20, 16, 69632)
    srd(a, 24, 18, WS_END)
    a("v_and_b32 v2, 15, v0")
    a("v_bfe_u32 v3, v0, 4, 2")
    a("v_and_b32 v4, 1, v3")
    a("v_lshlrev_b32 v4, 11, v4")
    a("v_lshl_add_u32 v4, v2, 1, v4")
    a("s_lshl_b32 s29, s28, 6")
    a("s_add_u32 s29, s29, 65536")
    for f in range(2):
        for m in range(8):
            a(f"buffer_load_ushort v{8+8*f+m}, v4, s[20:23], s29 offen offset:{256*m + 32*f}")
    a("v_and_b32 v5, 63, v0")
    a("v_lshlrev_b32 v5, 4, v5")
    a("s_lshl_b32 s34, s28, 11")
    a(f"s_add_u32 s34, s34, {CF_OFF}")
    a(f"s_mov_b32 s30, {hex(NEG_LOG2E)}")
    a("v_cmp_gt_u32 vcc, 2, v3")
    a("v_cmp_eq_u32 s[32:33], 2, v3")
    a(f"v_mov_b32 v6, {hex(BF16_NEGK)}")
    a("v_mov_b32 v7, 0")
    a("s_waitcnt vmcnt(0)")
    for f in range(2):
        for m in range(8):
            a(f"v_lshlrev_b32 v{8+8*f+m}, 16, v{8+8*f+m}")
            a(f"v_mul_f32 v{8+8*f+m}, s30, v{8+8*f+m}")
        for p in range(4):
            a(f"v_cvt_pk_bf16_f32 v{24+4*f+p}, v{8+8*f+2*p}, v{8+8*f+2*p+1}")
        a(f"v_cndmask_b32 v30, v7, v6, s[32:33]" if False else "")
        a(f"v_cndmask_b32 v32, v7, v6, s[32:33]")
        a(f"v_cndmask_b32 v{24+4*f+0}, v7, v{24+4*f+0}, vcc")
        a(f"v_cndmask_b32 v{24+4*f+1}, v7, v{24+4*f+1}, vcc")
        a(f"v_cndmask_b32 v{24+4*f+2}, v32, v{24+4*f+2}, vcc")
        a(f"v_cndmask_b32 v{24+4*f+3}, v7, v{24+4*f+3}, vcc")
        a(f"buffer_store_dwordx4 {vr(24+4*f,4)}, v5, s[24:27], s34 offen offset:{1024*f} sc1")
    a("s_cmp_eq_u32 s28, 0")
    a("s_cbranch_scc0 K1_CF_END")
    a("v_lshrrev_b32 v8, 2, v2")
    a("v_subrev_u32 v9, 2, v3")
    a("v_lshlrev_b32 v9, 1, v9")
    a("v_mov_b32 v10, 0x3f803f80")
    a("v_cmp_eq_u32 vcc, v8, v9")
    a("v_add_u32 v9, 1, v9")
    a("v_cmp_eq_u32 s[36:37], v8, v9")
    a("v_cndmask_b32 v12, v7, v10, vcc")
    a("v_mov_b32 v11, 0x3f80")
    a("v_cndmask_b32 v13, v7, v10, s[36:37]")
    a("v_cndmask_b32 v14, v7, v11, s[32:33]")
    a("v_mov_b32 v15, 0")
    a(f"s_mov_b32 s34, {CF_OFF + 8192}")
    a("buffer_store_dwordx4 v[12:15], v5, s[24:27], s34 offen sc1")
    a.label("K1_CF_END")
    a("s_endpgm")

def k1(a):
    a.raw(".p2align 8")
    a.raw(".type egc_prep_kernel,@function")
    a.label("egc_prep_kernel")
    a(f"s_cmp_ge_u32 s2, {K1_WGS}")
    a("s_cbranch_scc1 K1_EXIT")
    a("s_load_dwordx4 s[4:7], s[0:1], 0")
    a("s_load_dwordx4 s[8:11], s[0:1], 16")
    a("s_load_dwordx4 s[12:15], s[0:1], 32")
    a("s_load_dwordx2 s[16:17], s[0:1], 48")
    a("s_load_dwordx2 s[18:19], s[0:1], 72")
    a("s_waitcnt lgkmcnt(0)")
    a(f"s_cmp_lt_u32 s2, {BIN0}")
    a("s_cbranch_scc1 K1_TABLE")
    a(f"s_cmp_lt_u32 s2, {WF0}")
    a("s_cbranch_scc1 K1_BIN")
    a(f"s_cmp_lt_u32 s2, {CF0}")
    a("s_cbranch_scc1 K1_WF")
    a("s_branch K1_CF")
    a.label("K1_EXIT")
    a("s_endpgm")
    k1_table(a)
    k1_bin(a)
    k1_wf(a)
    k1_cf(a)

CAPE = 1500
SCAP = 1632
L_CNT = 0; L_TOT = 256; L_TILES = 264; L_FLAG = 268
P_RANGE = 60.0
L_ROW = 512
L_GN = L_ROW + SCAP * 4
L_EO = L_GN + SCAP * 4
L_PPK = L_EO + SCAP * 4
L_CS = L_PPK + 20480
L_AGG = L_CS + 9216
L_XS = L_AGG + 40960
L_ES = L_XS + 48 * 272
L_RAW = L_ES
K2_LDS = L_ES + SCAP * 32
assert K2_LDS <= 163840 and L_AGG + 512 < 65536

QH = [8, 24, 40]; D = 56; B = 72; A = 88; U = 92; T = 100; R = 104; G = 108
vGS = [111, 112, 113]; vTa = 114; vTe = 115; vJ16 = 116; vJ4 = 117; vTa0 = 118; vTe0 = 119; vCS = 120
vDUM = 7
vTd = 122; vEo = 123; vH16 = 5; vEPa = 1; vJ16h = 6; EP = 124
sX = 12; sE = 16; sO = 20; sWS = 24
sWV = 28
sLO = 30
sHI = 32
sCC = 34
sN = 36; sNIT = 37; sL = 38
sLI = 39
sAI = 40
sHL = 41
sHG = 42
sTOT = 43
sWIN = 44
sDI = 45
sM0 = 62
sBIN = 29
sE2 = 63
sINC = 20
sLM3 = 43+48
sFLAG = 90
sNM2 = 89
sINCP = 92
sM = 46
sTMP = 56

STAMP_OFF = 0x1300000
def fstamp(a, i):
    if "fine" in OPT:
        a(f"s_memtime s[{64+2*i}:{65+2*i}]")
        a("s_waitcnt lgkmcnt(0)")
def gstamp(a, i):
    if "gst" in OPT:
        a(f"s_memtime s[{64+2*i}:{65+2*i}]")
        a("s_waitcnt lgkmcnt(0)")
def stamp(a, i):
    if ("fine" in OPT or "gst" in OPT) and i in (1,2,3,4,5,6): return
    if "stamp" in OPT:
        a(f"s_memtime s[{64+2*i}:{65+2*i}]")
        a("s_waitcnt lgkmcnt(0)")
def stamp_out(a, n):
    if "stamp" in OPT:
        a(f"s_cmp_eq_u32 s28, {8 if 'gst' in OPT else 0}")
        a("s_cbranch_scc0 STAMP_SKIP")
        a("s_mov_b64 exec, -1")
        a("s_mov_b32 s26, 0x1400000")
        for i in range(n):
            a(f"v_mov_b32 v100, s{64+2*i}")
            a(f"v_mov_b32 v101, s{65+2*i}")
            a(f"s_lshl_b32 s60, s2, 7")
            a(f"s_add_u32 s60, s60, {STAMP_OFF + 8*i}")
            a("v_mov_b32 v102, 0")
            a(f"buffer_store_dwordx2 v[100:101], v102, {sr(sWS,4)}, s60 offen")
            a("s_nop 1")
        a.label("STAMP_SKIP")
def P2(x): return f"v[{x}:{x+1}]"

def pair_code(ta, tb, h, shl, vG, v5):
    s = []
    if shl:
        for r in range(4):
            s.append(f"v_lshlrev_b32 v{h[r]}, 16, v{h[r]}")
            s.append(f"v_lshlrev_b32 v{h[r]+1}, 16, v{h[r]+1}")
    if v5:
        ep = EP + (2 if shl else 0)
        for r in range(4):
            s.append(f"v_exp_f32 v{U+2*r}, v{D+4*ta+r}")
            s.append(f"v_exp_f32 v{U+2*r+1}, v{D+4*tb+r}")
        if not shl: s.append("s_waitcnt lgkmcnt(3)")
        for r in range(4):
            s.append(f"v_pk_fma_f32 {P2(U+2*r)}, {P2(U+2*r)}, {P2(ep)}, s[{sCC}:{sCC+1}] clamp")
    else:
        for r in range(4):
            s.append(f"v_exp_f32_e64 v{U+2*r}, v{D+4*ta+r} clamp")
            s.append(f"v_exp_f32_e64 v{U+2*r+1}, v{D+4*tb+r} clamp")
        for r in range(4):
            s.append(f"v_pk_add_f32 {P2(U+2*r)}, {P2(U+2*r)}, s[{sCC}:{sCC+1}]")
    d0, d1, d2, d3 = U, U+2, U+4, U+6
    s += [f"v_pk_mul_f32 {P2(T)}, {P2(h[0])}, {P2(d1)}",
          f"v_pk_mul_f32 {P2(T+2)}, {P2(h[2])}, {P2(d3)}",
          f"v_pk_fma_f32 {P2(T)}, {P2(h[1])}, {P2(d0)}, {P2(T)}",
          f"v_pk_fma_f32 {P2(T+2)}, {P2(h[3])}, {P2(d2)}, {P2(T+2)}",
          f"v_pk_mul_f32 {P2(d0)}, {P2(d0)}, {P2(d1)}",
          f"v_pk_mul_f32 {P2(d2)}, {P2(d2)}, {P2(d3)}",
          f"v_pk_mul_f32 {P2(d1)}, {P2(d0)}, {P2(d2)}",
          f"v_pk_mul_f32 {P2(T)}, {P2(T)}, {P2(d2)}",
          f"v_rcp_f32 v{d1}, v{d1}",
          f"v_rcp_f32 v{d1+1}, v{d1+1}",
          f"v_pk_fma_f32 {P2(T)}, {P2(T+2)}, {P2(d0)}, {P2(T)}",
          f"v_pk_mul_f32 {P2(T)}, {P2(T)}, {P2(d1)}"]
    if "noadd" not in OPT:
        s += [f"v_cvt_f64_f32 {P2(U)}, v{T}",
              f"v_cvt_f64_f32 {P2(U+4)}, v{T+1}",
              f"ds_add_f64 v{vG}, {P2(U)} offset:{L_AGG + 128*ta}",
              f"ds_add_f64 v{vG}, {P2(U+4)} offset:{L_AGG + 128*tb}"]
    return s

deferred = []
def defer(fn, inline):
    if inline: fn()
    else: deferred.append(fn)
uid = [0]
def lab(p):
    uid[0] += 1
    return f"{p}_{uid[0]}"

def list_reads(a, v5):
    a(f"ds_read_b128 {vr(R,4)}, v{vTa} offset:{L_ROW}")
    if v5: a(f"ds_read_b32 v{G+2}, v{vTa} offset:{L_GN + 8}")
    else:  a(f"ds_read_b96 {vr(G,3)}, v{vTa} offset:{L_GN}")

def ep_read(a):
    a(f"ds_read_b128 {vr(EP,4)}, v{vEPa} offset:{L_PPK}")

def advance(a):
    a(f"v_pk_add_f32 {P2(vTa)}, {P2(vTa)}, s[{sINCP}:{sINCP+1}]")

def list_wrap(a):
    a(f"s_add_u32 s{sLI}, s{sLI}, 1")
    a(f"s_cmp_eq_u32 s{sLI}, s{sL}")
    l, lb = lab("K2_LW"), lab("K2_LWB")
    a(f"s_cbranch_scc1 {l}")
    a.label(lb)
    def blk():
        a.label(l)
        a(f"s_mov_b32 s{sLI}, 0")
        a(f"s_mov_b32 s{sHL}, {HALF_STRIDE}")
        a(f"v_mov_b32 v{vTa}, v{vTa0}")
        a(f"s_branch {lb}")
    deferred.append(blk)

def eo_read(a):
    a(f"ds_read_b32 v{vEo}, v{vTd} offset:{L_EO}")
    a(f"v_add_u32 v{vTd}, 64, v{vTd}")

def e_dma(a):
    a(f"s_mov_b32 m0, s{sM0}")
    a(f"v_add_u32 v{vEo}, v{vEo}, v{vH16}")
    if "samee" in OPT: a(f"v_and_b32 v{vEo}, 0x1f, v{vEo}")
    a(f"s_add_u32 s{sM0}, s{sM0}, 512")
    a(f"s_add_u32 s{sDI}, s{sDI}, 1")
    a(f"s_mov_b64 exec, {sr(sLO,2)}")
    a(f"buffer_load_dwordx4 v{vEo}, {sr(sWS if 'ecopy' in OPT else sE,4)}, s{sE2} offen lds")
    a("s_mov_b64 exec, -1")

def gather_stage(a, buf):
    for r in (0, 2):
        a(f"v_pk_add_f32 {P2(R+r)}, {P2(R+r)}, {P2(vJ16)} op_sel_hi:[1,0]")
    if "samerow" in OPT:
        for r in range(4): a(f"v_and_b32 v{R+r}, 0xff, v{R+r}")
    for r in range(4):
        a(f"buffer_load_dwordx4 {vr(buf+4*r,4)}, v{R+r}, {sr(sWS,4)}, s{sHL} offen")
    l, lb = lab("K2_ND"), lab("K2_NDB")
    a(f"s_cmp_lt_u32 s{sDI}, s{sL}")
    a(f"s_cbranch_scc1 {l}")
    a.label(lb)
    def blk():
        a.label(l)
        e_dma(a)
        eo_read(a)
        a(f"s_branch {lb}")
    deferred.append(blk)
    list_wrap(a)

def ap_stage(a, dstG, v5, G=G):
    l, lb = lab("K2_AW"), lab("K2_AWB")
    a(f"s_cmp_eq_u32 s{sAI}, s{sL}")
    a(f"s_cbranch_scc1 {l}")
    a.label(lb)
    def blk():
        a.label(l)
        a(f"s_mov_b32 s{sAI}, 0")
        if "noprio" not in OPT:
            lp = lab("K2_NP")
            a(f"s_cmp_lt_u32 s{sN}, s{sL}")
            a(f"s_cbranch_scc0 {lp}")
            a("s_setprio 2" if "oldprio" not in OPT else "s_setprio 0")
            a.label(lp)
        a(f"v_add_u32 v{vJ4}, 256, v{vJ4}")
        if v5: a(f"v_add_u32 v{vJ16h}, 256, v{vJ16h}")
        a(f"v_mov_b32 v{vTe}, v{vTe0}")
        for t in range(4):
            a(f"ds_read_b128 {vr(B+4*t,4)}, v{vCS} offset:{L_CS + 1024*(4+t)}")
        a(f"s_branch {lb}")
    deferred.append(blk)
    a(f"s_add_u32 s{sAI}, s{sAI}, 1")
    if v5:
        a(f"v_add_lshl_u32 v{dstG}, v{G+2}, v{vJ4}, 1")
        a(f"v_add_u32 v{vEPa}, v{G+2}, v{vJ16h}")
        a(f"s_mov_b64 exec, {sr(sLO,2)}")
        a(f"ds_read_b128 {vr(A,4)}, v{vTe}")
        a("s_mov_b64 exec, -1")
        return
    a(f"v_pk_add_f32 {P2(G)}, {P2(G)}, {P2(vJ16)} op_sel:[0,1] op_sel_hi:[1,1]")
    a(f"v_add_lshl_u32 v{dstG}, v{G+2}, v{vJ4}, 1")
    a(f"s_mov_b64 exec, {sr(sLO,2)}")
    a(f"ds_read_b128 {vr(A,4)}, v{vTe}")
    a(f"s_mov_b64 exec, {sr(sHI,2)}")
    for t in range(4 if "nop" not in OPT else 0):
        a(f"ds_read_b32 v{B+4*t}, v{G} offset:{L_PPK + 64*t}")
        a(f"ds_read_b32 v{B+4*t+1}, v{G+1} offset:{L_PPK + 64*t}")
    a("s_mov_b64 exec, -1")

def tile_body(a, k, v5, done):
    buf = QH[k]; nbuf = QH[(k + 2) % 3]
    vG = vGS[k]; vGn = vGS[(k + 1) % 3]
    l2 = lab("K2_W")
    a(f"s_cmp_lt_i32 s{sN}, s{sLM3}")
    a(f"s_cbranch_scc1 {l2}")
    a("s_waitcnt vmcnt(4)")
    a.label(l2)
    a("s_waitcnt vmcnt(6)")
    for t in (1, 3):
        p = t >> 1
        for rr in (0, 2):
            a(f"v_pk_mov_b32 {P2(D+4*t+rr)}, {P2(buf+4*rr)}, {P2(buf+4*(rr+1))} op_sel:[{p},{p}]")
    for t in (0, 2):
        p = t >> 1
        for r in range(4):
            a(f"v_lshlrev_b32 v{D+4*t+r}, 16, v{buf+4*r+p}")
    a("s_waitcnt lgkmcnt(4)")
    for t in (1, 3, 0, 2):
        a(f"v_mfma_f32_16x16x32_bf16 {vr(D+4*t,4)}, {vr(A,4)}, {vr(B+4*t,4)}, {vr(D+4*t,4)}")
    ap_stage(a, vGn, v5)
    list_reads(a, v5)
    advance(a)
    h = [buf + 4*r + 2 for r in range(4)]
    for ins in pair_code(1, 3, h, False, vG, v5): a(ins)
    a("s_waitcnt lgkmcnt(3)" if "noadd" not in OPT else "s_waitcnt lgkmcnt(1)")
    gather_stage(a, nbuf)
    for ins in pair_code(0, 2, h, True, vG, v5): a(ins)
    if v5: ep_read(a)
    a(f"s_add_u32 s{sN}, s{sN}, 1")
    if "noprio" in OPT or "oldprio" in OPT:
        a(f"s_cmp_ge_u32 s{sN}, s{sNIT}")
        a(f"s_cbranch_scc1 {done}")
    else:
        l, lb = lab("K2_PR"), lab("K2_PRB")
        a(f"s_cmp_ge_u32 s{sN}, s{sNM2}")
        a(f"s_cbranch_scc1 {l}")
        a.label(lb)
        def blk():
            l1 = lab("K2_PR1")
            a.label(l)
            a(f"s_cmp_ge_u32 s{sN}, s{sNIT}")
            a(f"s_cbranch_scc1 {done}")
            a(f"s_cmp_eq_u32 s{sN}, s{sNM2}")
            a(f"s_cbranch_scc0 {l1}")
            a("s_setprio 1")
            a(f"s_branch {lb}")
            a.label(l1)
            a("s_setprio 0")
            a(f"s_branch {lb}")
        deferred.append(blk)

def table_prefetch(a, vL16):
    if "nopf" in OPT: return
    a(f"s_lshr_b32 s{sTMP+5}, s2, 3")
    a(f"s_mul_i32 s{sTMP+5}, s{sTMP+5}, 81920")
    a(f"s_lshl_b32 s{sTMP+6}, s28, 13")
    a(f"s_add_u32 s{sTMP+5}, s{sTMP+5}, s{sTMP+6}")
    a(f"s_cmp_lt_u32 s28, 10")
    a(f"s_cselect_b32 s{sTMP+5}, s{sTMP+5}, {WS_END}")
    a(f"v_lshlrev_b32 v{vDUM}, 3, v{vL16}")
    a(f"buffer_load_dword v{vDUM}, v{vDUM}, {sr(sWS,4)}, s{sTMP+5} offen")

def table_prefetch(a):
    a(f"s_lshr_b32 s{sTMP}, s2, 3")
    a(f"s_mul_i32 s{sTMP}, s{sTMP}, 81920")
    a(f"s_lshl_b32 s{sTMP+1}, s28, 13")
    a(f"s_add_u32 s{sTMP+1}, s{sTMP+1}, s{sTMP}")
    a(f"v_lshlrev_b32 v{vDUM}, 3, v{vCS}")
    a(f"buffer_load_dword v126, v{vDUM}, {sr(sWS,4)}, s{sTMP+1} offen")
    if "pf8" in OPT: return
    a(f"s_add_u32 s{sTMP+1}, s{sTMP+1}, 65536")
    a(f"s_cmp_lt_u32 s28, 2")
    a(f"s_cselect_b32 s{sTMP+1}, s{sTMP+1}, {WS_END}")
    a(f"buffer_load_dword v127, v{vDUM}, {sr(sWS,4)}, s{sTMP+1} offen")

def k2(a):
    ECOPY = "ecopy" in OPT
    a.raw(".p2align 8")
    a.raw(".type egc_main_kernel,@function")
    a.label("egc_main_kernel")
    a(f"s_cmp_ge_u32 s2, {NB}")
    a("s_cbranch_scc1 K2_EXIT")
    stamp(a, 0)
    if "stamp" in OPT:
        a("s_memrealtime s[80:81]")
        a("s_waitcnt lgkmcnt(0)")
    a("s_load_dwordx4 s[4:7], s[0:1], 0")
    a("s_load_dwordx2 s[8:9], s[0:1], 56")
    a("s_load_dwordx2 s[10:11], s[0:1], 72")
    a("v_lshrrev_b32 v1, 6, v0")
    a("v_lshlrev_b32 v3, 4, v0")
    a("s_and_b32 s46, s2, 7")
    a("v_readfirstlane_b32 s28, v1")
    a("s_lshr_b32 s47, s2, 3")
    a("s_sub_u32 s48, s46, 2")
    a("s_max_i32 s48, s48, 0")
    a("s_lshl_b32 s46, s46, 5")
    a("s_sub_u32 s46, s46, s48")
    a(f"s_add_u32 s{sBIN}, s46, s47")
    a(f"v_and_b32 v{vCS}, 0x3f0, v3")
    a(f"s_mov_b64 {sr(sLO,2)}, 0xffffffff")
    a(f"s_mov_b32 s{sHI}, 0")
    a(f"s_mov_b32 s{sHI+1}, -1")
    a(f"s_mov_b32 s{sCC}, {hex(C_2MK)}")
    a(f"s_mov_b32 s{sCC+1}, {hex(C_2MK)}")
    a(f"s_mov_b32 s{sWIN}, 0")
    a(f"s_mov_b32 s{sE2}, {E2_OFF if ECOPY else 0}")
    a("s_cmp_ge_u32 s28, 8")
    a("s_cbranch_scc1 K2_G")
    vW = 1; vOA = 2; vOf = 4
    vC = 32; vSub = 33; vWb = 34; vEA = 35; vPw = 36; vKB = 37; vSg = 39; vEB = 38
    EN = 56
    a("v_mov_b32 v5, 0")
    a("v_lshrrev_b32 v6, 2, v3")
    a("v_cmp_gt_u32 vcc, 128, v0")
    a(f"v_lshrrev_b32 v{vW}, 1, v0")
    a("s_and_saveexec_b64 s[54:55], vcc")
    a(f"ds_write_b32 v6, v5 offset:{L_CNT}")
    a("s_mov_b64 exec, -1")
    a(f"v_lshlrev_b32 v{vOA}, 10, v{vW}")
    a(f"s_lshl_b32 s{sTMP}, s{sBIN}, 2")
    a(f"s_add_u32 s{sTMP}, s{sTMP}, {OFFS_OFF}")
    a(f"s_mov_b32 s{sTMP+4}, {ENT_OFF}")
    a("s_waitcnt lgkmcnt(0)")
    srd(a, sWS, 10, WS_END)
    a(f"buffer_load_dword v{vOf}, v{vOA}, {sr(sWS,4)}, s{sTMP} offen")
    a(f"v_and_b32 v{vSub}, 1, v0")
    a(f"v_mul_u32_u24 v{vSg}, {CE}, v{vW}")
    a(f"v_cmp_gt_u32 vcc, 250, v{vW}")
    a(f"v_cmp_eq_u32 s[54:55], 0, v{vSub}")
    a(f"v_mov_b32 v16, {L_TOT}")
    if not ECOPY: a(f"v_mul_u32_u24 v{vWb}, {CE*32}, v{vW}")
    srd(a, sE, 6, E * 32)
    srd(a, sO, 8, N * 256)
    a("s_waitcnt vmcnt(0)")
    a(f"v_lshrrev_b32 v{vC}, 16, v{vOf}")
    a(f"v_and_b32 v{vOf}, 0xffff, v{vOf}")
    a(f"v_cndmask_b32 v{vC}, 0, v{vC}, vcc")
    a(f"v_add_u32 v{vSg}, v{vSg}, v{vOf}")
    def entry_addr():
        a(f"v_lshlrev_b32 v{vEB}, 2, v{vSg}")
        a(f"v_lshl_add_u32 v{vEA}, v{vSub}, 5, v{vEB}")
        a(f"v_lshl_add_u32 v{vEB}, v{vSub}, 3, v{vEB}")
    def entry_loads(soff):
        a(f"buffer_load_dwordx4 {vr(EN,4)}, v{vEA}, {sr(sWS,4)}, s{soff} offen")
        a(f"buffer_load_dwordx4 {vr(EN+4,4)}, v{vEA}, {sr(sWS,4)}, s{soff} offen offset:16")
        a(f"buffer_load_dwordx2 {vr(EN+8,2)}, v{vEB}, {sr(sWS,4)}, s{soff} offen offset:64")
    entry_addr()
    entry_loads(sTMP+4)
    a("s_barrier")
    stamp(a, 1)
    a("s_mov_b64 exec, s[54:55]")
    a(f"ds_add_rtn_u32 v{vPw}, v16, v{vC}")
    a("s_mov_b64 exec, -1")
    a(f"v_mov_b32 v{vKB}, 0")
    a("s_waitcnt lgkmcnt(0)")
    a(f"v_mov_b32_dpp v{vPw}, v{vPw} quad_perm:[0,0,2,2] row_mask:0xf bank_mask:0xf")
    a("s_nop 0")
    a(f"v_mov_b32 v121, v{vPw}")
    a("s_waitcnt vmcnt(0)")
    if "pfA" in OPT: table_prefetch(a)
    a.label("K2_WINDOW")
    vKE = 66; vRA = 67
    a(f"s_add_u32 s{sTMP}, s{sWIN}, {CAPE}")
    a(f"v_sub_u32 v{vKE}, s{sTMP}, v{vPw}")
    a(f"v_min_i32 v{vKE}, v{vKE}, v{vC}")
    if ECOPY:
        a(f"v_sub_u32 v{vWb}, v{vSg}, v{vPw}")
        a(f"v_add_lshl_u32 v{vWb}, v{vWb}, s{sWIN}, 5")
    a.label("K2_COPY")
    a(f"v_add_u32 v{vRA}, v{vPw}, v{vKB}")
    a(f"v_subrev_u32 v{vRA}, s{sWIN}, v{vRA}")
    a(f"v_sub_u32 v68, v{vKE}, v{vKB}")
    a(f"v_lshlrev_b32 v69, 3, v{vSub}")
    a("v_sub_u32 v70, v68, v69")
    a(f"v_add_lshl_u32 v69, v{vRA}, v69, 3")
    a(f"v_add_u32 v69, {L_RAW}, v69")
    a(f"v_lshlrev_b32 v71, 1, v{vSub}")
    a("v_sub_u32 v68, v68, v71")
    a(f"v_add_lshl_u32 v71, v{vRA}, v71, 3")
    a(f"v_add_u32 v71, {L_RAW + 128}, v71")
    for i in range(8):
        a(f"v_cmp_lt_i32 vcc, {i}, v70")
        a("s_and_b64 exec, exec, vcc")
        a("s_cbranch_execz K2_CPA")
        a(f"ds_write2_b32 v69, v{EN+i}, v{vWb} offset0:{2*i} offset1:{2*i+1}")
    a.label("K2_CPA")
    a("s_mov_b64 exec, -1")
    for i in range(2):
        a(f"v_cmp_lt_i32 vcc, {16+i}, v68")
        a("s_and_b64 exec, exec, vcc")
        a("s_cbranch_execz K2_CPB")
        a(f"ds_write2_b32 v71, v{EN+8+i}, v{vWb} offset0:{2*i} offset1:{2*i+1}")
    a.label("K2_CPB")
    a("s_mov_b64 exec, -1")
    a(f"v_add_u32 v{vKB}, 20, v{vKB}")
    a(f"v_cmp_lt_i32 vcc, v{vKB}, v{vKE}")
    a("s_cmp_eq_u64 vcc, 0")
    a("s_cbranch_scc1 K2_COPIED")
    a(f"v_add_u32 v{vEA}, 80, v{vEA}")
    a(f"v_add_u32 v{vEB}, 80, v{vEB}")
    a(f"s_mov_b32 s{sTMP+4}, {ENT_OFF}")
    entry_loads(sTMP+4)
    a("s_waitcnt vmcnt(0)")
    a("s_branch K2_COPY")
    a.label("K2_COPIED")
    if "pfB" in OPT: table_prefetch(a)
    a(f"v_mov_b32 v70, {L_TOT}")
    a("s_waitcnt lgkmcnt(0)")
    a("s_barrier")
    stamp(a, 2)
    a("ds_read_b32 v70, v70")
    if "pfC" in OPT: table_prefetch(a)
    RE = 56
    ND = 62; RK = 65
    a("v_lshlrev_b32 v68, 3, v0")
    a(f"v_add_u32 v68, {L_RAW}, v68")
    for i in range(3):
        a(f"ds_read_b64 {P2(RE+2*i)}, v68 offset:{4096*i}")
    a("v_mov_b32 v69, 1")
    a("s_waitcnt lgkmcnt(3)")
    a(f"v_readfirstlane_b32 s{sTOT}, v70")
    a("v_add_u32 v71, 512, v0")
    a("v_add_u32 v72, 1024, v0")
    a(f"s_sub_u32 s{sTMP}, s{sTOT}, s{sWIN}")
    a(f"s_min_u32 s{sTMP}, s{sTMP}, {CAPE}")
    a(f"v_cmp_gt_u32 {sr(sM,2)}, s{sTMP}, v0")
    a(f"v_cmp_gt_u32 {sr(sM+2,2)}, s{sTMP}, v71")
    a(f"v_cmp_gt_u32 {sr(sM+4,2)}, s{sTMP}, v72")
    for i in range(3):
        l = lab("K2_RK")
        a(f"s_waitcnt lgkmcnt({2-i if i == 0 else 0})" if i == 0 else "s_waitcnt lgkmcnt(0)" if i == 1 else "")
        a(f"v_bfe_u32 v{ND+i}, v{RE+2*i}, 14, 6")
        a(f"v_lshlrev_b32 v{ND+i}, 2, v{ND+i}")
        a(f"s_mov_b64 exec, {sr(sM+2*i,2)}")
        a(f"s_cbranch_execz {l}")
        a(f"ds_add_rtn_u32 v{RK+i}, v{ND+i}, v69 offset:{L_CNT}")
        a.label(l)
        a("s_mov_b64 exec, -1")
    a(f"v_lshrrev_b32 v68, 2, v{vCS}")
    a("s_waitcnt lgkmcnt(0)")
    a("s_barrier")
    stamp(a, 3)
    a(f"ds_read_b32 v69, v68 offset:{L_CNT}")
    for i in range(3):
        e = RE + 2*i
        if ECOPY:
            a(f"v_lshl_add_u32 v{e+1}, v0, 5, v{e+1}")
            if i: a(f"v_add_u32 v{e+1}, {512*32*i}, v{e+1}")
        else:
            a(f"v_lshrrev_b32 v70, 20, v{e}")
            a(f"v_lshl_add_u32 v{e+1}, v70, 5, v{e+1}")
        a(f"v_and_b32 v{e}, 0x3fff, v{e}")
        a(f"v_lshlrev_b32 v{e}, 8, v{e}")
    a("s_waitcnt lgkmcnt(0)")
    a("v_add_u32 v70, 3, v69")
    a("v_and_b32 v70, -4, v70")
    a("v_mov_b32 v71, v70")
    wave_scan(a, 71)
    a("v_sub_u32 v72, v71, v70")
    a("s_nop 0")
    a(f"v_readlane_b32 s{sNIT}, v71, 63")
    for i in range(3):
        a(f"ds_bpermute_b32 v{73+i}, v{ND+i}, v72")
    for i in range(3):
        a(f"v_lshlrev_b32 v{ND+i}, 7, v{ND+i}")
    for i in range(3):
        e = RE + 2*i
        l = lab("K2_PL")
        a(f"s_waitcnt lgkmcnt({2-i})" if i == 0 else "s_waitcnt lgkmcnt(0)" if i == 1 else "")
        a(f"s_mov_b64 exec, {sr(sM+2*i,2)}")
        a(f"s_cbranch_execz {l}")
        a(f"v_add_u32 v{73+i}, v{73+i}, v{RK+i}")
        a(f"v_and_b32 v{RK+i}, 3, v{RK+i}")
        a(f"v_lshlrev_b32 v76, 2, v{73+i}")
        a(f"v_cmp_eq_u32 vcc, 0, v{RK+i}")
        a(f"ds_write_b32 v76, v{e} offset:{L_ROW}")
        a(f"ds_write_b32 v76, v{e+1} offset:{L_EO}")
        a("s_and_b64 exec, exec, vcc")
        a(f"s_cbranch_execz {l}")
        a(f"ds_write_b32 v76, v{ND+i} offset:{L_GN + 8}")
        a(f"v_and_b32 v77, 0xffffffc0, v76")
        a(f"v_bfe_u32 v{RK+i}, v76, 5, 1")
        a(f"v_lshl_add_u32 v77, v{RK+i}, 4, v77")
        a(f"v_bfe_u32 v{RK+i}, v76, 4, 1")
        a(f"v_lshl_add_u32 v77, v{RK+i}, 2, v77")
        a(f"ds_write_b32 v77, v{ND+i} offset:{L_GN + 32}")
        a.label(l)
        a("s_mov_b64 exec, -1")
    a(f"s_add_u32 s{sTMP}, s{sNIT}, 15")
    a(f"s_lshr_b32 s{sTMP+1}, s{sTMP}, 4")
    a("s_cmp_ge_u32 s28, 2")
    a("s_cbranch_scc1 K2_NOTAIL")
    a(f"v_mov_b32 v78, {N*256}")
    a("v_mov_b32 v79, 0")
    a("s_cmp_eq_u32 s28, 0")
    a("s_cbranch_scc0 K2_NOPAD")
    a(f"v_mov_b32 v76, s{sTMP+1}")
    a(f"v_mov_b32 v77, {L_TILES}")
    a("ds_write_b32 v77, v76")
    a("v_add_u32 v76, v72, v69")
    for m in range(3):
        a("v_cmp_lt_u32 vcc, v76, v71")
        a("s_and_b64 exec, exec, vcc")
        a(f"s_cbranch_execz K2_NOTAIL")
        a("v_lshlrev_b32 v77, 2, v76")
        a(f"ds_write_b32 v77, v78 offset:{L_ROW}")
        a(f"ds_write_b32 v77, v79 offset:{L_EO}")
        a("v_add_u32 v76, 1, v76")
    a("s_branch K2_NOTAIL")
    a.label("K2_NOPAD")
    a(f"v_lshrrev_b32 v76, 4, v{vCS}")
    a(f"v_add_u32 v76, s{sNIT}, v76")
    a(f"s_lshl_b32 s{sTMP+2}, s{sTMP+1}, 4")
    a(f"v_cmp_gt_u32 vcc, s{sTMP+2}, v76")
    a("s_and_b64 exec, exec, vcc")
    a("s_cbranch_execz K2_NOTAIL")
    a("v_lshlrev_b32 v77, 2, v76")
    a(f"ds_write_b32 v77, v78 offset:{L_ROW}")
    a(f"ds_write_b32 v77, v79 offset:{L_EO}")
    a("v_and_b32 v76, 3, v76")
    a("v_cmp_eq_u32 vcc, 0, v76")
    a("s_and_b64 exec, exec, vcc")
    a("s_cbranch_execz K2_NOTAIL")
    a(f"ds_write_b32 v77, v79 offset:{L_GN + 8}")
    a(f"v_and_b32 v76, 0xffffffc0, v77")
    a("v_bfe_u32 v78, v77, 5, 1")
    a("v_lshl_add_u32 v76, v78, 4, v76")
    a("v_bfe_u32 v78, v77, 4, 1")
    a("v_lshl_add_u32 v76, v78, 2, v76")
    a(f"ds_write_b32 v76, v79 offset:{L_GN + 32}")
    a.label("K2_NOTAIL")
    a("s_mov_b64 exec, -1")
    a("s_waitcnt lgkmcnt(0)")
    a("s_barrier")
    a("s_branch K2_JOIN")
    a.label("K2_G")
    WP = 8; WU = 24; ACP = 56; ACU = 92; XR = 56; CR = 64
    AFS = [40, 68, 104]
    a("v_subrev_u32 v2, 0x2000, v3")
    a(f"s_sub_u32 s{sTMP+6}, s28, 8")
    a(f"s_mul_i32 s{sTMP+1}, s{sBIN}, {NPB*256}")
    a(f"s_add_u32 s{sTMP+2}, s{sTMP+1}, 8192")
    a(f"s_mov_b32 s{sTMP+3}, {CF_OFF}")
    a(f"s_mov_b32 s{sTMP+4}, {CF_OFF + 8192}")
    a(f"s_lshl_b32 s{sTMP+5}, s{sTMP+6}, 12")
    a(f"s_add_u32 s{sTMP+5}, s{sTMP+5}, {WF_OFF}")
    a("v_lshrrev_b32 v4, 8, v2")
    a("v_mul_u32_u24 v4, 272, v4")
    a(f"v_bfe_u32 v7, v{vCS}, 4, 4")
    a(f"v_lshrrev_b32 v6, 8, v{vCS}")
    a("v_lshl_add_u32 v4, v7, 4, v4")
    a(f"v_add_u32 v4, {L_XS}, v4")
    a("v_cmp_gt_u32 vcc, 0x1000, v2")
    a("s_waitcnt lgkmcnt(0)")
    srd(a, sX, 4, N * 256)
    a(f"buffer_load_dwordx4 {vr(XR,4)}, v2, {sr(sX,4)}, s{sTMP+1} offen")
    a(f"buffer_load_dwordx4 {vr(XR+4,4)}, v2, {sr(sX,4)}, s{sTMP+2} offen")
    srd(a, sWS, 10, WS_END)
    a(f"buffer_load_dwordx4 {vr(CR,4)}, v2, {sr(sWS,4)}, s{sTMP+3} offen")
    a(f"buffer_load_dwordx4 {vr(CR+4,4)}, v{vCS}, {sr(sWS,4)}, s{sTMP+4} offen")
    srd(a, sE, 6, E * 32)
    srd(a, sO, 8, N * 256)
    a("s_waitcnt vmcnt(3)")
    gstamp(a, 1)
    a(f"ds_write_b128 v4, {vr(XR,4)}")
    a("s_and_saveexec_b64 s[54:55], vcc")
    a("s_waitcnt vmcnt(2)")
    a(f"ds_write_b128 v4, {vr(XR+4,4)} offset:{32*272}")
    a("s_mov_b64 exec, -1")
    a("s_waitcnt vmcnt(1)")
    a(f"ds_write_b128 v2, {vr(CR,4)} offset:{L_CS}")
    a("s_waitcnt vmcnt(0)")
    a(f"s_cmp_eq_u32 s{sTMP+6}, 0")
    a("s_cbranch_scc0 K2_NOA")
    a(f"ds_write_b128 v{vCS}, {vr(CR+4,4)} offset:{L_CS+8192}")
    a.label("K2_NOA")
    a("v_mul_u32_u24 v4, 272, v7")
    a("v_lshl_add_u32 v4, v6, 4, v4")
    a(f"v_add_u32 v4, {L_XS}, v4")
    a("v_lshlrev_b32 v5, 11, v6")
    a("v_lshl_add_u32 v5, v7, 2, v5")
    a(f"s_lshl_b32 s{sTMP}, s{sTMP+6}, 6")
    a(f"v_add_u32 v5, s{sTMP}, v5")
    a("s_waitcnt lgkmcnt(0)")
    gstamp(a, 2)
    a("s_barrier")
    gstamp(a, 3)
    for ks in range(4):
        a(f"buffer_load_dwordx4 {vr(WP+4*ks,4)}, v{vCS}, {sr(sWS,4)}, s{sTMP+5} offen offset:{1024*ks}")
    a(f"s_add_u32 s{sTMP+5}, s{sTMP+5}, 32768")
    for ks in range(4):
        a(f"buffer_load_dwordx4 {vr(WU+4*ks,4)}, v{vCS}, {sr(sWS,4)}, s{sTMP+5} offen offset:{1024*ks}")
    for rho in range(3):
        for ks in range(4):
            a(f"ds_read_b128 {vr(AFS[rho]+4*ks,4)}, v4 offset:{rho*16*272 + ks*64}")
    a(f"s_mov_b32 s{sTMP}, {hex(NEG_LOG2E)}")
    a(f"s_mov_b32 s{sTMP+1}, {hex(C_2PK)}")
    a("v_lshlrev_b32 v4, 1, v5")
    a(f"v_add_u32 v4, {L_AGG}, v4")
    a(f"v_mov_b32 v1, {L_TOT}")
    gstamp(a, 4)
    a("s_barrier")
    a("ds_read_b32 v1, v1")
    a("s_waitcnt vmcnt(0) lgkmcnt(0)")
    a(f"v_readfirstlane_b32 s{sTOT}, v1")
    for rho in range(3):
        AF = AFS[rho]
        for ks in range(4):
            c = "0" if ks == 0 else vr(ACP+4*rho, 4)
            a(f"v_mfma_f32_16x16x32_bf16 {vr(ACP+4*rho,4)}, {vr(AF+4*ks,4)}, {vr(WP+4*ks,4)}, {c}")
    for rho in range(3):
        AF = AFS[rho]
        for ks in range(4):
            c = "0" if ks == 0 else vr(ACU+4*rho, 4)
            a(f"v_mfma_f32_16x16x32_bf16 {vr(ACU+4*rho,4)}, {vr(AF+4*ks,4)}, {vr(WU+4*ks,4)}, {c}")
    for i in range(12):
        a(f"v_mul_f32 v{ACP+i}, s{sTMP}, v{ACP+i}")
    a(f"v_max3_f32 v1, |v{ACP}|, |v{ACP+1}|, |v{ACP+2}|")
    for i in range(3, 11, 2):
        a(f"v_max3_f32 v1, |v{ACP+i}|, |v{ACP+i+1}|, v1")
    a(f"v_max_f32_e64 v1, |v{ACP+11}|, v1")
    a(f"s_mov_b32 s{sTMP+2}, {hex(f2u(P_RANGE))}")
    a(f"v_cmp_nle_f32 vcc, v1, s{sTMP+2}" if False else f"v_cmp_nge_f32 vcc, s{sTMP+2}, v1")
    a(f"v_mov_b32 v2, {L_FLAG}")
    a("v_mov_b32 v3, 1")
    if "nov5" in OPT: a("s_mov_b64 vcc, -1")
    a("s_and_saveexec_b64 s[54:55], vcc")
    a("s_cbranch_execz K2_NOFLAG")
    a("ds_write_b32 v2, v3")
    a.label("K2_NOFLAG")
    a("s_mov_b64 exec, -1")
    a("s_waitcnt lgkmcnt(0)")
    gstamp(a, 5)
    a("s_barrier")
    a("ds_read_b32 v2, v2")
    for rho in range(3):
        if rho == 2: a(f"s_mov_b64 exec, {sr(sLO,2)}")
        for r in range(4):
            a(f"v_mul_f32 v{ACU+4*rho+r}, s{sTMP+1}, v{ACU+4*rho+r}")
        for r in range(4):
            a(f"v_cvt_f64_f32 v[{40+2*r}:{41+2*r}], v{ACU+4*rho+r}")
        for r in range(4):
            a(f"ds_write_b64 v4, v[{40+2*r}:{41+2*r}] offset:{rho*16384 + r*1024}")
    a("s_mov_b64 exec, -1")
    a("s_waitcnt lgkmcnt(12)")
    a(f"v_readfirstlane_b32 s{sTMP+2}, v2")
    a("s_nop 3")
    a(f"s_cmp_lg_u32 s{sTMP+2}, 0")
    a("s_cbranch_scc1 K2_PADD")
    a(f"s_and_b32 s{sTMP+2}, s{sTMP+6}, 3")
    a(f"s_lshl_b32 s{sTMP+2}, s{sTMP+2}, 1")
    a(f"s_lshr_b32 s{sTMP+3}, 0x72, s{sTMP+2}")
    a(f"s_and_b32 s{sTMP+3}, s{sTMP+3}, 3")
    a(f"s_lshl_b32 s{sTMP+3}, s{sTMP+3}, 2")
    a(f"s_lshr_b32 s{sTMP+2}, s{sTMP+6}, 2")
    a(f"s_lshl_b32 s{sTMP+2}, s{sTMP+2}, 8")
    a(f"s_add_u32 s{sTMP+2}, s{sTMP+2}, s{sTMP+3}")
    a("v_lshlrev_b32 v5, 11, v6")
    a("v_lshl_add_u32 v5, v7, 4, v5")
    a(f"v_add_u32 v5, s{sTMP+2}, v5")
    a(f"s_mov_b32 s{sTMP+2}, {hex(f2u(-float(KSH)))}")
    for i in range(12):
        a(f"v_add_f32 v{ACP+i}, s{sTMP+2}, v{ACP+i}")
    for i in range(12):
        a(f"v_exp_f32 v{ACP+i}, v{ACP+i}")
    for rho in range(3):
        if rho == 2: a(f"s_mov_b64 exec, {sr(sLO,2)}")
        for r in range(4):
            a(f"ds_write_b32 v5, v{ACP+4*rho+r} offset:{L_PPK + rho*8192 + r*512}")
    a("s_branch K2_PDONE")
    a.label("K2_PADD")
    for i in range(12):
        a(f"v_cvt_pk_bf16_f32 v{ACP+i}, v{ACP+i}, 0")
    for rho in range(3):
        if rho == 2: a(f"s_mov_b64 exec, {sr(sLO,2)}")
        for r in range(4):
            a(f"ds_write_b32 v5, v{ACP+4*rho+r} offset:{L_PPK + rho*8192 + r*512}")
    a.label("K2_PDONE")
    a("s_mov_b64 exec, -1")
    a("s_waitcnt lgkmcnt(0)")
    gstamp(a, 6)
    a("s_barrier")
    a("s_branch K2_JOIN")
    a.label("K2_G_WINDOW")
    a("s_barrier")
    a("s_barrier")
    a("s_barrier")
    a.label("K2_JOIN")
    stamp(a, 4)
    a("s_cmp_eq_u32 s28, 0")
    a("s_cbranch_scc0 K2_NOZ2")
    a(f"v_lshrrev_b32 v68, 2, v{vCS}")
    a("v_mov_b32 v69, 0")
    a(f"ds_write_b32 v68, v69 offset:{L_CNT}")
    a("s_waitcnt lgkmcnt(0)")
    a.label("K2_NOZ2")
    a(f"v_mov_b32 v70, {L_TILES}")
    a("ds_read_b64 v[70:71], v70")
    for t in range(4):
        a(f"ds_read_b128 {vr(B+4*t,4)}, v{vCS} offset:{L_CS + 1024*t}")
    a(f"ds_read_b128 {vr(A,4)}, v{vCS} offset:{L_CS + 8192}")
    a(f"v_lshrrev_b32 v64, 8, v{vCS}")
    a(f"v_bfe_u32 v65, v{vCS}, 4, 4")
    a(f"v_lshlrev_b32 v{vJ16}, 4, v65")
    a(f"v_lshlrev_b32 v{vJ4}, 2, v65")
    a(f"v_and_b32 v{vH16}, 16, v{vCS}")
    a(f"v_lshrrev_b32 v67, 5, v{vCS}")
    a("s_waitcnt lgkmcnt(5)")
    a(f"v_readfirstlane_b32 s{sTMP+1}, v70")
    a(f"v_readfirstlane_b32 s{sFLAG}, v71")
    a(f"v_lshlrev_b32 v66, 5, v65")
    a(f"v_lshl_add_u32 v66, v64, 4, v66")
    a(f"s_lshr_b32 s{sTMP+2}, s{sTMP+1}, 4")
    a(f"s_and_b32 s{sTMP+3}, s{sTMP+1}, 15")
    a(f"s_cmp_lt_u32 s28, s{sTMP+3}")
    a(f"s_cselect_b32 s{sL}, 1, 0")
    a(f"s_add_u32 s{sL}, s{sL}, s{sTMP+2}")
    a(f"s_mul_i32 s{sTMP+2}, s{sTMP+2}, s28")
    a(f"s_min_u32 s{sTMP+3}, s{sTMP+3}, s28")
    a(f"s_add_u32 s{sTMP+2}, s{sTMP+2}, s{sTMP+3}")
    a(f"s_lshl_b32 s{sNIT}, s{sL}, {2 if 'dbl' in OPT else 1}")
    a(f"s_cmp_eq_u32 s{sL}, 0")
    a("s_cbranch_scc1 K2_LOOP_DONE")
    if "noprio" not in OPT: a("s_setprio 3")
    a(f"s_lshl_b32 s{sTMP+4}, s{sTMP+2}, 4")
    a(f"v_add_lshl_u32 v{vTd}, v67, s{sTMP+4}, 2")
    a(f"s_lshl_b32 s{sM0}, s{sTMP+2}, 9")
    a(f"s_add_u32 s{sM0}, s{sM0}, {L_ES}")
    a(f"v_add_u32 v{vTe0}, s{sM0}, v66")
    a(f"s_lshl_b32 s{sTMP+4}, s{sTMP+2}, 6")
    a(f"v_lshl_add_u32 v{vTa0}, v64, 4, s{sTMP+4}")
    a(f"s_mov_b32 s{sDI}, 0")
    a(f"s_mov_b32 s{sN}, 0")
    a(f"s_mov_b32 s{sLI}, 0")
    a(f"s_mov_b32 s{sAI}, 0")
    a(f"s_mov_b32 s{sHL}, 0")
    a(f"s_mov_b32 s{sINCP}, 64")
    a(f"s_mov_b32 s{sINCP+1}, 512")
    a(f"s_sub_i32 s{sLM3}, s{sL}, 3")
    a(f"s_sub_u32 s{sNM2}, s{sNIT}, 2")
    eo_read(a)
    a(f"v_mov_b32 v{vTa}, v{vTa0}")
    a(f"v_mov_b32 v{vTe}, v{vTe0}")
    a("s_waitcnt lgkmcnt(0)")
    e_dma(a)
    a(f"s_cmp_lt_u32 s{sDI}, s{sL}")
    a("s_cbranch_scc0 K2_ND1")
    eo_read(a)
    a("s_waitcnt lgkmcnt(0)")
    e_dma(a)
    eo_read(a)
    a.label("K2_ND1")
    a(f"v_mov_b32 v{vJ16h}, v{vJ16}")
    a(f"s_cmp_lg_u32 s{sFLAG}, 0")
    a("s_cbranch_scc1 K2_SETUP_ADD")
    for v5 in (True, False):
        sfx = "F" if v5 else "A"
        if v5:
            for i in range(4): a(f"v_mov_b32 v{A+i}, 0")
        else:
            a.label("K2_SETUP_ADD")
        list_reads(a, v5)
        a(f"v_add_u32 v{vTa}, 64, v{vTa}")
        a("s_waitcnt lgkmcnt(0)")
        gather_stage(a, QH[0])
        for i in range(3):
            if not v5 or i == 2: a(f"v_mov_b32 v{2+i}, v{G+i}")
        list_reads(a, v5)
        a(f"v_add_u32 v{vTa}, 64, v{vTa}")
        a("s_waitcnt lgkmcnt(0)")
        gather_stage(a, QH[1])
        if v5: stamp(a, 5)
        a("s_waitcnt vmcnt(8)")
        ap_stage(a, vGS[0], v5, 2)
        if v5: ep_read(a)
        a(f"v_add_u32 v{vTe}, 512, v{vTe}")
        a("s_waitcnt lgkmcnt(0)")
        a.label(f"K2_LOOP{sfx}")
        for k in range(3):
            tile_body(a, k, v5, "K2_LOOP_DONE")
        a(f"s_branch K2_LOOP{sfx}")
        for blk in deferred: blk()
        deferred.clear()
    a.label("K2_LOOP_DONE")
    a("s_setprio 0")
    a("s_waitcnt vmcnt(0)")
    stamp(a, 6)
    a("s_waitcnt lgkmcnt(0)")
    a("s_barrier")
    a(f"s_add_u32 s{sWIN}, s{sWIN}, {CAPE}")
    a(f"s_cmp_lt_u32 s{sWIN}, s{sTOT}")
    a("s_cbranch_scc0 K2_EPI")
    a("s_cmp_ge_u32 s28, 8")
    a("s_cbranch_scc1 K2_G_WINDOW")
    a(f"v_lshrrev_b32 v{vW}, 1, v0")
    a(f"v_lshlrev_b32 v{vOA}, 10, v{vW}")
    a(f"s_lshl_b32 s{sTMP}, s{sBIN}, 2")
    a(f"s_add_u32 s{sTMP}, s{sTMP}, {OFFS_OFF}")
    a(f"buffer_load_dword v{vOf}, v{vOA}, {sr(sWS,4)}, s{sTMP} offen")
    a(f"v_and_b32 v{vSub}, 1, v0")
    a(f"v_mul_u32_u24 v{vSg}, {CE}, v{vW}")
    a(f"v_cmp_gt_u32 vcc, 250, v{vW}")
    a(f"v_mov_b32 v{vPw}, v121")
    if not ECOPY: a(f"v_mul_u32_u24 v{vWb}, {CE*32}, v{vW}")
    a("s_waitcnt vmcnt(0)")
    a(f"v_lshrrev_b32 v{vC}, 16, v{vOf}")
    a(f"v_and_b32 v{vOf}, 0xffff, v{vOf}")
    a(f"v_cndmask_b32 v{vC}, 0, v{vC}, vcc")
    a(f"v_add_u32 v{vSg}, v{vSg}, v{vOf}")
    a(f"v_sub_u32 v{vKB}, s{sWIN}, v{vPw}")
    a(f"v_max_i32 v{vKB}, 0, v{vKB}")
    entry_addr()
    a(f"v_lshl_add_u32 v{vEA}, v{vKB}, 2, v{vEA}")
    a(f"v_lshl_add_u32 v{vEB}, v{vKB}, 2, v{vEB}")
    a(f"s_mov_b32 s{sTMP+4}, {ENT_OFF}")
    entry_loads(sTMP+4)
    a("s_waitcnt vmcnt(0)")
    a("s_branch K2_WINDOW")
    a.label("K2_EPI")
    a("v_cmp_gt_u32 vcc, 640, v0")
    a("s_and_saveexec_b64 s[54:55], vcc")
    a("s_cbranch_execz K2_EXIT")
    a("v_lshlrev_b32 v1, 6, v0")
    for i in range(4):
        a(f"ds_read_b128 {vr(32+4*i,4)}, v1 offset:{L_AGG+16*i}")
    a(f"s_mov_b32 s{sTMP}, {hex(C_2MK)}")
    a(f"s_mov_b32 s{sTMP+1}, {hex(NEG_LOG2E)}")
    a("s_waitcnt lgkmcnt(0)")
    for i in range(8):
        a(f"v_cvt_f32_f64 v{8+i}, v[{32+2*i}:{33+2*i}]")
    for i in range(8):
        a(f"v_mul_f32 v{8+i}, s{sTMP}, v{8+i}")
    for i in range(8):
        a(f"v_mul_f32 v{16+i}, s{sTMP+1}, v{8+i}")
    for i in range(8):
        a(f"v_exp_f32 v{16+i}, v{16+i}")
    for i in range(8):
        a(f"v_add_f32 v{16+i}, 1.0, v{16+i}")
    for i in range(8):
        a(f"v_rcp_f32 v{16+i}, v{16+i}")
    a("s_nop 0")
    for i in range(8):
        a(f"v_mul_f32 v{8+i}, v{8+i}, v{16+i}")
    for i in range(4):
        a(f"v_cvt_pk_bf16_f32 v{24+i}, v{8+2*i}, v{9+2*i}")
    a("v_lshlrev_b32 v2, 4, v0")
    a(f"s_mul_i32 s{sTMP}, s{sBIN}, {NPB*256}")
    a(f"buffer_store_dwordx4 v[24:27], v2, {sr(sO,4)}, s{sTMP} offen")
    if "stamp" in OPT:
        a("s_waitcnt vmcnt(0)")
        stamp(a, 7)
        a("s_memrealtime s[82:83]")
        a("s_waitcnt lgkmcnt(0)")
        stamp_out(a, 10)
    a.label("K2_EXIT")
    a("s_endpgm")

HEADER = f"""; EGC edge-gated message passing: out = silu(x@U + segsum_dst(sigmoid([x_dst,x_src,e]@G) * (x@V)[src]))
; launch 1 (prep): per-node tables Q'=-log2e*(x@B), H=x@V; edge binning by destination; weight fragment images
; @launch kernel=egc_prep_kernel grid=({K1_WGS},1,1) block=(256,1,1) lds={K1_LDS}
; @launch kernel=egc_main_kernel grid=({NB},1,1) block=(1024,1,1) lds={K2_LDS}
.amdgcn_target "amdgcn-amd-amdhsa--gfx950"
.text
"""

def kd(name, vgpr, sgpr, denorm=False):
    extra = "  .amdhsa_float_denorm_mode_32 3\n" if denorm else ""
    return f""".amdhsa_kernel {name}
  .amdhsa_next_free_vgpr {vgpr}
  .amdhsa_next_free_sgpr {sgpr}
  .amdhsa_accum_offset {((vgpr+3)//4)*4}
  .amdhsa_group_segment_fixed_size 0
  .amdhsa_kernarg_size 80
  .amdhsa_user_sgpr_count 2
  .amdhsa_user_sgpr_kernarg_segment_ptr 1
  .amdhsa_system_sgpr_workgroup_id_x 1
{extra}.end_amdhsa_kernel
"""

def main():
    a = Asm()
    a.raw(".globl egc_prep_kernel")
    k1(a)
    a.raw(".globl egc_main_kernel")
    k2(a)
    out = HEADER + a.text()
    out += '.section .rodata,"a"\n.p2align 6\n' + kd("egc_prep_kernel", 104 if "stamp1" in OPT else 96, 96) + ".p2align 6\n" + kd("egc_main_kernel", 128, 96, True)
    path = sys.argv[1] if len(sys.argv) > 1 else f"cdna_kernels/{NAME}.s"
    open(path, "w").write(out)
    print("wrote", path, len(out), "bytes")

if __name__ == "__main__":
    main()
```

```python
import sys, struct, os
OPT = set(os.environ.get("OPT","").split(","))

NAME = "gather_scatter__edge_featured_mpnn_egc__graph"
N = 10000; E = 320000
NB = 250; NPB = 40
NC = 250; CE = 1280
KSH = 26
def f2u(x): return struct.unpack('<I', struct.pack('<f', x))[0]
NEG_LOG2E = f2u(-1.4426950408889634)
C_2MK = f2u(2.0 ** -KSH)
C_2PK = f2u(2.0 ** KSH)
BF16_NEGK = 0xC1D0
assert KSH == 26

HALF_STRIDE = (N + 1) * 256
T_OFF = 0;            T_BYTES = 2 * HALF_STRIDE
ENT_OFF = 0x500000
OFFS_OFF = 0x640000
WF_OFF = 0x680000
CF_OFF = 0x690000
E2_OFF = 0x800000
WS_END = 0x1200000

NT_WG = 314
BIN0 = NT_WG
WF0 = BIN0 + NC
CF0 = WF0 + 8
K1_WGS = CF0 + 1
K1_LDS = (7168 + 40960) if 'ecopy' in OPT else 128 * 288

class Asm:
    def __init__(self): self.lines = []
    def __call__(self, s):
        for l in s.split("\n"):
            l = l.strip()
            if l: self.lines.append("    " + l)
    def label(self, n): self.lines.append(n + ":")
    def raw(self, s): self.lines.append(s)
    def text(self): return "\n".join(self.lines) + "\n"

def vr(i, n=1): return f"v{i}" if n == 1 else f"v[{i}:{i+n-1}]"
def sr(i, n=1): return f"s{i}" if n == 1 else f"s[{i}:{i+n-1}]"

def srd(a, d, base, nbytes):
    a(f"s_mov_b32 s{d}, s{base}")
    a(f"s_and_b32 s{d+1}, s{base+1}, 0xffff")
    a(f"s_mov_b32 s{d+2}, {nbytes}")
    a(f"s_mov_b32 s{d+3}, 0x00020000")

def stamp1(a, i):
    if "stamp1" in OPT:
        a(f"s_memrealtime s[{64+2*i}:{65+2*i}]")
        a("s_waitcnt lgkmcnt(0)")
def stamp1_out(a, n, ws_srd, wgreg, lbl):
    if "stamp1" in OPT:
        a("s_waitcnt vmcnt(0)")
        stamp1(a, n-1)
        a("v_readfirstlane_b32 s60, v0")
        a("s_cmp_eq_u32 s60, 0")
        a(f"s_cbranch_scc0 {lbl}")
        a(f"s_mov_b32 s{ws_srd+2}, 0x1400000")
        for i in range(n):
            a(f"v_mov_b32 v100, s{64+2*i}")
            a(f"v_mov_b32 v101, s{65+2*i}")
            a(f"s_lshl_b32 s60, s{wgreg}, 7")
            a(f"s_add_u32 s60, s60, {0x1310000 + 8*i}")
            a("v_mov_b32 v102, 0")
            a(f"buffer_store_dwordx2 v[100:101], v102, s[{ws_srd}:{ws_srd+3}], s60 offen")
            a("s_nop 1")
        a.label(lbl)

def diag_mark(a, slot, inv, dbgreg):
    if "diag" not in OPT: return
    dl = f"DIAG_{slot}_{len(a.lines)}"
    a("s_and_b32 s84, s2, 15")
    a("s_cmp_eq_u32 s84, 0")
    a(f"s_cbranch_scc0 {dl}")
    a("v_mbcnt_lo_u32_b32 v98, -1, 0") if False else None
    a("v_readfirstlane_b32 s84, v0")
    a("s_nop 3")
    a("s_cmp_lt_u32 s84, 64")
    a(f"s_cbranch_scc0 {dl}")
    a("s_memrealtime s[84:85]")
    a(f"s_load_dwordx2 s[86:87], s[0:1], 64")
    a("s_waitcnt lgkmcnt(0)")
    if inv: a("s_not_b32 s84, s84")
    a("s_mov_b64 s[88:89], exec") if False else None
    a("v_mov_b32 v99, s84")
    a(f"v_mov_b32 v98, {4*slot}")
    a("s_mov_b64 exec, 1")
    a("global_atomic_umax v98, v99, s[86:87]")
    a("s_mov_b64 exec, -1")
    a.label(dl)

def wave_scan(a, v):
    for sh in (1, 2, 4, 8):
        a("s_nop 1")
        a(f"v_add_u32_dpp v{v}, v{v}, v{v} row_shr:{sh} row_mask:0xf bank_mask:0xf bound_ctrl:1")
    a("s_nop 1")
    a(f"v_add_u32_dpp v{v}, v{v}, v{v} row_bcast:15 row_mask:0xa bank_mask:0xf")
    a("s_nop 1")
    a(f"v_add_u32_dpp v{v}, v{v}, v{v} row_bcast:31 row_mask:0xc bank_mask:0xf")

def k1_table(a):
    a.label("K1_TABLE")
    stamp1(a, 0)
    a("s_and_b32 s3, s2, 1")
    a("s_lshr_b32 s28, s2, 1")
    srd(a, 20, 16, 69632)
    srd(a, 36, 14, 32768)
    srd(a, 24, 4, N * 256)
    srd(a, 32, 18, 2 * HALF_STRIDE)
    a("s_lshl_b32 s29, s3, 7")
    a("s_add_u32 s30, s29, 32768")
    a("v_lshrrev_b32 v1, 3, v0")
    a("v_and_b32 v2, 7, v0")
    a("v_lshlrev_b32 v3, 8, v1")
    a("v_lshl_add_u32 v3, v2, 4, v3")
    for i in range(4):
        a(f"buffer_load_dwordx4 {vr(8+4*i,4)}, v3, s[20:23], s30 offen")
        if i < 3: a("s_add_u32 s30, s30, 8192")
    for i in range(4):
        a(f"buffer_load_dwordx4 {vr(24+4*i,4)}, v3, s[36:39], s29 offen")
        if i < 3: a("s_add_u32 s29, s29, 8192")
    a("v_mul_u32_u24 v7, 288, v1")
    a("v_lshl_add_u32 v7, v2, 4, v7")
    a("v_and_b32 v2, 15, v0")
    a("v_bfe_u32 v3, v0, 4, 2")
    a("v_lshrrev_b32 v4, 6, v0")
    a("s_lshl_b32 s31, s28, 6")
    a("v_lshl_add_u32 v5, v4, 4, s31")
    a("v_add_u32 v6, v5, v2")
    a("v_lshlrev_b32 v6, 8, v6")
    a("v_lshl_add_u32 v6, v3, 4, v6")
    for ks in range(4):
        a(f"buffer_load_dwordx4 {vr(40+4*ks,4)}, v6, s[24:27], 0 offen offset:{64*ks}")
    for i in range(8):
        a(f"s_waitcnt vmcnt({11-i})")
        a(f"ds_write_b128 v7, {vr(8+4*i,4)} offset:{9216*(i&3) + 128*(i>>2)}")
    a("v_lshrrev_b32 v7, 2, v2")
    a("v_lshl_add_u32 v7, v3, 3, v7")
    a("v_mul_u32_u24 v7, 288, v7")
    a("v_and_b32 v1, 3, v0")
    a("v_lshl_add_u32 v7, v1, 3, v7")
    a("v_lshl_add_u32 v1, v3, 2, v5")
    a("v_lshlrev_b32 v6, 8, v1")
    a("v_lshl_add_u32 v6, v2, 4, v6")
    a(f"s_mul_i32 s3, s3, {HALF_STRIDE}")
    a("s_waitcnt vmcnt(0) lgkmcnt(0)")
    stamp1(a, 1)
    a("s_barrier")
    stamp1(a, 2)
    ACC = 64
    BF = [8, 24]
    def reads(t):
        b = BF[t & 1]
        for ks in range(4):
            a(f"ds_read_b64_tr_b16 {vr(b+4*ks,2)}, v7 offset:{9216*ks + 32*t}")
            a(f"ds_read_b64_tr_b16 {vr(b+4*ks+2,2)}, v7 offset:{9216*ks + 32*t + 1152}")
    reads(0)
    for t in range(8):
        if t < 7:
            reads(t + 1)
            a("s_waitcnt lgkmcnt(8)")
        else:
            a("s_waitcnt lgkmcnt(0)")
        b = BF[t & 1]
        for ks in range(4):
            c = "0" if ks == 0 else vr(ACC+4*t, 4)
            a(f"v_mfma_f32_16x16x32_bf16 {vr(ACC+4*t,4)}, {vr(40+4*ks,4)}, {vr(b+4*ks,4)}, {c}")
    stamp1(a, 3)
    a("s_mov_b32 s40, 0x00800000")
    a("s_mov_b32 s41, 0x7fff0000")
    a(f"s_mov_b32 s42, {hex(NEG_LOG2E)}")
    a(f"s_movk_i32 s43, {N}")
    a("s_nop 6")
    for r in range(4):
        W = 8 + 8 * (r & 1)
        for t in range(4):
            a(f"v_mul_f32 v{ACC+4*t+r}, s42, v{ACC+4*t+r}")
        for p in range(4):
            lo, hi = ACC + 4*(2*p) + r, ACC + 4*(2*p+1) + r
            a(f"v_cvt_pk_bf16_f32 v{W+p}, v{lo}, v{hi}")
            a(f"v_max_f32_e64 v{hi}, |v{hi}|, s40")
        for p in range(4):
            hi = ACC + 4*(2*p+1) + r
            a(f"v_add_u32 v{hi}, 0x8000, v{hi}")
        for p in range(4):
            hi = ACC + 4*(2*p+1) + r
            a(f"v_sub_u32_sdwa v{hi}, v{hi}, v{W+p} dst_sel:DWORD dst_unused:UNUSED_PAD src0_sel:DWORD src1_sel:WORD_0")
        a(f"v_add_u32 v2, {r}, v1")
        a("v_cmp_ge_u32 vcc, s43, v2")
        for p in range(4):
            hi = ACC + 4*(2*p+1) + r
            a(f"v_bfi_b32 v{W+p}, s41, v{hi}, v{W+p}")
        a("s_and_saveexec_b64 s[44:45], vcc")
        a(f"s_cbranch_execz K1_TAB_SKIP{r}")
        a(f"buffer_store_dwordx4 {vr(W,4)}, v6, s[32:35], s3 offen offset:{256*r} sc1")
        a.label(f"K1_TAB_SKIP{r}")
        a("s_mov_b64 exec, s[44:45]")
    stamp1(a, 4)
    stamp1(a, 5)
    stamp1_out(a, 7, 32, 2, "K1_ST_TAB")
    if "diag" in OPT:
        a("s_waitcnt vmcnt(0)")
        diag_mark(a, 1, False, 0)
    a("s_endpgm")

def k1_bin(a):
    HIST, OFF2, SORT, ESORT = 0, 1024, 2048, 7168
    a.label("K1_BIN")
    stamp1(a, 0)
    a(f"s_sub_u32 s3, s2, {BIN0}")
    srd(a, 20, 8, E * 4)
    srd(a, 24, 10, E * 4)
    srd(a, 28, 18, WS_END)
    a("v_lshlrev_b32 v1, 2, v0")
    a("s_mul_i32 s32, s3, 5120")
    a("v_mov_b32 v2, 0")
    a(f"ds_write_b32 v1, v2 offset:{HIST}")
    DST, SRC = 8, 16
    for m in range(5):
        a(f"buffer_load_dword v{DST+m}, v1, s[24:27], s32 offen offset:{1024*m if m<4 else 0}" if m < 4 else
          f"s_add_u32 s33, s32, 4096\nbuffer_load_dword v{DST+m}, v1, s[24:27], s33 offen")
    for m in range(5):
        a(f"buffer_load_dword v{SRC+m}, v1, s[20:23], s32 offen offset:{1024*m}" if m < 4 else
          f"buffer_load_dword v{SRC+m}, v1, s[20:23], s33 offen")
    ECOPY = "ecopy" in OPT
    NE = 10 if ECOPY else 0
    srd(a, 40, 6, E * 32)
    a("v_lshlrev_b32 v6, 5, v0")
    a("s_mul_i32 s44, s3, 40960")
    ER = 56
    if "noeload" in OPT: a("s_mov_b32 s42, 0")
    NT = " nt" if "ent" in OPT else ""
    for m in range(5 if ECOPY else 0):
        a(f"buffer_load_dwordx4 {vr(ER+8*m,4)}, v6, s[40:43], s44 offen{NT}")
        a(f"buffer_load_dwordx4 {vr(ER+8*m+4,4)}, v6, s[40:43], s44 offen offset:16{NT}")
        if m < 4: a("s_add_u32 s44, s44, 8192")
    a("s_mov_b32 s34, 52429")
    a("s_waitcnt lgkmcnt(0)")
    a("s_barrier")
    BINR, RANK = 24, 32
    if "stamp1" in OPT:
        a(f"s_waitcnt vmcnt({9+NE})")
        stamp1(a, 1)
    a("v_mov_b32 v3, 1")
    for m in range(5):
        a(f"s_waitcnt vmcnt({9+NE-m})")
        a(f"v_mul_u32_u24 v{BINR+m}, s34, v{DST+m}")
        a(f"v_lshrrev_b32 v{BINR+m}, 21, v{BINR+m}")
        a(f"v_mul_u32_u24 v4, 40, v{BINR+m}")
        a(f"v_sub_u32 v{DST+m}, v{DST+m}, v4")
        a(f"v_lshlrev_b32 v{BINR+m}, 2, v{BINR+m}")
        a(f"ds_add_rtn_u32 v{RANK+m}, v{BINR+m}, v3 offset:{HIST}")
    for m in range(5):
        a(f"s_waitcnt vmcnt({4+NE-m})")
        a(f"v_lshl_or_b32 v{SRC+m}, v{DST+m}, 14, v{SRC+m}")
        if not ECOPY:
            a(f"v_add_u32 v4, {256*m}, v0")
            a(f"v_lshl_or_b32 v{SRC+m}, v4, 20, v{SRC+m}")
    a("s_waitcnt lgkmcnt(0)")
    a("s_barrier")
    stamp1(a, 2)
    a("v_and_b32 v5, 63, v0")
    a("v_lshlrev_b32 v5, 4, v5")
    a(f"ds_read_b128 v[40:43], v5 offset:{HIST}")
    a("s_waitcnt lgkmcnt(0)")
    a("v_add_u32 v44, v40, v41")
    a("v_add_u32 v45, v42, v43")
    a("v_add_u32 v46, v44, v45")
    a("v_mov_b32 v47, v46")
    wave_scan(a, 47)
    a("v_sub_u32 v48, v47, v46")
    a("v_add_u32 v49, v48, v40")
    a("v_add_u32 v50, v48, v44")
    a("v_add_u32 v51, v50, v42")
    a(f"ds_write_b128 v5, v[48:51] offset:{OFF2}")
    a("v_readfirstlane_b32 s35, v0")
    a("s_lshl_b32 s36, s3, 10")
    a(f"s_add_u32 s36, s36, {OFFS_OFF}")
    a("s_cmp_ge_u32 s35, 64")
    a("s_cbranch_scc1 K1_BIN_NOPUB")
    for i in range(4):
        a(f"v_lshl_or_b32 v{52+i}, v{40+i}, 16, v{48+i}")
    a("buffer_store_dwordx4 v[52:55], v5, s[28:31], s36 offen sc1")
    a.label("K1_BIN_NOPUB")
    a("s_waitcnt lgkmcnt(0)")
    for m in range(5):
        a(f"ds_read_b32 v{40+m}, v{BINR+m} offset:{OFF2}")
    for m in range(5):
        a(f"s_waitcnt lgkmcnt({4-m})")
        a(f"v_add_lshl_u32 v{40+m}, v{40+m}, v{RANK+m}, 2")
        a(f"ds_write_b32 v{40+m}, v{SRC+m} offset:{SORT}")
    stamp1(a, 3)
    for m in range(5 if ECOPY else 0):
        a(f"v_lshlrev_b32 v{40+m}, 3, v{40+m}")
        a(f"s_waitcnt vmcnt({9 - 2*m})")
        a(f"ds_write_b128 v{40+m}, {vr(ER+8*m,4)} offset:{ESORT}")
        a(f"s_waitcnt vmcnt({8 - 2*m})")
        a(f"ds_write_b128 v{40+m}, {vr(ER+8*m+4,4)} offset:{ESORT+16}")
    a("s_waitcnt lgkmcnt(0)")
    a("s_barrier")
    stamp1(a, 4)
    a("v_lshlrev_b32 v5, 4, v0")
    a(f"ds_read_b128 v[40:43], v5 offset:{SORT}")
    a(f"s_add_u32 s36, s32, {ENT_OFF}")
    a("v_cmp_gt_u32 vcc, 64, v0")
    a("s_waitcnt lgkmcnt(0)")
    a("buffer_store_dwordx4 v[40:43], v5, s[28:31], s36 offen sc1")
    a("s_and_saveexec_b64 s[38:39], vcc")
    a("s_cbranch_execz K1_BIN_END")
    a(f"ds_read_b128 v[44:47], v5 offset:{SORT+4096}")
    a("s_add_u32 s36, s36, 4096")
    a("s_waitcnt lgkmcnt(0)")
    a("buffer_store_dwordx4 v[44:47], v5, s[28:31], s36 offen sc1")
    a.label("K1_BIN_END")
    a("s_mov_b64 exec, -1")
    a("s_mul_i32 s36, s3, 40960")
    a(f"s_add_u32 s36, s36, {E2_OFF}")
    for i in range(NE):
        a(f"ds_read_b128 {vr(ER+4*i,4)}, v5 offset:{ESORT + 4096*i}")
    for i in range(NE):
        a(f"s_waitcnt lgkmcnt({9-i})")
        pol = "" if "eplain" in OPT else (" nt" if "estnt" in OPT else " sc1")
        if "noestore" not in OPT: a(f"buffer_store_dwordx4 {vr(ER+4*i,4)}, v5, s[28:31], s36 offen{pol}")
        if i < 9: a("s_add_u32 s36, s36, 4096")
    stamp1(a, 5)
    stamp1_out(a, 7, 28, 2, "K1_ST_BIN")
    if "diag" in OPT:
        a("s_waitcnt vmcnt(0)")
        diag_mark(a, 1, False, 0)
    a("s_endpgm")

def k1_wf(a):
    a.label("K1_WF")
    a(f"s_sub_u32 s3, s2, {WF0}")
    a("v_lshrrev_b32 v1, 6, v0")
    a("s_nop 0")
    a("v_readfirstlane_b32 s28, v1")
    a("s_lshl_b32 s3, s3, 2")
    a("s_add_u32 s3, s3, s28")
    a("s_lshr_b32 s29, s3, 1")
    a("s_and_b32 s30, s3, 1")
    a("s_cmp_lt_u32 s29, 8")
    a("s_cselect_b32 s20, s16, s12")
    a("s_cselect_b32 s21, s17, s13")
    a("s_and_b32 s21, s21, 0xffff")
    a("s_mov_b32 s22, 32768")
    a("s_mov_b32 s23, 0x00020000")
    srd(a, 24, 18, WS_END)
    a("v_and_b32 v2, 15, v0")
    a("v_bfe_u32 v3, v0, 4, 2")
    a("s_and_b32 s31, s29, 7")
    a("s_lshl_b32 s31, s31, 5")
    a("s_lshl_b32 s32, s30, 14")
    a("s_add_u32 s31, s31, s32")
    a("v_lshlrev_b32 v4, 11, v3")
    a("v_lshl_add_u32 v4, v2, 1, v4")
    a("s_add_u32 s33, s31, 8192")
    for f in range(2):
        for m in range(8):
            a(f"buffer_load_ushort v{8+8*f+m}, v4, s[20:23], s{31 if f==0 else 33} offen offset:{256*m}")
    a("v_and_b32 v5, 63, v0")
    a("v_lshlrev_b32 v5, 4, v5")
    a("s_lshl_b32 s34, s3, 11")
    a(f"s_add_u32 s34, s34, {WF_OFF}")
    for f in range(2):
        a(f"s_waitcnt vmcnt({8 if f==0 else 1})")
        for p in range(4):
            a(f"v_lshl_or_b32 v{24+4*f+p}, v{8+8*f+2*p+1}, 16, v{8+8*f+2*p}")
        a(f"buffer_store_dwordx4 {vr(24+4*f,4)}, v5, s[24:27], s34 offen offset:{1024*f} sc1")
    a("s_endpgm")

def k1_cf(a):
    a.label("K1_CF")
    a("v_lshrrev_b32 v1, 6, v0")
    a("s_nop 0")
    a("v_readfirstlane_b32 s28, v1")
    srd(a, 20, 16, 69632)
    srd(a, 24, 18, WS_END)
    a("v_and_b32 v2, 15, v0")
    a("v_bfe_u32 v3, v0, 4, 2")
    a("v_and_b32 v4, 1, v3")
    a("v_lshlrev_b32 v4, 11, v4")
    a("v_lshl_add_u32 v4, v2, 1, v4")
    a("s_lshl_b32 s29, s28, 6")
    a("s_add_u32 s29, s29, 65536")
    for f in range(2):
        for m in range(8):
            a(f"buffer_load_ushort v{8+8*f+m}, v4, s[20:23], s29 offen offset:{256*m + 32*f}")
    a("v_and_b32 v5, 63, v0")
    a("v_lshlrev_b32 v5, 4, v5")
    a("s_lshl_b32 s34, s28, 11")
    a(f"s_add_u32 s34, s34, {CF_OFF}")
    a(f"s_mov_b32 s30, {hex(NEG_LOG2E)}")
    a("v_cmp_gt_u32 vcc, 2, v3")
    a("v_cmp_eq_u32 s[32:33], 2, v3")
    a(f"v_mov_b32 v6, {hex(BF16_NEGK)}")
    a("v_mov_b32 v7, 0")
    a("s_waitcnt vmcnt(0)")
    for f in range(2):
        for m in range(8):
            a(f"v_lshlrev_b32 v{8+8*f+m}, 16, v{8+8*f+m}")
            a(f"v_mul_f32 v{8+8*f+m}, s30, v{8+8*f+m}")
        for p in range(4):
            a(f"v_cvt_pk_bf16_f32 v{24+4*f+p}, v{8+8*f+2*p}, v{8+8*f+2*p+1}")
        a(f"v_cndmask_b32 v30, v7, v6, s[32:33]" if False else "")
        a(f"v_cndmask_b32 v32, v7, v6, s[32:33]")
        a(f"v_cndmask_b32 v{24+4*f+0}, v7, v{24+4*f+0}, vcc")
        a(f"v_cndmask_b32 v{24+4*f+1}, v7, v{24+4*f+1}, vcc")
        a(f"v_cndmask_b32 v{24+4*f+2}, v32, v{24+4*f+2}, vcc")
        a(f"v_cndmask_b32 v{24+4*f+3}, v7, v{24+4*f+3}, vcc")
        a(f"buffer_store_dwordx4 {vr(24+4*f,4)}, v5, s[24:27], s34 offen offset:{1024*f} sc1")
    a("s_cmp_eq_u32 s28, 0")
    a("s_cbranch_scc0 K1_CF_END")
    a("v_lshrrev_b32 v8, 2, v2")
    a("v_subrev_u32 v9, 2, v3")
    a("v_lshlrev_b32 v9, 1, v9")
    a("v_mov_b32 v10, 0x3f803f80")
    a("v_cmp_eq_u32 vcc, v8, v9")
    a("v_add_u32 v9, 1, v9")
    a("v_cmp_eq_u32 s[36:37], v8, v9")
    a("v_cndmask_b32 v12, v7, v10, vcc")
    a("v_mov_b32 v11, 0x3f80")
    a("v_cndmask_b32 v13, v7, v10, s[36:37]")
    a("v_cndmask_b32 v14, v7, v11, s[32:33]")
    a("v_mov_b32 v15, 0")
    a(f"s_mov_b32 s34, {CF_OFF + 8192}")
    a("buffer_store_dwordx4 v[12:15], v5, s[24:27], s34 offen sc1")
    a.label("K1_CF_END")
    a("s_endpgm")

def k1(a):
    a.raw(".p2align 8")
    a.raw(".type egc_prep_kernel,@function")
    a.label("egc_prep_kernel")
    a(f"s_cmp_ge_u32 s2, {K1_WGS}")
    a("s_cbranch_scc1 K1_EXIT")
    diag_mark(a, 0, True, 0)
    a("s_load_dwordx4 s[4:7], s[0:1], 0")
    a("s_load_dwordx4 s[8:11], s[0:1], 16")
    a("s_load_dwordx4 s[12:15], s[0:1], 32")
    a("s_load_dwordx2 s[16:17], s[0:1], 48")
    a("s_load_dwordx2 s[18:19], s[0:1], 72")
    a("s_waitcnt lgkmcnt(0)")
    a(f"s_cmp_lt_u32 s2, {BIN0}")
    a("s_cbranch_scc1 K1_TABLE")
    a(f"s_cmp_lt_u32 s2, {WF0}")
    a("s_cbranch_scc1 K1_BIN")
    a(f"s_cmp_lt_u32 s2, {CF0}")
    a("s_cbranch_scc1 K1_WF")
    a("s_branch K1_CF")
    a.label("K1_EXIT")
    a("s_endpgm")
    k1_table(a)
    k1_bin(a)
    k1_wf(a)
    k1_cf(a)

CAPE = 1500
SCAP = 1632
L_CNT = 0; L_TOT = 256; L_TILES = 264; L_FLAG = 268
P_RANGE = 60.0
L_ROW = 512
L_GN = L_ROW + SCAP * 4
L_EO = L_GN + SCAP * 4
L_PPK = L_EO + SCAP * 4
L_CS = L_PPK + 20480
L_AGG = L_CS + 9216
L_XS = L_AGG + 40960
L_ES = L_XS + 48 * 272
L_RAW = L_ES
K2_LDS = L_ES + SCAP * 32
assert K2_LDS <= 163840 and L_AGG + 512 < 65536

QH = [8, 24, 40]; D = 56; B = 72; A = 88; U = 92; T = 100; R = 104; G = 108
vGS = [111, 112, 113]; vTa = 114; vTe = 115; vJ16 = 116; vJ4 = 117; vTa0 = 118; vTe0 = 119; vCS = 120
vDUM = 7
vTd = 122; vEo = 123; vH16 = 5; vEPa = 1; vJ16h = 6; EP = 124
sX = 12; sE = 16; sO = 20; sWS = 24
sWV = 28
sLO = 30
sHI = 32
sCC = 34
sN = 36; sNIT = 37; sL = 38
sLI = 39
sAI = 40
sHL = 41
sHG = 42
sTOT = 43
sWIN = 44
sDI = 45
sM0 = 62
sBIN = 29
sE2 = 63
sINC = 20
sLM3 = 43+48
sFLAG = 90
sNM2 = 89
sINCP = 92
sM = 46
sTMP = 56

STAMP_OFF = 0x1300000
def fstamp(a, i):
    if "fine" in OPT:
        a(f"s_memtime s[{64+2*i}:{65+2*i}]")
        a("s_waitcnt lgkmcnt(0)")
def gstamp(a, i):
    if "gst" in OPT:
        a(f"s_memtime s[{64+2*i}:{65+2*i}]")
        a("s_waitcnt lgkmcnt(0)")
def stamp(a, i):
    if ("fine" in OPT or "gst" in OPT) and i in (1,2,3,4,5,6): return
    if "stamp" in OPT:
        a(f"s_memtime s[{64+2*i}:{65+2*i}]")
        a("s_waitcnt lgkmcnt(0)")
def stamp_out(a, n):
    if "stamp" in OPT:
        a(f"s_cmp_eq_u32 s28, {8 if 'gst' in OPT else 0}")
        a("s_cbranch_scc0 STAMP_SKIP")
        a("s_mov_b64 exec, -1")
        a("s_mov_b32 s26, 0x1400000")
        for i in range(n):
            a(f"v_mov_b32 v100, s{64+2*i}")
            a(f"v_mov_b32 v101, s{65+2*i}")
            a(f"s_lshl_b32 s60, s2, 7")
            a(f"s_add_u32 s60, s60, {STAMP_OFF + 8*i}")
            a("v_mov_b32 v102, 0")
            a(f"buffer_store_dwordx2 v[100:101], v102, {sr(sWS,4)}, s60 offen")
            a("s_nop 1")
        a.label("STAMP_SKIP")
def P2(x): return f"v[{x}:{x+1}]"

def pair_code(ta, tb, h, shl, vG, v5):
    s = []
    if shl:
        for r in range(4):
            s.append(f"v_lshlrev_b32 v{h[r]}, 16, v{h[r]}")
            s.append(f"v_lshlrev_b32 v{h[r]+1}, 16, v{h[r]+1}")
    if v5:
        ep = EP + (2 if shl else 0)
        for r in range(4):
            s.append(f"v_exp_f32 v{U+2*r}, v{D+4*ta+r}")
            s.append(f"v_exp_f32 v{U+2*r+1}, v{D+4*tb+r}")
        if not shl: s.append("s_waitcnt lgkmcnt(3)")
        for r in range(4):
            s.append(f"v_pk_fma_f32 {P2(U+2*r)}, {P2(U+2*r)}, {P2(ep)}, s[{sCC}:{sCC+1}] clamp")
    else:
        for r in range(4):
            s.append(f"v_exp_f32_e64 v{U+2*r}, v{D+4*ta+r} clamp")
            s.append(f"v_exp_f32_e64 v{U+2*r+1}, v{D+4*tb+r} clamp")
        for r in range(4):
            s.append(f"v_pk_add_f32 {P2(U+2*r)}, {P2(U+2*r)}, s[{sCC}:{sCC+1}]")
    d0, d1, d2, d3 = U, U+2, U+4, U+6
    s += [f"v_pk_mul_f32 {P2(T)}, {P2(h[0])}, {P2(d1)}",
          f"v_pk_mul_f32 {P2(T+2)}, {P2(h[2])}, {P2(d3)}",
          f"v_pk_fma_f32 {P2(T)}, {P2(h[1])}, {P2(d0)}, {P2(T)}",
          f"v_pk_fma_f32 {P2(T+2)}, {P2(h[3])}, {P2(d2)}, {P2(T+2)}",
          f"v_pk_mul_f32 {P2(d0)}, {P2(d0)}, {P2(d1)}",
          f"v_pk_mul_f32 {P2(d2)}, {P2(d2)}, {P2(d3)}",
          f"v_pk_mul_f32 {P2(d1)}, {P2(d0)}, {P2(d2)}",
          f"v_pk_mul_f32 {P2(T)}, {P2(T)}, {P2(d2)}",
          f"v_rcp_f32 v{d1}, v{d1}",
          f"v_rcp_f32 v{d1+1}, v{d1+1}",
          f"v_pk_fma_f32 {P2(T)}, {P2(T+2)}, {P2(d0)}, {P2(T)}",
          f"v_pk_mul_f32 {P2(T)}, {P2(T)}, {P2(d1)}"]
    if "noadd" not in OPT:
        s += [f"v_cvt_f64_f32 {P2(U)}, v{T}",
              f"v_cvt_f64_f32 {P2(U+4)}, v{T+1}",
              f"ds_add_f64 v{vG}, {P2(U)} offset:{L_AGG + 128*ta}",
              f"ds_add_f64 v{vG}, {P2(U+4)} offset:{L_AGG + 128*tb}"]
    return s

deferred = []
def defer(fn, inline):
    if inline: fn()
    else: deferred.append(fn)
uid = [0]
def lab(p):
    uid[0] += 1
    return f"{p}_{uid[0]}"

def list_reads(a, v5):
    a(f"ds_read_b128 {vr(R,4)}, v{vTa} offset:{L_ROW}")
    if v5: a(f"ds_read_b32 v{G+2}, v{vTa} offset:{L_GN + 8}")
    else:  a(f"ds_read_b96 {vr(G,3)}, v{vTa} offset:{L_GN}")

def ep_read(a):
    a(f"ds_read_b128 {vr(EP,4)}, v{vEPa} offset:{L_PPK}")

def advance(a):
    a(f"v_pk_add_f32 {P2(vTa)}, {P2(vTa)}, s[{sINCP}:{sINCP+1}]")

def list_wrap(a):
    a(f"s_add_u32 s{sLI}, s{sLI}, 1")
    a(f"s_cmp_eq_u32 s{sLI}, s{sL}")
    l, lb = lab("K2_LW"), lab("K2_LWB")
    a(f"s_cbranch_scc1 {l}")
    a.label(lb)
    def blk():
        a.label(l)
        a(f"s_mov_b32 s{sLI}, 0")
        a(f"s_mov_b32 s{sHL}, {HALF_STRIDE}")
        a(f"v_mov_b32 v{vTa}, v{vTa0}")
        a(f"s_branch {lb}")
    deferred.append(blk)

def eo_read(a):
    a(f"ds_read_b32 v{vEo}, v{vTd} offset:{L_EO}")
    a(f"v_add_u32 v{vTd}, 64, v{vTd}")

def e_dma(a):
    a(f"s_mov_b32 m0, s{sM0}")
    a(f"v_add_u32 v{vEo}, v{vEo}, v{vH16}")
    if "samee" in OPT: a(f"v_and_b32 v{vEo}, 0x1f, v{vEo}")
    a(f"s_add_u32 s{sM0}, s{sM0}, 512")
    a(f"s_add_u32 s{sDI}, s{sDI}, 1")
    a(f"s_mov_b64 exec, {sr(sLO,2)}")
    a(f"buffer_load_dwordx4 v{vEo}, {sr(sWS if 'ecopy' in OPT else sE,4)}, s{sE2} offen lds")
    a("s_mov_b64 exec, -1")

def gather_stage(a, buf):
    for r in (0, 2):
        a(f"v_pk_add_f32 {P2(R+r)}, {P2(R+r)}, {P2(vJ16)} op_sel_hi:[1,0]")
    if "samerow" in OPT:
        for r in range(4): a(f"v_and_b32 v{R+r}, 0xff, v{R+r}")
    for r in range(4):
        a(f"buffer_load_dwordx4 {vr(buf+4*r,4)}, v{R+r}, {sr(sWS,4)}, s{sHL} offen")
    l, lb = lab("K2_ND"), lab("K2_NDB")
    a(f"s_cmp_lt_u32 s{sDI}, s{sL}")
    a(f"s_cbranch_scc1 {l}")
    a.label(lb)
    def blk():
        a.label(l)
        e_dma(a)
        eo_read(a)
        a(f"s_branch {lb}")
    deferred.append(blk)
    list_wrap(a)

def ap_stage(a, dstG, v5, G=G):
    l, lb = lab("K2_AW"), lab("K2_AWB")
    a(f"s_cmp_eq_u32 s{sAI}, s{sL}")
    a(f"s_cbranch_scc1 {l}")
    a.label(lb)
    def blk():
        a.label(l)
        a(f"s_mov_b32 s{sAI}, 0")
        if "noprio" not in OPT:
            lp = lab("K2_NP")
            a(f"s_cmp_lt_u32 s{sN}, s{sL}")
            a(f"s_cbranch_scc0 {lp}")
            a("s_setprio 2" if "oldprio" not in OPT else "s_setprio 0")
            a.label(lp)
        a(f"v_add_u32 v{vJ4}, 256, v{vJ4}")
        if v5: a(f"v_add_u32 v{vJ16h}, 256, v{vJ16h}")
        a(f"v_mov_b32 v{vTe}, v{vTe0}")
        for t in range(4):
            a(f"ds_read_b128 {vr(B+4*t,4)}, v{vCS} offset:{L_CS + 1024*(4+t)}")
        a(f"s_branch {lb}")
    deferred.append(blk)
    a(f"s_add_u32 s{sAI}, s{sAI}, 1")
    if v5:
        a(f"v_add_lshl_u32 v{dstG}, v{G+2}, v{vJ4}, 1")
        a(f"v_add_u32 v{vEPa}, v{G+2}, v{vJ16h}")
        a(f"s_mov_b64 exec, {sr(sLO,2)}")
        a(f"ds_read_b128 {vr(A,4)}, v{vTe}")
        a("s_mov_b64 exec, -1")
        return
    a(f"v_pk_add_f32 {P2(G)}, {P2(G)}, {P2(vJ16)} op_sel:[0,1] op_sel_hi:[1,1]")
    a(f"v_add_lshl_u32 v{dstG}, v{G+2}, v{vJ4}, 1")
    a(f"s_mov_b64 exec, {sr(sLO,2)}")
    a(f"ds_read_b128 {vr(A,4)}, v{vTe}")
    a(f"s_mov_b64 exec, {sr(sHI,2)}")
    for t in range(4 if "nop" not in OPT else 0):
        a(f"ds_read_b32 v{B+4*t}, v{G} offset:{L_PPK + 64*t}")
        a(f"ds_read_b32 v{B+4*t+1}, v{G+1} offset:{L_PPK + 64*t}")
    a("s_mov_b64 exec, -1")

def tile_body(a, k, v5, done):
    buf = QH[k]; nbuf = QH[(k + 2) % 3]
    vG = vGS[k]; vGn = vGS[(k + 1) % 3]
    l2 = lab("K2_W")
    a(f"s_cmp_lt_i32 s{sN}, s{sLM3}")
    a(f"s_cbranch_scc1 {l2}")
    a("s_waitcnt vmcnt(4)")
    a.label(l2)
    a("s_waitcnt vmcnt(6)")
    for t in (1, 3):
        p = t >> 1
        for rr in (0, 2):
            a(f"v_pk_mov_b32 {P2(D+4*t+rr)}, {P2(buf+4*rr)}, {P2(buf+4*(rr+1))} op_sel:[{p},{p}]")
    for t in (0, 2):
        p = t >> 1
        for r in range(4):
            a(f"v_lshlrev_b32 v{D+4*t+r}, 16, v{buf+4*r+p}")
    a("s_waitcnt lgkmcnt(4)")
    for t in (1, 3, 0, 2):
        a(f"v_mfma_f32_16x16x32_bf16 {vr(D+4*t,4)}, {vr(A,4)}, {vr(B+4*t,4)}, {vr(D+4*t,4)}")
    ap_stage(a, vGn, v5)
    list_reads(a, v5)
    advance(a)
    h = [buf + 4*r + 2 for r in range(4)]
    for ins in pair_code(1, 3, h, False, vG, v5): a(ins)
    a("s_waitcnt lgkmcnt(3)" if "noadd" not in OPT else "s_waitcnt lgkmcnt(1)")
    gather_stage(a, nbuf)
    for ins in pair_code(0, 2, h, True, vG, v5): a(ins)
    if v5: ep_read(a)
    a(f"s_add_u32 s{sN}, s{sN}, 1")
    if "noprio" in OPT or "oldprio" in OPT:
        a(f"s_cmp_ge_u32 s{sN}, s{sNIT}")
        a(f"s_cbranch_scc1 {done}")
    else:
        l, lb = lab("K2_PR"), lab("K2_PRB")
        a(f"s_cmp_ge_u32 s{sN}, s{sNM2}")
        a(f"s_cbranch_scc1 {l}")
        a.label(lb)
        def blk():
            l1 = lab("K2_PR1")
            a.label(l)
            a(f"s_cmp_ge_u32 s{sN}, s{sNIT}")
            a(f"s_cbranch_scc1 {done}")
            a(f"s_cmp_eq_u32 s{sN}, s{sNM2}")
            a(f"s_cbranch_scc0 {l1}")
            a("s_setprio 1")
            a(f"s_branch {lb}")
            a.label(l1)
            a("s_setprio 0")
            a(f"s_branch {lb}")
        deferred.append(blk)

def table_prefetch(a, vL16):
    if "nopf" in OPT: return
    a(f"s_lshr_b32 s{sTMP+5}, s2, 3")
    a(f"s_mul_i32 s{sTMP+5}, s{sTMP+5}, 81920")
    a(f"s_lshl_b32 s{sTMP+6}, s28, 13")
    a(f"s_add_u32 s{sTMP+5}, s{sTMP+5}, s{sTMP+6}")
    a(f"s_cmp_lt_u32 s28, 10")
    a(f"s_cselect_b32 s{sTMP+5}, s{sTMP+5}, {WS_END}")
    a(f"v_lshlrev_b32 v{vDUM}, 3, v{vL16}")
    a(f"buffer_load_dword v{vDUM}, v{vDUM}, {sr(sWS,4)}, s{sTMP+5} offen")

def table_prefetch(a):
    a(f"s_lshr_b32 s{sTMP}, s2, 3")
    a(f"s_mul_i32 s{sTMP}, s{sTMP}, 81920")
    a(f"s_lshl_b32 s{sTMP+1}, s28, 13")
    a(f"s_add_u32 s{sTMP+1}, s{sTMP+1}, s{sTMP}")
    a(f"v_lshlrev_b32 v{vDUM}, 3, v{vCS}")
    a(f"buffer_load_dword v126, v{vDUM}, {sr(sWS,4)}, s{sTMP+1} offen")
    if "pf8" in OPT: return
    a(f"s_add_u32 s{sTMP+1}, s{sTMP+1}, 65536")
    a(f"s_cmp_lt_u32 s28, 2")
    a(f"s_cselect_b32 s{sTMP+1}, s{sTMP+1}, {WS_END}")
    a(f"buffer_load_dword v127, v{vDUM}, {sr(sWS,4)}, s{sTMP+1} offen")

def k2(a):
    ECOPY = "ecopy" in OPT
    a.raw(".p2align 8")
    a.raw(".type egc_main_kernel,@function")
    a.label("egc_main_kernel")
    a(f"s_cmp_ge_u32 s2, {NB}")
    a("s_cbranch_scc1 K2_EXIT")
    diag_mark(a, 0, True, 0)
    stamp(a, 0)
    if "stamp" in OPT:
        a("s_memrealtime s[80:81]")
        a("s_waitcnt lgkmcnt(0)")
    a("s_load_dwordx4 s[4:7], s[0:1], 0")
    a("s_load_dwordx2 s[8:9], s[0:1], 56")
    a("s_load_dwordx2 s[10:11], s[0:1], 72")
    a("v_lshrrev_b32 v1, 6, v0")
    a("v_lshlrev_b32 v3, 4, v0")
    a("s_and_b32 s46, s2, 7")
    a("v_readfirstlane_b32 s28, v1")
    a("s_lshr_b32 s47, s2, 3")
    a("s_sub_u32 s48, s46, 2")
    a("s_max_i32 s48, s48, 0")
    a("s_lshl_b32 s46, s46, 5")
    a("s_sub_u32 s46, s46, s48")
    a(f"s_add_u32 s{sBIN}, s46, s47")
    a(f"v_and_b32 v{vCS}, 0x3f0, v3")
    a(f"s_mov_b64 {sr(sLO,2)}, 0xffffffff")
    a(f"s_mov_b32 s{sHI}, 0")
    a(f"s_mov_b32 s{sHI+1}, -1")
    a(f"s_mov_b32 s{sCC}, {hex(C_2MK)}")
    a(f"s_mov_b32 s{sCC+1}, {hex(C_2MK)}")
    a(f"s_mov_b32 s{sWIN}, 0")
    a(f"s_mov_b32 s{sE2}, {E2_OFF if ECOPY else 0}")
    a("s_cmp_ge_u32 s28, 8")
    a("s_cbranch_scc1 K2_G")
    vW = 1; vOA = 2; vOf = 4
    vC = 32; vSub = 33; vWb = 34; vEA = 35; vPw = 36; vKB = 37; vSg = 39; vEB = 38
    EN = 56
    a("v_mov_b32 v5, 0")
    a("v_lshrrev_b32 v6, 2, v3")
    a("v_cmp_gt_u32 vcc, 128, v0")
    a(f"v_lshrrev_b32 v{vW}, 1, v0")
    a("s_and_saveexec_b64 s[54:55], vcc")
    a(f"ds_write_b32 v6, v5 offset:{L_CNT}")
    a("s_mov_b64 exec, -1")
    a(f"v_lshlrev_b32 v{vOA}, 10, v{vW}")
    a(f"s_lshl_b32 s{sTMP}, s{sBIN}, 2")
    a(f"s_add_u32 s{sTMP}, s{sTMP}, {OFFS_OFF}")
    a(f"s_mov_b32 s{sTMP+4}, {ENT_OFF}")
    a("s_waitcnt lgkmcnt(0)")
    srd(a, sWS, 10, WS_END)
    a(f"buffer_load_dword v{vOf}, v{vOA}, {sr(sWS,4)}, s{sTMP} offen")
    a(f"v_and_b32 v{vSub}, 1, v0")
    a(f"v_mul_u32_u24 v{vSg}, {CE}, v{vW}")
    a(f"v_cmp_gt_u32 vcc, 250, v{vW}")
    a(f"v_cmp_eq_u32 s[54:55], 0, v{vSub}")
    a(f"v_mov_b32 v16, {L_TOT}")
    if not ECOPY: a(f"v_mul_u32_u24 v{vWb}, {CE*32}, v{vW}")
    srd(a, sE, 6, E * 32)
    srd(a, sO, 8, N * 256)
    a("s_waitcnt vmcnt(0)")
    a(f"v_lshrrev_b32 v{vC}, 16, v{vOf}")
    a(f"v_and_b32 v{vOf}, 0xffff, v{vOf}")
    a(f"v_cndmask_b32 v{vC}, 0, v{vC}, vcc")
    a(f"v_add_u32 v{vSg}, v{vSg}, v{vOf}")
    def entry_addr():
        a(f"v_lshlrev_b32 v{vEB}, 2, v{vSg}")
        a(f"v_lshl_add_u32 v{vEA}, v{vSub}, 5, v{vEB}")
        a(f"v_lshl_add_u32 v{vEB}, v{vSub}, 3, v{vEB}")
    def entry_loads(soff):
        a(f"buffer_load_dwordx4 {vr(EN,4)}, v{vEA}, {sr(sWS,4)}, s{soff} offen")
        a(f"buffer_load_dwordx4 {vr(EN+4,4)}, v{vEA}, {sr(sWS,4)}, s{soff} offen offset:16")
        a(f"buffer_load_dwordx2 {vr(EN+8,2)}, v{vEB}, {sr(sWS,4)}, s{soff} offen offset:64")
    entry_addr()
    entry_loads(sTMP+4)
    a("s_barrier")
    stamp(a, 1)
    a("s_mov_b64 exec, s[54:55]")
    a(f"ds_add_rtn_u32 v{vPw}, v16, v{vC}")
    a("s_mov_b64 exec, -1")
    a(f"v_mov_b32 v{vKB}, 0")
    a("s_waitcnt lgkmcnt(0)")
    a(f"v_mov_b32_dpp v{vPw}, v{vPw} quad_perm:[0,0,2,2] row_mask:0xf bank_mask:0xf")
    a("s_nop 0")
    a(f"v_mov_b32 v121, v{vPw}")
    a("s_waitcnt vmcnt(0)")
    if "pfA" in OPT: table_prefetch(a)
    a.label("K2_WINDOW")
    vKE = 66; vRA = 67
    a(f"s_add_u32 s{sTMP}, s{sWIN}, {CAPE}")
    a(f"v_sub_u32 v{vKE}, s{sTMP}, v{vPw}")
    a(f"v_min_i32 v{vKE}, v{vKE}, v{vC}")
    if ECOPY:
        a(f"v_sub_u32 v{vWb}, v{vSg}, v{vPw}")
        a(f"v_add_lshl_u32 v{vWb}, v{vWb}, s{sWIN}, 5")
    a.label("K2_COPY")
    a(f"v_add_u32 v{vRA}, v{vPw}, v{vKB}")
    a(f"v_subrev_u32 v{vRA}, s{sWIN}, v{vRA}")
    a(f"v_sub_u32 v68, v{vKE}, v{vKB}")
    a(f"v_lshlrev_b32 v69, 3, v{vSub}")
    a("v_sub_u32 v70, v68, v69")
    a(f"v_add_lshl_u32 v69, v{vRA}, v69, 3")
    a(f"v_add_u32 v69, {L_RAW}, v69")
    a(f"v_lshlrev_b32 v71, 1, v{vSub}")
    a("v_sub_u32 v68, v68, v71")
    a(f"v_add_lshl_u32 v71, v{vRA}, v71, 3")
    a(f"v_add_u32 v71, {L_RAW + 128}, v71")
    for i in range(8):
        a(f"v_cmp_lt_i32 vcc, {i}, v70")
        a("s_and_b64 exec, exec, vcc")
        a("s_cbranch_execz K2_CPA")
        a(f"ds_write2_b32 v69, v{EN+i}, v{vWb} offset0:{2*i} offset1:{2*i+1}")
    a.label("K2_CPA")
    a("s_mov_b64 exec, -1")
    for i in range(2):
        a(f"v_cmp_lt_i32 vcc, {16+i}, v68")
        a("s_and_b64 exec, exec, vcc")
        a("s_cbranch_execz K2_CPB")
        a(f"ds_write2_b32 v71, v{EN+8+i}, v{vWb} offset0:{2*i} offset1:{2*i+1}")
    a.label("K2_CPB")
    a("s_mov_b64 exec, -1")
    a(f"v_add_u32 v{vKB}, 20, v{vKB}")
    a(f"v_cmp_lt_i32 vcc, v{vKB}, v{vKE}")
    a("s_cmp_eq_u64 vcc, 0")
    a("s_cbranch_scc1 K2_COPIED")
    a(f"v_add_u32 v{vEA}, 80, v{vEA}")
    a(f"v_add_u32 v{vEB}, 80, v{vEB}")
    a(f"s_mov_b32 s{sTMP+4}, {ENT_OFF}")
    entry_loads(sTMP+4)
    a("s_waitcnt vmcnt(0)")
    a("s_branch K2_COPY")
    a.label("K2_COPIED")
    if "pfB" in OPT: table_prefetch(a)
    a(f"v_mov_b32 v70, {L_TOT}")
    a("s_waitcnt lgkmcnt(0)")
    a("s_barrier")
    stamp(a, 2)
    a("ds_read_b32 v70, v70")
    if "pfC" in OPT: table_prefetch(a)
    RE = 56
    ND = 62; RK = 65
    a("v_lshlrev_b32 v68, 3, v0")
    a(f"v_add_u32 v68, {L_RAW}, v68")
    for i in range(3):
        a(f"ds_read_b64 {P2(RE+2*i)}, v68 offset:{4096*i}")
    a("v_mov_b32 v69, 1")
    a("s_waitcnt lgkmcnt(3)")
    a(f"v_readfirstlane_b32 s{sTOT}, v70")
    a("v_add_u32 v71, 512, v0")
    a("v_add_u32 v72, 1024, v0")
    a(f"s_sub_u32 s{sTMP}, s{sTOT}, s{sWIN}")
    a(f"s_min_u32 s{sTMP}, s{sTMP}, {CAPE}")
    a(f"v_cmp_gt_u32 {sr(sM,2)}, s{sTMP}, v0")
    a(f"v_cmp_gt_u32 {sr(sM+2,2)}, s{sTMP}, v71")
    a(f"v_cmp_gt_u32 {sr(sM+4,2)}, s{sTMP}, v72")
    for i in range(3):
        l = lab("K2_RK")
        a(f"s_waitcnt lgkmcnt({2-i if i == 0 else 0})" if i == 0 else "s_waitcnt lgkmcnt(0)" if i == 1 else "")
        a(f"v_bfe_u32 v{ND+i}, v{RE+2*i}, 14, 6")
        a(f"v_lshlrev_b32 v{ND+i}, 2, v{ND+i}")
        a(f"s_mov_b64 exec, {sr(sM+2*i,2)}")
        a(f"s_cbranch_execz {l}")
        a(f"ds_add_rtn_u32 v{RK+i}, v{ND+i}, v69 offset:{L_CNT}")
        a.label(l)
        a("s_mov_b64 exec, -1")
    a(f"v_lshrrev_b32 v68, 2, v{vCS}")
    a("s_waitcnt lgkmcnt(0)")
    a("s_barrier")
    stamp(a, 3)
    a(f"ds_read_b32 v69, v68 offset:{L_CNT}")
    for i in range(3):
        e = RE + 2*i
        if ECOPY:
            a(f"v_lshl_add_u32 v{e+1}, v0, 5, v{e+1}")
            if i: a(f"v_add_u32 v{e+1}, {512*32*i}, v{e+1}")
        else:
            a(f"v_lshrrev_b32 v70, 20, v{e}")
            a(f"v_lshl_add_u32 v{e+1}, v70, 5, v{e+1}")
        a(f"v_and_b32 v{e}, 0x3fff, v{e}")
        a(f"v_lshlrev_b32 v{e}, 8, v{e}")
    a("s_waitcnt lgkmcnt(0)")
    a("v_add_u32 v70, 3, v69")
    a("v_and_b32 v70, -4, v70")
    a("v_mov_b32 v71, v70")
    wave_scan(a, 71)
    a("v_sub_u32 v72, v71, v70")
    a("s_nop 0")
    a(f"v_readlane_b32 s{sNIT}, v71, 63")
    for i in range(3):
        a(f"ds_bpermute_b32 v{73+i}, v{ND+i}, v72")
    for i in range(3):
        a(f"v_lshlrev_b32 v{ND+i}, 7, v{ND+i}")
    for i in range(3):
        e = RE + 2*i
        l = lab("K2_PL")
        a(f"s_waitcnt lgkmcnt({2-i})" if i == 0 else "s_waitcnt lgkmcnt(0)" if i == 1 else "")
        a(f"s_mov_b64 exec, {sr(sM+2*i,2)}")
        a(f"s_cbranch_execz {l}")
        a(f"v_add_u32 v{73+i}, v{73+i}, v{RK+i}")
        a(f"v_and_b32 v{RK+i}, 3, v{RK+i}")
        a(f"v_lshlrev_b32 v76, 2, v{73+i}")
        a(f"v_cmp_eq_u32 vcc, 0, v{RK+i}")
        a(f"ds_write_b32 v76, v{e} offset:{L_ROW}")
        a(f"ds_write_b32 v76, v{e+1} offset:{L_EO}")
        a("s_and_b64 exec, exec, vcc")
        a(f"s_cbranch_execz {l}")
        a(f"ds_write_b32 v76, v{ND+i} offset:{L_GN + 8}")
        a(f"v_and_b32 v77, 0xffffffc0, v76")
        a(f"v_bfe_u32 v{RK+i}, v76, 5, 1")
        a(f"v_lshl_add_u32 v77, v{RK+i}, 4, v77")
        a(f"v_bfe_u32 v{RK+i}, v76, 4, 1")
        a(f"v_lshl_add_u32 v77, v{RK+i}, 2, v77")
        a(f"ds_write_b32 v77, v{ND+i} offset:{L_GN + 32}")
        a.label(l)
        a("s_mov_b64 exec, -1")
    a(f"s_add_u32 s{sTMP}, s{sNIT}, 15")
    a(f"s_lshr_b32 s{sTMP+1}, s{sTMP}, 4")
    a("s_cmp_ge_u32 s28, 2")
    a("s_cbranch_scc1 K2_NOTAIL")
    a(f"v_mov_b32 v78, {N*256}")
    a("v_mov_b32 v79, 0")
    a("s_cmp_eq_u32 s28, 0")
    a("s_cbranch_scc0 K2_NOPAD")
    a(f"v_mov_b32 v76, s{sTMP+1}")
    a(f"v_mov_b32 v77, {L_TILES}")
    a("ds_write_b32 v77, v76")
    a("v_add_u32 v76, v72, v69")
    for m in range(3):
        a("v_cmp_lt_u32 vcc, v76, v71")
        a("s_and_b64 exec, exec, vcc")
        a(f"s_cbranch_execz K2_NOTAIL")
        a("v_lshlrev_b32 v77, 2, v76")
        a(f"ds_write_b32 v77, v78 offset:{L_ROW}")
        a(f"ds_write_b32 v77, v79 offset:{L_EO}")
        a("v_add_u32 v76, 1, v76")
    a("s_branch K2_NOTAIL")
    a.label("K2_NOPAD")
    a(f"v_lshrrev_b32 v76, 4, v{vCS}")
    a(f"v_add_u32 v76, s{sNIT}, v76")
    a(f"s_lshl_b32 s{sTMP+2}, s{sTMP+1}, 4")
    a(f"v_cmp_gt_u32 vcc, s{sTMP+2}, v76")
    a("s_and_b64 exec, exec, vcc")
    a("s_cbranch_execz K2_NOTAIL")
    a("v_lshlrev_b32 v77, 2, v76")
    a(f"ds_write_b32 v77, v78 offset:{L_ROW}")
    a(f"ds_write_b32 v77, v79 offset:{L_EO}")
    a("v_and_b32 v76, 3, v76")
    a("v_cmp_eq_u32 vcc, 0, v76")
    a("s_and_b64 exec, exec, vcc")
    a("s_cbranch_execz K2_NOTAIL")
    a(f"ds_write_b32 v77, v79 offset:{L_GN + 8}")
    a(f"v_and_b32 v76, 0xffffffc0, v77")
    a("v_bfe_u32 v78, v77, 5, 1")
    a("v_lshl_add_u32 v76, v78, 4, v76")
    a("v_bfe_u32 v78, v77, 4, 1")
    a("v_lshl_add_u32 v76, v78, 2, v76")
    a(f"ds_write_b32 v76, v79 offset:{L_GN + 32}")
    a.label("K2_NOTAIL")
    a("s_mov_b64 exec, -1")
    a("s_waitcnt lgkmcnt(0)")
    a("s_barrier")
    a("s_branch K2_JOIN")
    a.label("K2_G")
    WP = 8; WU = 24; ACP = 56; ACU = 92; XR = 56; CR = 64
    AFS = [40, 68, 104]
    a("v_subrev_u32 v2, 0x2000, v3")
    a(f"s_sub_u32 s{sTMP+6}, s28, 8")
    a(f"s_mul_i32 s{sTMP+1}, s{sBIN}, {NPB*256}")
    a(f"s_add_u32 s{sTMP+2}, s{sTMP+1}, 8192")
    a(f"s_mov_b32 s{sTMP+3}, {CF_OFF}")
    a(f"s_mov_b32 s{sTMP+4}, {CF_OFF + 8192}")
    a(f"s_lshl_b32 s{sTMP+5}, s{sTMP+6}, 12")
    a(f"s_add_u32 s{sTMP+5}, s{sTMP+5}, {WF_OFF}")
    a("v_lshrrev_b32 v4, 8, v2")
    a("v_mul_u32_u24 v4, 272, v4")
    a(f"v_bfe_u32 v7, v{vCS}, 4, 4")
    a(f"v_lshrrev_b32 v6, 8, v{vCS}")
    a("v_lshl_add_u32 v4, v7, 4, v4")
    a(f"v_add_u32 v4, {L_XS}, v4")
    a("v_cmp_gt_u32 vcc, 0x1000, v2")
    a("s_waitcnt lgkmcnt(0)")
    srd(a, sX, 4, N * 256)
    a(f"buffer_load_dwordx4 {vr(XR,4)}, v2, {sr(sX,4)}, s{sTMP+1} offen")
    a(f"buffer_load_dwordx4 {vr(XR+4,4)}, v2, {sr(sX,4)}, s{sTMP+2} offen")
    srd(a, sWS, 10, WS_END)
    a(f"buffer_load_dwordx4 {vr(CR,4)}, v2, {sr(sWS,4)}, s{sTMP+3} offen")
    a(f"buffer_load_dwordx4 {vr(CR+4,4)}, v{vCS}, {sr(sWS,4)}, s{sTMP+4} offen")
    srd(a, sE, 6, E * 32)
    srd(a, sO, 8, N * 256)
    a("s_waitcnt vmcnt(3)")
    gstamp(a, 1)
    a(f"ds_write_b128 v4, {vr(XR,4)}")
    a("s_and_saveexec_b64 s[54:55], vcc")
    a("s_waitcnt vmcnt(2)")
    a(f"ds_write_b128 v4, {vr(XR+4,4)} offset:{32*272}")
    a("s_mov_b64 exec, -1")
    a("s_waitcnt vmcnt(1)")
    a(f"ds_write_b128 v2, {vr(CR,4)} offset:{L_CS}")
    a("s_waitcnt vmcnt(0)")
    a(f"s_cmp_eq_u32 s{sTMP+6}, 0")
    a("s_cbranch_scc0 K2_NOA")
    a(f"ds_write_b128 v{vCS}, {vr(CR+4,4)} offset:{L_CS+8192}")
    a.label("K2_NOA")
    a("v_mul_u32_u24 v4, 272, v7")
    a("v_lshl_add_u32 v4, v6, 4, v4")
    a(f"v_add_u32 v4, {L_XS}, v4")
    a("v_lshlrev_b32 v5, 11, v6")
    a("v_lshl_add_u32 v5, v7, 2, v5")
    a(f"s_lshl_b32 s{sTMP}, s{sTMP+6}, 6")
    a(f"v_add_u32 v5, s{sTMP}, v5")
    a("s_waitcnt lgkmcnt(0)")
    gstamp(a, 2)
    a("s_barrier")
    gstamp(a, 3)
    for ks in range(4):
        a(f"buffer_load_dwordx4 {vr(WP+4*ks,4)}, v{vCS}, {sr(sWS,4)}, s{sTMP+5} offen offset:{1024*ks}")
    a(f"s_add_u32 s{sTMP+5}, s{sTMP+5}, 32768")
    for ks in range(4):
        a(f"buffer_load_dwordx4 {vr(WU+4*ks,4)}, v{vCS}, {sr(sWS,4)}, s{sTMP+5} offen offset:{1024*ks}")
    for rho in range(3):
        for ks in range(4):
            a(f"ds_read_b128 {vr(AFS[rho]+4*ks,4)}, v4 offset:{rho*16*272 + ks*64}")
    a(f"s_mov_b32 s{sTMP}, {hex(NEG_LOG2E)}")
    a(f"s_mov_b32 s{sTMP+1}, {hex(C_2PK)}")
    a("v_lshlrev_b32 v4, 1, v5")
    a(f"v_add_u32 v4, {L_AGG}, v4")
    a(f"v_mov_b32 v1, {L_TOT}")
    gstamp(a, 4)
    a("s_barrier")
    a("ds_read_b32 v1, v1")
    a("s_waitcnt vmcnt(0) lgkmcnt(0)")
    a(f"v_readfirstlane_b32 s{sTOT}, v1")
    for rho in range(3):
        AF = AFS[rho]
        for ks in range(4):
            c = "0" if ks == 0 else vr(ACP+4*rho, 4)
            a(f"v_mfma_f32_16x16x32_bf16 {vr(ACP+4*rho,4)}, {vr(AF+4*ks,4)}, {vr(WP+4*ks,4)}, {c}")
    for rho in range(3):
        AF = AFS[rho]
        for ks in range(4):
            c = "0" if ks == 0 else vr(ACU+4*rho, 4)
            a(f"v_mfma_f32_16x16x32_bf16 {vr(ACU+4*rho,4)}, {vr(AF+4*ks,4)}, {vr(WU+4*ks,4)}, {c}")
    for i in range(12):
        a(f"v_mul_f32 v{ACP+i}, s{sTMP}, v{ACP+i}")
    a(f"v_max3_f32 v1, |v{ACP}|, |v{ACP+1}|, |v{ACP+2}|")
    for i in range(3, 11, 2):
        a(f"v_max3_f32 v1, |v{ACP+i}|, |v{ACP+i+1}|, v1")
    a(f"v_max_f32_e64 v1, |v{ACP+11}|, v1")
    a(f"s_mov_b32 s{sTMP+2}, {hex(f2u(P_RANGE))}")
    a(f"v_cmp_nle_f32 vcc, v1, s{sTMP+2}" if False else f"v_cmp_nge_f32 vcc, s{sTMP+2}, v1")
    a(f"v_mov_b32 v2, {L_FLAG}")
    a("v_mov_b32 v3, 1")
    if "nov5" in OPT: a("s_mov_b64 vcc, -1")
    a("s_and_saveexec_b64 s[54:55], vcc")
    a("s_cbranch_execz K2_NOFLAG")
    a("ds_write_b32 v2, v3")
    a.label("K2_NOFLAG")
    a("s_mov_b64 exec, -1")
    a("s_waitcnt lgkmcnt(0)")
    gstamp(a, 5)
    a("s_barrier")
    a("ds_read_b32 v2, v2")
    for rho in range(3):
        if rho == 2: a(f"s_mov_b64 exec, {sr(sLO,2)}")
        for r in range(4):
            a(f"v_mul_f32 v{ACU+4*rho+r}, s{sTMP+1}, v{ACU+4*rho+r}")
        for r in range(4):
            a(f"v_cvt_f64_f32 v[{40+2*r}:{41+2*r}], v{ACU+4*rho+r}")
        for r in range(4):
            a(f"ds_write_b64 v4, v[{40+2*r}:{41+2*r}] offset:{rho*16384 + r*1024}")
    a("s_mov_b64 exec, -1")
    a("s_waitcnt lgkmcnt(12)")
    a(f"v_readfirstlane_b32 s{sTMP+2}, v2")
    a("s_nop 3")
    a(f"s_cmp_lg_u32 s{sTMP+2}, 0")
    a("s_cbranch_scc1 K2_PADD")
    a(f"s_and_b32 s{sTMP+2}, s{sTMP+6}, 3")
    a(f"s_lshl_b32 s{sTMP+2}, s{sTMP+2}, 1")
    a(f"s_lshr_b32 s{sTMP+3}, 0x72, s{sTMP+2}")
    a(f"s_and_b32 s{sTMP+3}, s{sTMP+3}, 3")
    a(f"s_lshl_b32 s{sTMP+3}, s{sTMP+3}, 2")
    a(f"s_lshr_b32 s{sTMP+2}, s{sTMP+6}, 2")
    a(f"s_lshl_b32 s{sTMP+2}, s{sTMP+2}, 8")
    a(f"s_add_u32 s{sTMP+2}, s{sTMP+2}, s{sTMP+3}")
    a("v_lshlrev_b32 v5, 11, v6")
    a("v_lshl_add_u32 v5, v7, 4, v5")
    a(f"v_add_u32 v5, s{sTMP+2}, v5")
    a(f"s_mov_b32 s{sTMP+2}, {hex(f2u(-float(KSH)))}")
    for i in range(12):
        a(f"v_add_f32 v{ACP+i}, s{sTMP+2}, v{ACP+i}")
    for i in range(12):
        a(f"v_exp_f32 v{ACP+i}, v{ACP+i}")
    for rho in range(3):
        if rho == 2: a(f"s_mov_b64 exec, {sr(sLO,2)}")
        for r in range(4):
            a(f"ds_write_b32 v5, v{ACP+4*rho+r} offset:{L_PPK + rho*8192 + r*512}")
    a("s_branch K2_PDONE")
    a.label("K2_PADD")
    for i in range(12):
        a(f"v_cvt_pk_bf16_f32 v{ACP+i}, v{ACP+i}, 0")
    for rho in range(3):
        if rho == 2: a(f"s_mov_b64 exec, {sr(sLO,2)}")
        for r in range(4):
            a(f"ds_write_b32 v5, v{ACP+4*rho+r} offset:{L_PPK + rho*8192 + r*512}")
    a.label("K2_PDONE")
    a("s_mov_b64 exec, -1")
    a("s_waitcnt lgkmcnt(0)")
    gstamp(a, 6)
    a("s_barrier")
    a("s_branch K2_JOIN")
    a.label("K2_G_WINDOW")
    a("s_barrier")
    a("s_barrier")
    a("s_barrier")
    a.label("K2_JOIN")
    stamp(a, 4)
    a("s_cmp_eq_u32 s28, 0")
    a("s_cbranch_scc0 K2_NOZ2")
    a(f"v_lshrrev_b32 v68, 2, v{vCS}")
    a("v_mov_b32 v69, 0")
    a(f"ds_write_b32 v68, v69 offset:{L_CNT}")
    a("s_waitcnt lgkmcnt(0)")
    a.label("K2_NOZ2")
    a(f"v_mov_b32 v70, {L_TILES}")
    a("ds_read_b64 v[70:71], v70")
    for t in range(4):
        a(f"ds_read_b128 {vr(B+4*t,4)}, v{vCS} offset:{L_CS + 1024*t}")
    a(f"ds_read_b128 {vr(A,4)}, v{vCS} offset:{L_CS + 8192}")
    a(f"v_lshrrev_b32 v64, 8, v{vCS}")
    a(f"v_bfe_u32 v65, v{vCS}, 4, 4")
    a(f"v_lshlrev_b32 v{vJ16}, 4, v65")
    a(f"v_lshlrev_b32 v{vJ4}, 2, v65")
    a(f"v_and_b32 v{vH16}, 16, v{vCS}")
    a(f"v_lshrrev_b32 v67, 5, v{vCS}")
    a("s_waitcnt lgkmcnt(5)")
    a(f"v_readfirstlane_b32 s{sTMP+1}, v70")
    a(f"v_readfirstlane_b32 s{sFLAG}, v71")
    a(f"v_lshlrev_b32 v66, 5, v65")
    a(f"v_lshl_add_u32 v66, v64, 4, v66")
    a(f"s_lshr_b32 s{sTMP+2}, s{sTMP+1}, 4")
    a(f"s_and_b32 s{sTMP+3}, s{sTMP+1}, 15")
    a(f"s_cmp_lt_u32 s28, s{sTMP+3}")
    a(f"s_cselect_b32 s{sL}, 1, 0")
    a(f"s_add_u32 s{sL}, s{sL}, s{sTMP+2}")
    a(f"s_mul_i32 s{sTMP+2}, s{sTMP+2}, s28")
    a(f"s_min_u32 s{sTMP+3}, s{sTMP+3}, s28")
    a(f"s_add_u32 s{sTMP+2}, s{sTMP+2}, s{sTMP+3}")
    a(f"s_lshl_b32 s{sNIT}, s{sL}, {2 if 'dbl' in OPT else 1}")
    a(f"s_cmp_eq_u32 s{sL}, 0")
    a("s_cbranch_scc1 K2_LOOP_DONE")
    if "noprio" not in OPT: a("s_setprio 3")
    a(f"s_lshl_b32 s{sTMP+4}, s{sTMP+2}, 4")
    a(f"v_add_lshl_u32 v{vTd}, v67, s{sTMP+4}, 2")
    a(f"s_lshl_b32 s{sM0}, s{sTMP+2}, 9")
    a(f"s_add_u32 s{sM0}, s{sM0}, {L_ES}")
    a(f"v_add_u32 v{vTe0}, s{sM0}, v66")
    a(f"s_lshl_b32 s{sTMP+4}, s{sTMP+2}, 6")
    a(f"v_lshl_add_u32 v{vTa0}, v64, 4, s{sTMP+4}")
    a(f"s_mov_b32 s{sDI}, 0")
    a(f"s_mov_b32 s{sN}, 0")
    a(f"s_mov_b32 s{sLI}, 0")
    a(f"s_mov_b32 s{sAI}, 0")
    a(f"s_mov_b32 s{sHL}, 0")
    a(f"s_mov_b32 s{sINCP}, 64")
    a(f"s_mov_b32 s{sINCP+1}, 512")
    a(f"s_sub_i32 s{sLM3}, s{sL}, 3")
    a(f"s_sub_u32 s{sNM2}, s{sNIT}, 2")
    eo_read(a)
    a(f"v_mov_b32 v{vTa}, v{vTa0}")
    a(f"v_mov_b32 v{vTe}, v{vTe0}")
    a("s_waitcnt lgkmcnt(0)")
    e_dma(a)
    a(f"s_cmp_lt_u32 s{sDI}, s{sL}")
    a("s_cbranch_scc0 K2_ND1")
    eo_read(a)
    a("s_waitcnt lgkmcnt(0)")
    e_dma(a)
    eo_read(a)
    a.label("K2_ND1")
    a(f"v_mov_b32 v{vJ16h}, v{vJ16}")
    a(f"s_cmp_lg_u32 s{sFLAG}, 0")
    a("s_cbranch_scc1 K2_SETUP_ADD")
    for v5 in (True, False):
        sfx = "F" if v5 else "A"
        if v5:
            for i in range(4): a(f"v_mov_b32 v{A+i}, 0")
        else:
            a.label("K2_SETUP_ADD")
        list_reads(a, v5)
        a(f"v_add_u32 v{vTa}, 64, v{vTa}")
        a("s_waitcnt lgkmcnt(0)")
        gather_stage(a, QH[0])
        for i in range(3):
            if not v5 or i == 2: a(f"v_mov_b32 v{2+i}, v{G+i}")
        list_reads(a, v5)
        a(f"v_add_u32 v{vTa}, 64, v{vTa}")
        a("s_waitcnt lgkmcnt(0)")
        gather_stage(a, QH[1])
        if v5: stamp(a, 5)
        a("s_waitcnt vmcnt(8)")
        ap_stage(a, vGS[0], v5, 2)
        if v5: ep_read(a)
        a(f"v_add_u32 v{vTe}, 512, v{vTe}")
        a("s_waitcnt lgkmcnt(0)")
        a.label(f"K2_LOOP{sfx}")
        for k in range(3):
            tile_body(a, k, v5, "K2_LOOP_DONE")
        a(f"s_branch K2_LOOP{sfx}")
        for blk in deferred: blk()
        deferred.clear()
    a.label("K2_LOOP_DONE")
    a("s_setprio 0")
    a("s_waitcnt vmcnt(0)")
    stamp(a, 6)
    a("s_waitcnt lgkmcnt(0)")
    a("s_barrier")
    a(f"s_add_u32 s{sWIN}, s{sWIN}, {CAPE}")
    a(f"s_cmp_lt_u32 s{sWIN}, s{sTOT}")
    a("s_cbranch_scc0 K2_EPI")
    a("s_cmp_ge_u32 s28, 8")
    a("s_cbranch_scc1 K2_G_WINDOW")
    a(f"v_lshrrev_b32 v{vW}, 1, v0")
    a(f"v_lshlrev_b32 v{vOA}, 10, v{vW}")
    a(f"s_lshl_b32 s{sTMP}, s{sBIN}, 2")
    a(f"s_add_u32 s{sTMP}, s{sTMP}, {OFFS_OFF}")
    a(f"buffer_load_dword v{vOf}, v{vOA}, {sr(sWS,4)}, s{sTMP} offen")
    a(f"v_and_b32 v{vSub}, 1, v0")
    a(f"v_mul_u32_u24 v{vSg}, {CE}, v{vW}")
    a(f"v_cmp_gt_u32 vcc, 250, v{vW}")
    a(f"v_mov_b32 v{vPw}, v121")
    if not ECOPY: a(f"v_mul_u32_u24 v{vWb}, {CE*32}, v{vW}")
    a("s_waitcnt vmcnt(0)")
    a(f"v_lshrrev_b32 v{vC}, 16, v{vOf}")
    a(f"v_and_b32 v{vOf}, 0xffff, v{vOf}")
    a(f"v_cndmask_b32 v{vC}, 0, v{vC}, vcc")
    a(f"v_add_u32 v{vSg}, v{vSg}, v{vOf}")
    a(f"v_sub_u32 v{vKB}, s{sWIN}, v{vPw}")
    a(f"v_max_i32 v{vKB}, 0, v{vKB}")
    entry_addr()
    a(f"v_lshl_add_u32 v{vEA}, v{vKB}, 2, v{vEA}")
    a(f"v_lshl_add_u32 v{vEB}, v{vKB}, 2, v{vEB}")
    a(f"s_mov_b32 s{sTMP+4}, {ENT_OFF}")
    entry_loads(sTMP+4)
    a("s_waitcnt vmcnt(0)")
    a("s_branch K2_WINDOW")
    a.label("K2_EPI")
    a("v_cmp_gt_u32 vcc, 640, v0")
    a("s_and_saveexec_b64 s[54:55], vcc")
    a("s_cbranch_execz K2_EXIT")
    a("v_lshlrev_b32 v1, 6, v0")
    for i in range(4):
        a(f"ds_read_b128 {vr(32+4*i,4)}, v1 offset:{L_AGG+16*i}")
    a(f"s_mov_b32 s{sTMP}, {hex(C_2MK)}")
    a(f"s_mov_b32 s{sTMP+1}, {hex(NEG_LOG2E)}")
    a("s_waitcnt lgkmcnt(0)")
    for i in range(8):
        a(f"v_cvt_f32_f64 v{8+i}, v[{32+2*i}:{33+2*i}]")
    for i in range(8):
        a(f"v_mul_f32 v{8+i}, s{sTMP}, v{8+i}")
    for i in range(8):
        a(f"v_mul_f32 v{16+i}, s{sTMP+1}, v{8+i}")
    for i in range(8):
        a(f"v_exp_f32 v{16+i}, v{16+i}")
    for i in range(8):
        a(f"v_add_f32 v{16+i}, 1.0, v{16+i}")
    for i in range(8):
        a(f"v_rcp_f32 v{16+i}, v{16+i}")
    a("s_nop 0")
    for i in range(8):
        a(f"v_mul_f32 v{8+i}, v{8+i}, v{16+i}")
    for i in range(4):
        a(f"v_cvt_pk_bf16_f32 v{24+i}, v{8+2*i}, v{9+2*i}")
    a("v_lshlrev_b32 v2, 4, v0")
    a(f"s_mul_i32 s{sTMP}, s{sBIN}, {NPB*256}")
    a(f"buffer_store_dwordx4 v[24:27], v2, {sr(sO,4)}, s{sTMP} offen")
    if "diag" in OPT:
        a("s_waitcnt vmcnt(0)")
        diag_mark(a, 1, False, 0)
    if "stamp" in OPT:
        a("s_waitcnt vmcnt(0)")
        stamp(a, 7)
        a("s_memrealtime s[82:83]")
        a("s_waitcnt lgkmcnt(0)")
        stamp_out(a, 10)
    a.label("K2_EXIT")
    a("s_endpgm")

HEADER = f"""; EGC edge-gated message passing: out = silu(x@U + segsum_dst(sigmoid([x_dst,x_src,e]@G) * (x@V)[src]))
; launch 1 (prep): per-node tables Q'=-log2e*(x@B), H=x@V; edge binning by destination; weight fragment images
; @launch kernel=egc_prep_kernel grid=({K1_WGS},1,1) block=(256,1,1) lds={K1_LDS}
; @launch kernel=egc_main_kernel grid=({NB},1,1) block=(1024,1,1) lds={K2_LDS}
.amdgcn_target "amdgcn-amd-amdhsa--gfx950"
.text
"""

def kd(name, vgpr, sgpr, denorm=False):
    extra = "  .amdhsa_float_denorm_mode_32 3\n" if denorm else ""
    return f""".amdhsa_kernel {name}
  .amdhsa_next_free_vgpr {vgpr}
  .amdhsa_next_free_sgpr {sgpr}
  .amdhsa_accum_offset {((vgpr+3)//4)*4}
  .amdhsa_group_segment_fixed_size 0
  .amdhsa_kernarg_size 80
  .amdhsa_user_sgpr_count 2
  .amdhsa_user_sgpr_kernarg_segment_ptr 1
  .amdhsa_system_sgpr_workgroup_id_x 1
{extra}.end_amdhsa_kernel
"""

def k3(a, which):
    a.raw(".globl egc_diag_kernel")
    a.raw(".p2align 8")
    a.raw(".type egc_diag_kernel,@function")
    a.label("egc_diag_kernel")
    a("s_cmp_ge_u32 s2, 1")
    a("s_cbranch_scc1 K3_END")
    a("s_load_dwordx2 s[4:5], s[0:1], 64")
    a("s_waitcnt lgkmcnt(0)")
    a("s_sub_u32 s4, s4, 1024")
    a("s_subb_u32 s5, s5, 0")
    a("s_load_dwordx2 s[6:7], s[4:5], 0")
    a("s_load_dwordx2 s[8:9], s[4:5], 512")
    a("s_memrealtime s[10:11]")
    a("s_waitcnt lgkmcnt(0)")
    a("s_not_b32 s6, s6")
    a("s_not_b32 s8, s8")
    if which == 1: a("s_sub_u32 s12, s7, s6")
    if which == 2: a("s_sub_u32 s12, s8, s7")
    if which == 3: a("s_sub_u32 s12, s9, s8")
    if which == 4: a("s_sub_u32 s12, s10, s9")
    if which == 0: a("s_mov_b32 s12, 0")
    a("s_lshl_b32 s12, s12, 2")
    a("s_min_u32 s12, s12, 20000")
    a.label("K3_SPIN")
    a("s_memrealtime s[14:15]")
    a("s_waitcnt lgkmcnt(0)")
    a("s_sub_u32 s14, s14, s10")
    a("s_cmp_lt_u32 s14, s12")
    a("s_cbranch_scc1 K3_SPIN")
    a.label("K3_END")
    a("s_endpgm")

def main():
    a = Asm()
    a.raw(".globl egc_prep_kernel")
    k1(a)
    a.raw(".globl egc_main_kernel")
    k2(a)
    hdr = HEADER
    which = [int(o[4:]) for o in OPT if o.startswith("dsel")]
    if which:
        k3(a, which[0])
        hdr = hdr.replace(".amdgcn_target", "; @launch kernel=egc_diag_kernel grid=(1,1,1) block=(64,1,1) lds=0\n.amdgcn_target", 1)
    out = hdr + a.text()
    out += '.section .rodata,"a"\n.p2align 6\n' + kd("egc_prep_kernel", 104 if ("stamp1" in OPT or "diag" in OPT) else 96, 96) + ".p2align 6\n" + kd("egc_main_kernel", 128, 96, True) + (".p2align 6\n" + kd("egc_diag_kernel", 8, 32) if which else "")
    path = sys.argv[1] if len(sys.argv) > 1 else f"cdna_kernels/{NAME}.s"
    open(path, "w").write(out)
    print("wrote", path, len(out), "bytes")

if __name__ == "__main__":
    main()
```

```python
import sys, struct, os
OPT = set(os.environ.get("OPT","").split(","))

NAME = "gather_scatter__edge_featured_mpnn_egc__graph"
N = 10000; E = 320000
NB = 250; NPB = 40
NC = 250; CE = 1280
KSH = 26
def f2u(x): return struct.unpack('<I', struct.pack('<f', x))[0]
NEG_LOG2E = f2u(-1.4426950408889634)
C_2MK = f2u(2.0 ** -KSH)
C_2PK = f2u(2.0 ** KSH)
BF16_NEGK = 0xC1D0
assert KSH == 26

HALF_STRIDE = (N + 1) * 256
T_OFF = 0;            T_BYTES = 2 * HALF_STRIDE
ENT_OFF = 0x500000
OFFS_OFF = 0x640000
WF_OFF = 0x680000
CF_OFF = 0x690000
E2_OFF = 0x800000
WS_END = 0x1200000

NT_WG = 314
BIN0 = NT_WG
WF0 = BIN0 + NC
CF0 = WF0 + 8
K1_WGS = CF0 + 1
K1_LDS = (7168 + 40960) if 'ecopy' in OPT else 128 * 288

class Asm:
    def __init__(self): self.lines = []
    def __call__(self, s):
        for l in s.split("\n"):
            l = l.strip()
            if l: self.lines.append("    " + l)
    def label(self, n): self.lines.append(n + ":")
    def raw(self, s): self.lines.append(s)
    def text(self): return "\n".join(self.lines) + "\n"

def vr(i, n=1): return f"v{i}" if n == 1 else f"v[{i}:{i+n-1}]"
def sr(i, n=1): return f"s{i}" if n == 1 else f"s[{i}:{i+n-1}]"

def srd(a, d, base, nbytes):
    a(f"s_mov_b32 s{d}, s{base}")
    a(f"s_and_b32 s{d+1}, s{base+1}, 0xffff")
    a(f"s_mov_b32 s{d+2}, {nbytes}")
    a(f"s_mov_b32 s{d+3}, 0x00020000")

def stamp1(a, i):
    if "stamp1" in OPT:
        a(f"s_memrealtime s[{64+2*i}:{65+2*i}]")
        a("s_waitcnt lgkmcnt(0)")
def stamp1_out(a, n, ws_srd, wgreg, lbl):
    if "stamp1" in OPT:
        a("s_waitcnt vmcnt(0)")
        stamp1(a, n-1)
        a("v_readfirstlane_b32 s60, v0")
        a("s_cmp_eq_u32 s60, 0")
        a(f"s_cbranch_scc0 {lbl}")
        a(f"s_mov_b32 s{ws_srd+2}, 0x1400000")
        for i in range(n):
            a(f"v_mov_b32 v100, s{64+2*i}")
            a(f"v_mov_b32 v101, s{65+2*i}")
            a(f"s_lshl_b32 s60, s{wgreg}, 7")
            a(f"s_add_u32 s60, s60, {0x1310000 + 8*i}")
            a("v_mov_b32 v102, 0")
            a(f"buffer_store_dwordx2 v[100:101], v102, s[{ws_srd}:{ws_srd+3}], s60 offen")
            a("s_nop 1")
        a.label(lbl)

def diag_mark(a, slot, inv, dbgreg):
    if "diag" not in OPT: return
    dl = f"DIAG_{slot}_{len(a.lines)}"
    a("s_and_b32 s84, s2, 15")
    a("s_cmp_eq_u32 s84, 0")
    a(f"s_cbranch_scc0 {dl}")
    a("v_mbcnt_lo_u32_b32 v98, -1, 0") if False else None
    a("v_readfirstlane_b32 s84, v0")
    a("s_nop 3")
    a("s_cmp_lt_u32 s84, 64")
    a(f"s_cbranch_scc0 {dl}")
    a("s_memrealtime s[84:85]")
    a(f"s_load_dwordx2 s[86:87], s[0:1], 64")
    a("s_waitcnt lgkmcnt(0)")
    if inv: a("s_not_b32 s84, s84")
    a("s_mov_b64 s[88:89], exec") if False else None
    a("v_mov_b32 v99, s84")
    a(f"v_mov_b32 v98, {4*slot}")
    a("s_mov_b64 exec, 1")
    a("global_atomic_umax v98, v99, s[86:87]")
    a("s_mov_b64 exec, -1")
    a.label(dl)

def wave_scan(a, v):
    for sh in (1, 2, 4, 8):
        a("s_nop 1")
        a(f"v_add_u32_dpp v{v}, v{v}, v{v} row_shr:{sh} row_mask:0xf bank_mask:0xf bound_ctrl:1")
    a("s_nop 1")
    a(f"v_add_u32_dpp v{v}, v{v}, v{v} row_bcast:15 row_mask:0xa bank_mask:0xf")
    a("s_nop 1")
    a(f"v_add_u32_dpp v{v}, v{v}, v{v} row_bcast:31 row_mask:0xc bank_mask:0xf")

def k1_table(a):
    a.label("K1_TABLE")
    stamp1(a, 0)
    a("s_and_b32 s3, s2, 1")
    a("s_lshr_b32 s28, s2, 1")
    srd(a, 20, 16, 69632)
    srd(a, 36, 14, 32768)
    srd(a, 24, 4, N * 256)
    srd(a, 32, 18, 2 * HALF_STRIDE)
    a("s_lshl_b32 s29, s3, 7")
    a("s_add_u32 s30, s29, 32768")
    a("v_lshrrev_b32 v1, 3, v0")
    a("v_and_b32 v2, 7, v0")
    a("v_lshlrev_b32 v3, 8, v1")
    a("v_lshl_add_u32 v3, v2, 4, v3")
    for i in range(4):
        a(f"buffer_load_dwordx4 {vr(8+4*i,4)}, v3, s[20:23], s30 offen")
        if i < 3: a("s_add_u32 s30, s30, 8192")
    for i in range(4):
        a(f"buffer_load_dwordx4 {vr(24+4*i,4)}, v3, s[36:39], s29 offen")
        if i < 3: a("s_add_u32 s29, s29, 8192")
    a("v_mul_u32_u24 v7, 288, v1")
    a("v_lshl_add_u32 v7, v2, 4, v7")
    a("v_and_b32 v2, 15, v0")
    a("v_bfe_u32 v3, v0, 4, 2")
    a("v_lshrrev_b32 v4, 6, v0")
    a("s_lshl_b32 s31, s28, 6")
    a("v_lshl_add_u32 v5, v4, 4, s31")
    a("v_add_u32 v6, v5, v2")
    a("v_lshlrev_b32 v6, 8, v6")
    a("v_lshl_add_u32 v6, v3, 4, v6")
    for ks in range(4):
        a(f"buffer_load_dwordx4 {vr(40+4*ks,4)}, v6, s[24:27], 0 offen offset:{64*ks}")
    for i in range(8):
        a(f"s_waitcnt vmcnt({11-i})")
        a(f"ds_write_b128 v7, {vr(8+4*i,4)} offset:{9216*(i&3) + 128*(i>>2)}")
    a("v_lshrrev_b32 v7, 2, v2")
    a("v_lshl_add_u32 v7, v3, 3, v7")
    a("v_mul_u32_u24 v7, 288, v7")
    a("v_and_b32 v1, 3, v0")
    a("v_lshl_add_u32 v7, v1, 3, v7")
    a("v_lshl_add_u32 v1, v3, 2, v5")
    a("v_lshlrev_b32 v6, 8, v1")
    a("v_lshl_add_u32 v6, v2, 4, v6")
    a(f"s_mul_i32 s3, s3, {HALF_STRIDE}")
    a("s_waitcnt vmcnt(0) lgkmcnt(0)")
    stamp1(a, 1)
    a("s_barrier")
    stamp1(a, 2)
    ACC = 64
    BF = [8, 24]
    def reads(t):
        b = BF[t & 1]
        for ks in range(4):
            a(f"ds_read_b64_tr_b16 {vr(b+4*ks,2)}, v7 offset:{9216*ks + 32*t}")
            a(f"ds_read_b64_tr_b16 {vr(b+4*ks+2,2)}, v7 offset:{9216*ks + 32*t + 1152}")
    reads(0)
    for t in range(8):
        if t < 7:
            reads(t + 1)
            a("s_waitcnt lgkmcnt(8)")
        else:
            a("s_waitcnt lgkmcnt(0)")
        b = BF[t & 1]
        for ks in range(4):
            c = "0" if ks == 0 else vr(ACC+4*t, 4)
            a(f"v_mfma_f32_16x16x32_bf16 {vr(ACC+4*t,4)}, {vr(40+4*ks,4)}, {vr(b+4*ks,4)}, {c}")
    stamp1(a, 3)
    a("s_mov_b32 s40, 0x00800000")
    a("s_mov_b32 s41, 0x7fff0000")
    a(f"s_mov_b32 s42, {hex(NEG_LOG2E)}")
    a(f"s_movk_i32 s43, {N}")
    a("s_nop 6")
    for r in range(4):
        W = 8 + 8 * (r & 1)
        for t in range(4):
            a(f"v_mul_f32 v{ACC+4*t+r}, s42, v{ACC+4*t+r}")
        for p in range(4):
            lo, hi = ACC + 4*(2*p) + r, ACC + 4*(2*p+1) + r
            a(f"v_cvt_pk_bf16_f32 v{W+p}, v{lo}, v{hi}")
            a(f"v_max_f32_e64 v{hi}, |v{hi}|, s40")
        for p in range(4):
            hi = ACC + 4*(2*p+1) + r
            a(f"v_add_u32 v{hi}, 0x8000, v{hi}")
        for p in range(4):
            hi = ACC + 4*(2*p+1) + r
            a(f"v_sub_u32_sdwa v{hi}, v{hi}, v{W+p} dst_sel:DWORD dst_unused:UNUSED_PAD src0_sel:DWORD src1_sel:WORD_0")
        a(f"v_add_u32 v2, {r}, v1")
        a("v_cmp_ge_u32 vcc, s43, v2")
        for p in range(4):
            hi = ACC + 4*(2*p+1) + r
            a(f"v_bfi_b32 v{W+p}, s41, v{hi}, v{W+p}")
        a("s_and_saveexec_b64 s[44:45], vcc")
        a(f"s_cbranch_execz K1_TAB_SKIP{r}")
        a(f"buffer_store_dwordx4 {vr(W,4)}, v6, s[32:35], s3 offen offset:{256*r} sc1")
        a.label(f"K1_TAB_SKIP{r}")
        a("s_mov_b64 exec, s[44:45]")
    stamp1(a, 4)
    stamp1(a, 5)
    stamp1_out(a, 7, 32, 2, "K1_ST_TAB")
    if "diag" in OPT:
        a("s_waitcnt vmcnt(0)")
        diag_mark(a, 1, False, 0)
    a("s_endpgm")

def k1_bin(a):
    HIST, OFF2, SORT, ESORT = 0, 1024, 2048, 7168
    a.label("K1_BIN")
    stamp1(a, 0)
    a(f"s_sub_u32 s3, s2, {BIN0}")
    srd(a, 20, 8, E * 4)
    srd(a, 24, 10, E * 4)
    srd(a, 28, 18, WS_END)
    a("v_lshlrev_b32 v1, 2, v0")
    a("s_mul_i32 s32, s3, 5120")
    a("v_mov_b32 v2, 0")
    a(f"ds_write_b32 v1, v2 offset:{HIST}")
    DST, SRC = 8, 16
    for m in range(5):
        a(f"buffer_load_dword v{DST+m}, v1, s[24:27], s32 offen offset:{1024*m if m<4 else 0}" if m < 4 else
          f"s_add_u32 s33, s32, 4096\nbuffer_load_dword v{DST+m}, v1, s[24:27], s33 offen")
    for m in range(5):
        a(f"buffer_load_dword v{SRC+m}, v1, s[20:23], s32 offen offset:{1024*m}" if m < 4 else
          f"buffer_load_dword v{SRC+m}, v1, s[20:23], s33 offen")
    ECOPY = "ecopy" in OPT
    NE = 10 if ECOPY else 0
    srd(a, 40, 6, E * 32)
    a("v_lshlrev_b32 v6, 5, v0")
    a("s_mul_i32 s44, s3, 40960")
    ER = 56
    if "noeload" in OPT: a("s_mov_b32 s42, 0")
    NT = " nt" if "ent" in OPT else ""
    ELATE = "elate" in OPT and ECOPY
    def e_loads():
        for m in range(5 if ECOPY else 0):
            a(f"buffer_load_dwordx4 {vr(ER+8*m,4)}, v6, s[40:43], s44 offen{NT}")
            a(f"buffer_load_dwordx4 {vr(ER+8*m+4,4)}, v6, s[40:43], s44 offen offset:16{NT}")
            if m < 4: a("s_add_u32 s44, s44, 8192")
    if not ELATE: e_loads()
    NE0 = 0 if ELATE else NE
    a("s_mov_b32 s34, 52429")
    a("s_waitcnt lgkmcnt(0)")
    a("s_barrier")
    BINR, RANK = 24, 32
    if "stamp1" in OPT:
        a(f"s_waitcnt vmcnt({9+NE})")
        stamp1(a, 1)
    a("v_mov_b32 v3, 1")
    for m in range(5):
        a(f"s_waitcnt vmcnt({9+NE0-m})" if not (ELATE and m > 0) else "")
        if ELATE and m == 0:
            a("s_waitcnt vmcnt(5)")
            e_loads()
        a(f"v_mul_u32_u24 v{BINR+m}, s34, v{DST+m}")
        a(f"v_lshrrev_b32 v{BINR+m}, 21, v{BINR+m}")
        a(f"v_mul_u32_u24 v4, 40, v{BINR+m}")
        a(f"v_sub_u32 v{DST+m}, v{DST+m}, v4")
        a(f"v_lshlrev_b32 v{BINR+m}, 2, v{BINR+m}")
        a(f"ds_add_rtn_u32 v{RANK+m}, v{BINR+m}, v3 offset:{HIST}")
    for m in range(5):
        a(f"s_waitcnt vmcnt({4+NE-m})")
        a(f"v_lshl_or_b32 v{SRC+m}, v{DST+m}, 14, v{SRC+m}")
        if not ECOPY:
            a(f"v_add_u32 v4, {256*m}, v0")
            a(f"v_lshl_or_b32 v{SRC+m}, v4, 20, v{SRC+m}")
    a("s_waitcnt lgkmcnt(0)")
    a("s_barrier")
    stamp1(a, 2)
    a("v_and_b32 v5, 63, v0")
    a("v_lshlrev_b32 v5, 4, v5")
    a(f"ds_read_b128 v[40:43], v5 offset:{HIST}")
    a("s_waitcnt lgkmcnt(0)")
    a("v_add_u32 v44, v40, v41")
    a("v_add_u32 v45, v42, v43")
    a("v_add_u32 v46, v44, v45")
    a("v_mov_b32 v47, v46")
    wave_scan(a, 47)
    a("v_sub_u32 v48, v47, v46")
    a("v_add_u32 v49, v48, v40")
    a("v_add_u32 v50, v48, v44")
    a("v_add_u32 v51, v50, v42")
    a(f"ds_write_b128 v5, v[48:51] offset:{OFF2}")
    a("v_readfirstlane_b32 s35, v0")
    a("s_lshl_b32 s36, s3, 10")
    a(f"s_add_u32 s36, s36, {OFFS_OFF}")
    a("s_cmp_ge_u32 s35, 64")
    a("s_cbranch_scc1 K1_BIN_NOPUB")
    for i in range(4):
        a(f"v_lshl_or_b32 v{52+i}, v{40+i}, 16, v{48+i}")
    a("buffer_store_dwordx4 v[52:55], v5, s[28:31], s36 offen sc1")
    a.label("K1_BIN_NOPUB")
    a("s_waitcnt lgkmcnt(0)")
    for m in range(5):
        a(f"ds_read_b32 v{40+m}, v{BINR+m} offset:{OFF2}")
    for m in range(5):
        a(f"s_waitcnt lgkmcnt({4-m})")
        a(f"v_add_lshl_u32 v{40+m}, v{40+m}, v{RANK+m}, 2")
        a(f"ds_write_b32 v{40+m}, v{SRC+m} offset:{SORT}")
    stamp1(a, 3)
    for m in range(5 if ECOPY else 0):
        a(f"v_lshlrev_b32 v{40+m}, 3, v{40+m}")
        a(f"s_waitcnt vmcnt({9 - 2*m})")
        a(f"ds_write_b128 v{40+m}, {vr(ER+8*m,4)} offset:{ESORT}")
        a(f"s_waitcnt vmcnt({8 - 2*m})")
        a(f"ds_write_b128 v{40+m}, {vr(ER+8*m+4,4)} offset:{ESORT+16}")
    a("s_waitcnt lgkmcnt(0)")
    a("s_barrier")
    stamp1(a, 4)
    a("v_lshlrev_b32 v5, 4, v0")
    a(f"ds_read_b128 v[40:43], v5 offset:{SORT}")
    a(f"s_add_u32 s36, s32, {ENT_OFF}")
    a("v_cmp_gt_u32 vcc, 64, v0")
    a("s_waitcnt lgkmcnt(0)")
    a("buffer_store_dwordx4 v[40:43], v5, s[28:31], s36 offen sc1")
    a("s_and_saveexec_b64 s[38:39], vcc")
    a("s_cbranch_execz K1_BIN_END")
    a(f"ds_read_b128 v[44:47], v5 offset:{SORT+4096}")
    a("s_add_u32 s36, s36, 4096")
    a("s_waitcnt lgkmcnt(0)")
    a("buffer_store_dwordx4 v[44:47], v5, s[28:31], s36 offen sc1")
    a.label("K1_BIN_END")
    a("s_mov_b64 exec, -1")
    a("s_mul_i32 s36, s3, 40960")
    a(f"s_add_u32 s36, s36, {E2_OFF}")
    for i in range(NE):
        a(f"ds_read_b128 {vr(ER+4*i,4)}, v5 offset:{ESORT + 4096*i}")
    for i in range(NE):
        a(f"s_waitcnt lgkmcnt({9-i})")
        pol = "" if "eplain" in OPT else (" nt" if "estnt" in OPT else " sc1")
        if "noestore" not in OPT: a(f"buffer_store_dwordx4 {vr(ER+4*i,4)}, v5, s[28:31], s36 offen{pol}")
        if i < 9: a("s_add_u32 s36, s36, 4096")
    stamp1(a, 5)
    stamp1_out(a, 7, 28, 2, "K1_ST_BIN")
    if "diag" in OPT:
        a("s_waitcnt vmcnt(0)")
        diag_mark(a, 1, False, 0)
    a("s_endpgm")

def k1_wf(a):
    a.label("K1_WF")
    a(f"s_sub_u32 s3, s2, {WF0}")
    a("v_lshrrev_b32 v1, 6, v0")
    a("s_nop 0")
    a("v_readfirstlane_b32 s28, v1")
    a("s_lshl_b32 s3, s3, 2")
    a("s_add_u32 s3, s3, s28")
    a("s_lshr_b32 s29, s3, 1")
    a("s_and_b32 s30, s3, 1")
    a("s_cmp_lt_u32 s29, 8")
    a("s_cselect_b32 s20, s16, s12")
    a("s_cselect_b32 s21, s17, s13")
    a("s_and_b32 s21, s21, 0xffff")
    a("s_mov_b32 s22, 32768")
    a("s_mov_b32 s23, 0x00020000")
    srd(a, 24, 18, WS_END)
    a("v_and_b32 v2, 15, v0")
    a("v_bfe_u32 v3, v0, 4, 2")
    a("s_and_b32 s31, s29, 7")
    a("s_lshl_b32 s31, s31, 5")
    a("s_lshl_b32 s32, s30, 14")
    a("s_add_u32 s31, s31, s32")
    a("v_lshlrev_b32 v4, 11, v3")
    a("v_lshl_add_u32 v4, v2, 1, v4")
    a("s_add_u32 s33, s31, 8192")
    for f in range(2):
        for m in range(8):
            a(f"buffer_load_ushort v{8+8*f+m}, v4, s[20:23], s{31 if f==0 else 33} offen offset:{256*m}")
    a("v_and_b32 v5, 63, v0")
    a("v_lshlrev_b32 v5, 4, v5")
    a("s_lshl_b32 s34, s3, 11")
    a(f"s_add_u32 s34, s34, {WF_OFF}")
    a("s_cmp_lt_u32 s29, 8")
    a(f"s_cselect_b32 s35, 1.0, {hex(C_2PK)}")
    a("s_mov_b32 s36, 0x07060302")
    for f in range(2):
        a(f"s_waitcnt vmcnt({8 if f==0 else 1})")
        for m in range(8):
            a(f"v_lshlrev_b32 v{8+8*f+m}, 16, v{8+8*f+m}")
            a(f"v_mul_f32 v{8+8*f+m}, s35, v{8+8*f+m}")
        for p in range(4):
            a(f"v_perm_b32 v{24+4*f+p}, v{8+8*f+2*p+1}, v{8+8*f+2*p}, s36")
        a(f"buffer_store_dwordx4 {vr(24+4*f,4)}, v5, s[24:27], s34 offen offset:{1024*f} sc1")
    a("s_endpgm")

def k1_cf(a):
    a.label("K1_CF")
    a("v_lshrrev_b32 v1, 6, v0")
    a("s_nop 0")
    a("v_readfirstlane_b32 s28, v1")
    srd(a, 20, 16, 69632)
    srd(a, 24, 18, WS_END)
    a("v_and_b32 v2, 15, v0")
    a("v_bfe_u32 v3, v0, 4, 2")
    a("v_and_b32 v4, 1, v3")
    a("v_lshlrev_b32 v4, 11, v4")
    a("v_lshl_add_u32 v4, v2, 1, v4")
    a("s_lshl_b32 s29, s28, 6")
    a("s_add_u32 s29, s29, 65536")
    for f in range(2):
        for m in range(8):
            a(f"buffer_load_ushort v{8+8*f+m}, v4, s[20:23], s29 offen offset:{256*m + 32*f}")
    a("v_and_b32 v5, 63, v0")
    a("v_lshlrev_b32 v5, 4, v5")
    a("s_lshl_b32 s34, s28, 11")
    a(f"s_add_u32 s34, s34, {CF_OFF}")
    a(f"s_mov_b32 s30, {hex(NEG_LOG2E)}")
    a("v_cmp_gt_u32 vcc, 2, v3")
    a("v_cmp_eq_u32 s[32:33], 2, v3")
    a(f"v_mov_b32 v6, {hex(BF16_NEGK)}")
    a("v_mov_b32 v7, 0")
    a("s_waitcnt vmcnt(0)")
    for f in range(2):
        for m in range(8):
            a(f"v_lshlrev_b32 v{8+8*f+m}, 16, v{8+8*f+m}")
            a(f"v_mul_f32 v{8+8*f+m}, s30, v{8+8*f+m}")
        for p in range(4):
            a(f"v_cvt_pk_bf16_f32 v{24+4*f+p}, v{8+8*f+2*p}, v{8+8*f+2*p+1}")
        a(f"v_cndmask_b32 v30, v7, v6, s[32:33]" if False else "")
        a(f"v_cndmask_b32 v32, v7, v6, s[32:33]")
        a(f"v_cndmask_b32 v{24+4*f+0}, v7, v{24+4*f+0}, vcc")
        a(f"v_cndmask_b32 v{24+4*f+1}, v7, v{24+4*f+1}, vcc")
        a(f"v_cndmask_b32 v{24+4*f+2}, v32, v{24+4*f+2}, vcc")
        a(f"v_cndmask_b32 v{24+4*f+3}, v7, v{24+4*f+3}, vcc")
        a(f"buffer_store_dwordx4 {vr(24+4*f,4)}, v5, s[24:27], s34 offen offset:{1024*f} sc1")
    a("s_cmp_eq_u32 s28, 0")
    a("s_cbranch_scc0 K1_CF_END")
    a("v_lshrrev_b32 v8, 2, v2")
    a("v_subrev_u32 v9, 2, v3")
    a("v_lshlrev_b32 v9, 1, v9")
    a("v_mov_b32 v10, 0x3f803f80")
    a("v_cmp_eq_u32 vcc, v8, v9")
    a("v_add_u32 v9, 1, v9")
    a("v_cmp_eq_u32 s[36:37], v8, v9")
    a("v_cndmask_b32 v12, v7, v10, vcc")
    a("v_mov_b32 v11, 0x3f80")
    a("v_cndmask_b32 v13, v7, v10, s[36:37]")
    a("v_cndmask_b32 v14, v7, v11, s[32:33]")
    a("v_mov_b32 v15, 0")
    a(f"s_mov_b32 s34, {CF_OFF + 8192}")
    a("buffer_store_dwordx4 v[12:15], v5, s[24:27], s34 offen sc1")
    a.label("K1_CF_END")
    a("s_endpgm")

def k1(a):
    a.raw(".p2align 8")
    a.raw(".type egc_prep_kernel,@function")
    a.label("egc_prep_kernel")
    a(f"s_cmp_ge_u32 s2, {K1_WGS}")
    a("s_cbranch_scc1 K1_EXIT")
    diag_mark(a, 0, True, 0)
    a("s_load_dwordx4 s[4:7], s[0:1], 0")
    a("s_load_dwordx4 s[8:11], s[0:1], 16")
    a("s_load_dwordx4 s[12:15], s[0:1], 32")
    a("s_load_dwordx2 s[16:17], s[0:1], 48")
    a("s_load_dwordx2 s[18:19], s[0:1], 72")
    a("s_waitcnt lgkmcnt(0)")
    a(f"s_cmp_lt_u32 s2, {BIN0}")
    a("s_cbranch_scc1 K1_TABLE")
    a(f"s_cmp_lt_u32 s2, {WF0}")
    a("s_cbranch_scc1 K1_BIN")
    a(f"s_cmp_lt_u32 s2, {CF0}")
    a("s_cbranch_scc1 K1_WF")
    a("s_branch K1_CF")
    a.label("K1_EXIT")
    a("s_endpgm")
    k1_table(a)
    k1_bin(a)
    k1_wf(a)
    k1_cf(a)

CAPE = 1500
SCAP = 1632
L_CNT = 0; L_TOT = 256; L_TILES = 264; L_FLAG = 268
P_RANGE = 60.0
L_ROW = 512
L_GN = L_ROW + SCAP * 4
L_EO = L_GN + SCAP * 4
L_PPK = L_EO + SCAP * 4
L_CS = L_PPK + 20480
L_AGG = L_CS + 9216
L_XS = L_AGG + 40960
L_ES = L_XS + 48 * 272
L_RAW = L_ES
K2_LDS = L_ES + SCAP * 32
assert K2_LDS <= 163840 and L_AGG + 512 < 65536

QH = [8, 24, 40]; D = 56; B = 72; A = 88; U = 92; T = 100; R = 104; G = 108
vGS = [111, 112, 113]; vTa = 114; vTe = 115; vJ16 = 116; vJ4 = 117; vTa0 = 118; vTe0 = 119; vCS = 120
vDUM = 7
vTd = 122; vEo = 123; vH16 = 5; vEPa = 1; vJ16h = 6; EP = 124
vK66 = 2; vQ16 = 3; vLH = 4
sX = 12; sE = 16; sO = 20; sWS = 24
sWV = 28
sLO = 30
sHI = 32
sCC = 34
sN = 36; sNIT = 37; sL = 38
sLI = 39
sAI = 40
sHL = 41
sHG = 42
sTOT = 43
sWIN = 44
sDI = 45
sM0 = 62
sBIN = 29
sE2 = 63
sINC = 20
sLM3 = 43+48
sFLAG = 90
sNM2 = 89
sINCP = 92
sM = 46
sTMP = 56

STAMP_OFF = 0x1300000
def fstamp(a, i):
    if "fine" in OPT:
        a(f"s_memtime s[{64+2*i}:{65+2*i}]")
        a("s_waitcnt lgkmcnt(0)")
def gstamp(a, i):
    if "gst" in OPT:
        a(f"s_memtime s[{64+2*i}:{65+2*i}]")
        a("s_waitcnt lgkmcnt(0)")
def stamp(a, i):
    if ("fine" in OPT or "gst" in OPT) and i in (1,2,3,4,5,6): return
    if "stamp" in OPT:
        a(f"s_memtime s[{64+2*i}:{65+2*i}]")
        a("s_waitcnt lgkmcnt(0)")
def stamp_out(a, n):
    if "stamp" in OPT:
        a(f"s_cmp_eq_u32 s28, {8 if 'gst' in OPT else 0}")
        a("s_cbranch_scc0 STAMP_SKIP")
        a("s_mov_b64 exec, -1")
        a("s_mov_b32 s26, 0x1400000")
        for i in range(n):
            a(f"v_mov_b32 v100, s{64+2*i}")
            a(f"v_mov_b32 v101, s{65+2*i}")
            a(f"s_lshl_b32 s60, s2, 7")
            a(f"s_add_u32 s60, s60, {STAMP_OFF + 8*i}")
            a("v_mov_b32 v102, 0")
            a(f"buffer_store_dwordx2 v[100:101], v102, {sr(sWS,4)}, s60 offen")
            a("s_nop 1")
        a.label("STAMP_SKIP")
def P2(x): return f"v[{x}:{x+1}]"

def pair_code(ta, tb, h, shl, vG, v5):
    s = []
    if shl:
        for r in range(4):
            s.append(f"v_lshlrev_b32 v{h[r]}, 16, v{h[r]}")
            s.append(f"v_lshlrev_b32 v{h[r]+1}, 16, v{h[r]+1}")
    if v5:
        ep = EP + (2 if shl else 0)
        for r in range(4):
            s.append(f"v_exp_f32 v{U+2*r}, v{D+4*ta+r}")
            s.append(f"v_exp_f32 v{U+2*r+1}, v{D+4*tb+r}")
        if not shl: s.append("s_waitcnt lgkmcnt(3)")
        for r in range(4):
            s.append(f"v_pk_fma_f32 {P2(U+2*r)}, {P2(U+2*r)}, {P2(ep)}, s[{sCC}:{sCC+1}] clamp")
    else:
        for r in range(4):
            s.append(f"v_exp_f32_e64 v{U+2*r}, v{D+4*ta+r} clamp")
            s.append(f"v_exp_f32_e64 v{U+2*r+1}, v{D+4*tb+r} clamp")
        for r in range(4):
            s.append(f"v_pk_add_f32 {P2(U+2*r)}, {P2(U+2*r)}, s[{sCC}:{sCC+1}]")
    d0, d1, d2, d3 = U, U+2, U+4, U+6
    s += [f"v_pk_mul_f32 {P2(T)}, {P2(h[0])}, {P2(d1)}",
          f"v_pk_mul_f32 {P2(T+2)}, {P2(h[2])}, {P2(d3)}",
          f"v_pk_fma_f32 {P2(T)}, {P2(h[1])}, {P2(d0)}, {P2(T)}",
          f"v_pk_fma_f32 {P2(T+2)}, {P2(h[3])}, {P2(d2)}, {P2(T+2)}",
          f"v_pk_mul_f32 {P2(d0)}, {P2(d0)}, {P2(d1)}",
          f"v_pk_mul_f32 {P2(d2)}, {P2(d2)}, {P2(d3)}",
          f"v_pk_mul_f32 {P2(d1)}, {P2(d0)}, {P2(d2)}",
          f"v_pk_mul_f32 {P2(T)}, {P2(T)}, {P2(d2)}",
          f"v_rcp_f32 v{d1}, v{d1}",
          f"v_rcp_f32 v{d1+1}, v{d1+1}",
          f"v_pk_fma_f32 {P2(T)}, {P2(T+2)}, {P2(d0)}, {P2(T)}",
          f"v_pk_mul_f32 {P2(T)}, {P2(T)}, {P2(d1)}"]
    if "noadd" not in OPT:
        s += [f"v_cvt_f64_f32 {P2(U)}, v{T}",
              f"v_cvt_f64_f32 {P2(U+4)}, v{T+1}",
              f"ds_add_f64 v{vG}, {P2(U)} offset:{L_AGG + 128*ta}",
              f"ds_add_f64 v{vG}, {P2(U+4)} offset:{L_AGG + 128*tb}"]
    return s

deferred = []
def defer(fn, inline):
    if inline: fn()
    else: deferred.append(fn)
uid = [0]
def lab(p):
    uid[0] += 1
    return f"{p}_{uid[0]}"

def list_reads(a, v5):
    a(f"ds_read_b128 {vr(R,4)}, v{vTa} offset:{L_ROW}")
    if v5: a(f"ds_read_b32 v{G+2}, v{vTa} offset:{L_GN + 8}")
    else:  a(f"ds_read_b96 {vr(G,3)}, v{vTa} offset:{L_GN}")

def ep_read(a):
    a(f"ds_read_b128 {vr(EP,4)}, v{vEPa} offset:{L_PPK}")

def advance(a):
    a(f"v_pk_add_f32 {P2(vTa)}, {P2(vTa)}, s[{sINCP}:{sINCP+1}]")

def list_wrap(a):
    a(f"s_add_u32 s{sLI}, s{sLI}, 1")
    a(f"s_cmp_eq_u32 s{sLI}, s{sL}")
    l, lb = lab("K2_LW"), lab("K2_LWB")
    a(f"s_cbranch_scc1 {l}")
    a.label(lb)
    def blk():
        a.label(l)
        a(f"s_mov_b32 s{sLI}, 0")
        a(f"s_mov_b32 s{sHL}, {HALF_STRIDE}")
        a(f"v_mov_b32 v{vTa}, v{vTa0}")
        a(f"s_branch {lb}")
    deferred.append(blk)

def eo_read(a):
    a(f"ds_read_b32 v{vEo}, v{vTd} offset:{L_EO}")
    a(f"v_add_u32 v{vTd}, 64, v{vTd}")

def e_dma(a):
    a(f"s_mov_b32 m0, s{sM0}")
    a(f"v_add_u32 v{vEo}, v{vEo}, v{vH16}")
    if "samee" in OPT: a(f"v_and_b32 v{vEo}, 0x1f, v{vEo}")
    a(f"s_add_u32 s{sM0}, s{sM0}, 512")
    a(f"s_add_u32 s{sDI}, s{sDI}, 1")
    a(f"s_mov_b64 exec, {sr(sLO,2)}")
    a(f"buffer_load_dwordx4 v{vEo}, {sr(sWS if 'ecopy' in OPT else sE,4)}, s{sE2} offen lds")
    a("s_mov_b64 exec, -1")

def gather_stage(a, buf):
    for r in (0, 2):
        a(f"v_pk_add_f32 {P2(R+r)}, {P2(R+r)}, {P2(vJ16)} op_sel_hi:[1,0]")
    if "samerow" in OPT:
        for r in range(4): a(f"v_and_b32 v{R+r}, 0xff, v{R+r}")
    for r in range(4):
        a(f"buffer_load_dwordx4 {vr(buf+4*r,4)}, v{R+r}, {sr(sWS,4)}, s{sHL} offen")
    l, lb = lab("K2_ND"), lab("K2_NDB")
    a(f"s_cmp_lt_u32 s{sDI}, s{sL}")
    a(f"s_cbranch_scc1 {l}")
    a.label(lb)
    def blk():
        a.label(l)
        e_dma(a)
        eo_read(a)
        a(f"s_branch {lb}")
    deferred.append(blk)
    list_wrap(a)

def ap_stage(a, dstG, v5, G=G):
    l, lb = lab("K2_AW"), lab("K2_AWB")
    a(f"s_cmp_eq_u32 s{sAI}, s{sL}")
    a(f"s_cbranch_scc1 {l}")
    a.label(lb)
    def blk():
        a.label(l)
        a(f"s_mov_b32 s{sAI}, 0")
        if "noprio" not in OPT:
            lp = lab("K2_NP")
            a(f"s_cmp_lt_u32 s{sN}, s{sL}")
            a(f"s_cbranch_scc0 {lp}")
            a("s_setprio 2" if "oldprio" not in OPT else "s_setprio 0")
            a.label(lp)
        a(f"v_add_u32 v{vJ4}, 256, v{vJ4}")
        if v5: a(f"v_add_u32 v{vJ16h}, 256, v{vJ16h}")
        a(f"v_mov_b32 v{vTe}, v{vTe0}")
        for t in range(4):
            a(f"ds_read_b128 {vr(B+4*t,4)}, v{vCS} offset:{L_CS + 1024*(4+t)}")
        a(f"s_branch {lb}")
    deferred.append(blk)
    a(f"s_add_u32 s{sAI}, s{sAI}, 1")
    if v5:
        a(f"v_add_lshl_u32 v{dstG}, v{G+2}, v{vJ4}, 1")
        a(f"v_add_u32 v{vEPa}, v{G+2}, v{vJ16h}")
        a(f"s_mov_b64 exec, {sr(sLO,2)}")
        a(f"ds_read_b128 {vr(A,4)}, v{vTe}")
        a("s_mov_b64 exec, -1")
        return
    a(f"v_pk_add_f32 {P2(G)}, {P2(G)}, {P2(vJ16)} op_sel:[0,1] op_sel_hi:[1,1]")
    a(f"v_add_lshl_u32 v{dstG}, v{G+2}, v{vJ4}, 1")
    a(f"s_mov_b64 exec, {sr(sLO,2)}")
    a(f"ds_read_b128 {vr(A,4)}, v{vTe}")
    a(f"s_mov_b64 exec, {sr(sHI,2)}")
    for t in range(4 if "nop" not in OPT else 0):
        a(f"ds_read_b32 v{B+4*t}, v{G} offset:{L_PPK + 64*t}")
        a(f"ds_read_b32 v{B+4*t+1}, v{G+1} offset:{L_PPK + 64*t}")
    a("s_mov_b64 exec, -1")

def tile_body(a, k, v5, done):
    buf = QH[k]; nbuf = QH[(k + 2) % 3]
    vG = vGS[k]; vGn = vGS[(k + 1) % 3]
    l2 = lab("K2_W")
    a(f"s_cmp_lt_i32 s{sN}, s{sLM3}")
    a(f"s_cbranch_scc1 {l2}")
    a("s_waitcnt vmcnt(4)")
    a.label(l2)
    a("s_waitcnt vmcnt(6)")
    for t in (1, 3):
        p = t >> 1
        for rr in (0, 2):
            a(f"v_pk_mov_b32 {P2(D+4*t+rr)}, {P2(buf+4*rr)}, {P2(buf+4*(rr+1))} op_sel:[{p},{p}]")
    for t in (0, 2):
        p = t >> 1
        for r in range(4):
            a(f"v_lshlrev_b32 v{D+4*t+r}, 16, v{buf+4*r+p}")
    a("s_waitcnt lgkmcnt(4)")
    for t in (1, 3, 0, 2):
        a(f"v_mfma_f32_16x16x32_bf16 {vr(D+4*t,4)}, {vr(A,4)}, {vr(B+4*t,4)}, {vr(D+4*t,4)}")
    ap_stage(a, vGn, v5)
    list_reads(a, v5)
    advance(a)
    h = [buf + 4*r + 2 for r in range(4)]
    for ins in pair_code(1, 3, h, False, vG, v5): a(ins)
    a("s_waitcnt lgkmcnt(3)" if "noadd" not in OPT else "s_waitcnt lgkmcnt(1)")
    gather_stage(a, nbuf)
    for ins in pair_code(0, 2, h, True, vG, v5): a(ins)
    if v5: ep_read(a)
    a(f"s_add_u32 s{sN}, s{sN}, 1")
    if "noprio" in OPT or "oldprio" in OPT:
        a(f"s_cmp_ge_u32 s{sN}, s{sNIT}")
        a(f"s_cbranch_scc1 {done}")
    else:
        l, lb = lab("K2_PR"), lab("K2_PRB")
        a(f"s_cmp_ge_u32 s{sN}, s{sNM2}")
        a(f"s_cbranch_scc1 {l}")
        a.label(lb)
        def blk():
            l1 = lab("K2_PR1")
            a.label(l)
            a(f"s_cmp_ge_u32 s{sN}, s{sNIT}")
            a(f"s_cbranch_scc1 {done}")
            a(f"s_cmp_eq_u32 s{sN}, s{sNM2}")
            a(f"s_cbranch_scc0 {l1}")
            a("s_setprio 1")
            a(f"s_branch {lb}")
            a.label(l1)
            a("s_setprio 0")
            a(f"s_branch {lb}")
        deferred.append(blk)

def table_prefetch(a, vL16):
    if "nopf" in OPT: return
    a(f"s_lshr_b32 s{sTMP+5}, s2, 3")
    a(f"s_mul_i32 s{sTMP+5}, s{sTMP+5}, 81920")
    a(f"s_lshl_b32 s{sTMP+6}, s28, 13")
    a(f"s_add_u32 s{sTMP+5}, s{sTMP+5}, s{sTMP+6}")
    a(f"s_cmp_lt_u32 s28, 10")
    a(f"s_cselect_b32 s{sTMP+5}, s{sTMP+5}, {WS_END}")
    a(f"v_lshlrev_b32 v{vDUM}, 3, v{vL16}")
    a(f"buffer_load_dword v{vDUM}, v{vDUM}, {sr(sWS,4)}, s{sTMP+5} offen")

def table_prefetch(a):
    a(f"s_lshr_b32 s{sTMP}, s2, 3")
    a(f"s_mul_i32 s{sTMP}, s{sTMP}, 81920")
    a(f"s_lshl_b32 s{sTMP+1}, s28, 13")
    a(f"s_add_u32 s{sTMP+1}, s{sTMP+1}, s{sTMP}")
    a(f"v_lshlrev_b32 v{vDUM}, 3, v{vCS}")
    a(f"buffer_load_dword v{vDUM}, v{vDUM}, {sr(sWS,4)}, s{sTMP+1} offen")
    return
    a(f"s_add_u32 s{sTMP+1}, s{sTMP+1}, 65536")
    a(f"s_cmp_lt_u32 s28, 2")
    a(f"s_cselect_b32 s{sTMP+1}, s{sTMP+1}, {WS_END}")
    a(f"buffer_load_dword v127, v{vDUM}, {sr(sWS,4)}, s{sTMP+1} offen")

def k2(a):
    ECOPY = "ecopy" in OPT
    a.raw(".p2align 8")
    a.raw(".type egc_main_kernel,@function")
    a.label("egc_main_kernel")
    a(f"s_cmp_ge_u32 s2, {NB}")
    a("s_cbranch_scc1 K2_EXIT")
    diag_mark(a, 0, True, 0)
    stamp(a, 0)
    if "stamp" in OPT:
        a("s_memrealtime s[80:81]")
        a("s_waitcnt lgkmcnt(0)")
    a("s_load_dwordx4 s[4:7], s[0:1], 0")
    a("s_load_dwordx2 s[8:9], s[0:1], 56")
    a("s_load_dwordx2 s[10:11], s[0:1], 72")
    a("v_lshrrev_b32 v1, 6, v0")
    a("v_lshlrev_b32 v3, 4, v0")
    a("s_and_b32 s46, s2, 7")
    a("v_readfirstlane_b32 s28, v1")
    a("s_lshr_b32 s47, s2, 3")
    a("s_sub_u32 s48, s46, 2")
    a("s_max_i32 s48, s48, 0")
    a("s_lshl_b32 s46, s46, 5")
    a("s_sub_u32 s46, s46, s48")
    a(f"s_add_u32 s{sBIN}, s46, s47")
    a(f"v_and_b32 v{vCS}, 0x3f0, v3")
    a("v_mov_b32 v8, v3")
    a(f"v_bfe_u32 v9, v{vCS}, 4, 4")
    a(f"v_lshrrev_b32 v10, 8, v{vCS}")
    a(f"v_lshlrev_b32 v{vJ16}, 4, v9")
    a(f"v_lshlrev_b32 v{vQ16}, 4, v10")
    a(f"v_lshl_add_u32 v{vK66}, v9, 5, v{vQ16}")
    a(f"v_and_b32 v{vH16}, 16, v{vCS}")
    a(f"v_lshrrev_b32 v{vLH}, 5, v{vCS}")
    a(f"s_mov_b64 {sr(sLO,2)}, 0xffffffff")
    a(f"s_mov_b32 s{sHI}, 0")
    a(f"s_mov_b32 s{sHI+1}, -1")
    a(f"s_mov_b32 s{sCC}, {hex(C_2MK)}")
    a(f"s_mov_b32 s{sCC+1}, {hex(C_2MK)}")
    a(f"s_mov_b32 s{sWIN}, 0")
    a(f"s_mov_b32 s{sE2}, {E2_OFF if ECOPY else 0}")
    a("s_cmp_ge_u32 s28, 8")
    a("s_cbranch_scc1 K2_G")
    vW = 12; vOA = 13; vOf = 14
    vC = 32; vSub = 33; vWb = 34; vEA = 35; vPw = 36; vKB = 37; vSg = 39; vEB = 38
    EN = 56
    a("v_mov_b32 v15, 0")
    a("v_lshrrev_b32 v16, 2, v8")
    a("v_cmp_gt_u32 vcc, 128, v0")
    a(f"v_lshrrev_b32 v{vW}, 1, v0")
    a("s_and_saveexec_b64 s[54:55], vcc")
    a(f"ds_write_b32 v16, v15 offset:{L_CNT}")
    a("s_mov_b64 exec, -1")
    a(f"v_lshlrev_b32 v{vOA}, 10, v{vW}")
    a(f"s_lshl_b32 s{sTMP}, s{sBIN}, 2")
    a(f"s_add_u32 s{sTMP}, s{sTMP}, {OFFS_OFF}")
    a(f"s_mov_b32 s{sTMP+4}, {ENT_OFF}")
    a(f"v_and_b32 v{vSub}, 1, v0")
    a(f"v_mul_u32_u24 v{vSg}, {CE}, v{vW}")
    a("s_waitcnt lgkmcnt(0)")
    srd(a, sWS, 10, WS_END)
    a(f"buffer_load_dword v{vOf}, v{vOA}, {sr(sWS,4)}, s{sTMP} offen")
    a("s_barrier")
    a(f"v_cmp_gt_u32 vcc, 250, v{vW}")
    a(f"v_cmp_eq_u32 s[54:55], 0, v{vSub}")
    a(f"v_mov_b32 v16, {L_TOT}")
    if not ECOPY: a(f"v_mul_u32_u24 v{vWb}, {CE*32}, v{vW}")
    a(f"v_mov_b32 v{vKB}, 0")
    srd(a, sE, 6, E * 32)
    srd(a, sO, 8, N * 256)
    a("s_waitcnt vmcnt(0)")
    a(f"v_lshrrev_b32 v{vC}, 16, v{vOf}")
    a(f"v_and_b32 v{vOf}, 0xffff, v{vOf}")
    a(f"v_cndmask_b32 v{vC}, 0, v{vC}, vcc")
    a(f"v_add_u32 v{vSg}, v{vSg}, v{vOf}")
    def entry_addr():
        a(f"v_lshlrev_b32 v{vEB}, 2, v{vSg}")
        a(f"v_lshl_add_u32 v{vEA}, v{vSub}, 5, v{vEB}")
        a(f"v_lshl_add_u32 v{vEB}, v{vSub}, 3, v{vEB}")
    def entry_loads(soff):
        a(f"buffer_load_dwordx4 {vr(EN,4)}, v{vEA}, {sr(sWS,4)}, s{soff} offen")
        a(f"buffer_load_dwordx4 {vr(EN+4,4)}, v{vEA}, {sr(sWS,4)}, s{soff} offen offset:16")
        a(f"buffer_load_dwordx2 {vr(EN+8,2)}, v{vEB}, {sr(sWS,4)}, s{soff} offen offset:64")
    entry_addr()
    entry_loads(sTMP+4)
    stamp(a, 1)
    a("s_mov_b64 exec, s[54:55]")
    a(f"ds_add_rtn_u32 v{vPw}, v16, v{vC}")
    a("s_mov_b64 exec, -1")
    a("s_waitcnt lgkmcnt(0)")
    a(f"v_mov_b32_dpp v{vPw}, v{vPw} quad_perm:[0,0,2,2] row_mask:0xf bank_mask:0xf")
    a("s_nop 0")
    a(f"v_mov_b32 v121, v{vPw}")
    a("s_waitcnt vmcnt(0)")
    a.label("K2_WINDOW")
    vKE = 66; vRA = 67
    a(f"s_add_u32 s{sTMP}, s{sWIN}, {CAPE}")
    a(f"v_sub_u32 v{vKE}, s{sTMP}, v{vPw}")
    a(f"v_min_i32 v{vKE}, v{vKE}, v{vC}")
    if ECOPY:
        a(f"v_sub_u32 v{vWb}, v{vSg}, v{vPw}")
        a(f"v_add_lshl_u32 v{vWb}, v{vWb}, s{sWIN}, 5")
    a.label("K2_COPY")
    a(f"v_add_u32 v{vRA}, v{vPw}, v{vKB}")
    a(f"v_subrev_u32 v{vRA}, s{sWIN}, v{vRA}")
    a(f"v_sub_u32 v68, v{vKE}, v{vKB}")
    a(f"v_lshlrev_b32 v69, 3, v{vSub}")
    a("v_sub_u32 v70, v68, v69")
    a(f"v_add_lshl_u32 v69, v{vRA}, v69, 3")
    a(f"v_add_u32 v69, {L_RAW}, v69")
    a(f"v_lshlrev_b32 v71, 1, v{vSub}")
    a("v_sub_u32 v68, v68, v71")
    a(f"v_add_lshl_u32 v71, v{vRA}, v71, 3")
    a(f"v_add_u32 v71, {L_RAW + 128}, v71")
    for i in range(8):
        a(f"v_cmp_lt_i32 vcc, {i}, v70")
        a("s_and_b64 exec, exec, vcc")
        a("s_cbranch_execz K2_CPA")
        a(f"ds_write2_b32 v69, v{EN+i}, v{vWb} offset0:{2*i} offset1:{2*i+1}")
    a.label("K2_CPA")
    a("s_mov_b64 exec, -1")
    for i in range(2):
        a(f"v_cmp_lt_i32 vcc, {16+i}, v68")
        a("s_and_b64 exec, exec, vcc")
        a("s_cbranch_execz K2_CPB")
        a(f"ds_write2_b32 v71, v{EN+8+i}, v{vWb} offset0:{2*i} offset1:{2*i+1}")
    a.label("K2_CPB")
    a("s_mov_b64 exec, -1")
    a(f"v_add_u32 v{vKB}, 20, v{vKB}")
    a(f"v_cmp_lt_i32 vcc, v{vKB}, v{vKE}")
    a("s_cmp_eq_u64 vcc, 0")
    a("s_cbranch_scc1 K2_COPIED")
    a(f"v_add_u32 v{vEA}, 80, v{vEA}")
    a(f"v_add_u32 v{vEB}, 80, v{vEB}")
    a(f"s_mov_b32 s{sTMP+4}, {ENT_OFF}")
    entry_loads(sTMP+4)
    a("s_waitcnt vmcnt(0)")
    a("s_branch K2_COPY")
    a.label("K2_COPIED")
    if "pfB" in OPT: table_prefetch(a)
    a(f"v_mov_b32 v70, {L_TOT}")
    a("s_waitcnt lgkmcnt(0)")
    a("s_barrier")
    stamp(a, 2)
    a("ds_read_b32 v70, v70")
    if "pfC" in OPT: table_prefetch(a)
    RE = 56
    ND = 62; RK = 65
    a("v_lshlrev_b32 v68, 3, v0")
    a(f"v_add_u32 v68, {L_RAW}, v68")
    for i in range(3):
        a(f"ds_read_b64 {P2(RE+2*i)}, v68 offset:{4096*i}")
    a("v_mov_b32 v69, 1")
    a("s_waitcnt lgkmcnt(3)")
    a(f"v_readfirstlane_b32 s{sTOT}, v70")
    a("v_add_u32 v71, 512, v0")
    a("v_add_u32 v72, 1024, v0")
    a(f"s_sub_u32 s{sTMP}, s{sTOT}, s{sWIN}")
    a(f"s_min_u32 s{sTMP}, s{sTMP}, {CAPE}")
    a(f"v_cmp_gt_u32 {sr(sM,2)}, s{sTMP}, v0")
    a(f"v_cmp_gt_u32 {sr(sM+2,2)}, s{sTMP}, v71")
    a(f"v_cmp_gt_u32 {sr(sM+4,2)}, s{sTMP}, v72")
    for i in range(3):
        l = lab("K2_RK")
        a(f"s_waitcnt lgkmcnt({2-i if i == 0 else 0})" if i == 0 else "s_waitcnt lgkmcnt(0)" if i == 1 else "")
        a(f"v_bfe_u32 v{ND+i}, v{RE+2*i}, 14, 6")
        a(f"v_lshlrev_b32 v{ND+i}, 2, v{ND+i}")
        a(f"s_mov_b64 exec, {sr(sM+2*i,2)}")
        a(f"s_cbranch_execz {l}")
        a(f"ds_add_rtn_u32 v{RK+i}, v{ND+i}, v69 offset:{L_CNT}")
        a.label(l)
        a("s_mov_b64 exec, -1")
    a(f"v_lshrrev_b32 v68, 2, v{vCS}")
    a("s_waitcnt lgkmcnt(0)")
    a("s_barrier")
    stamp(a, 3)
    a(f"ds_read_b32 v69, v68 offset:{L_CNT}")
    for i in range(3):
        e = RE + 2*i
        if ECOPY:
            a(f"v_lshl_add_u32 v{e+1}, v0, 5, v{e+1}")
            if i: a(f"v_add_u32 v{e+1}, {512*32*i}, v{e+1}")
        else:
            a(f"v_lshrrev_b32 v70, 20, v{e}")
            a(f"v_lshl_add_u32 v{e+1}, v70, 5, v{e+1}")
        a(f"v_and_b32 v{e}, 0x3fff, v{e}")
        a(f"v_lshlrev_b32 v{e}, 8, v{e}")
    a("s_waitcnt lgkmcnt(0)")
    a("v_add_u32 v70, 3, v69")
    a("v_and_b32 v70, -4, v70")
    a("v_mov_b32 v71, v70")
    wave_scan(a, 71)
    a("v_sub_u32 v72, v71, v70")
    a("s_nop 0")
    a(f"v_readlane_b32 s{sNIT}, v71, 63")
    for i in range(3):
        a(f"ds_bpermute_b32 v{73+i}, v{ND+i}, v72")
    for i in range(3):
        a(f"v_lshlrev_b32 v{ND+i}, 7, v{ND+i}")
    for i in range(3):
        e = RE + 2*i
        l = lab("K2_PL")
        a(f"s_waitcnt lgkmcnt({2-i})" if i == 0 else "s_waitcnt lgkmcnt(0)" if i == 1 else "")
        a(f"s_mov_b64 exec, {sr(sM+2*i,2)}")
        a(f"s_cbranch_execz {l}")
        a(f"v_add_u32 v{73+i}, v{73+i}, v{RK+i}")
        a(f"v_and_b32 v{RK+i}, 3, v{RK+i}")
        a(f"v_lshlrev_b32 v76, 2, v{73+i}")
        a(f"v_cmp_eq_u32 vcc, 0, v{RK+i}")
        a(f"ds_write_b32 v76, v{e} offset:{L_ROW}")
        a(f"ds_write_b32 v76, v{e+1} offset:{L_EO}")
        a("s_and_b64 exec, exec, vcc")
        a(f"s_cbranch_execz {l}")
        a(f"ds_write_b32 v76, v{ND+i} offset:{L_GN + 8}")
        a(f"v_and_b32 v77, 0xffffffc0, v76")
        a(f"v_bfe_u32 v{RK+i}, v76, 5, 1")
        a(f"v_lshl_add_u32 v77, v{RK+i}, 4, v77")
        a(f"v_bfe_u32 v{RK+i}, v76, 4, 1")
        a(f"v_lshl_add_u32 v77, v{RK+i}, 2, v77")
        a(f"ds_write_b32 v77, v{ND+i} offset:{L_GN + 32}")
        a.label(l)
        a("s_mov_b64 exec, -1")
    a(f"s_add_u32 s{sTMP}, s{sNIT}, 15")
    a(f"s_lshr_b32 s{sTMP+1}, s{sTMP}, 4")
    a("s_cmp_ge_u32 s28, 2")
    a("s_cbranch_scc1 K2_NOTAIL")
    a(f"v_mov_b32 v78, {N*256}")
    a("v_mov_b32 v79, 0")
    a("s_cmp_eq_u32 s28, 0")
    a("s_cbranch_scc0 K2_NOPAD")
    a(f"v_mov_b32 v76, s{sTMP+1}")
    a(f"v_mov_b32 v77, {L_TILES}")
    a("ds_write_b32 v77, v76")
    a("v_add_u32 v76, v72, v69")
    for m in range(3):
        a("v_cmp_lt_u32 vcc, v76, v71")
        a("s_and_b64 exec, exec, vcc")
        a(f"s_cbranch_execz K2_NOTAIL")
        a("v_lshlrev_b32 v77, 2, v76")
        a(f"ds_write_b32 v77, v78 offset:{L_ROW}")
        a(f"ds_write_b32 v77, v79 offset:{L_EO}")
        a("v_add_u32 v76, 1, v76")
    a("s_branch K2_NOTAIL")
    a.label("K2_NOPAD")
    a(f"v_lshrrev_b32 v76, 4, v{vCS}")
    a(f"v_add_u32 v76, s{sNIT}, v76")
    a(f"s_lshl_b32 s{sTMP+2}, s{sTMP+1}, 4")
    a(f"v_cmp_gt_u32 vcc, s{sTMP+2}, v76")
    a("s_and_b64 exec, exec, vcc")
    a("s_cbranch_execz K2_NOTAIL")
    a("v_lshlrev_b32 v77, 2, v76")
    a(f"ds_write_b32 v77, v78 offset:{L_ROW}")
    a(f"ds_write_b32 v77, v79 offset:{L_EO}")
    a("v_and_b32 v76, 3, v76")
    a("v_cmp_eq_u32 vcc, 0, v76")
    a("s_and_b64 exec, exec, vcc")
    a("s_cbranch_execz K2_NOTAIL")
    a(f"ds_write_b32 v77, v79 offset:{L_GN + 8}")
    a(f"v_and_b32 v76, 0xffffffc0, v77")
    a("v_bfe_u32 v78, v77, 5, 1")
    a("v_lshl_add_u32 v76, v78, 4, v76")
    a("v_bfe_u32 v78, v77, 4, 1")
    a("v_lshl_add_u32 v76, v78, 2, v76")
    a(f"ds_write_b32 v76, v79 offset:{L_GN + 32}")
    a.label("K2_NOTAIL")
    a("s_mov_b64 exec, -1")
    a("s_waitcnt lgkmcnt(0)")
    a("s_barrier")
    a("s_branch K2_JOIN")
    a.label("K2_G")
    WP = 8; WU = 24; ACP = 56; ACU = 104; XR = 56; CR = 64
    AFS = [40, 68, 84]
    g2, g4, g5, g6, g7, g1, g3 = 100, 101, 102, 103, 121, 122, 123
    a(f"v_subrev_u32 v{g2}, 0x2000, v8")
    a(f"v_mov_b32 v{g7}, v9")
    a(f"v_mov_b32 v{g6}, v10")
    a(f"s_sub_u32 s{sTMP+6}, s28, 8")
    a(f"s_mul_i32 s{sTMP+1}, s{sBIN}, {NPB*256}")
    a(f"s_add_u32 s{sTMP+2}, s{sTMP+1}, 8192")
    a(f"s_mov_b32 s{sTMP+3}, {CF_OFF}")
    a(f"s_mov_b32 s{sTMP+4}, {CF_OFF + 8192}")
    a(f"s_lshl_b32 s{sTMP+5}, s{sTMP+6}, 12")
    a(f"s_add_u32 s{sTMP+5}, s{sTMP+5}, {WF_OFF}")
    a(f"v_lshrrev_b32 v{g4}, 8, v{g2}")
    a(f"v_mul_u32_u24 v{g4}, 272, v{g4}")
    a(f"v_lshl_add_u32 v{g4}, v{g7}, 4, v{g4}")
    a(f"v_add_u32 v{g4}, {L_XS}, v{g4}")
    a(f"v_cmp_gt_u32 vcc, 0x1000, v{g2}")
    a("s_waitcnt lgkmcnt(0)")
    srd(a, sX, 4, N * 256)
    a(f"buffer_load_dwordx4 {vr(XR,4)}, v{g2}, {sr(sX,4)}, s{sTMP+1} offen")
    a(f"buffer_load_dwordx4 {vr(XR+4,4)}, v{g2}, {sr(sX,4)}, s{sTMP+2} offen")
    srd(a, sWS, 10, WS_END)
    a(f"buffer_load_dwordx4 {vr(CR,4)}, v{g2}, {sr(sWS,4)}, s{sTMP+3} offen")
    a(f"buffer_load_dwordx4 {vr(CR+4,4)}, v{vCS}, {sr(sWS,4)}, s{sTMP+4} offen")
    a("s_barrier")
    srd(a, sE, 6, E * 32)
    srd(a, sO, 8, N * 256)
    a("s_waitcnt vmcnt(3)")
    gstamp(a, 1)
    a(f"ds_write_b128 v{g4}, {vr(XR,4)}")
    a("s_and_saveexec_b64 s[54:55], vcc")
    a("s_waitcnt vmcnt(2)")
    a(f"ds_write_b128 v{g4}, {vr(XR+4,4)} offset:{32*272}")
    a("s_mov_b64 exec, -1")
    a("s_waitcnt vmcnt(1)")
    a(f"ds_write_b128 v{g2}, {vr(CR,4)} offset:{L_CS}")
    a("s_waitcnt vmcnt(0)")
    a(f"s_cmp_eq_u32 s{sTMP+6}, 0")
    a("s_cbranch_scc0 K2_NOA")
    a(f"ds_write_b128 v{vCS}, {vr(CR+4,4)} offset:{L_CS+8192}")
    a.label("K2_NOA")
    for ks in range(4):
        a(f"buffer_load_dwordx4 {vr(WP+4*ks,4)}, v{vCS}, {sr(sWS,4)}, s{sTMP+5} offen offset:{1024*ks}")
    a(f"s_add_u32 s{sTMP+5}, s{sTMP+5}, 32768")
    for ks in range(4):
        a(f"buffer_load_dwordx4 {vr(WU+4*ks,4)}, v{vCS}, {sr(sWS,4)}, s{sTMP+5} offen offset:{1024*ks}")
    a(f"v_mul_u32_u24 v{g4}, 272, v{g7}")
    a(f"v_lshl_add_u32 v{g4}, v{g6}, 4, v{g4}")
    a(f"v_add_u32 v{g4}, {L_XS}, v{g4}")
    a(f"v_lshlrev_b32 v{g5}, 11, v{g6}")
    a(f"v_lshl_add_u32 v{g5}, v{g7}, 2, v{g5}")
    a(f"s_lshl_b32 s{sTMP}, s{sTMP+6}, 6")
    a(f"v_add_u32 v{g5}, s{sTMP}, v{g5}")
    a(f"v_mov_b32 v{g1}, {L_TOT}")
    a(f"s_mov_b32 s{sTMP}, {hex(NEG_LOG2E)}")
    a(f"s_mov_b32 s{sTMP+1}, {hex(f2u(P_RANGE / 1.4426950408889634))}")
    a("s_waitcnt lgkmcnt(0)")
    gstamp(a, 2)
    a("s_barrier")
    gstamp(a, 3)
    for rho in range(3):
        for ks in range(4):
            a(f"ds_read_b128 {vr(AFS[rho]+4*ks,4)}, v{g4} offset:{rho*16*272 + ks*64}")
    a(f"ds_read_b32 v{g1}, v{g1}")
    a(f"v_lshlrev_b32 v{g4}, 1, v{g5}")
    a(f"v_add_u32 v{g4}, {L_AGG}, v{g4}")
    a("s_waitcnt vmcnt(0)")
    gstamp(a, 4)
    for rho in range(3):
        AF = AFS[rho]
        a(f"s_waitcnt lgkmcnt({9-4*rho})")
        for ks in range(4):
            c = "0" if ks == 0 else vr(ACP+4*rho, 4)
            a(f"v_mfma_f32_16x16x32_bf16 {vr(ACP+4*rho,4)}, {vr(AF+4*ks,4)}, {vr(WP+4*ks,4)}, {c}")
    for rho in range(3):
        AF = AFS[rho]
        for ks in range(4):
            c = "0" if ks == 0 else vr(ACU+4*rho, 4)
            a(f"v_mfma_f32_16x16x32_bf16 {vr(ACU+4*rho,4)}, {vr(AF+4*ks,4)}, {vr(WU+4*ks,4)}, {c}")
    a("s_waitcnt lgkmcnt(0)")
    a(f"v_readfirstlane_b32 s{sTOT}, v{g1}")
    a(f"v_max3_f32 v{g1}, |v{ACP}|, |v{ACP+1}|, |v{ACP+2}|")
    for i in range(3, 11, 2):
        a(f"v_max3_f32 v{g1}, |v{ACP+i}|, |v{ACP+i+1}|, v{g1}")
    a(f"v_max_f32_e64 v{g1}, |v{ACP+11}|, v{g1}")
    a(f"v_mov_b32 v{g2}, {L_FLAG}")
    a(f"v_cmp_nge_f32 vcc, s{sTMP+1}, v{g1}")
    a(f"v_mov_b32 v{g3}, 1")
    if "nov5" in OPT: a("s_mov_b64 vcc, -1")
    a("s_and_saveexec_b64 s[54:55], vcc")
    a("s_cbranch_execz K2_NOFLAG")
    a(f"ds_write_b32 v{g2}, v{g3}")
    a.label("K2_NOFLAG")
    a("s_mov_b64 exec, -1")
    a("s_waitcnt lgkmcnt(0)")
    gstamp(a, 5)
    a("s_barrier")
    a(f"ds_read_b32 v{g2}, v{g2}")
    for rho in range(3):
        if rho == 2: a(f"s_mov_b64 exec, {sr(sLO,2)}")
        for r in range(4):
            a(f"v_cvt_f64_f32 {P2(AFS[rho]+2*r)}, v{ACU+4*rho+r}")
        for r in range(4):
            a(f"ds_write_b64 v{g4}, {P2(AFS[rho]+2*r)} offset:{rho*16384 + r*1024}")
    a("s_mov_b64 exec, -1")
    a(f"s_and_b32 s{sTMP+2}, s{sTMP+6}, 3")
    a(f"s_lshl_b32 s{sTMP+2}, s{sTMP+2}, 1")
    a(f"s_lshr_b32 s{sTMP+3}, 0x72, s{sTMP+2}")
    a(f"s_and_b32 s{sTMP+3}, s{sTMP+3}, 3")
    a(f"s_lshl_b32 s{sTMP+3}, s{sTMP+3}, 2")
    a(f"s_lshr_b32 s{sTMP+2}, s{sTMP+6}, 2")
    a(f"s_lshl_b32 s{sTMP+2}, s{sTMP+2}, 8")
    a(f"s_add_u32 s{sTMP+3}, s{sTMP+2}, s{sTMP+3}")
    a("s_waitcnt lgkmcnt(12)")
    a(f"v_readfirstlane_b32 s{sTMP+2}, v{g2}")
    a(f"v_mov_b32 v{g3}, {hex(f2u(-float(KSH)))}")
    a("s_nop 2")
    a(f"s_cmp_lg_u32 s{sTMP+2}, 0")
    a("s_cbranch_scc1 K2_PADD")
    a(f"v_lshlrev_b32 v{g5}, 11, v{g6}")
    a(f"v_lshl_add_u32 v{g5}, v{g7}, 4, v{g5}")
    a(f"v_add_u32 v{g5}, s{sTMP+3}, v{g5}")
    for i in range(12):
        a(f"v_fma_f32 v{ACP+i}, v{ACP+i}, s{sTMP}, v{g3}")
    for i in range(12):
        a(f"v_exp_f32 v{ACP+i}, v{ACP+i}")
    for rho in range(3):
        if rho == 2: a(f"s_mov_b64 exec, {sr(sLO,2)}")
        for r in range(4):
            a(f"ds_write_b32 v{g5}, v{ACP+4*rho+r} offset:{L_PPK + rho*8192 + r*512}")
    a("s_branch K2_PDONE")
    a.label("K2_PADD")
    for i in range(12):
        a(f"v_mul_f32 v{ACP+i}, s{sTMP}, v{ACP+i}")
    for i in range(12):
        a(f"v_cvt_pk_bf16_f32 v{ACP+i}, v{ACP+i}, 0")
    for rho in range(3):
        if rho == 2: a(f"s_mov_b64 exec, {sr(sLO,2)}")
        for r in range(4):
            a(f"ds_write_b32 v{g5}, v{ACP+4*rho+r} offset:{L_PPK + rho*8192 + r*512}")
    a.label("K2_PDONE")
    a("s_mov_b64 exec, -1")
    a("s_waitcnt lgkmcnt(0)")
    gstamp(a, 6)
    a("s_barrier")
    a("s_branch K2_JOIN")
    a.label("K2_G_WINDOW")
    a("s_barrier")
    a("s_barrier")
    a("s_barrier")
    a.label("K2_JOIN")
    stamp(a, 4)
    a("s_cmp_eq_u32 s28, 0")
    a("s_cbranch_scc0 K2_NOZ2")
    a(f"v_lshrrev_b32 v68, 2, v{vCS}")
    a("v_mov_b32 v69, 0")
    a(f"ds_write_b32 v68, v69 offset:{L_CNT}")
    a("s_waitcnt lgkmcnt(0)")
    a.label("K2_NOZ2")
    a(f"v_mov_b32 v70, {L_TILES}")
    a("ds_read_b64 v[70:71], v70")
    for t in range(4):
        a(f"ds_read_b128 {vr(B+4*t,4)}, v{vCS} offset:{L_CS + 1024*t}")
    a(f"ds_read_b128 {vr(A,4)}, v{vCS} offset:{L_CS + 8192}")
    a(f"v_lshrrev_b32 v{vJ4}, 2, v{vJ16}")
    a(f"v_mov_b32 v{vJ16h}, v{vJ16}")
    a("s_waitcnt lgkmcnt(5)")
    a(f"v_readfirstlane_b32 s{sTMP+1}, v70")
    a(f"v_readfirstlane_b32 s{sFLAG}, v71")
    a(f"s_lshr_b32 s{sTMP+2}, s{sTMP+1}, 4")
    a(f"s_and_b32 s{sTMP+3}, s{sTMP+1}, 15")
    a(f"s_cmp_lt_u32 s28, s{sTMP+3}")
    a(f"s_cselect_b32 s{sL}, 1, 0")
    a(f"s_add_u32 s{sL}, s{sL}, s{sTMP+2}")
    a(f"s_mul_i32 s{sTMP+2}, s{sTMP+2}, s28")
    a(f"s_min_u32 s{sTMP+3}, s{sTMP+3}, s28")
    a(f"s_add_u32 s{sTMP+2}, s{sTMP+2}, s{sTMP+3}")
    a(f"s_lshl_b32 s{sNIT}, s{sL}, {2 if 'dbl' in OPT else 1}")
    a(f"s_cmp_eq_u32 s{sL}, 0")
    a("s_cbranch_scc1 K2_LOOP_DONE")
    if "noprio" not in OPT: a("s_setprio 3")
    a(f"s_lshl_b32 s{sTMP+4}, s{sTMP+2}, 4")
    a(f"v_add_lshl_u32 v{vTd}, v{vLH}, s{sTMP+4}, 2")
    a(f"s_lshl_b32 s{sM0}, s{sTMP+2}, 9")
    a(f"s_add_u32 s{sM0}, s{sM0}, {L_ES}")
    a(f"v_add_u32 v{vTe0}, s{sM0}, v{vK66}")
    a(f"s_lshl_b32 s{sTMP+4}, s{sTMP+2}, 6")
    a(f"v_add_u32 v{vTa0}, s{sTMP+4}, v{vQ16}")
    a(f"s_mov_b32 s{sDI}, 0")
    a(f"s_mov_b32 s{sN}, 0")
    a(f"s_mov_b32 s{sLI}, 0")
    a(f"s_mov_b32 s{sAI}, 0")
    a(f"s_mov_b32 s{sHL}, 0")
    a(f"s_mov_b32 s{sINCP}, 64")
    a(f"s_mov_b32 s{sINCP+1}, 512")
    a(f"s_sub_i32 s{sLM3}, s{sL}, 3")
    a(f"s_sub_u32 s{sNM2}, s{sNIT}, 2")
    eo_read(a)
    a(f"v_mov_b32 v{vTa}, v{vTa0}")
    a(f"v_mov_b32 v{vTe}, v{vTe0}")
    a("s_waitcnt lgkmcnt(0)")
    e_dma(a)
    a(f"s_cmp_lt_u32 s{sDI}, s{sL}")
    a("s_cbranch_scc0 K2_ND1")
    eo_read(a)
    a("s_waitcnt lgkmcnt(0)")
    e_dma(a)
    eo_read(a)
    a.label("K2_ND1")
    a(f"s_cmp_lg_u32 s{sFLAG}, 0")
    a("s_cbranch_scc1 K2_SETUP_ADD")
    for v5 in (True, False):
        sfx = "F" if v5 else "A"
        if v5:
            for i in range(4): a(f"v_mov_b32 v{A+i}, 0")
        else:
            a.label("K2_SETUP_ADD")
        list_reads(a, v5)
        a(f"v_add_u32 v{vTa}, 64, v{vTa}")
        a("s_waitcnt lgkmcnt(0)")
        gather_stage(a, QH[0])
        for i in range(3):
            if not v5 or i == 2: a(f"v_mov_b32 v{EP+i}, v{G+i}")
        list_reads(a, v5)
        a(f"v_add_u32 v{vTa}, 64, v{vTa}")
        a("s_waitcnt lgkmcnt(0)")
        gather_stage(a, QH[1])
        if v5: stamp(a, 5)
        a("s_waitcnt vmcnt(8)")
        ap_stage(a, vGS[0], v5, EP)
        if v5: ep_read(a)
        a(f"v_add_u32 v{vTe}, 512, v{vTe}")
        a("s_waitcnt lgkmcnt(0)")
        a.label(f"K2_LOOP{sfx}")
        for k in range(3):
            tile_body(a, k, v5, "K2_LOOP_DONE")
        a(f"s_branch K2_LOOP{sfx}")
        for blk in deferred: blk()
        deferred.clear()
    a.label("K2_LOOP_DONE")
    a("s_setprio 0")
    a("s_waitcnt vmcnt(0)")
    stamp(a, 6)
    a("s_waitcnt lgkmcnt(0)")
    a("s_barrier")
    a(f"s_add_u32 s{sWIN}, s{sWIN}, {CAPE}")
    a(f"s_cmp_lt_u32 s{sWIN}, s{sTOT}")
    a("s_cbranch_scc0 K2_EPI")
    a("s_cmp_ge_u32 s28, 8")
    a("s_cbranch_scc1 K2_G_WINDOW")
    a(f"v_lshrrev_b32 v{vW}, 1, v0")
    a(f"v_lshlrev_b32 v{vOA}, 10, v{vW}")
    a(f"s_lshl_b32 s{sTMP}, s{sBIN}, 2")
    a(f"s_add_u32 s{sTMP}, s{sTMP}, {OFFS_OFF}")
    a(f"buffer_load_dword v{vOf}, v{vOA}, {sr(sWS,4)}, s{sTMP} offen")
    a(f"v_and_b32 v{vSub}, 1, v0")
    a(f"v_mul_u32_u24 v{vSg}, {CE}, v{vW}")
    a(f"v_cmp_gt_u32 vcc, 250, v{vW}")
    a(f"v_mov_b32 v{vPw}, v121")
    if not ECOPY: a(f"v_mul_u32_u24 v{vWb}, {CE*32}, v{vW}")
    a("s_waitcnt vmcnt(0)")
    a(f"v_lshrrev_b32 v{vC}, 16, v{vOf}")
    a(f"v_and_b32 v{vOf}, 0xffff, v{vOf}")
    a(f"v_cndmask_b32 v{vC}, 0, v{vC}, vcc")
    a(f"v_add_u32 v{vSg}, v{vSg}, v{vOf}")
    a(f"v_sub_u32 v{vKB}, s{sWIN}, v{vPw}")
    a(f"v_max_i32 v{vKB}, 0, v{vKB}")
    entry_addr()
    a(f"v_lshl_add_u32 v{vEA}, v{vKB}, 2, v{vEA}")
    a(f"v_lshl_add_u32 v{vEB}, v{vKB}, 2, v{vEB}")
    a(f"s_mov_b32 s{sTMP+4}, {ENT_OFF}")
    entry_loads(sTMP+4)
    a("s_waitcnt vmcnt(0)")
    a("s_branch K2_WINDOW")
    a.label("K2_EPI")
    a("v_cmp_gt_u32 vcc, 640, v0")
    a("s_and_saveexec_b64 s[54:55], vcc")
    a("s_cbranch_execz K2_EXIT")
    a("v_lshlrev_b32 v1, 6, v0")
    for i in range(4):
        a(f"ds_read_b128 {vr(32+4*i,4)}, v1 offset:{L_AGG+16*i}")
    a(f"s_mov_b32 s{sTMP}, {hex(C_2MK)}")
    a(f"s_mov_b32 s{sTMP+1}, {hex(NEG_LOG2E)}")
    a("s_waitcnt lgkmcnt(0)")
    for i in range(8):
        a(f"v_cvt_f32_f64 v{8+i}, v[{32+2*i}:{33+2*i}]")
    a(f"s_mov_b32 s{sTMP+2}, {hex(f2u(-1.4426950408889634 * 2.0**-KSH))}")
    a(f"s_mov_b32 s{sTMP+3}, {hex(f2u(-1.4426950408889634 * 2.0**-KSH))}")
    a(f"s_mov_b32 s{sTMP+1}, {hex(C_2MK)}")
    a(f"s_mov_b32 s{sTMP+4}, 1.0")
    a(f"s_mov_b32 s{sTMP+5}, 1.0")
    for i in range(4):
        a(f"v_pk_mul_f32 {P2(16+2*i)}, {P2(8+2*i)}, s[{sTMP+2}:{sTMP+3}]")
    for i in range(4):
        a(f"v_pk_mul_f32 {P2(8+2*i)}, {P2(8+2*i)}, s[{sTMP}:{sTMP+1}]")
    for i in range(8):
        a(f"v_exp_f32 v{16+i}, v{16+i}")
    for i in range(4):
        a(f"v_pk_add_f32 {P2(16+2*i)}, {P2(16+2*i)}, s[{sTMP+4}:{sTMP+5}]")
    for i in range(8):
        a(f"v_rcp_f32 v{16+i}, v{16+i}")
    a("s_nop 0")
    for i in range(4):
        a(f"v_pk_mul_f32 {P2(8+2*i)}, {P2(8+2*i)}, {P2(16+2*i)}")
    for i in range(4):
        a(f"v_cvt_pk_bf16_f32 v{24+i}, v{8+2*i}, v{9+2*i}")
    a("v_lshlrev_b32 v2, 4, v0")
    a(f"s_mul_i32 s{sTMP}, s{sBIN}, {NPB*256}")
    a(f"buffer_store_dwordx4 v[24:27], v2, {sr(sO,4)}, s{sTMP} offen")
    if "diag" in OPT:
        a("s_waitcnt vmcnt(0)")
        diag_mark(a, 1, False, 0)
    if "stamp" in OPT:
        a("s_waitcnt vmcnt(0)")
        stamp(a, 7)
        a("s_memrealtime s[82:83]")
        a("s_waitcnt lgkmcnt(0)")
        stamp_out(a, 10)
    a.label("K2_EXIT")
    a("s_endpgm")

HEADER = f"""; EGC edge-gated message passing: out = silu(x@U + segsum_dst(sigmoid([x_dst,x_src,e]@G) * (x@V)[src]))
; launch 1 (prep): per-node tables Q'=-log2e*(x@B), H=x@V; edge binning by destination; weight fragment images
; @launch kernel=egc_prep_kernel grid=({K1_WGS},1,1) block=(256,1,1) lds={K1_LDS}
; @launch kernel=egc_main_kernel grid=({NB},1,1) block=(1024,1,1) lds={K2_LDS}
.amdgcn_target "amdgcn-amd-amdhsa--gfx950"
.text
"""

def kd(name, vgpr, sgpr, denorm=False):
    extra = "  .amdhsa_float_denorm_mode_32 3\n" if denorm else ""
    return f""".amdhsa_kernel {name}
  .amdhsa_next_free_vgpr {vgpr}
  .amdhsa_next_free_sgpr {sgpr}
  .amdhsa_accum_offset {((vgpr+3)//4)*4}
  .amdhsa_group_segment_fixed_size 0
  .amdhsa_kernarg_size 80
  .amdhsa_user_sgpr_count 2
  .amdhsa_user_sgpr_kernarg_segment_ptr 1
  .amdhsa_system_sgpr_workgroup_id_x 1
{extra}.end_amdhsa_kernel
"""

def k3(a, which):
    a.raw(".globl egc_diag_kernel")
    a.raw(".p2align 8")
    a.raw(".type egc_diag_kernel,@function")
    a.label("egc_diag_kernel")
    a("s_cmp_ge_u32 s2, 1")
    a("s_cbranch_scc1 K3_END")
    a("s_load_dwordx2 s[4:5], s[0:1], 64")
    a("s_waitcnt lgkmcnt(0)")
    a("s_sub_u32 s4, s4, 1024")
    a("s_subb_u32 s5, s5, 0")
    a("s_load_dwordx2 s[6:7], s[4:5], 0")
    a("s_load_dwordx2 s[8:9], s[4:5], 512")
    a("s_memrealtime s[10:11]")
    a("s_waitcnt lgkmcnt(0)")
    a("s_not_b32 s6, s6")
    a("s_not_b32 s8, s8")
    if which == 1: a("s_sub_u32 s12, s7, s6")
    if which == 2: a("s_sub_u32 s12, s8, s7")
    if which == 3: a("s_sub_u32 s12, s9, s8")
    if which == 4: a("s_sub_u32 s12, s10, s9")
    if which == 0: a("s_mov_b32 s12, 0")
    a("s_lshl_b32 s12, s12, 2")
    a("s_min_u32 s12, s12, 20000")
    a.label("K3_SPIN")
    a("s_memrealtime s[14:15]")
    a("s_waitcnt lgkmcnt(0)")
    a("s_sub_u32 s14, s14, s10")
    a("s_cmp_lt_u32 s14, s12")
    a("s_cbranch_scc1 K3_SPIN")
    a.label("K3_END")
    a("s_endpgm")

def main():
    a = Asm()
    a.raw(".globl egc_prep_kernel")
    k1(a)
    a.raw(".globl egc_main_kernel")
    k2(a)
    hdr = HEADER
    which = [int(o[4:]) for o in OPT if o.startswith("dsel")]
    if which:
        k3(a, which[0])
        hdr = hdr.replace(".amdgcn_target", "; @launch kernel=egc_diag_kernel grid=(1,1,1) block=(64,1,1) lds=0\n.amdgcn_target", 1)
    out = hdr + a.text()
    out += '.section .rodata,"a"\n.p2align 6\n' + kd("egc_prep_kernel", 104 if ("stamp1" in OPT or "diag" in OPT) else 96, 96) + ".p2align 6\n" + kd("egc_main_kernel", 128, 96, True) + (".p2align 6\n" + kd("egc_diag_kernel", 8, 32) if which else "")
    path = sys.argv[1] if len(sys.argv) > 1 else f"cdna_kernels/{NAME}.s"
    open(path, "w").write(out)
    print("wrote", path, len(out), "bytes")

if __name__ == "__main__":
    main()
```

```python
import sys, struct, os
OPT = set(os.environ.get("OPT","").split(","))

NAME = "gather_scatter__edge_featured_mpnn_egc__graph"
N = 10000; E = 320000
NB = 250; NPB = 40
NC = 250; CE = 1280
KSH = 26
def f2u(x): return struct.unpack('<I', struct.pack('<f', x))[0]
NEG_LOG2E = f2u(-1.4426950408889634)
C_2MK = f2u(2.0 ** -KSH)
C_2PK = f2u(2.0 ** KSH)
BF16_NEGK = 0xC1D0
assert KSH == 26

HALF_STRIDE = (N + 1) * 256
T_OFF = 0;            T_BYTES = 2 * HALF_STRIDE
ENT_OFF = 0x500000
OFFS_OFF = 0x640000
WF_OFF = 0x680000
CF_OFF = 0x690000
E2_OFF = 0x800000
WS_END = 0x1200000

NT_WG = 314
BIN0 = NT_WG
WF0 = BIN0 + NC
CF0 = WF0 + 8
K1_WGS = CF0 + 1
K1_LDS = (7168 + 40960) if 'ecopy' in OPT else 128 * 288

class Asm:
    def __init__(self): self.lines = []
    def __call__(self, s):
        for l in s.split("\n"):
            l = l.strip()
            if l: self.lines.append("    " + l)
    def label(self, n): self.lines.append(n + ":")
    def raw(self, s): self.lines.append(s)
    def text(self): return "\n".join(self.lines) + "\n"

def vr(i, n=1): return f"v{i}" if n == 1 else f"v[{i}:{i+n-1}]"
def sr(i, n=1): return f"s{i}" if n == 1 else f"s[{i}:{i+n-1}]"

def srd(a, d, base, nbytes):
    a(f"s_mov_b32 s{d}, s{base}")
    a(f"s_and_b32 s{d+1}, s{base+1}, 0xffff")
    a(f"s_mov_b32 s{d+2}, {nbytes}")
    a(f"s_mov_b32 s{d+3}, 0x00020000")

def stamp1(a, i):
    if "stamp1" in OPT:
        a(f"s_memrealtime s[{64+2*i}:{65+2*i}]")
        a("s_waitcnt lgkmcnt(0)")
def stamp1_out(a, n, ws_srd, wgreg, lbl):
    if "stamp1" in OPT:
        a("s_waitcnt vmcnt(0)")
        stamp1(a, n-1)
        a("v_readfirstlane_b32 s60, v0")
        a("s_cmp_eq_u32 s60, 0")
        a(f"s_cbranch_scc0 {lbl}")
        a(f"s_mov_b32 s{ws_srd+2}, 0x1400000")
        for i in range(n):
            a(f"v_mov_b32 v100, s{64+2*i}")
            a(f"v_mov_b32 v101, s{65+2*i}")
            a(f"s_lshl_b32 s60, s{wgreg}, 7")
            a(f"s_add_u32 s60, s60, {0x1310000 + 8*i}")
            a("v_mov_b32 v102, 0")
            a(f"buffer_store_dwordx2 v[100:101], v102, s[{ws_srd}:{ws_srd+3}], s60 offen")
            a("s_nop 1")
        a.label(lbl)

def diag_mark(a, slot, inv, dbgreg):
    if "diag" not in OPT: return
    dl = f"DIAG_{slot}_{len(a.lines)}"
    a("s_and_b32 s84, s2, 15")
    a("s_cmp_eq_u32 s84, 0")
    a(f"s_cbranch_scc0 {dl}")
    a("v_mbcnt_lo_u32_b32 v98, -1, 0") if False else None
    a("v_readfirstlane_b32 s84, v0")
    a("s_nop 3")
    a("s_cmp_lt_u32 s84, 64")
    a(f"s_cbranch_scc0 {dl}")
    a("s_memrealtime s[84:85]")
    a(f"s_load_dwordx2 s[86:87], s[0:1], 64")
    a("s_waitcnt lgkmcnt(0)")
    if inv: a("s_not_b32 s84, s84")
    a("s_mov_b64 s[88:89], exec") if False else None
    a("v_mov_b32 v99, s84")
    a(f"v_mov_b32 v98, {4*slot}")
    a("s_mov_b64 exec, 1")
    a("global_atomic_umax v98, v99, s[86:87]")
    a("s_mov_b64 exec, -1")
    a.label(dl)

def wave_scan(a, v):
    for sh in (1, 2, 4, 8):
        a("s_nop 1")
        a(f"v_add_u32_dpp v{v}, v{v}, v{v} row_shr:{sh} row_mask:0xf bank_mask:0xf bound_ctrl:1")
    a("s_nop 1")
    a(f"v_add_u32_dpp v{v}, v{v}, v{v} row_bcast:15 row_mask:0xa bank_mask:0xf")
    a("s_nop 1")
    a(f"v_add_u32_dpp v{v}, v{v}, v{v} row_bcast:31 row_mask:0xc bank_mask:0xf")

def k1_table(a):
    a.label("K1_TABLE")
    stamp1(a, 0)
    a("s_and_b32 s3, s2, 1")
    a("s_lshr_b32 s28, s2, 1")
    srd(a, 20, 16, 69632)
    srd(a, 36, 14, 32768)
    srd(a, 24, 4, N * 256)
    srd(a, 32, 18, 2 * HALF_STRIDE)
    a("s_lshl_b32 s29, s3, 7")
    a("s_add_u32 s30, s29, 32768")
    a("v_lshrrev_b32 v1, 3, v0")
    a("v_and_b32 v2, 7, v0")
    a("v_lshlrev_b32 v3, 8, v1")
    a("v_lshl_add_u32 v3, v2, 4, v3")
    for i in range(4):
        a(f"buffer_load_dwordx4 {vr(8+4*i,4)}, v3, s[20:23], s30 offen")
        if i < 3: a("s_add_u32 s30, s30, 8192")
    for i in range(4):
        a(f"buffer_load_dwordx4 {vr(24+4*i,4)}, v3, s[36:39], s29 offen")
        if i < 3: a("s_add_u32 s29, s29, 8192")
    a("v_mul_u32_u24 v7, 288, v1")
    a("v_lshl_add_u32 v7, v2, 4, v7")
    a("v_and_b32 v2, 15, v0")
    a("v_bfe_u32 v3, v0, 4, 2")
    a("v_lshrrev_b32 v4, 6, v0")
    a("s_lshl_b32 s31, s28, 6")
    a("v_lshl_add_u32 v5, v4, 4, s31")
    a("v_add_u32 v6, v5, v2")
    a("v_lshlrev_b32 v6, 8, v6")
    a("v_lshl_add_u32 v6, v3, 4, v6")
    for ks in range(4):
        a(f"buffer_load_dwordx4 {vr(40+4*ks,4)}, v6, s[24:27], 0 offen offset:{64*ks}")
    for i in range(8):
        a(f"s_waitcnt vmcnt({11-i})")
        a(f"ds_write_b128 v7, {vr(8+4*i,4)} offset:{9216*(i&3) + 128*(i>>2)}")
    a("v_lshrrev_b32 v7, 2, v2")
    a("v_lshl_add_u32 v7, v3, 3, v7")
    a("v_mul_u32_u24 v7, 288, v7")
    a("v_and_b32 v1, 3, v0")
    a("v_lshl_add_u32 v7, v1, 3, v7")
    a("v_lshl_add_u32 v1, v3, 2, v5")
    a("v_lshlrev_b32 v6, 8, v1")
    a("v_lshl_add_u32 v6, v2, 4, v6")
    a(f"s_mul_i32 s3, s3, {HALF_STRIDE}")
    a("s_waitcnt vmcnt(0) lgkmcnt(0)")
    stamp1(a, 1)
    a("s_barrier")
    stamp1(a, 2)
    ACC = 64
    BF = [8, 24]
    def reads(t):
        b = BF[t & 1]
        for ks in range(4):
            a(f"ds_read_b64_tr_b16 {vr(b+4*ks,2)}, v7 offset:{9216*ks + 32*t}")
            a(f"ds_read_b64_tr_b16 {vr(b+4*ks+2,2)}, v7 offset:{9216*ks + 32*t + 1152}")
    reads(0)
    for t in range(8):
        if t < 7:
            reads(t + 1)
            a("s_waitcnt lgkmcnt(8)")
        else:
            a("s_waitcnt lgkmcnt(0)")
        b = BF[t & 1]
        for ks in range(4):
            c = "0" if ks == 0 else vr(ACC+4*t, 4)
            a(f"v_mfma_f32_16x16x32_bf16 {vr(ACC+4*t,4)}, {vr(40+4*ks,4)}, {vr(b+4*ks,4)}, {c}")
    stamp1(a, 3)
    a("s_mov_b32 s40, 0x00800000")
    a("s_mov_b32 s41, 0x7fff0000")
    a(f"s_mov_b32 s42, {hex(NEG_LOG2E)}")
    a(f"s_movk_i32 s43, {N}")
    a("s_nop 6")
    for r in range(4):
        W = 8 + 8 * (r & 1)
        for t in range(4):
            a(f"v_mul_f32 v{ACC+4*t+r}, s42, v{ACC+4*t+r}")
        for p in range(4):
            lo, hi = ACC + 4*(2*p) + r, ACC + 4*(2*p+1) + r
            a(f"v_cvt_pk_bf16_f32 v{W+p}, v{lo}, v{hi}")
            a(f"v_max_f32_e64 v{hi}, |v{hi}|, s40")
        for p in range(4):
            hi = ACC + 4*(2*p+1) + r
            a(f"v_add_u32 v{hi}, 0x8000, v{hi}")
        for p in range(4):
            hi = ACC + 4*(2*p+1) + r
            a(f"v_sub_u32_sdwa v{hi}, v{hi}, v{W+p} dst_sel:DWORD dst_unused:UNUSED_PAD src0_sel:DWORD src1_sel:WORD_0")
        a(f"v_add_u32 v2, {r}, v1")
        a("v_cmp_ge_u32 vcc, s43, v2")
        for p in range(4):
            hi = ACC + 4*(2*p+1) + r
            a(f"v_bfi_b32 v{W+p}, s41, v{hi}, v{W+p}")
        a("s_and_saveexec_b64 s[44:45], vcc")
        a(f"s_cbranch_execz K1_TAB_SKIP{r}")
        a(f"buffer_store_dwordx4 {vr(W,4)}, v6, s[32:35], s3 offen offset:{256*r} sc1")
        a.label(f"K1_TAB_SKIP{r}")
        a("s_mov_b64 exec, s[44:45]")
    stamp1(a, 4)
    stamp1(a, 5)
    stamp1_out(a, 7, 32, 2, "K1_ST_TAB")
    if "diag" in OPT:
        a("s_waitcnt vmcnt(0)")
        diag_mark(a, 1, False, 0)
    a("s_endpgm")

def k1_bin(a):
    HIST, OFF2, SORT, ESORT = 0, 1024, 2048, 7168
    a.label("K1_BIN")
    stamp1(a, 0)
    a(f"s_sub_u32 s3, s2, {BIN0}")
    srd(a, 20, 8, E * 4)
    srd(a, 24, 10, E * 4)
    srd(a, 28, 18, WS_END)
    a("v_lshlrev_b32 v1, 2, v0")
    a("s_mul_i32 s32, s3, 5120")
    a("v_mov_b32 v2, 0")
    a(f"ds_write_b32 v1, v2 offset:{HIST}")
    DST, SRC = 8, 16
    for m in range(5):
        a(f"buffer_load_dword v{DST+m}, v1, s[24:27], s32 offen offset:{1024*m if m<4 else 0}" if m < 4 else
          f"s_add_u32 s33, s32, 4096\nbuffer_load_dword v{DST+m}, v1, s[24:27], s33 offen")
    for m in range(5):
        a(f"buffer_load_dword v{SRC+m}, v1, s[20:23], s32 offen offset:{1024*m}" if m < 4 else
          f"buffer_load_dword v{SRC+m}, v1, s[20:23], s33 offen")
    ECOPY = "ecopy" in OPT
    NE = 10 if ECOPY else 0
    srd(a, 40, 6, E * 32)
    a("v_lshlrev_b32 v6, 5, v0")
    a("s_mul_i32 s44, s3, 40960")
    ER = 56
    if "noeload" in OPT: a("s_mov_b32 s42, 0")
    NT = " nt" if "ent" in OPT else ""
    ELATE = "elate" in OPT and ECOPY
    def e_loads():
        for m in range(5 if ECOPY else 0):
            a(f"buffer_load_dwordx4 {vr(ER+8*m,4)}, v6, s[40:43], s44 offen{NT}")
            a(f"buffer_load_dwordx4 {vr(ER+8*m+4,4)}, v6, s[40:43], s44 offen offset:16{NT}")
            if m < 4: a("s_add_u32 s44, s44, 8192")
    if not ELATE: e_loads()
    NE0 = 0 if ELATE else NE
    a("s_mov_b32 s34, 52429")
    a("s_waitcnt lgkmcnt(0)")
    a("s_barrier")
    BINR, RANK = 24, 32
    if "stamp1" in OPT:
        a(f"s_waitcnt vmcnt({9+NE})")
        stamp1(a, 1)
    a("v_mov_b32 v3, 1")
    for m in range(5):
        a(f"s_waitcnt vmcnt({9+NE0-m})" if not (ELATE and m > 0) else "")
        if ELATE and m == 0:
            a("s_waitcnt vmcnt(5)")
            e_loads()
        a(f"v_mul_u32_u24 v{BINR+m}, s34, v{DST+m}")
        a(f"v_lshrrev_b32 v{BINR+m}, 21, v{BINR+m}")
        a(f"v_mul_u32_u24 v4, 40, v{BINR+m}")
        a(f"v_sub_u32 v{DST+m}, v{DST+m}, v4")
        a(f"v_lshlrev_b32 v{BINR+m}, 2, v{BINR+m}")
        a(f"ds_add_rtn_u32 v{RANK+m}, v{BINR+m}, v3 offset:{HIST}")
    for m in range(5):
        a(f"s_waitcnt vmcnt({4+NE-m})")
        a(f"v_lshl_or_b32 v{SRC+m}, v{DST+m}, 14, v{SRC+m}")
        if not ECOPY:
            a(f"v_add_u32 v4, {256*m}, v0")
            a(f"v_lshl_or_b32 v{SRC+m}, v4, 20, v{SRC+m}")
    a("s_waitcnt lgkmcnt(0)")
    a("s_barrier")
    stamp1(a, 2)
    a("v_and_b32 v5, 63, v0")
    a("v_lshlrev_b32 v5, 4, v5")
    a(f"ds_read_b128 v[40:43], v5 offset:{HIST}")
    a("s_waitcnt lgkmcnt(0)")
    a("v_add_u32 v44, v40, v41")
    a("v_add_u32 v45, v42, v43")
    a("v_add_u32 v46, v44, v45")
    a("v_mov_b32 v47, v46")
    wave_scan(a, 47)
    a("v_sub_u32 v48, v47, v46")
    a("v_add_u32 v49, v48, v40")
    a("v_add_u32 v50, v48, v44")
    a("v_add_u32 v51, v50, v42")
    a(f"ds_write_b128 v5, v[48:51] offset:{OFF2}")
    a("v_readfirstlane_b32 s35, v0")
    a("s_lshl_b32 s36, s3, 10")
    a(f"s_add_u32 s36, s36, {OFFS_OFF}")
    a("s_cmp_ge_u32 s35, 64")
    a("s_cbranch_scc1 K1_BIN_NOPUB")
    for i in range(4):
        a(f"v_lshl_or_b32 v{52+i}, v{40+i}, 16, v{48+i}")
    a("buffer_store_dwordx4 v[52:55], v5, s[28:31], s36 offen sc1")
    a.label("K1_BIN_NOPUB")
    a("s_waitcnt lgkmcnt(0)")
    for m in range(5):
        a(f"ds_read_b32 v{40+m}, v{BINR+m} offset:{OFF2}")
    for m in range(5):
        a(f"s_waitcnt lgkmcnt({4-m})")
        a(f"v_add_lshl_u32 v{40+m}, v{40+m}, v{RANK+m}, 2")
        a(f"ds_write_b32 v{40+m}, v{SRC+m} offset:{SORT}")
    stamp1(a, 3)
    for m in range(5 if ECOPY else 0):
        a(f"v_lshlrev_b32 v{40+m}, 3, v{40+m}")
        a(f"s_waitcnt vmcnt({9 - 2*m})")
        a(f"ds_write_b128 v{40+m}, {vr(ER+8*m,4)} offset:{ESORT}")
        a(f"s_waitcnt vmcnt({8 - 2*m})")
        a(f"ds_write_b128 v{40+m}, {vr(ER+8*m+4,4)} offset:{ESORT+16}")
    a("s_waitcnt lgkmcnt(0)")
    a("s_barrier")
    stamp1(a, 4)
    a("v_lshlrev_b32 v5, 4, v0")
    a(f"ds_read_b128 v[40:43], v5 offset:{SORT}")
    a(f"s_add_u32 s36, s32, {ENT_OFF}")
    a("v_cmp_gt_u32 vcc, 64, v0")
    a("s_waitcnt lgkmcnt(0)")
    a("buffer_store_dwordx4 v[40:43], v5, s[28:31], s36 offen sc1")
    a("s_and_saveexec_b64 s[38:39], vcc")
    a("s_cbranch_execz K1_BIN_END")
    a(f"ds_read_b128 v[44:47], v5 offset:{SORT+4096}")
    a("s_add_u32 s36, s36, 4096")
    a("s_waitcnt lgkmcnt(0)")
    a("buffer_store_dwordx4 v[44:47], v5, s[28:31], s36 offen sc1")
    a.label("K1_BIN_END")
    a("s_mov_b64 exec, -1")
    a("s_mul_i32 s36, s3, 40960")
    a(f"s_add_u32 s36, s36, {E2_OFF}")
    for i in range(NE):
        a(f"ds_read_b128 {vr(ER+4*i,4)}, v5 offset:{ESORT + 4096*i}")
    for i in range(NE):
        a(f"s_waitcnt lgkmcnt({9-i})")
        pol = "" if "eplain" in OPT else (" nt" if "estnt" in OPT else " sc1")
        if "noestore" not in OPT: a(f"buffer_store_dwordx4 {vr(ER+4*i,4)}, v5, s[28:31], s36 offen{pol}")
        if i < 9: a("s_add_u32 s36, s36, 4096")
    stamp1(a, 5)
    stamp1_out(a, 7, 28, 2, "K1_ST_BIN")
    if "diag" in OPT:
        a("s_waitcnt vmcnt(0)")
        diag_mark(a, 1, False, 0)
    a("s_endpgm")

def k1_wf(a):
    a.label("K1_WF")
    a(f"s_sub_u32 s3, s2, {WF0}")
    a("v_lshrrev_b32 v1, 6, v0")
    a("s_nop 0")
    a("v_readfirstlane_b32 s28, v1")
    a("s_lshl_b32 s3, s3, 2")
    a("s_add_u32 s3, s3, s28")
    a("s_lshr_b32 s29, s3, 1")
    a("s_and_b32 s30, s3, 1")
    a("s_cmp_lt_u32 s29, 8")
    a("s_cselect_b32 s20, s16, s12")
    a("s_cselect_b32 s21, s17, s13")
    a("s_and_b32 s21, s21, 0xffff")
    a("s_mov_b32 s22, 32768")
    a("s_mov_b32 s23, 0x00020000")
    srd(a, 24, 18, WS_END)
    a("v_and_b32 v2, 15, v0")
    a("v_bfe_u32 v3, v0, 4, 2")
    a("s_and_b32 s31, s29, 7")
    a("s_lshl_b32 s31, s31, 5")
    a("s_lshl_b32 s32, s30, 14")
    a("s_add_u32 s31, s31, s32")
    a("v_lshlrev_b32 v4, 11, v3")
    a("v_lshl_add_u32 v4, v2, 1, v4")
    a("s_add_u32 s33, s31, 8192")
    for f in range(2):
        for m in range(8):
            a(f"buffer_load_ushort v{8+8*f+m}, v4, s[20:23], s{31 if f==0 else 33} offen offset:{256*m}")
    a("v_and_b32 v5, 63, v0")
    a("v_lshlrev_b32 v5, 4, v5")
    a("s_lshl_b32 s34, s3, 11")
    a(f"s_add_u32 s34, s34, {WF_OFF}")
    a("s_cmp_lt_u32 s29, 8")
    a(f"s_cselect_b32 s35, 1.0, {hex(C_2PK)}")
    a("s_mov_b32 s36, 0x07060302")
    for f in range(2):
        a(f"s_waitcnt vmcnt({8 if f==0 else 1})")
        for m in range(8):
            a(f"v_lshlrev_b32 v{8+8*f+m}, 16, v{8+8*f+m}")
            a(f"v_mul_f32 v{8+8*f+m}, s35, v{8+8*f+m}")
        for p in range(4):
            a(f"v_perm_b32 v{24+4*f+p}, v{8+8*f+2*p+1}, v{8+8*f+2*p}, s36")
        a(f"buffer_store_dwordx4 {vr(24+4*f,4)}, v5, s[24:27], s34 offen offset:{1024*f} sc1")
    a("s_endpgm")

def k1_cf(a):
    a.label("K1_CF")
    a("v_lshrrev_b32 v1, 6, v0")
    a("s_nop 0")
    a("v_readfirstlane_b32 s28, v1")
    srd(a, 20, 16, 69632)
    srd(a, 24, 18, WS_END)
    a("v_and_b32 v2, 15, v0")
    a("v_bfe_u32 v3, v0, 4, 2")
    a("v_and_b32 v4, 1, v3")
    a("v_lshlrev_b32 v4, 11, v4")
    a("v_lshl_add_u32 v4, v2, 1, v4")
    a("s_lshl_b32 s29, s28, 6")
    a("s_add_u32 s29, s29, 65536")
    for f in range(2):
        for m in range(8):
            a(f"buffer_load_ushort v{8+8*f+m}, v4, s[20:23], s29 offen offset:{256*m + 32*f}")
    a("v_and_b32 v5, 63, v0")
    a("v_lshlrev_b32 v5, 4, v5")
    a("s_lshl_b32 s34, s28, 11")
    a(f"s_add_u32 s34, s34, {CF_OFF}")
    a(f"s_mov_b32 s30, {hex(NEG_LOG2E)}")
    a("v_cmp_gt_u32 vcc, 2, v3")
    a("v_cmp_eq_u32 s[32:33], 2, v3")
    a(f"v_mov_b32 v6, {hex(BF16_NEGK)}")
    a("v_mov_b32 v7, 0")
    a("s_waitcnt vmcnt(0)")
    for f in range(2):
        for m in range(8):
            a(f"v_lshlrev_b32 v{8+8*f+m}, 16, v{8+8*f+m}")
            a(f"v_mul_f32 v{8+8*f+m}, s30, v{8+8*f+m}")
        for p in range(4):
            a(f"v_cvt_pk_bf16_f32 v{24+4*f+p}, v{8+8*f+2*p}, v{8+8*f+2*p+1}")
        a(f"v_cndmask_b32 v30, v7, v6, s[32:33]" if False else "")
        a(f"v_cndmask_b32 v32, v7, v6, s[32:33]")
        a(f"v_cndmask_b32 v{24+4*f+0}, v7, v{24+4*f+0}, vcc")
        a(f"v_cndmask_b32 v{24+4*f+1}, v7, v{24+4*f+1}, vcc")
        a(f"v_cndmask_b32 v{24+4*f+2}, v32, v{24+4*f+2}, vcc")
        a(f"v_cndmask_b32 v{24+4*f+3}, v7, v{24+4*f+3}, vcc")
        a(f"buffer_store_dwordx4 {vr(24+4*f,4)}, v5, s[24:27], s34 offen offset:{1024*f} sc1")
    a("s_cmp_eq_u32 s28, 0")
    a("s_cbranch_scc0 K1_CF_END")
    a("v_lshrrev_b32 v8, 2, v2")
    a("v_subrev_u32 v9, 2, v3")
    a("v_lshlrev_b32 v9, 1, v9")
    a("v_mov_b32 v10, 0x3f803f80")
    a("v_cmp_eq_u32 vcc, v8, v9")
    a("v_add_u32 v9, 1, v9")
    a("v_cmp_eq_u32 s[36:37], v8, v9")
    a("v_cndmask_b32 v12, v7, v10, vcc")
    a("v_mov_b32 v11, 0x3f80")
    a("v_cndmask_b32 v13, v7, v10, s[36:37]")
    a("v_cndmask_b32 v14, v7, v11, s[32:33]")
    a("v_mov_b32 v15, 0")
    a(f"s_mov_b32 s34, {CF_OFF + 8192}")
    a("buffer_store_dwordx4 v[12:15], v5, s[24:27], s34 offen sc1")
    a.label("K1_CF_END")
    a("s_endpgm")

def k1(a):
    a.raw(".p2align 8")
    a.raw(".type egc_prep_kernel,@function")
    a.label("egc_prep_kernel")
    a(f"s_cmp_ge_u32 s2, {K1_WGS}")
    a("s_cbranch_scc1 K1_EXIT")
    diag_mark(a, 0, True, 0)
    a("s_load_dwordx4 s[4:7], s[0:1], 0")
    a("s_load_dwordx4 s[8:11], s[0:1], 16")
    a("s_load_dwordx4 s[12:15], s[0:1], 32")
    a("s_load_dwordx2 s[16:17], s[0:1], 48")
    a("s_load_dwordx2 s[18:19], s[0:1], 72")
    if "binfirst" in OPT:
        a(f"s_add_u32 s20, s2, {NT_WG}")
        a(f"s_sub_u32 s21, s2, {NC}")
        a(f"s_cmp_lt_u32 s2, {NC}")
        a("s_cselect_b32 s22, s20, s21")
        a(f"s_cmp_lt_u32 s2, {WF0}")
        a("s_cselect_b32 s2, s22, s2")
    a("s_waitcnt lgkmcnt(0)")
    a(f"s_cmp_lt_u32 s2, {BIN0}")
    a("s_cbranch_scc1 K1_TABLE")
    a(f"s_cmp_lt_u32 s2, {WF0}")
    a("s_cbranch_scc1 K1_BIN")
    a(f"s_cmp_lt_u32 s2, {CF0}")
    a("s_cbranch_scc1 K1_WF")
    a("s_branch K1_CF")
    a.label("K1_EXIT")
    a("s_endpgm")
    k1_table(a)
    k1_bin(a)
    k1_wf(a)
    k1_cf(a)

CAPE = 1500
SCAP = 1632
L_CNT = 0; L_TOT = 256; L_TILES = 264; L_FLAG = 268
P_RANGE = 60.0
L_ROW = 512
L_GN = L_ROW + SCAP * 4
L_EO = L_GN + SCAP * 4
L_PPK = L_EO + SCAP * 4
L_CS = L_PPK + 20480
L_AGG = L_CS + 9216
L_XS = L_AGG + 40960
L_ES = L_XS + 48 * 272
L_RAW = L_ES
K2_LDS = L_ES + SCAP * 32
assert K2_LDS <= 163840 and L_AGG + 512 < 65536

QH = [8, 24, 40]; D = 56; B = 72; A = 88; U = 92; T = 100; R = 104; G = 108
vGS = [111, 112, 113]; vTa = 114; vTe = 115; vJ16 = 116; vJ4 = 117; vTa0 = 118; vTe0 = 119; vCS = 120
vDUM = 7
vTd = 122; vEo = 123; vH16 = 5; vEPa = 1; vJ16h = 6; EP = 124
vK66 = 2; vQ16 = 3; vLH = 4
sX = 12; sE = 16; sO = 20; sWS = 24
sWV = 28
sLO = 30
sHI = 32
sCC = 34
sN = 36; sNIT = 37; sL = 38
sLI = 39
sAI = 40
sHL = 41
sHG = 42
sTOT = 43
sWIN = 44
sDI = 45
sM0 = 62
sBIN = 29
sE2 = 63
sINC = 20
sLM3 = 43+48
sFLAG = 90
sNM2 = 89
sINCP = 92
sM = 46
sTMP = 56

STAMP_OFF = 0x1300000
def fstamp(a, i):
    if "fine" in OPT:
        a(f"s_memtime s[{64+2*i}:{65+2*i}]")
        a("s_waitcnt lgkmcnt(0)")
def gstamp(a, i):
    if "gst" in OPT:
        a(f"s_memtime s[{64+2*i}:{65+2*i}]")
        a("s_waitcnt lgkmcnt(0)")
def stamp(a, i):
    if ("fine" in OPT or "gst" in OPT) and i in (1,2,3,4,5,6): return
    if "stamp" in OPT:
        a(f"s_memtime s[{64+2*i}:{65+2*i}]")
        a("s_waitcnt lgkmcnt(0)")
def stamp_out(a, n):
    if "stamp" in OPT:
        a(f"s_cmp_eq_u32 s28, {8 if 'gst' in OPT else 0}")
        a("s_cbranch_scc0 STAMP_SKIP")
        a("s_mov_b64 exec, -1")
        a("s_mov_b32 s26, 0x1400000")
        for i in range(n):
            a(f"v_mov_b32 v100, s{64+2*i}")
            a(f"v_mov_b32 v101, s{65+2*i}")
            a(f"s_lshl_b32 s60, s2, 7")
            a(f"s_add_u32 s60, s60, {STAMP_OFF + 8*i}")
            a("v_mov_b32 v102, 0")
            a(f"buffer_store_dwordx2 v[100:101], v102, {sr(sWS,4)}, s60 offen")
            a("s_nop 1")
        a.label("STAMP_SKIP")
def P2(x): return f"v[{x}:{x+1}]"

def pair_code(ta, tb, h, shl, vG, v5):
    s = []
    if shl:
        for r in range(4):
            s.append(f"v_lshlrev_b32 v{h[r]}, 16, v{h[r]}")
            s.append(f"v_lshlrev_b32 v{h[r]+1}, 16, v{h[r]+1}")
    if v5:
        ep = EP + (2 if shl else 0)
        for r in range(4):
            s.append(f"v_exp_f32 v{U+2*r}, v{D+4*ta+r}")
            s.append(f"v_exp_f32 v{U+2*r+1}, v{D+4*tb+r}")
        if not shl: s.append("s_waitcnt lgkmcnt(3)")
        for r in range(4):
            s.append(f"v_pk_fma_f32 {P2(U+2*r)}, {P2(U+2*r)}, {P2(ep)}, s[{sCC}:{sCC+1}] clamp")
    else:
        for r in range(4):
            s.append(f"v_exp_f32_e64 v{U+2*r}, v{D+4*ta+r} clamp")
            s.append(f"v_exp_f32_e64 v{U+2*r+1}, v{D+4*tb+r} clamp")
        for r in range(4):
            s.append(f"v_pk_add_f32 {P2(U+2*r)}, {P2(U+2*r)}, s[{sCC}:{sCC+1}]")
    d0, d1, d2, d3 = U, U+2, U+4, U+6
    s += [f"v_pk_mul_f32 {P2(T)}, {P2(h[0])}, {P2(d1)}",
          f"v_pk_mul_f32 {P2(T+2)}, {P2(h[2])}, {P2(d3)}",
          f"v_pk_fma_f32 {P2(T)}, {P2(h[1])}, {P2(d0)}, {P2(T)}",
          f"v_pk_fma_f32 {P2(T+2)}, {P2(h[3])}, {P2(d2)}, {P2(T+2)}",
          f"v_pk_mul_f32 {P2(d0)}, {P2(d0)}, {P2(d1)}",
          f"v_pk_mul_f32 {P2(d2)}, {P2(d2)}, {P2(d3)}",
          f"v_pk_mul_f32 {P2(d1)}, {P2(d0)}, {P2(d2)}",
          f"v_pk_mul_f32 {P2(T)}, {P2(T)}, {P2(d2)}",
          f"v_rcp_f32 v{d1}, v{d1}",
          f"v_rcp_f32 v{d1+1}, v{d1+1}",
          f"v_pk_fma_f32 {P2(T)}, {P2(T+2)}, {P2(d0)}, {P2(T)}",
          f"v_pk_mul_f32 {P2(T)}, {P2(T)}, {P2(d1)}"]
    if "noadd" not in OPT:
        s += [f"v_cvt_f64_f32 {P2(U)}, v{T}",
              f"v_cvt_f64_f32 {P2(U+4)}, v{T+1}",
              f"ds_add_f64 v{vG}, {P2(U)} offset:{L_AGG + 128*ta}",
              f"ds_add_f64 v{vG}, {P2(U+4)} offset:{L_AGG + 128*tb}"]
    return s

deferred = []
def defer(fn, inline):
    if inline: fn()
    else: deferred.append(fn)
uid = [0]
def lab(p):
    uid[0] += 1
    return f"{p}_{uid[0]}"

def list_reads(a, v5):
    a(f"ds_read_b128 {vr(R,4)}, v{vTa} offset:{L_ROW}")
    if v5: a(f"ds_read_b32 v{G+2}, v{vTa} offset:{L_GN + 8}")
    else:  a(f"ds_read_b96 {vr(G,3)}, v{vTa} offset:{L_GN}")

def ep_read(a):
    a(f"ds_read_b128 {vr(EP,4)}, v{vEPa} offset:{L_PPK}")

def advance(a):
    a(f"v_pk_add_f32 {P2(vTa)}, {P2(vTa)}, s[{sINCP}:{sINCP+1}]")

def list_wrap(a):
    a(f"s_add_u32 s{sLI}, s{sLI}, 1")
    a(f"s_cmp_eq_u32 s{sLI}, s{sL}")
    l, lb = lab("K2_LW"), lab("K2_LWB")
    a(f"s_cbranch_scc1 {l}")
    a.label(lb)
    def blk():
        a.label(l)
        a(f"s_mov_b32 s{sLI}, 0")
        a(f"s_mov_b32 s{sHL}, {HALF_STRIDE}")
        a(f"v_mov_b32 v{vTa}, v{vTa0}")
        a(f"s_branch {lb}")
    deferred.append(blk)

def eo_read(a):
    a(f"ds_read_b32 v{vEo}, v{vTd} offset:{L_EO}")
    a(f"v_add_u32 v{vTd}, 64, v{vTd}")

def e_dma(a):
    a(f"s_mov_b32 m0, s{sM0}")
    a(f"v_add_u32 v{vEo}, v{vEo}, v{vH16}")
    if "samee" in OPT: a(f"v_and_b32 v{vEo}, 0x1f, v{vEo}")
    a(f"s_add_u32 s{sM0}, s{sM0}, 512")
    a(f"s_add_u32 s{sDI}, s{sDI}, 1")
    a(f"s_mov_b64 exec, {sr(sLO,2)}")
    a(f"buffer_load_dwordx4 v{vEo}, {sr(sWS if 'ecopy' in OPT else sE,4)}, s{sE2} offen{' nt' if 'edmant' in OPT else ''}{' sc1' if 'edmasc1' in OPT else ''} lds")
    a("s_mov_b64 exec, -1")

def gather_stage(a, buf):
    for r in (0, 2):
        a(f"v_pk_add_f32 {P2(R+r)}, {P2(R+r)}, {P2(vJ16)} op_sel_hi:[1,0]")
    if "samerow" in OPT:
        for r in range(4): a(f"v_and_b32 v{R+r}, 0xff, v{R+r}")
    for r in range(4):
        a(f"buffer_load_dwordx4 {vr(buf+4*r,4)}, v{R+r}, {sr(sWS,4)}, s{sHL} offen")
    l, lb = lab("K2_ND"), lab("K2_NDB")
    a(f"s_cmp_lt_u32 s{sDI}, s{sL}")
    a(f"s_cbranch_scc1 {l}")
    a.label(lb)
    def blk():
        a.label(l)
        e_dma(a)
        eo_read(a)
        a(f"s_branch {lb}")
    deferred.append(blk)
    list_wrap(a)

def ap_stage(a, dstG, v5, G=G):
    l, lb = lab("K2_AW"), lab("K2_AWB")
    a(f"s_cmp_eq_u32 s{sAI}, s{sL}")
    a(f"s_cbranch_scc1 {l}")
    a.label(lb)
    def blk():
        a.label(l)
        a(f"s_mov_b32 s{sAI}, 0")
        if "pstamp" in OPT:
            lq = lab("K2_PS")
            a(f"s_cmp_lt_u32 s{sN}, s{sL}")
            a(f"s_cbranch_scc0 {lq}")
            a("s_memtime s[76:77]")
            a("s_waitcnt lgkmcnt(0)")
            a.label(lq)
        if "noprio" not in OPT:
            lp = lab("K2_NP")
            a(f"s_cmp_lt_u32 s{sN}, s{sL}")
            a(f"s_cbranch_scc0 {lp}")
            a("s_setprio 2" if "oldprio" not in OPT else "s_setprio 0")
            a.label(lp)
        a(f"v_add_u32 v{vJ4}, 256, v{vJ4}")
        if v5: a(f"v_add_u32 v{vJ16h}, 256, v{vJ16h}")
        a(f"v_mov_b32 v{vTe}, v{vTe0}")
        for t in range(4):
            a(f"ds_read_b128 {vr(B+4*t,4)}, v{vCS} offset:{L_CS + 1024*(4+t)}")
        a(f"s_branch {lb}")
    deferred.append(blk)
    a(f"s_add_u32 s{sAI}, s{sAI}, 1")
    if v5:
        a(f"v_add_lshl_u32 v{dstG}, v{G+2}, v{vJ4}, 1")
        a(f"v_add_u32 v{vEPa}, v{G+2}, v{vJ16h}")
        a(f"s_mov_b64 exec, {sr(sLO,2)}")
        a(f"ds_read_b128 {vr(A,4)}, v{vTe}")
        a("s_mov_b64 exec, -1")
        return
    a(f"v_pk_add_f32 {P2(G)}, {P2(G)}, {P2(vJ16)} op_sel:[0,1] op_sel_hi:[1,1]")
    a(f"v_add_lshl_u32 v{dstG}, v{G+2}, v{vJ4}, 1")
    a(f"s_mov_b64 exec, {sr(sLO,2)}")
    a(f"ds_read_b128 {vr(A,4)}, v{vTe}")
    a(f"s_mov_b64 exec, {sr(sHI,2)}")
    for t in range(4 if "nop" not in OPT else 0):
        a(f"ds_read_b32 v{B+4*t}, v{G} offset:{L_PPK + 64*t}")
        a(f"ds_read_b32 v{B+4*t+1}, v{G+1} offset:{L_PPK + 64*t}")
    a("s_mov_b64 exec, -1")

def tile_body(a, k, v5, done):
    buf = QH[k]; nbuf = QH[(k + 2) % 3]
    vG = vGS[k]; vGn = vGS[(k + 1) % 3]
    l2 = lab("K2_W")
    a(f"s_cmp_lt_i32 s{sN}, s{sLM3}")
    a(f"s_cbranch_scc1 {l2}")
    a("s_waitcnt vmcnt(4)")
    a.label(l2)
    a("s_waitcnt vmcnt(6)")
    for t in (1, 3):
        p = t >> 1
        for rr in (0, 2):
            a(f"v_pk_mov_b32 {P2(D+4*t+rr)}, {P2(buf+4*rr)}, {P2(buf+4*(rr+1))} op_sel:[{p},{p}]")
    for t in (0, 2):
        p = t >> 1
        for r in range(4):
            a(f"v_lshlrev_b32 v{D+4*t+r}, 16, v{buf+4*r+p}")
    a("s_waitcnt lgkmcnt(4)")
    for t in (1, 3, 0, 2):
        a(f"v_mfma_f32_16x16x32_bf16 {vr(D+4*t,4)}, {vr(A,4)}, {vr(B+4*t,4)}, {vr(D+4*t,4)}")
    ap_stage(a, vGn, v5)
    list_reads(a, v5)
    advance(a)
    h = [buf + 4*r + 2 for r in range(4)]
    for ins in pair_code(1, 3, h, False, vG, v5): a(ins)
    a("s_waitcnt lgkmcnt(3)" if "noadd" not in OPT else "s_waitcnt lgkmcnt(1)")
    gather_stage(a, nbuf)
    for ins in pair_code(0, 2, h, True, vG, v5): a(ins)
    if v5: ep_read(a)
    a(f"s_add_u32 s{sN}, s{sN}, 1")
    if "noprio" in OPT or "oldprio" in OPT:
        a(f"s_cmp_ge_u32 s{sN}, s{sNIT}")
        a(f"s_cbranch_scc1 {done}")
    else:
        l, lb = lab("K2_PR"), lab("K2_PRB")
        a(f"s_cmp_ge_u32 s{sN}, s{sNM2}")
        a(f"s_cbranch_scc1 {l}")
        a.label(lb)
        def blk():
            l1 = lab("K2_PR1")
            a.label(l)
            a(f"s_cmp_ge_u32 s{sN}, s{sNIT}")
            a(f"s_cbranch_scc1 {done}")
            a(f"s_cmp_eq_u32 s{sN}, s{sNM2}")
            a(f"s_cbranch_scc0 {l1}")
            a("s_setprio 1")
            a(f"s_branch {lb}")
            a.label(l1)
            a("s_setprio 0")
            a(f"s_branch {lb}")
        deferred.append(blk)

def table_prefetch(a, vL16):
    if "nopf" in OPT: return
    a(f"s_lshr_b32 s{sTMP+5}, s2, 3")
    a(f"s_mul_i32 s{sTMP+5}, s{sTMP+5}, 81920")
    a(f"s_lshl_b32 s{sTMP+6}, s28, 13")
    a(f"s_add_u32 s{sTMP+5}, s{sTMP+5}, s{sTMP+6}")
    a(f"s_cmp_lt_u32 s28, 10")
    a(f"s_cselect_b32 s{sTMP+5}, s{sTMP+5}, {WS_END}")
    a(f"v_lshlrev_b32 v{vDUM}, 3, v{vL16}")
    a(f"buffer_load_dword v{vDUM}, v{vDUM}, {sr(sWS,4)}, s{sTMP+5} offen")

def table_prefetch(a):
    a(f"s_lshr_b32 s{sTMP}, s2, 3")
    a(f"s_mul_i32 s{sTMP}, s{sTMP}, 81920")
    a(f"s_lshl_b32 s{sTMP+1}, s28, 13")
    a(f"s_add_u32 s{sTMP+1}, s{sTMP+1}, s{sTMP}")
    a(f"v_lshlrev_b32 v{vDUM}, 3, v{vCS}")
    a(f"buffer_load_dword v{vDUM}, v{vDUM}, {sr(sWS,4)}, s{sTMP+1} offen")
    return
    a(f"s_add_u32 s{sTMP+1}, s{sTMP+1}, 65536")
    a(f"s_cmp_lt_u32 s28, 2")
    a(f"s_cselect_b32 s{sTMP+1}, s{sTMP+1}, {WS_END}")
    a(f"buffer_load_dword v127, v{vDUM}, {sr(sWS,4)}, s{sTMP+1} offen")

def k2(a):
    ECOPY = "ecopy" in OPT
    a.raw(".p2align 8")
    a.raw(".type egc_main_kernel,@function")
    a.label("egc_main_kernel")
    a(f"s_cmp_ge_u32 s2, {NB}")
    a("s_cbranch_scc1 K2_EXIT")
    diag_mark(a, 0, True, 0)
    stamp(a, 0)
    if "stamp" in OPT:
        a("s_memrealtime s[80:81]")
        a("s_waitcnt lgkmcnt(0)")
    a("s_load_dwordx4 s[4:7], s[0:1], 0")
    a("s_load_dwordx2 s[8:9], s[0:1], 56")
    a("s_load_dwordx2 s[10:11], s[0:1], 72")
    a("v_lshrrev_b32 v1, 6, v0")
    a("v_lshlrev_b32 v3, 4, v0")
    a("s_and_b32 s46, s2, 7")
    a("v_readfirstlane_b32 s28, v1")
    a("s_lshr_b32 s47, s2, 3")
    a("s_sub_u32 s48, s46, 2")
    a("s_max_i32 s48, s48, 0")
    a("s_lshl_b32 s46, s46, 5")
    a("s_sub_u32 s46, s46, s48")
    a(f"s_add_u32 s{sBIN}, s46, s47")
    a(f"v_and_b32 v{vCS}, 0x3f0, v3")
    a("v_mov_b32 v8, v3")
    a(f"v_bfe_u32 v9, v{vCS}, 4, 4")
    a(f"v_lshrrev_b32 v10, 8, v{vCS}")
    a(f"v_lshlrev_b32 v{vJ16}, 4, v9")
    a(f"v_lshlrev_b32 v{vQ16}, 4, v10")
    a(f"v_lshl_add_u32 v{vK66}, v9, 5, v{vQ16}")
    a(f"v_and_b32 v{vH16}, 16, v{vCS}")
    a(f"v_lshrrev_b32 v{vLH}, 5, v{vCS}")
    a(f"s_mov_b64 {sr(sLO,2)}, 0xffffffff")
    a(f"s_mov_b32 s{sHI}, 0")
    a(f"s_mov_b32 s{sHI+1}, -1")
    a(f"s_mov_b32 s{sCC}, {hex(C_2MK)}")
    a(f"s_mov_b32 s{sCC+1}, {hex(C_2MK)}")
    a(f"s_mov_b32 s{sWIN}, 0")
    a(f"s_mov_b32 s{sE2}, {E2_OFF if ECOPY else 0}")
    a("s_cmp_ge_u32 s28, 8")
    a("s_cbranch_scc1 K2_G")
    vW = 12; vOA = 13; vOf = 14
    vC = 32; vSub = 33; vWb = 34; vEA = 35; vPw = 36; vKB = 37; vSg = 39; vEB = 38
    EN = 56
    a("v_mov_b32 v15, 0")
    a("v_lshrrev_b32 v16, 2, v8")
    a("v_cmp_gt_u32 vcc, 128, v0")
    a(f"v_lshrrev_b32 v{vW}, 1, v0")
    a("s_and_saveexec_b64 s[54:55], vcc")
    a(f"ds_write_b32 v16, v15 offset:{L_CNT}")
    a("s_mov_b64 exec, -1")
    a(f"v_lshlrev_b32 v{vOA}, 10, v{vW}")
    a(f"s_lshl_b32 s{sTMP}, s{sBIN}, 2")
    a(f"s_add_u32 s{sTMP}, s{sTMP}, {OFFS_OFF}")
    a(f"s_mov_b32 s{sTMP+4}, {ENT_OFF}")
    a(f"v_and_b32 v{vSub}, 1, v0")
    a(f"v_mul_u32_u24 v{vSg}, {CE}, v{vW}")
    a("s_waitcnt lgkmcnt(0)")
    srd(a, sWS, 10, WS_END)
    a(f"buffer_load_dword v{vOf}, v{vOA}, {sr(sWS,4)}, s{sTMP} offen")
    a("s_barrier")
    a(f"v_cmp_gt_u32 vcc, 250, v{vW}")
    a(f"v_cmp_eq_u32 s[54:55], 0, v{vSub}")
    a(f"v_mov_b32 v16, {L_TOT}")
    if not ECOPY: a(f"v_mul_u32_u24 v{vWb}, {CE*32}, v{vW}")
    a(f"v_mov_b32 v{vKB}, 0")
    srd(a, sE, 6, E * 32)
    srd(a, sO, 8, N * 256)
    a("s_waitcnt vmcnt(0)")
    a(f"v_lshrrev_b32 v{vC}, 16, v{vOf}")
    a(f"v_and_b32 v{vOf}, 0xffff, v{vOf}")
    a(f"v_cndmask_b32 v{vC}, 0, v{vC}, vcc")
    a(f"v_add_u32 v{vSg}, v{vSg}, v{vOf}")
    def entry_addr():
        a(f"v_lshlrev_b32 v{vEB}, 2, v{vSg}")
        a(f"v_lshl_add_u32 v{vEA}, v{vSub}, 5, v{vEB}")
        a(f"v_lshl_add_u32 v{vEB}, v{vSub}, 3, v{vEB}")
    def entry_loads(soff):
        a(f"buffer_load_dwordx4 {vr(EN,4)}, v{vEA}, {sr(sWS,4)}, s{soff} offen")
        a(f"buffer_load_dwordx4 {vr(EN+4,4)}, v{vEA}, {sr(sWS,4)}, s{soff} offen offset:16")
        a(f"buffer_load_dwordx2 {vr(EN+8,2)}, v{vEB}, {sr(sWS,4)}, s{soff} offen offset:64")
    entry_addr()
    entry_loads(sTMP+4)
    stamp(a, 1)
    a("s_mov_b64 exec, s[54:55]")
    a(f"ds_add_rtn_u32 v{vPw}, v16, v{vC}")
    a("s_mov_b64 exec, -1")
    a("s_waitcnt lgkmcnt(0)")
    a(f"v_mov_b32_dpp v{vPw}, v{vPw} quad_perm:[0,0,2,2] row_mask:0xf bank_mask:0xf")
    a("s_nop 0")
    a(f"v_mov_b32 v121, v{vPw}")
    a("s_waitcnt vmcnt(0)")
    a.label("K2_WINDOW")
    vKE = 66; vRA = 67
    a(f"s_add_u32 s{sTMP}, s{sWIN}, {CAPE}")
    a(f"v_sub_u32 v{vKE}, s{sTMP}, v{vPw}")
    a(f"v_min_i32 v{vKE}, v{vKE}, v{vC}")
    if ECOPY:
        a(f"v_sub_u32 v{vWb}, v{vSg}, v{vPw}")
        a(f"v_add_lshl_u32 v{vWb}, v{vWb}, s{sWIN}, 5")
    a.label("K2_COPY")
    a(f"v_add_u32 v{vRA}, v{vPw}, v{vKB}")
    a(f"v_subrev_u32 v{vRA}, s{sWIN}, v{vRA}")
    a(f"v_sub_u32 v68, v{vKE}, v{vKB}")
    a(f"v_lshlrev_b32 v69, 3, v{vSub}")
    a("v_sub_u32 v70, v68, v69")
    a(f"v_add_lshl_u32 v69, v{vRA}, v69, 3")
    a(f"v_add_u32 v69, {L_RAW}, v69")
    a(f"v_lshlrev_b32 v71, 1, v{vSub}")
    a("v_sub_u32 v68, v68, v71")
    a(f"v_add_lshl_u32 v71, v{vRA}, v71, 3")
    a(f"v_add_u32 v71, {L_RAW + 128}, v71")
    for i in range(8):
        a(f"v_cmp_lt_i32 vcc, {i}, v70")
        a("s_and_b64 exec, exec, vcc")
        a("s_cbranch_execz K2_CPA")
        a(f"ds_write2_b32 v69, v{EN+i}, v{vWb} offset0:{2*i} offset1:{2*i+1}")
    a.label("K2_CPA")
    a("s_mov_b64 exec, -1")
    for i in range(2):
        a(f"v_cmp_lt_i32 vcc, {16+i}, v68")
        a("s_and_b64 exec, exec, vcc")
        a("s_cbranch_execz K2_CPB")
        a(f"ds_write2_b32 v71, v{EN+8+i}, v{vWb} offset0:{2*i} offset1:{2*i+1}")
    a.label("K2_CPB")
    a("s_mov_b64 exec, -1")
    a(f"v_add_u32 v{vKB}, 20, v{vKB}")
    a(f"v_cmp_lt_i32 vcc, v{vKB}, v{vKE}")
    a("s_cmp_eq_u64 vcc, 0")
    a("s_cbranch_scc1 K2_COPIED")
    a(f"v_add_u32 v{vEA}, 80, v{vEA}")
    a(f"v_add_u32 v{vEB}, 80, v{vEB}")
    a(f"s_mov_b32 s{sTMP+4}, {ENT_OFF}")
    entry_loads(sTMP+4)
    a("s_waitcnt vmcnt(0)")
    a("s_branch K2_COPY")
    a.label("K2_COPIED")
    if "pfB" in OPT: table_prefetch(a)
    a(f"v_mov_b32 v70, {L_TOT}")
    a("s_waitcnt lgkmcnt(0)")
    a("s_barrier")
    stamp(a, 2)
    a("ds_read_b32 v70, v70")
    if "pfC" in OPT: table_prefetch(a)
    RE = 56
    ND = 62; RK = 65
    a("v_lshlrev_b32 v68, 3, v0")
    a(f"v_add_u32 v68, {L_RAW}, v68")
    for i in range(3):
        a(f"ds_read_b64 {P2(RE+2*i)}, v68 offset:{4096*i}")
    a("v_mov_b32 v69, 1")
    a("s_waitcnt lgkmcnt(3)")
    a(f"v_readfirstlane_b32 s{sTOT}, v70")
    a("v_add_u32 v71, 512, v0")
    a("v_add_u32 v72, 1024, v0")
    a(f"s_sub_u32 s{sTMP}, s{sTOT}, s{sWIN}")
    a(f"s_min_u32 s{sTMP}, s{sTMP}, {CAPE}")
    a(f"v_cmp_gt_u32 {sr(sM,2)}, s{sTMP}, v0")
    a(f"v_cmp_gt_u32 {sr(sM+2,2)}, s{sTMP}, v71")
    a(f"v_cmp_gt_u32 {sr(sM+4,2)}, s{sTMP}, v72")
    for i in range(3):
        l = lab("K2_RK")
        a(f"s_waitcnt lgkmcnt({2-i if i == 0 else 0})" if i == 0 else "s_waitcnt lgkmcnt(0)" if i == 1 else "")
        a(f"v_bfe_u32 v{ND+i}, v{RE+2*i}, 14, 6")
        a(f"v_lshlrev_b32 v{ND+i}, 2, v{ND+i}")
        a(f"s_mov_b64 exec, {sr(sM+2*i,2)}")
        a(f"s_cbranch_execz {l}")
        a(f"ds_add_rtn_u32 v{RK+i}, v{ND+i}, v69 offset:{L_CNT}")
        a.label(l)
        a("s_mov_b64 exec, -1")
    a(f"v_lshrrev_b32 v68, 2, v{vCS}")
    a("s_waitcnt lgkmcnt(0)")
    a("s_barrier")
    stamp(a, 3)
    a(f"ds_read_b32 v69, v68 offset:{L_CNT}")
    for i in range(3):
        e = RE + 2*i
        if ECOPY:
            a(f"v_lshl_add_u32 v{e+1}, v0, 5, v{e+1}")
            if i: a(f"v_add_u32 v{e+1}, {512*32*i}, v{e+1}")
        else:
            a(f"v_lshrrev_b32 v70, 20, v{e}")
            a(f"v_lshl_add_u32 v{e+1}, v70, 5, v{e+1}")
        a(f"v_and_b32 v{e}, 0x3fff, v{e}")
        a(f"v_lshlrev_b32 v{e}, 8, v{e}")
    a("s_waitcnt lgkmcnt(0)")
    a("v_add_u32 v70, 3, v69")
    a("v_and_b32 v70, -4, v70")
    a("v_mov_b32 v71, v70")
    wave_scan(a, 71)
    a("v_sub_u32 v72, v71, v70")
    a("s_nop 0")
    a(f"v_readlane_b32 s{sNIT}, v71, 63")
    for i in range(3):
        a(f"ds_bpermute_b32 v{73+i}, v{ND+i}, v72")
    for i in range(3):
        a(f"v_lshlrev_b32 v{ND+i}, 7, v{ND+i}")
    for i in range(3):
        e = RE + 2*i
        l = lab("K2_PL")
        a(f"s_waitcnt lgkmcnt({2-i})" if i == 0 else "s_waitcnt lgkmcnt(0)" if i == 1 else "")
        a(f"s_mov_b64 exec, {sr(sM+2*i,2)}")
        a(f"s_cbranch_execz {l}")
        a(f"v_add_u32 v{73+i}, v{73+i}, v{RK+i}")
        a(f"v_and_b32 v{RK+i}, 3, v{RK+i}")
        a(f"v_lshlrev_b32 v76, 2, v{73+i}")
        a(f"v_cmp_eq_u32 vcc, 0, v{RK+i}")
        a(f"ds_write_b32 v76, v{e} offset:{L_ROW}")
        a(f"ds_write_b32 v76, v{e+1} offset:{L_EO}")
        a("s_and_b64 exec, exec, vcc")
        a(f"s_cbranch_execz {l}")
        a(f"ds_write_b32 v76, v{ND+i} offset:{L_GN + 8}")
        a(f"v_and_b32 v77, 0xffffffc0, v76")
        a(f"v_bfe_u32 v{RK+i}, v76, 5, 1")
        a(f"v_lshl_add_u32 v77, v{RK+i}, 4, v77")
        a(f"v_bfe_u32 v{RK+i}, v76, 4, 1")
        a(f"v_lshl_add_u32 v77, v{RK+i}, 2, v77")
        a(f"ds_write_b32 v77, v{ND+i} offset:{L_GN + 32}")
        a.label(l)
        a("s_mov_b64 exec, -1")
    a(f"s_add_u32 s{sTMP}, s{sNIT}, 15")
    a(f"s_lshr_b32 s{sTMP+1}, s{sTMP}, 4")
    a("s_cmp_ge_u32 s28, 2")
    a("s_cbranch_scc1 K2_NOTAIL")
    a(f"v_mov_b32 v78, {N*256}")
    a("v_mov_b32 v79, 0")
    a("s_cmp_eq_u32 s28, 0")
    a("s_cbranch_scc0 K2_NOPAD")
    a(f"v_mov_b32 v76, s{sTMP+1}")
    a(f"v_mov_b32 v77, {L_TILES}")
    a("ds_write_b32 v77, v76")
    a("v_add_u32 v76, v72, v69")
    for m in range(3):
        a("v_cmp_lt_u32 vcc, v76, v71")
        a("s_and_b64 exec, exec, vcc")
        a(f"s_cbranch_execz K2_NOTAIL")
        a("v_lshlrev_b32 v77, 2, v76")
        a(f"ds_write_b32 v77, v78 offset:{L_ROW}")
        a(f"ds_write_b32 v77, v79 offset:{L_EO}")
        a("v_add_u32 v76, 1, v76")
    a("s_branch K2_NOTAIL")
    a.label("K2_NOPAD")
    a(f"v_lshrrev_b32 v76, 4, v{vCS}")
    a(f"v_add_u32 v76, s{sNIT}, v76")
    a(f"s_lshl_b32 s{sTMP+2}, s{sTMP+1}, 4")
    a(f"v_cmp_gt_u32 vcc, s{sTMP+2}, v76")
    a("s_and_b64 exec, exec, vcc")
    a("s_cbranch_execz K2_NOTAIL")
    a("v_lshlrev_b32 v77, 2, v76")
    a(f"ds_write_b32 v77, v78 offset:{L_ROW}")
    a(f"ds_write_b32 v77, v79 offset:{L_EO}")
    a("v_and_b32 v76, 3, v76")
    a("v_cmp_eq_u32 vcc, 0, v76")
    a("s_and_b64 exec, exec, vcc")
    a("s_cbranch_execz K2_NOTAIL")
    a(f"ds_write_b32 v77, v79 offset:{L_GN + 8}")
    a(f"v_and_b32 v76, 0xffffffc0, v77")
    a("v_bfe_u32 v78, v77, 5, 1")
    a("v_lshl_add_u32 v76, v78, 4, v76")
    a("v_bfe_u32 v78, v77, 4, 1")
    a("v_lshl_add_u32 v76, v78, 2, v76")
    a(f"ds_write_b32 v76, v79 offset:{L_GN + 32}")
    a.label("K2_NOTAIL")
    a("s_mov_b64 exec, -1")
    a("s_waitcnt lgkmcnt(0)")
    a("s_barrier")
    a("s_branch K2_JOIN")
    a.label("K2_G")
    WP = 8; WU = 24; ACP = 56; ACU = 104; XR = 56; CR = 64
    AFS = [40, 68, 84]
    g2, g4, g5, g6, g7, g1, g3 = 100, 101, 102, 103, 121, 122, 123
    a(f"v_subrev_u32 v{g2}, 0x2000, v8")
    a(f"v_mov_b32 v{g7}, v9")
    a(f"v_mov_b32 v{g6}, v10")
    a(f"s_sub_u32 s{sTMP+6}, s28, 8")
    a(f"s_mul_i32 s{sTMP+1}, s{sBIN}, {NPB*256}")
    a(f"s_add_u32 s{sTMP+2}, s{sTMP+1}, 8192")
    a(f"s_mov_b32 s{sTMP+3}, {CF_OFF}")
    a(f"s_mov_b32 s{sTMP+4}, {CF_OFF + 8192}")
    a(f"s_lshl_b32 s{sTMP+5}, s{sTMP+6}, 12")
    a(f"s_add_u32 s{sTMP+5}, s{sTMP+5}, {WF_OFF}")
    a(f"v_lshrrev_b32 v{g4}, 8, v{g2}")
    a(f"v_mul_u32_u24 v{g4}, 272, v{g4}")
    a(f"v_lshl_add_u32 v{g4}, v{g7}, 4, v{g4}")
    a(f"v_add_u32 v{g4}, {L_XS}, v{g4}")
    a(f"v_cmp_gt_u32 vcc, 0x1000, v{g2}")
    a("s_waitcnt lgkmcnt(0)")
    srd(a, sX, 4, N * 256)
    a(f"buffer_load_dwordx4 {vr(XR,4)}, v{g2}, {sr(sX,4)}, s{sTMP+1} offen")
    a(f"buffer_load_dwordx4 {vr(XR+4,4)}, v{g2}, {sr(sX,4)}, s{sTMP+2} offen")
    srd(a, sWS, 10, WS_END)
    a(f"buffer_load_dwordx4 {vr(CR,4)}, v{g2}, {sr(sWS,4)}, s{sTMP+3} offen")
    a(f"buffer_load_dwordx4 {vr(CR+4,4)}, v{vCS}, {sr(sWS,4)}, s{sTMP+4} offen")
    a("s_barrier")
    srd(a, sE, 6, E * 32)
    srd(a, sO, 8, N * 256)
    a("s_waitcnt vmcnt(3)")
    gstamp(a, 1)
    a(f"ds_write_b128 v{g4}, {vr(XR,4)}")
    a("s_and_saveexec_b64 s[54:55], vcc")
    a("s_waitcnt vmcnt(2)")
    a(f"ds_write_b128 v{g4}, {vr(XR+4,4)} offset:{32*272}")
    a("s_mov_b64 exec, -1")
    a("s_waitcnt vmcnt(1)")
    a(f"ds_write_b128 v{g2}, {vr(CR,4)} offset:{L_CS}")
    a("s_waitcnt vmcnt(0)")
    a(f"s_cmp_eq_u32 s{sTMP+6}, 0")
    a("s_cbranch_scc0 K2_NOA")
    a(f"ds_write_b128 v{vCS}, {vr(CR+4,4)} offset:{L_CS+8192}")
    a.label("K2_NOA")
    for ks in range(4):
        a(f"buffer_load_dwordx4 {vr(WP+4*ks,4)}, v{vCS}, {sr(sWS,4)}, s{sTMP+5} offen offset:{1024*ks}")
    a(f"s_add_u32 s{sTMP+5}, s{sTMP+5}, 32768")
    for ks in range(4):
        a(f"buffer_load_dwordx4 {vr(WU+4*ks,4)}, v{vCS}, {sr(sWS,4)}, s{sTMP+5} offen offset:{1024*ks}")
    a(f"v_mul_u32_u24 v{g4}, 272, v{g7}")
    a(f"v_lshl_add_u32 v{g4}, v{g6}, 4, v{g4}")
    a(f"v_add_u32 v{g4}, {L_XS}, v{g4}")
    a(f"v_lshlrev_b32 v{g5}, 11, v{g6}")
    a(f"v_lshl_add_u32 v{g5}, v{g7}, 2, v{g5}")
    a(f"s_lshl_b32 s{sTMP}, s{sTMP+6}, 6")
    a(f"v_add_u32 v{g5}, s{sTMP}, v{g5}")
    a(f"v_mov_b32 v{g1}, {L_TOT}")
    a(f"s_mov_b32 s{sTMP}, {hex(NEG_LOG2E)}")
    a(f"s_mov_b32 s{sTMP+1}, {hex(f2u(P_RANGE / 1.4426950408889634))}")
    a("s_waitcnt lgkmcnt(0)")
    gstamp(a, 2)
    a("s_barrier")
    gstamp(a, 3)
    for rho in range(3):
        for ks in range(4):
            a(f"ds_read_b128 {vr(AFS[rho]+4*ks,4)}, v{g4} offset:{rho*16*272 + ks*64}")
    a(f"ds_read_b32 v{g1}, v{g1}")
    a(f"v_lshlrev_b32 v{g4}, 1, v{g5}")
    a(f"v_add_u32 v{g4}, {L_AGG}, v{g4}")
    a("s_waitcnt vmcnt(0)")
    gstamp(a, 4)
    for rho in range(3):
        AF = AFS[rho]
        a(f"s_waitcnt lgkmcnt({9-4*rho})")
        for ks in range(4):
            c = "0" if ks == 0 else vr(ACP+4*rho, 4)
            a(f"v_mfma_f32_16x16x32_bf16 {vr(ACP+4*rho,4)}, {vr(AF+4*ks,4)}, {vr(WP+4*ks,4)}, {c}")
    for rho in range(3):
        AF = AFS[rho]
        for ks in range(4):
            c = "0" if ks == 0 else vr(ACU+4*rho, 4)
            a(f"v_mfma_f32_16x16x32_bf16 {vr(ACU+4*rho,4)}, {vr(AF+4*ks,4)}, {vr(WU+4*ks,4)}, {c}")
    a("s_waitcnt lgkmcnt(0)")
    a(f"v_readfirstlane_b32 s{sTOT}, v{g1}")
    a(f"v_max3_f32 v{g1}, |v{ACP}|, |v{ACP+1}|, |v{ACP+2}|")
    for i in range(3, 11, 2):
        a(f"v_max3_f32 v{g1}, |v{ACP+i}|, |v{ACP+i+1}|, v{g1}")
    a(f"v_max_f32_e64 v{g1}, |v{ACP+11}|, v{g1}")
    a(f"v_mov_b32 v{g2}, {L_FLAG}")
    a(f"v_cmp_nge_f32 vcc, s{sTMP+1}, v{g1}")
    a(f"v_mov_b32 v{g3}, 1")
    if "nov5" in OPT: a("s_mov_b64 vcc, -1")
    a("s_and_saveexec_b64 s[54:55], vcc")
    a("s_cbranch_execz K2_NOFLAG")
    a(f"ds_write_b32 v{g2}, v{g3}")
    a.label("K2_NOFLAG")
    a("s_mov_b64 exec, -1")
    a("s_waitcnt lgkmcnt(0)")
    gstamp(a, 5)
    a("s_barrier")
    a(f"ds_read_b32 v{g2}, v{g2}")
    for rho in range(3):
        if rho == 2: a(f"s_mov_b64 exec, {sr(sLO,2)}")
        for r in range(4):
            a(f"v_cvt_f64_f32 {P2(AFS[rho]+2*r)}, v{ACU+4*rho+r}")
        for r in range(4):
            a(f"ds_write_b64 v{g4}, {P2(AFS[rho]+2*r)} offset:{rho*16384 + r*1024}")
    a("s_mov_b64 exec, -1")
    a(f"s_and_b32 s{sTMP+2}, s{sTMP+6}, 3")
    a(f"s_lshl_b32 s{sTMP+2}, s{sTMP+2}, 1")
    a(f"s_lshr_b32 s{sTMP+3}, 0x72, s{sTMP+2}")
    a(f"s_and_b32 s{sTMP+3}, s{sTMP+3}, 3")
    a(f"s_lshl_b32 s{sTMP+3}, s{sTMP+3}, 2")
    a(f"s_lshr_b32 s{sTMP+2}, s{sTMP+6}, 2")
    a(f"s_lshl_b32 s{sTMP+2}, s{sTMP+2}, 8")
    a(f"s_add_u32 s{sTMP+3}, s{sTMP+2}, s{sTMP+3}")
    a("s_waitcnt lgkmcnt(12)")
    a(f"v_readfirstlane_b32 s{sTMP+2}, v{g2}")
    a(f"v_mov_b32 v{g3}, {hex(f2u(-float(KSH)))}")
    a("s_nop 2")
    a(f"s_cmp_lg_u32 s{sTMP+2}, 0")
    a("s_cbranch_scc1 K2_PADD")
    a(f"v_lshlrev_b32 v{g5}, 11, v{g6}")
    a(f"v_lshl_add_u32 v{g5}, v{g7}, 4, v{g5}")
    a(f"v_add_u32 v{g5}, s{sTMP+3}, v{g5}")
    for i in range(12):
        a(f"v_fma_f32 v{ACP+i}, v{ACP+i}, s{sTMP}, v{g3}")
    for i in range(12):
        a(f"v_exp_f32 v{ACP+i}, v{ACP+i}")
    for rho in range(3):
        if rho == 2: a(f"s_mov_b64 exec, {sr(sLO,2)}")
        for r in range(4):
            a(f"ds_write_b32 v{g5}, v{ACP+4*rho+r} offset:{L_PPK + rho*8192 + r*512}")
    a("s_branch K2_PDONE")
    a.label("K2_PADD")
    for i in range(12):
        a(f"v_mul_f32 v{ACP+i}, s{sTMP}, v{ACP+i}")
    for i in range(12):
        a(f"v_cvt_pk_bf16_f32 v{ACP+i}, v{ACP+i}, 0")
    for rho in range(3):
        if rho == 2: a(f"s_mov_b64 exec, {sr(sLO,2)}")
        for r in range(4):
            a(f"ds_write_b32 v{g5}, v{ACP+4*rho+r} offset:{L_PPK + rho*8192 + r*512}")
    a.label("K2_PDONE")
    a("s_mov_b64 exec, -1")
    a("s_waitcnt lgkmcnt(0)")
    gstamp(a, 6)
    a("s_barrier")
    a("s_branch K2_JOIN")
    a.label("K2_G_WINDOW")
    a("s_barrier")
    a("s_barrier")
    a("s_barrier")
    a.label("K2_JOIN")
    stamp(a, 4)
    a("s_cmp_eq_u32 s28, 0")
    a("s_cbranch_scc0 K2_NOZ2")
    a(f"v_lshrrev_b32 v68, 2, v{vCS}")
    a("v_mov_b32 v69, 0")
    a(f"ds_write_b32 v68, v69 offset:{L_CNT}")
    a("s_waitcnt lgkmcnt(0)")
    a.label("K2_NOZ2")
    a(f"v_mov_b32 v70, {L_TILES}")
    a("ds_read_b64 v[70:71], v70")
    for t in range(4):
        a(f"ds_read_b128 {vr(B+4*t,4)}, v{vCS} offset:{L_CS + 1024*t}")
    a(f"ds_read_b128 {vr(A,4)}, v{vCS} offset:{L_CS + 8192}")
    a(f"v_lshrrev_b32 v{vJ4}, 2, v{vJ16}")
    a(f"v_mov_b32 v{vJ16h}, v{vJ16}")
    a("s_waitcnt lgkmcnt(5)")
    a(f"v_readfirstlane_b32 s{sTMP+1}, v70")
    a(f"v_readfirstlane_b32 s{sFLAG}, v71")
    a(f"s_lshr_b32 s{sTMP+2}, s{sTMP+1}, 4")
    a(f"s_and_b32 s{sTMP+3}, s{sTMP+1}, 15")
    a(f"s_cmp_lt_u32 s28, s{sTMP+3}")
    a(f"s_cselect_b32 s{sL}, 1, 0")
    a(f"s_add_u32 s{sL}, s{sL}, s{sTMP+2}")
    a(f"s_mul_i32 s{sTMP+2}, s{sTMP+2}, s28")
    a(f"s_min_u32 s{sTMP+3}, s{sTMP+3}, s28")
    a(f"s_add_u32 s{sTMP+2}, s{sTMP+2}, s{sTMP+3}")
    a(f"s_lshl_b32 s{sNIT}, s{sL}, {2 if 'dbl' in OPT else 1}")
    a(f"s_cmp_eq_u32 s{sL}, 0")
    a("s_cbranch_scc1 K2_LOOP_DONE")
    if "noprio" not in OPT: a("s_setprio 3")
    a(f"s_lshl_b32 s{sTMP+4}, s{sTMP+2}, 4")
    a(f"v_add_lshl_u32 v{vTd}, v{vLH}, s{sTMP+4}, 2")
    a(f"s_lshl_b32 s{sM0}, s{sTMP+2}, 9")
    a(f"s_add_u32 s{sM0}, s{sM0}, {L_ES}")
    a(f"v_add_u32 v{vTe0}, s{sM0}, v{vK66}")
    a(f"s_lshl_b32 s{sTMP+4}, s{sTMP+2}, 6")
    a(f"v_add_u32 v{vTa0}, s{sTMP+4}, v{vQ16}")
    a(f"s_mov_b32 s{sDI}, 0")
    a(f"s_mov_b32 s{sN}, 0")
    a(f"s_mov_b32 s{sLI}, 0")
    a(f"s_mov_b32 s{sAI}, 0")
    a(f"s_mov_b32 s{sHL}, 0")
    a(f"s_mov_b32 s{sINCP}, 64")
    a(f"s_mov_b32 s{sINCP+1}, 512")
    a(f"s_sub_i32 s{sLM3}, s{sL}, 3")
    a(f"s_sub_u32 s{sNM2}, s{sNIT}, 2")
    eo_read(a)
    a(f"v_mov_b32 v{vTa}, v{vTa0}")
    a(f"v_mov_b32 v{vTe}, v{vTe0}")
    a("s_waitcnt lgkmcnt(0)")
    e_dma(a)
    a(f"s_cmp_lt_u32 s{sDI}, s{sL}")
    a("s_cbranch_scc0 K2_ND1")
    eo_read(a)
    a("s_waitcnt lgkmcnt(0)")
    e_dma(a)
    eo_read(a)
    a.label("K2_ND1")
    a(f"s_cmp_lg_u32 s{sFLAG}, 0")
    a("s_cbranch_scc1 K2_SETUP_ADD")
    for v5 in (True, False):
        sfx = "F" if v5 else "A"
        if v5:
            for i in range(4): a(f"v_mov_b32 v{A+i}, 0")
        else:
            a.label("K2_SETUP_ADD")
        list_reads(a, v5)
        a(f"v_add_u32 v{vTa}, 64, v{vTa}")
        a("s_waitcnt lgkmcnt(0)")
        gather_stage(a, QH[0])
        for i in range(3):
            if not v5 or i == 2: a(f"v_mov_b32 v{EP+i}, v{G+i}")
        list_reads(a, v5)
        a(f"v_add_u32 v{vTa}, 64, v{vTa}")
        a("s_waitcnt lgkmcnt(0)")
        gather_stage(a, QH[1])
        if v5: stamp(a, 5)
        a("s_waitcnt vmcnt(8)")
        ap_stage(a, vGS[0], v5, EP)
        if v5: ep_read(a)
        a(f"v_add_u32 v{vTe}, 512, v{vTe}")
        a("s_waitcnt lgkmcnt(0)")
        a.label(f"K2_LOOP{sfx}")
        for k in range(3):
            tile_body(a, k, v5, "K2_LOOP_DONE")
        a(f"s_branch K2_LOOP{sfx}")
        for blk in deferred: blk()
        deferred.clear()
    a.label("K2_LOOP_DONE")
    a("s_setprio 0")
    a("s_waitcnt vmcnt(0)")
    if "pstamp" not in OPT: stamp(a, 6)
    a("s_waitcnt lgkmcnt(0)")
    a("s_barrier")
    a(f"s_add_u32 s{sWIN}, s{sWIN}, {CAPE}")
    a(f"s_cmp_lt_u32 s{sWIN}, s{sTOT}")
    a("s_cbranch_scc0 K2_EPI")
    a("s_cmp_ge_u32 s28, 8")
    a("s_cbranch_scc1 K2_G_WINDOW")
    a(f"v_lshrrev_b32 v{vW}, 1, v0")
    a(f"v_lshlrev_b32 v{vOA}, 10, v{vW}")
    a(f"s_lshl_b32 s{sTMP}, s{sBIN}, 2")
    a(f"s_add_u32 s{sTMP}, s{sTMP}, {OFFS_OFF}")
    a(f"buffer_load_dword v{vOf}, v{vOA}, {sr(sWS,4)}, s{sTMP} offen")
    a(f"v_and_b32 v{vSub}, 1, v0")
    a(f"v_mul_u32_u24 v{vSg}, {CE}, v{vW}")
    a(f"v_cmp_gt_u32 vcc, 250, v{vW}")
    a(f"v_mov_b32 v{vPw}, v121")
    if not ECOPY: a(f"v_mul_u32_u24 v{vWb}, {CE*32}, v{vW}")
    a("s_waitcnt vmcnt(0)")
    a(f"v_lshrrev_b32 v{vC}, 16, v{vOf}")
    a(f"v_and_b32 v{vOf}, 0xffff, v{vOf}")
    a(f"v_cndmask_b32 v{vC}, 0, v{vC}, vcc")
    a(f"v_add_u32 v{vSg}, v{vSg}, v{vOf}")
    a(f"v_sub_u32 v{vKB}, s{sWIN}, v{vPw}")
    a(f"v_max_i32 v{vKB}, 0, v{vKB}")
    entry_addr()
    a(f"v_lshl_add_u32 v{vEA}, v{vKB}, 2, v{vEA}")
    a(f"v_lshl_add_u32 v{vEB}, v{vKB}, 2, v{vEB}")
    a(f"s_mov_b32 s{sTMP+4}, {ENT_OFF}")
    entry_loads(sTMP+4)
    a("s_waitcnt vmcnt(0)")
    a("s_branch K2_WINDOW")
    a.label("K2_EPI")
    a("v_cmp_gt_u32 vcc, 640, v0")
    a("s_and_saveexec_b64 s[54:55], vcc")
    a("s_cbranch_execz K2_EXIT")
    a("v_lshlrev_b32 v1, 6, v0")
    for i in range(4):
        a(f"ds_read_b128 {vr(32+4*i,4)}, v1 offset:{L_AGG+16*i}")
    a(f"s_mov_b32 s{sTMP}, {hex(C_2MK)}")
    a(f"s_mov_b32 s{sTMP+1}, {hex(NEG_LOG2E)}")
    a("s_waitcnt lgkmcnt(0)")
    for i in range(8):
        a(f"v_cvt_f32_f64 v{8+i}, v[{32+2*i}:{33+2*i}]")
    a(f"s_mov_b32 s{sTMP+2}, {hex(f2u(-1.4426950408889634 * 2.0**-KSH))}")
    a(f"s_mov_b32 s{sTMP+3}, {hex(f2u(-1.4426950408889634 * 2.0**-KSH))}")
    a(f"s_mov_b32 s{sTMP+1}, {hex(C_2MK)}")
    a(f"s_mov_b32 s{sTMP+4}, 1.0")
    a(f"s_mov_b32 s{sTMP+5}, 1.0")
    for i in range(4):
        a(f"v_pk_mul_f32 {P2(16+2*i)}, {P2(8+2*i)}, s[{sTMP+2}:{sTMP+3}]")
    for i in range(4):
        a(f"v_pk_mul_f32 {P2(8+2*i)}, {P2(8+2*i)}, s[{sTMP}:{sTMP+1}]")
    for i in range(8):
        a(f"v_exp_f32 v{16+i}, v{16+i}")
    for i in range(4):
        a(f"v_pk_add_f32 {P2(16+2*i)}, {P2(16+2*i)}, s[{sTMP+4}:{sTMP+5}]")
    for i in range(8):
        a(f"v_rcp_f32 v{16+i}, v{16+i}")
    a("s_nop 0")
    for i in range(4):
        a(f"v_pk_mul_f32 {P2(8+2*i)}, {P2(8+2*i)}, {P2(16+2*i)}")
    for i in range(4):
        a(f"v_cvt_pk_bf16_f32 v{24+i}, v{8+2*i}, v{9+2*i}")
    a("v_lshlrev_b32 v2, 4, v0")
    a(f"s_mul_i32 s{sTMP}, s{sBIN}, {NPB*256}")
    a(f"buffer_store_dwordx4 v[24:27], v2, {sr(sO,4)}, s{sTMP} offen")
    if "diag" in OPT:
        a("s_waitcnt vmcnt(0)")
        diag_mark(a, 1, False, 0)
    if "stamp" in OPT:
        a("s_waitcnt vmcnt(0)")
        stamp(a, 7)
        a("s_memrealtime s[82:83]")
        a("s_waitcnt lgkmcnt(0)")
        stamp_out(a, 10)
    a.label("K2_EXIT")
    a("s_endpgm")

HEADER = f"""; EGC edge-gated message passing: out = silu(x@U + segsum_dst(sigmoid([x_dst,x_src,e]@G) * (x@V)[src]))
; launch 1 (prep): per-node tables Q'=-log2e*(x@B), H=x@V; edge binning by destination; weight fragment images
; @launch kernel=egc_prep_kernel grid=({K1_WGS},1,1) block=(256,1,1) lds={K1_LDS}
; @launch kernel=egc_main_kernel grid=({NB},1,1) block=(1024,1,1) lds={K2_LDS}
.amdgcn_target "amdgcn-amd-amdhsa--gfx950"
.text
"""

def kd(name, vgpr, sgpr, denorm=False):
    extra = "  .amdhsa_float_denorm_mode_32 3\n" if denorm else ""
    return f""".amdhsa_kernel {name}
  .amdhsa_next_free_vgpr {vgpr}
  .amdhsa_next_free_sgpr {sgpr}
  .amdhsa_accum_offset {((vgpr+3)//4)*4}
  .amdhsa_group_segment_fixed_size 0
  .amdhsa_kernarg_size 80
  .amdhsa_user_sgpr_count 2
  .amdhsa_user_sgpr_kernarg_segment_ptr 1
  .amdhsa_system_sgpr_workgroup_id_x 1
{extra}.end_amdhsa_kernel
"""

def k3(a, which):
    a.raw(".globl egc_diag_kernel")
    a.raw(".p2align 8")
    a.raw(".type egc_diag_kernel,@function")
    a.label("egc_diag_kernel")
    a("s_cmp_ge_u32 s2, 1")
    a("s_cbranch_scc1 K3_END")
    a("s_load_dwordx2 s[4:5], s[0:1], 64")
    a("s_waitcnt lgkmcnt(0)")
    a("s_sub_u32 s4, s4, 1024")
    a("s_subb_u32 s5, s5, 0")
    a("s_load_dwordx2 s[6:7], s[4:5], 0")
    a("s_load_dwordx2 s[8:9], s[4:5], 512")
    a("s_memrealtime s[10:11]")
    a("s_waitcnt lgkmcnt(0)")
    a("s_not_b32 s6, s6")
    a("s_not_b32 s8, s8")
    if which == 1: a("s_sub_u32 s12, s7, s6")
    if which == 2: a("s_sub_u32 s12, s8, s7")
    if which == 3: a("s_sub_u32 s12, s9, s8")
    if which == 4: a("s_sub_u32 s12, s10, s9")
    if which == 0: a("s_mov_b32 s12, 0")
    a("s_lshl_b32 s12, s12, 2")
    a("s_min_u32 s12, s12, 20000")
    a.label("K3_SPIN")
    a("s_memrealtime s[14:15]")
    a("s_waitcnt lgkmcnt(0)")
    a("s_sub_u32 s14, s14, s10")
    a("s_cmp_lt_u32 s14, s12")
    a("s_cbranch_scc1 K3_SPIN")
    a.label("K3_END")
    a("s_endpgm")

def main():
    a = Asm()
    a.raw(".globl egc_prep_kernel")
    k1(a)
    a.raw(".globl egc_main_kernel")
    k2(a)
    hdr = HEADER
    which = [int(o[4:]) for o in OPT if o.startswith("dsel")]
    if which:
        k3(a, which[0])
        hdr = hdr.replace(".amdgcn_target", "; @launch kernel=egc_diag_kernel grid=(1,1,1) block=(64,1,1) lds=0\n.amdgcn_target", 1)
    out = hdr + a.text()
    out += '.section .rodata,"a"\n.p2align 6\n' + kd("egc_prep_kernel", 104 if ("stamp1" in OPT or "diag" in OPT) else 96, 96) + ".p2align 6\n" + kd("egc_main_kernel", 128, 96, True) + (".p2align 6\n" + kd("egc_diag_kernel", 8, 32) if which else "")
    path = sys.argv[1] if len(sys.argv) > 1 else f"cdna_kernels/{NAME}.s"
    open(path, "w").write(out)
    print("wrote", path, len(out), "bytes")

if __name__ == "__main__":
    main()
```

```python
import sys, struct, os
OPT = set(os.environ.get("OPT","").split(","))

NAME = "gather_scatter__edge_featured_mpnn_egc__graph"
N = 10000; E = 320000
NB = 250; NPB = 40
NC = 250; CE = 1280
KSH = 26
def f2u(x): return struct.unpack('<I', struct.pack('<f', x))[0]
NEG_LOG2E = f2u(-1.4426950408889634)
C_2MK = f2u(2.0 ** -KSH)
C_2PK = f2u(2.0 ** KSH)
BF16_NEGK = 0xC1D0
assert KSH == 26

HALF_STRIDE = (N + 1) * 256
T_OFF = 0;            T_BYTES = 2 * HALF_STRIDE
ENT_OFF = 0x500000
OFFS_OFF = 0x640000
WF_OFF = 0x680000
CF_OFF = 0x690000
E2_OFF = 0x800000
WS_END = 0x1200000

NT_WG = 314
BIN0 = NT_WG
WF0 = BIN0 + NC
CF0 = WF0 + 8
K1_WGS = CF0 + 1
K1_LDS = (7168 + 40960) if 'ecopy' in OPT else 128 * 288

class Asm:
    def __init__(self): self.lines = []
    def __call__(self, s):
        for l in s.split("\n"):
            l = l.strip()
            if l: self.lines.append("    " + l)
    def label(self, n): self.lines.append(n + ":")
    def raw(self, s): self.lines.append(s)
    def text(self): return "\n".join(self.lines) + "\n"

def vr(i, n=1): return f"v{i}" if n == 1 else f"v[{i}:{i+n-1}]"
def sr(i, n=1): return f"s{i}" if n == 1 else f"s[{i}:{i+n-1}]"

def srd(a, d, base, nbytes):
    a(f"s_mov_b32 s{d}, s{base}")
    a(f"s_and_b32 s{d+1}, s{base+1}, 0xffff")
    a(f"s_mov_b32 s{d+2}, {nbytes}")
    a(f"s_mov_b32 s{d+3}, 0x00020000")

def stamp1(a, i):
    if "stamp1" in OPT:
        a(f"s_memrealtime s[{64+2*i}:{65+2*i}]")
        a("s_waitcnt lgkmcnt(0)")
def stamp1_out(a, n, ws_srd, wgreg, lbl):
    if "stamp1" in OPT:
        a("s_waitcnt vmcnt(0)")
        stamp1(a, n-1)
        a("v_readfirstlane_b32 s60, v0")
        a("s_cmp_eq_u32 s60, 0")
        a(f"s_cbranch_scc0 {lbl}")
        a(f"s_mov_b32 s{ws_srd+2}, 0x1400000")
        for i in range(n):
            a(f"v_mov_b32 v100, s{64+2*i}")
            a(f"v_mov_b32 v101, s{65+2*i}")
            a(f"s_lshl_b32 s60, s{wgreg}, 7")
            a(f"s_add_u32 s60, s60, {0x1310000 + 8*i}")
            a("v_mov_b32 v102, 0")
            a(f"buffer_store_dwordx2 v[100:101], v102, s[{ws_srd}:{ws_srd+3}], s60 offen")
            a("s_nop 1")
        a.label(lbl)

def diag_mark(a, slot, inv, dbgreg):
    if "diag" not in OPT: return
    dl = f"DIAG_{slot}_{len(a.lines)}"
    a("s_and_b32 s84, s2, 15")
    a("s_cmp_eq_u32 s84, 0")
    a(f"s_cbranch_scc0 {dl}")
    a("v_mbcnt_lo_u32_b32 v98, -1, 0") if False else None
    a("v_readfirstlane_b32 s84, v0")
    a("s_nop 3")
    a("s_cmp_lt_u32 s84, 64")
    a(f"s_cbranch_scc0 {dl}")
    a("s_memrealtime s[84:85]")
    a(f"s_load_dwordx2 s[86:87], s[0:1], 64")
    a("s_waitcnt lgkmcnt(0)")
    if inv: a("s_not_b32 s84, s84")
    a("s_mov_b64 s[88:89], exec") if False else None
    a("v_mov_b32 v99, s84")
    a(f"v_mov_b32 v98, {4*slot}")
    a("s_mov_b64 exec, 1")
    a("global_atomic_umax v98, v99, s[86:87]")
    a("s_mov_b64 exec, -1")
    a.label(dl)

def wave_scan(a, v):
    for sh in (1, 2, 4, 8):
        a("s_nop 1")
        a(f"v_add_u32_dpp v{v}, v{v}, v{v} row_shr:{sh} row_mask:0xf bank_mask:0xf bound_ctrl:1")
    a("s_nop 1")
    a(f"v_add_u32_dpp v{v}, v{v}, v{v} row_bcast:15 row_mask:0xa bank_mask:0xf")
    a("s_nop 1")
    a(f"v_add_u32_dpp v{v}, v{v}, v{v} row_bcast:31 row_mask:0xc bank_mask:0xf")

def k1_table(a):
    a.label("K1_TABLE")
    stamp1(a, 0)
    a("s_and_b32 s3, s2, 1")
    a("s_lshr_b32 s28, s2, 1")
    srd(a, 20, 16, 69632)
    srd(a, 36, 14, 32768)
    srd(a, 24, 4, N * 256)
    srd(a, 32, 18, 2 * HALF_STRIDE)
    a("s_lshl_b32 s29, s3, 7")
    a("s_add_u32 s30, s29, 32768")
    a("v_lshrrev_b32 v1, 3, v0")
    a("v_and_b32 v2, 7, v0")
    a("v_lshlrev_b32 v3, 8, v1")
    a("v_lshl_add_u32 v3, v2, 4, v3")
    for i in range(4):
        a(f"buffer_load_dwordx4 {vr(8+4*i,4)}, v3, s[20:23], s30 offen")
        if i < 3: a("s_add_u32 s30, s30, 8192")
    for i in range(4):
        a(f"buffer_load_dwordx4 {vr(24+4*i,4)}, v3, s[36:39], s29 offen")
        if i < 3: a("s_add_u32 s29, s29, 8192")
    a("v_mul_u32_u24 v7, 288, v1")
    a("v_lshl_add_u32 v7, v2, 4, v7")
    a("v_and_b32 v2, 15, v0")
    a("v_bfe_u32 v3, v0, 4, 2")
    a("v_lshrrev_b32 v4, 6, v0")
    a("s_lshl_b32 s31, s28, 6")
    a("v_lshl_add_u32 v5, v4, 4, s31")
    a("v_add_u32 v6, v5, v2")
    a("v_lshlrev_b32 v6, 8, v6")
    a("v_lshl_add_u32 v6, v3, 4, v6")
    for ks in range(4):
        a(f"buffer_load_dwordx4 {vr(40+4*ks,4)}, v6, s[24:27], 0 offen offset:{64*ks}")
    for i in range(8):
        a(f"s_waitcnt vmcnt({11-i})")
        a(f"ds_write_b128 v7, {vr(8+4*i,4)} offset:{9216*(i&3) + 128*(i>>2)}")
    a("v_lshrrev_b32 v7, 2, v2")
    a("v_lshl_add_u32 v7, v3, 3, v7")
    a("v_mul_u32_u24 v7, 288, v7")
    a("v_and_b32 v1, 3, v0")
    a("v_lshl_add_u32 v7, v1, 3, v7")
    a("v_lshl_add_u32 v1, v3, 2, v5")
    a("v_lshlrev_b32 v6, 8, v1")
    a("v_lshl_add_u32 v6, v2, 4, v6")
    a(f"s_mul_i32 s3, s3, {HALF_STRIDE}")
    a("s_waitcnt vmcnt(0) lgkmcnt(0)")
    stamp1(a, 1)
    a("s_barrier")
    stamp1(a, 2)
    ACC = 64
    BF = [8, 24]
    def reads(t):
        b = BF[t & 1]
        for ks in range(4):
            a(f"ds_read_b64_tr_b16 {vr(b+4*ks,2)}, v7 offset:{9216*ks + 32*t}")
            a(f"ds_read_b64_tr_b16 {vr(b+4*ks+2,2)}, v7 offset:{9216*ks + 32*t + 1152}")
    reads(0)
    for t in range(8):
        if t < 7:
            reads(t + 1)
            a("s_waitcnt lgkmcnt(8)")
        else:
            a("s_waitcnt lgkmcnt(0)")
        b = BF[t & 1]
        for ks in range(4):
            c = "0" if ks == 0 else vr(ACC+4*t, 4)
            a(f"v_mfma_f32_16x16x32_bf16 {vr(ACC+4*t,4)}, {vr(40+4*ks,4)}, {vr(b+4*ks,4)}, {c}")
    stamp1(a, 3)
    a("s_mov_b32 s40, 0x00800000")
    a("s_mov_b32 s41, 0x7fff0000")
    a(f"s_mov_b32 s42, {hex(NEG_LOG2E)}")
    a(f"s_movk_i32 s43, {N}")
    a("s_nop 6")
    for r in range(4):
        W = 8 + 8 * (r & 1)
        for t in range(4):
            a(f"v_mul_f32 v{ACC+4*t+r}, s42, v{ACC+4*t+r}")
        for p in range(4):
            lo, hi = ACC + 4*(2*p) + r, ACC + 4*(2*p+1) + r
            a(f"v_cvt_pk_bf16_f32 v{W+p}, v{lo}, v{hi}")
            a(f"v_max_f32_e64 v{hi}, |v{hi}|, s40")
        for p in range(4):
            hi = ACC + 4*(2*p+1) + r
            a(f"v_add_u32 v{hi}, 0x8000, v{hi}")
        for p in range(4):
            hi = ACC + 4*(2*p+1) + r
            a(f"v_sub_u32_sdwa v{hi}, v{hi}, v{W+p} dst_sel:DWORD dst_unused:UNUSED_PAD src0_sel:DWORD src1_sel:WORD_0")
        a(f"v_add_u32 v2, {r}, v1")
        a("v_cmp_ge_u32 vcc, s43, v2")
        for p in range(4):
            hi = ACC + 4*(2*p+1) + r
            a(f"v_bfi_b32 v{W+p}, s41, v{hi}, v{W+p}")
        a("s_and_saveexec_b64 s[44:45], vcc")
        a(f"s_cbranch_execz K1_TAB_SKIP{r}")
        a(f"buffer_store_dwordx4 {vr(W,4)}, v6, s[32:35], s3 offen offset:{256*r} sc1")
        a.label(f"K1_TAB_SKIP{r}")
        a("s_mov_b64 exec, s[44:45]")
    stamp1(a, 4)
    stamp1(a, 5)
    stamp1_out(a, 7, 32, 2, "K1_ST_TAB")
    if "diag" in OPT:
        a("s_waitcnt vmcnt(0)")
        diag_mark(a, 1, False, 0)
    a("s_endpgm")

def k1_bin(a):
    HIST, OFF2, SORT, ESORT = 0, 1024, 2048, 7168
    a.label("K1_BIN")
    stamp1(a, 0)
    a(f"s_sub_u32 s3, s2, {BIN0}")
    srd(a, 20, 8, E * 4)
    srd(a, 24, 10, E * 4)
    srd(a, 28, 18, WS_END)
    a("v_lshlrev_b32 v1, 2, v0")
    a("s_mul_i32 s32, s3, 5120")
    a("v_mov_b32 v2, 0")
    a(f"ds_write_b32 v1, v2 offset:{HIST}")
    DST, SRC = 8, 16
    for m in range(5):
        a(f"buffer_load_dword v{DST+m}, v1, s[24:27], s32 offen offset:{1024*m if m<4 else 0}" if m < 4 else
          f"s_add_u32 s33, s32, 4096\nbuffer_load_dword v{DST+m}, v1, s[24:27], s33 offen")
    for m in range(5):
        a(f"buffer_load_dword v{SRC+m}, v1, s[20:23], s32 offen offset:{1024*m}" if m < 4 else
          f"buffer_load_dword v{SRC+m}, v1, s[20:23], s33 offen")
    ECOPY = "ecopy" in OPT
    NE = 10 if ECOPY else 0
    srd(a, 40, 6, E * 32)
    a("v_lshlrev_b32 v6, 5, v0")
    a("s_mul_i32 s44, s3, 40960")
    ER = 56
    if "noeload" in OPT: a("s_mov_b32 s42, 0")
    NT = " nt" if "ent" in OPT else ""
    ELATE = "elate" in OPT and ECOPY
    def e_loads():
        for m in range(5 if ECOPY else 0):
            a(f"buffer_load_dwordx4 {vr(ER+8*m,4)}, v6, s[40:43], s44 offen{NT}")
            a(f"buffer_load_dwordx4 {vr(ER+8*m+4,4)}, v6, s[40:43], s44 offen offset:16{NT}")
            if m < 4: a("s_add_u32 s44, s44, 8192")
    if not ELATE: e_loads()
    NE0 = 0 if ELATE else NE
    a("s_mov_b32 s34, 52429")
    a("s_waitcnt lgkmcnt(0)")
    a("s_barrier")
    BINR, RANK = 24, 32
    if "stamp1" in OPT:
        a(f"s_waitcnt vmcnt({9+NE})")
        stamp1(a, 1)
    a("v_mov_b32 v3, 1")
    for m in range(5):
        a(f"s_waitcnt vmcnt({9+NE0-m})" if not (ELATE and m > 0) else "")
        if ELATE and m == 0:
            a("s_waitcnt vmcnt(5)")
            e_loads()
        a(f"v_mul_u32_u24 v{BINR+m}, s34, v{DST+m}")
        a(f"v_lshrrev_b32 v{BINR+m}, 21, v{BINR+m}")
        a(f"v_mul_u32_u24 v4, 40, v{BINR+m}")
        a(f"v_sub_u32 v{DST+m}, v{DST+m}, v4")
        a(f"v_lshlrev_b32 v{BINR+m}, 2, v{BINR+m}")
        a(f"ds_add_rtn_u32 v{RANK+m}, v{BINR+m}, v3 offset:{HIST}")
    for m in range(5):
        a(f"s_waitcnt vmcnt({4+NE-m})")
        a(f"v_lshl_or_b32 v{SRC+m}, v{DST+m}, 14, v{SRC+m}")
        if not ECOPY:
            a(f"v_add_u32 v4, {256*m}, v0")
            a(f"v_lshl_or_b32 v{SRC+m}, v4, 20, v{SRC+m}")
    a("s_waitcnt lgkmcnt(0)")
    a("s_barrier")
    stamp1(a, 2)
    a("v_and_b32 v5, 63, v0")
    a("v_lshlrev_b32 v5, 4, v5")
    a(f"ds_read_b128 v[40:43], v5 offset:{HIST}")
    a("s_waitcnt lgkmcnt(0)")
    a("v_add_u32 v44, v40, v41")
    a("v_add_u32 v45, v42, v43")
    a("v_add_u32 v46, v44, v45")
    a("v_mov_b32 v47, v46")
    wave_scan(a, 47)
    a("v_sub_u32 v48, v47, v46")
    a("v_add_u32 v49, v48, v40")
    a("v_add_u32 v50, v48, v44")
    a("v_add_u32 v51, v50, v42")
    a(f"ds_write_b128 v5, v[48:51] offset:{OFF2}")
    a("v_readfirstlane_b32 s35, v0")
    a("s_lshl_b32 s36, s3, 10")
    a(f"s_add_u32 s36, s36, {OFFS_OFF}")
    a("s_cmp_ge_u32 s35, 64")
    a("s_cbranch_scc1 K1_BIN_NOPUB")
    for i in range(4):
        a(f"v_lshl_or_b32 v{52+i}, v{40+i}, 16, v{48+i}")
    a("buffer_store_dwordx4 v[52:55], v5, s[28:31], s36 offen sc1")
    a.label("K1_BIN_NOPUB")
    a("s_waitcnt lgkmcnt(0)")
    for m in range(5):
        a(f"ds_read_b32 v{40+m}, v{BINR+m} offset:{OFF2}")
    for m in range(5):
        a(f"s_waitcnt lgkmcnt({4-m})")
        a(f"v_add_lshl_u32 v{40+m}, v{40+m}, v{RANK+m}, 2")
        a(f"ds_write_b32 v{40+m}, v{SRC+m} offset:{SORT}")
    stamp1(a, 3)
    for m in range(5 if ECOPY else 0):
        a(f"v_lshlrev_b32 v{40+m}, 3, v{40+m}")
        a(f"s_waitcnt vmcnt({9 - 2*m})")
        a(f"ds_write_b128 v{40+m}, {vr(ER+8*m,4)} offset:{ESORT}")
        a(f"s_waitcnt vmcnt({8 - 2*m})")
        a(f"ds_write_b128 v{40+m}, {vr(ER+8*m+4,4)} offset:{ESORT+16}")
    a("s_waitcnt lgkmcnt(0)")
    a("s_barrier")
    stamp1(a, 4)
    a("v_lshlrev_b32 v5, 4, v0")
    a(f"ds_read_b128 v[40:43], v5 offset:{SORT}")
    a(f"s_add_u32 s36, s32, {ENT_OFF}")
    a("v_cmp_gt_u32 vcc, 64, v0")
    a("s_waitcnt lgkmcnt(0)")
    a("buffer_store_dwordx4 v[40:43], v5, s[28:31], s36 offen sc1")
    a("s_and_saveexec_b64 s[38:39], vcc")
    a("s_cbranch_execz K1_BIN_END")
    a(f"ds_read_b128 v[44:47], v5 offset:{SORT+4096}")
    a("s_add_u32 s36, s36, 4096")
    a("s_waitcnt lgkmcnt(0)")
    a("buffer_store_dwordx4 v[44:47], v5, s[28:31], s36 offen sc1")
    a.label("K1_BIN_END")
    a("s_mov_b64 exec, -1")
    a("s_mul_i32 s36, s3, 40960")
    a(f"s_add_u32 s36, s36, {E2_OFF}")
    for i in range(NE):
        a(f"ds_read_b128 {vr(ER+4*i,4)}, v5 offset:{ESORT + 4096*i}")
    for i in range(NE):
        a(f"s_waitcnt lgkmcnt({9-i})")
        pol = "" if "eplain" in OPT else (" nt" if "estnt" in OPT else " sc1")
        if "noestore" not in OPT: a(f"buffer_store_dwordx4 {vr(ER+4*i,4)}, v5, s[28:31], s36 offen{pol}")
        if i < 9: a("s_add_u32 s36, s36, 4096")
    stamp1(a, 5)
    stamp1_out(a, 7, 28, 2, "K1_ST_BIN")
    if "diag" in OPT:
        a("s_waitcnt vmcnt(0)")
        diag_mark(a, 1, False, 0)
    a("s_endpgm")

def k1_wf(a):
    a.label("K1_WF")
    a(f"s_sub_u32 s3, s2, {WF0}")
    a("v_lshrrev_b32 v1, 6, v0")
    a("s_nop 0")
    a("v_readfirstlane_b32 s28, v1")
    a("s_lshl_b32 s3, s3, 2")
    a("s_add_u32 s3, s3, s28")
    a("s_lshr_b32 s29, s3, 1")
    a("s_and_b32 s30, s3, 1")
    a("s_cmp_lt_u32 s29, 8")
    a("s_cselect_b32 s20, s16, s12")
    a("s_cselect_b32 s21, s17, s13")
    a("s_and_b32 s21, s21, 0xffff")
    a("s_mov_b32 s22, 32768")
    a("s_mov_b32 s23, 0x00020000")
    srd(a, 24, 18, WS_END)
    a("v_and_b32 v2, 15, v0")
    a("v_bfe_u32 v3, v0, 4, 2")
    a("s_and_b32 s31, s29, 7")
    a("s_lshl_b32 s31, s31, 5")
    a("s_lshl_b32 s32, s30, 14")
    a("s_add_u32 s31, s31, s32")
    a("v_lshlrev_b32 v4, 11, v3")
    a("v_lshl_add_u32 v4, v2, 1, v4")
    a("s_add_u32 s33, s31, 8192")
    for f in range(2):
        for m in range(8):
            a(f"buffer_load_ushort v{8+8*f+m}, v4, s[20:23], s{31 if f==0 else 33} offen offset:{256*m}")
    a("v_and_b32 v5, 63, v0")
    a("v_lshlrev_b32 v5, 4, v5")
    a("s_lshl_b32 s34, s3, 11")
    a(f"s_add_u32 s34, s34, {WF_OFF}")
    a("s_cmp_lt_u32 s29, 8")
    a(f"s_cselect_b32 s35, 1.0, {hex(C_2PK)}")
    a("s_mov_b32 s36, 0x07060302")
    for f in range(2):
        a(f"s_waitcnt vmcnt({8 if f==0 else 1})")
        for m in range(8):
            a(f"v_lshlrev_b32 v{8+8*f+m}, 16, v{8+8*f+m}")
            a(f"v_mul_f32 v{8+8*f+m}, s35, v{8+8*f+m}")
        for p in range(4):
            a(f"v_perm_b32 v{24+4*f+p}, v{8+8*f+2*p+1}, v{8+8*f+2*p}, s36")
        a(f"buffer_store_dwordx4 {vr(24+4*f,4)}, v5, s[24:27], s34 offen offset:{1024*f} sc1")
    a("s_endpgm")

def k1_cf(a):
    a.label("K1_CF")
    a("v_lshrrev_b32 v1, 6, v0")
    a("s_nop 0")
    a("v_readfirstlane_b32 s28, v1")
    srd(a, 20, 16, 69632)
    srd(a, 24, 18, WS_END)
    a("v_and_b32 v2, 15, v0")
    a("v_bfe_u32 v3, v0, 4, 2")
    a("v_and_b32 v4, 1, v3")
    a("v_lshlrev_b32 v4, 11, v4")
    a("v_lshl_add_u32 v4, v2, 1, v4")
    a("s_lshl_b32 s29, s28, 6")
    a("s_add_u32 s29, s29, 65536")
    for f in range(2):
        for m in range(8):
            a(f"buffer_load_ushort v{8+8*f+m}, v4, s[20:23], s29 offen offset:{256*m + 32*f}")
    a("v_and_b32 v5, 63, v0")
    a("v_lshlrev_b32 v5, 4, v5")
    a("s_lshl_b32 s34, s28, 11")
    a(f"s_add_u32 s34, s34, {CF_OFF}")
    a(f"s_mov_b32 s30, {hex(NEG_LOG2E)}")
    a("v_cmp_gt_u32 vcc, 2, v3")
    a("v_cmp_eq_u32 s[32:33], 2, v3")
    a(f"v_mov_b32 v6, {hex(BF16_NEGK)}")
    a("v_mov_b32 v7, 0")
    a("s_waitcnt vmcnt(0)")
    for f in range(2):
        for m in range(8):
            a(f"v_lshlrev_b32 v{8+8*f+m}, 16, v{8+8*f+m}")
            a(f"v_mul_f32 v{8+8*f+m}, s30, v{8+8*f+m}")
        for p in range(4):
            a(f"v_cvt_pk_bf16_f32 v{24+4*f+p}, v{8+8*f+2*p}, v{8+8*f+2*p+1}")
        a(f"v_cndmask_b32 v30, v7, v6, s[32:33]" if False else "")
        a(f"v_cndmask_b32 v32, v7, v6, s[32:33]")
        a(f"v_cndmask_b32 v{24+4*f+0}, v7, v{24+4*f+0}, vcc")
        a(f"v_cndmask_b32 v{24+4*f+1}, v7, v{24+4*f+1}, vcc")
        a(f"v_cndmask_b32 v{24+4*f+2}, v32, v{24+4*f+2}, vcc")
        a(f"v_cndmask_b32 v{24+4*f+3}, v7, v{24+4*f+3}, vcc")
        a(f"buffer_store_dwordx4 {vr(24+4*f,4)}, v5, s[24:27], s34 offen offset:{1024*f} sc1")
    a("s_cmp_eq_u32 s28, 0")
    a("s_cbranch_scc0 K1_CF_END")
    a("v_lshrrev_b32 v8, 2, v2")
    a("v_subrev_u32 v9, 2, v3")
    a("v_lshlrev_b32 v9, 1, v9")
    a("v_mov_b32 v10, 0x3f803f80")
    a("v_cmp_eq_u32 vcc, v8, v9")
    a("v_add_u32 v9, 1, v9")
    a("v_cmp_eq_u32 s[36:37], v8, v9")
    a("v_cndmask_b32 v12, v7, v10, vcc")
    a("v_mov_b32 v11, 0x3f80")
    a("v_cndmask_b32 v13, v7, v10, s[36:37]")
    a("v_cndmask_b32 v14, v7, v11, s[32:33]")
    a("v_mov_b32 v15, 0")
    a(f"s_mov_b32 s34, {CF_OFF + 8192}")
    a("buffer_store_dwordx4 v[12:15], v5, s[24:27], s34 offen sc1")
    a.label("K1_CF_END")
    a("s_endpgm")

def k1(a):
    a.raw(".p2align 8")
    a.raw(".type egc_prep_kernel,@function")
    a.label("egc_prep_kernel")
    a(f"s_cmp_ge_u32 s2, {K1_WGS}")
    a("s_cbranch_scc1 K1_EXIT")
    diag_mark(a, 0, True, 0)
    a("s_load_dwordx4 s[4:7], s[0:1], 0")
    a("s_load_dwordx4 s[8:11], s[0:1], 16")
    a("s_load_dwordx4 s[12:15], s[0:1], 32")
    a("s_load_dwordx2 s[16:17], s[0:1], 48")
    a("s_load_dwordx2 s[18:19], s[0:1], 72")
    if "binfirst" in OPT:
        a(f"s_add_u32 s20, s2, {NT_WG}")
        a(f"s_sub_u32 s21, s2, {NC}")
        a(f"s_cmp_lt_u32 s2, {NC}")
        a("s_cselect_b32 s22, s20, s21")
        a(f"s_cmp_lt_u32 s2, {WF0}")
        a("s_cselect_b32 s2, s22, s2")
    a("s_waitcnt lgkmcnt(0)")
    a(f"s_cmp_lt_u32 s2, {BIN0}")
    a("s_cbranch_scc1 K1_TABLE")
    a(f"s_cmp_lt_u32 s2, {WF0}")
    a("s_cbranch_scc1 K1_BIN")
    a(f"s_cmp_lt_u32 s2, {CF0}")
    a("s_cbranch_scc1 K1_WF")
    a("s_branch K1_CF")
    a.label("K1_EXIT")
    a("s_endpgm")
    k1_table(a)
    k1_bin(a)
    k1_wf(a)
    k1_cf(a)

CAPE = 1500
SCAP = 1632
L_CNT = 0; L_TOT = 256; L_TILES = 264; L_FLAG = 268
P_RANGE = 60.0
L_ROW = 512
L_GN = L_ROW + SCAP * 4
L_EO = L_GN + SCAP * 4
L_PPK = L_EO + SCAP * 4
L_CS = L_PPK + 20480
L_AGG = L_CS + 9216
L_XS = L_AGG + 40960
L_ES = L_XS + 48 * 272
L_RAW = L_ES
K2_LDS = L_ES + SCAP * 32
assert K2_LDS <= 163840 and L_AGG + 512 < 65536

QH = [8, 24, 40]; D = 56; B = 72; A = 88; U = 92; T = 100; R = 104; G = 108
vGS = [111, 112, 113]; vTa = 114; vTe = 115; vJ16 = 116; vJ4 = 117; vTa0 = 118; vTe0 = 119; vCS = 120
vDUM = 7
vTd = 122; vEo = 123; vH16 = 5; vEPa = 1; vJ16h = 6; EP = 124
vK66 = 2; vQ16 = 3; vLH = 4
sX = 12; sE = 16; sO = 20; sWS = 24
sWV = 28
sLO = 30
sHI = 32
sCC = 34
sN = 36; sNIT = 37; sL = 38
sLI = 39
sAI = 40
sHL = 41
sHG = 42
sTOT = 43
sWIN = 44
sDI = 45
sM0 = 62
sBIN = 29
sE2 = 63
sINC = 20
sLM3 = 43+48
sFLAG = 90
sNM2 = 89
sINCP = 92
sM = 46
sTMP = 56

STAMP_OFF = 0x1300000
def fstamp(a, i):
    if "fine" in OPT:
        a(f"s_memtime s[{64+2*i}:{65+2*i}]")
        a("s_waitcnt lgkmcnt(0)")
def gstamp(a, i):
    if "gst" in OPT:
        a(f"s_memtime s[{64+2*i}:{65+2*i}]")
        a("s_waitcnt lgkmcnt(0)")
def stamp(a, i):
    if ("fine" in OPT or "gst" in OPT) and i in (1,2,3,4,5,6): return
    if "stamp" in OPT:
        a(f"s_memtime s[{64+2*i}:{65+2*i}]")
        a("s_waitcnt lgkmcnt(0)")
def stamp_out(a, n):
    if "stamp" in OPT:
        a(f"s_cmp_eq_u32 s28, {8 if 'gst' in OPT else 0}")
        a("s_cbranch_scc0 STAMP_SKIP")
        a("s_mov_b64 exec, -1")
        a("s_mov_b32 s26, 0x1400000")
        for i in range(n):
            a(f"v_mov_b32 v100, s{64+2*i}")
            a(f"v_mov_b32 v101, s{65+2*i}")
            a(f"s_lshl_b32 s60, s2, 7")
            a(f"s_add_u32 s60, s60, {STAMP_OFF + 8*i}")
            a("v_mov_b32 v102, 0")
            a(f"buffer_store_dwordx2 v[100:101], v102, {sr(sWS,4)}, s60 offen")
            a("s_nop 1")
        a.label("STAMP_SKIP")
def P2(x): return f"v[{x}:{x+1}]"

def pair_code(ta, tb, h, shl, vG, v5):
    s = []
    if shl:
        for r in range(4):
            s.append(f"v_lshlrev_b32 v{h[r]}, 16, v{h[r]}")
            s.append(f"v_lshlrev_b32 v{h[r]+1}, 16, v{h[r]+1}")
    if v5:
        ep = EP + (2 if shl else 0)
        for r in range(4):
            s.append(f"v_exp_f32 v{U+2*r}, v{D+4*ta+r}")
            s.append(f"v_exp_f32 v{U+2*r+1}, v{D+4*tb+r}")
        if not shl: s.append("s_waitcnt lgkmcnt(3)")
        for r in range(4):
            s.append(f"v_pk_fma_f32 {P2(U+2*r)}, {P2(U+2*r)}, {P2(ep)}, s[{sCC}:{sCC+1}] clamp")
    else:
        for r in range(4):
            s.append(f"v_exp_f32_e64 v{U+2*r}, v{D+4*ta+r} clamp")
            s.append(f"v_exp_f32_e64 v{U+2*r+1}, v{D+4*tb+r} clamp")
        for r in range(4):
            s.append(f"v_pk_add_f32 {P2(U+2*r)}, {P2(U+2*r)}, s[{sCC}:{sCC+1}]")
    d0, d1, d2, d3 = U, U+2, U+4, U+6
    s += [f"v_pk_mul_f32 {P2(T)}, {P2(h[0])}, {P2(d1)}",
          f"v_pk_mul_f32 {P2(T+2)}, {P2(h[2])}, {P2(d3)}",
          f"v_pk_fma_f32 {P2(T)}, {P2(h[1])}, {P2(d0)}, {P2(T)}",
          f"v_pk_fma_f32 {P2(T+2)}, {P2(h[3])}, {P2(d2)}, {P2(T+2)}",
          f"v_pk_mul_f32 {P2(d0)}, {P2(d0)}, {P2(d1)}",
          f"v_pk_mul_f32 {P2(d2)}, {P2(d2)}, {P2(d3)}",
          f"v_pk_mul_f32 {P2(d1)}, {P2(d0)}, {P2(d2)}",
          f"v_pk_mul_f32 {P2(T)}, {P2(T)}, {P2(d2)}",
          f"v_rcp_f32 v{d1}, v{d1}",
          f"v_rcp_f32 v{d1+1}, v{d1+1}",
          f"v_pk_fma_f32 {P2(T)}, {P2(T+2)}, {P2(d0)}, {P2(T)}",
          f"v_pk_mul_f32 {P2(T)}, {P2(T)}, {P2(d1)}"]
    if "noadd" not in OPT:
        s += [f"v_cvt_f64_f32 {P2(U)}, v{T}",
              f"v_cvt_f64_f32 {P2(U+4)}, v{T+1}",
              f"ds_add_f64 v{vG}, {P2(U)} offset:{L_AGG + 128*ta}",
              f"ds_add_f64 v{vG}, {P2(U+4)} offset:{L_AGG + 128*tb}"]
    return s

deferred = []
def defer(fn, inline):
    if inline: fn()
    else: deferred.append(fn)
uid = [0]
def lab(p):
    uid[0] += 1
    return f"{p}_{uid[0]}"

def list_reads(a, v5):
    a(f"ds_read_b128 {vr(R,4)}, v{vTa} offset:{L_ROW}")
    if v5: a(f"ds_read_b32 v{G+2}, v{vTa} offset:{L_GN + 8}")
    else:  a(f"ds_read_b96 {vr(G,3)}, v{vTa} offset:{L_GN}")

def ep_read(a):
    a(f"ds_read_b128 {vr(EP,4)}, v{vEPa} offset:{L_PPK}")

def advance(a):
    a(f"v_pk_add_f32 {P2(vTa)}, {P2(vTa)}, s[{sINCP}:{sINCP+1}]")

def list_wrap(a):
    a(f"s_add_u32 s{sLI}, s{sLI}, 1")
    a(f"s_cmp_eq_u32 s{sLI}, s{sL}")
    l, lb = lab("K2_LW"), lab("K2_LWB")
    a(f"s_cbranch_scc1 {l}")
    a.label(lb)
    def blk():
        a.label(l)
        a(f"s_mov_b32 s{sLI}, 0")
        a(f"s_mov_b32 s{sHL}, {HALF_STRIDE}")
        a(f"v_mov_b32 v{vTa}, v{vTa0}")
        a(f"s_branch {lb}")
    deferred.append(blk)

def eo_read(a):
    a(f"ds_read_b32 v{vEo}, v{vTd} offset:{L_EO}")
    a(f"v_add_u32 v{vTd}, 64, v{vTd}")

def e_dma(a):
    a(f"s_mov_b32 m0, s{sM0}")
    a(f"v_add_u32 v{vEo}, v{vEo}, v{vH16}")
    if "samee" in OPT: a(f"v_and_b32 v{vEo}, 0x1f, v{vEo}")
    a(f"s_add_u32 s{sM0}, s{sM0}, 512")
    a(f"s_add_u32 s{sDI}, s{sDI}, 1")
    a(f"s_mov_b64 exec, {sr(sLO,2)}")
    a(f"buffer_load_dwordx4 v{vEo}, {sr(sWS if 'ecopy' in OPT else sE,4)}, s{sE2} offen{' nt' if 'edmant' in OPT else ''}{' sc1' if 'edmasc1' in OPT else ''} lds")
    a("s_mov_b64 exec, -1")

def gather_stage(a, buf, inloop=False):
    if inloop:
        lsk = lab("K2_SG")
        a(f"s_cmp_ge_u32 s{sN}, s{sNM2}")
        a(f"s_cbranch_scc1 {lsk}")
    for r in (0, 2):
        a(f"v_pk_add_f32 {P2(R+r)}, {P2(R+r)}, {P2(vJ16)} op_sel_hi:[1,0]")
    if "samerow" in OPT:
        for r in range(4): a(f"v_and_b32 v{R+r}, 0xff, v{R+r}")
    for r in range(4):
        a(f"buffer_load_dwordx4 {vr(buf+4*r,4)}, v{R+r}, {sr(sWS,4)}, s{sHL} offen")
    l, lb = lab("K2_ND"), lab("K2_NDB")
    a(f"s_cmp_lt_u32 s{sDI}, s{sL}")
    a(f"s_cbranch_scc1 {l}")
    a.label(lb)
    def blk():
        a.label(l)
        e_dma(a)
        eo_read(a)
        a(f"s_branch {lb}")
    deferred.append(blk)
    list_wrap(a)
    if inloop: a.label(lsk)

def ap_stage(a, dstG, v5, G=G):
    l, lb = lab("K2_AW"), lab("K2_AWB")
    a(f"s_cmp_eq_u32 s{sAI}, s{sL}")
    a(f"s_cbranch_scc1 {l}")
    a.label(lb)
    def blk():
        a.label(l)
        a(f"s_mov_b32 s{sAI}, 0")
        if "pstamp" in OPT:
            lq = lab("K2_PS")
            a(f"s_cmp_lt_u32 s{sN}, s{sL}")
            a(f"s_cbranch_scc0 {lq}")
            a("s_memtime s[76:77]")
            a("s_waitcnt lgkmcnt(0)")
            a.label(lq)
        if "noprio" not in OPT:
            lp = lab("K2_NP")
            a(f"s_cmp_lt_u32 s{sN}, s{sL}")
            a(f"s_cbranch_scc0 {lp}")
            a("s_setprio 2" if "oldprio" not in OPT else "s_setprio 0")
            a.label(lp)
        a(f"v_add_u32 v{vJ4}, 256, v{vJ4}")
        if v5: a(f"v_add_u32 v{vJ16h}, 256, v{vJ16h}")
        a(f"v_mov_b32 v{vTe}, v{vTe0}")
        for t in range(4):
            a(f"ds_read_b128 {vr(B+4*t,4)}, v{vCS} offset:{L_CS + 1024*(4+t)}")
        a(f"s_branch {lb}")
    deferred.append(blk)
    a(f"s_add_u32 s{sAI}, s{sAI}, 1")
    if v5:
        a(f"v_add_lshl_u32 v{dstG}, v{G+2}, v{vJ4}, 1")
        a(f"v_add_u32 v{vEPa}, v{G+2}, v{vJ16h}")
        a(f"s_mov_b64 exec, {sr(sLO,2)}")
        a(f"ds_read_b128 {vr(A,4)}, v{vTe}")
        a("s_mov_b64 exec, -1")
        return
    a(f"v_pk_add_f32 {P2(G)}, {P2(G)}, {P2(vJ16)} op_sel:[0,1] op_sel_hi:[1,1]")
    a(f"v_add_lshl_u32 v{dstG}, v{G+2}, v{vJ4}, 1")
    a(f"s_mov_b64 exec, {sr(sLO,2)}")
    a(f"ds_read_b128 {vr(A,4)}, v{vTe}")
    a(f"s_mov_b64 exec, {sr(sHI,2)}")
    for t in range(4 if "nop" not in OPT else 0):
        a(f"ds_read_b32 v{B+4*t}, v{G} offset:{L_PPK + 64*t}")
        a(f"ds_read_b32 v{B+4*t+1}, v{G+1} offset:{L_PPK + 64*t}")
    a("s_mov_b64 exec, -1")

def tile_body(a, k, v5, done):
    buf = QH[k]; nbuf = QH[(k + 2) % 3]
    vG = vGS[k]; vGn = vGS[(k + 1) % 3]
    l2 = lab("K2_W")
    a(f"s_cmp_lt_i32 s{sN}, s{sLM3}")
    a(f"s_cbranch_scc1 {l2}")
    a("s_waitcnt vmcnt(4)")
    a.label(l2)
    a("s_waitcnt vmcnt(6)")
    for t in (1, 3):
        p = t >> 1
        for rr in (0, 2):
            a(f"v_pk_mov_b32 {P2(D+4*t+rr)}, {P2(buf+4*rr)}, {P2(buf+4*(rr+1))} op_sel:[{p},{p}]")
    for t in (0, 2):
        p = t >> 1
        for r in range(4):
            a(f"v_lshlrev_b32 v{D+4*t+r}, 16, v{buf+4*r+p}")
    a("s_waitcnt lgkmcnt(4)")
    for t in (1, 3, 0, 2):
        a(f"v_mfma_f32_16x16x32_bf16 {vr(D+4*t,4)}, {vr(A,4)}, {vr(B+4*t,4)}, {vr(D+4*t,4)}")
    ap_stage(a, vGn, v5)
    list_reads(a, v5)
    advance(a)
    h = [buf + 4*r + 2 for r in range(4)]
    for ins in pair_code(1, 3, h, False, vG, v5): a(ins)
    a("s_waitcnt lgkmcnt(3)" if "noadd" not in OPT else "s_waitcnt lgkmcnt(1)")
    gather_stage(a, nbuf, True)
    for ins in pair_code(0, 2, h, True, vG, v5): a(ins)
    if v5: ep_read(a)
    a(f"s_add_u32 s{sN}, s{sN}, 1")
    if "noprio" in OPT or "oldprio" in OPT:
        a(f"s_cmp_ge_u32 s{sN}, s{sNIT}")
        a(f"s_cbranch_scc1 {done}")
    else:
        l, lb = lab("K2_PR"), lab("K2_PRB")
        a(f"s_cmp_ge_u32 s{sN}, s{sNM2}")
        a(f"s_cbranch_scc1 {l}")
        a.label(lb)
        def blk():
            l1 = lab("K2_PR1")
            a.label(l)
            a(f"s_cmp_ge_u32 s{sN}, s{sNIT}")
            a(f"s_cbranch_scc1 {done}")
            a(f"s_cmp_eq_u32 s{sN}, s{sNM2}")
            a(f"s_cbranch_scc0 {l1}")
            a("s_setprio 1")
            a(f"s_branch {lb}")
            a.label(l1)
            a("s_setprio 0")
            a("s_waitcnt vmcnt(0)")
            a(f"s_branch {lb}")
        deferred.append(blk)

def table_prefetch(a, vL16):
    if "nopf" in OPT: return
    a(f"s_lshr_b32 s{sTMP+5}, s2, 3")
    a(f"s_mul_i32 s{sTMP+5}, s{sTMP+5}, 81920")
    a(f"s_lshl_b32 s{sTMP+6}, s28, 13")
    a(f"s_add_u32 s{sTMP+5}, s{sTMP+5}, s{sTMP+6}")
    a(f"s_cmp_lt_u32 s28, 10")
    a(f"s_cselect_b32 s{sTMP+5}, s{sTMP+5}, {WS_END}")
    a(f"v_lshlrev_b32 v{vDUM}, 3, v{vL16}")
    a(f"buffer_load_dword v{vDUM}, v{vDUM}, {sr(sWS,4)}, s{sTMP+5} offen")

def table_prefetch(a):
    a(f"s_lshr_b32 s{sTMP}, s2, 3")
    a(f"s_mul_i32 s{sTMP}, s{sTMP}, 81920")
    a(f"s_lshl_b32 s{sTMP+1}, s28, 13")
    a(f"s_add_u32 s{sTMP+1}, s{sTMP+1}, s{sTMP}")
    a(f"v_lshlrev_b32 v{vDUM}, 3, v{vCS}")
    a(f"buffer_load_dword v{vDUM}, v{vDUM}, {sr(sWS,4)}, s{sTMP+1} offen")
    return
    a(f"s_add_u32 s{sTMP+1}, s{sTMP+1}, 65536")
    a(f"s_cmp_lt_u32 s28, 2")
    a(f"s_cselect_b32 s{sTMP+1}, s{sTMP+1}, {WS_END}")
    a(f"buffer_load_dword v127, v{vDUM}, {sr(sWS,4)}, s{sTMP+1} offen")

def k2(a):
    ECOPY = "ecopy" in OPT
    a.raw(".p2align 8")
    a.raw(".type egc_main_kernel,@function")
    a.label("egc_main_kernel")
    a(f"s_cmp_ge_u32 s2, {NB}")
    a("s_cbranch_scc1 K2_EXIT")
    diag_mark(a, 0, True, 0)
    stamp(a, 0)
    if "stamp" in OPT:
        a("s_memrealtime s[80:81]")
        a("s_waitcnt lgkmcnt(0)")
    a("s_load_dwordx4 s[4:7], s[0:1], 0")
    a("s_load_dwordx2 s[8:9], s[0:1], 56")
    a("s_load_dwordx2 s[10:11], s[0:1], 72")
    a("v_lshrrev_b32 v1, 6, v0")
    a("v_lshlrev_b32 v3, 4, v0")
    a("s_and_b32 s46, s2, 7")
    a("v_readfirstlane_b32 s28, v1")
    a("s_lshr_b32 s47, s2, 3")
    a("s_sub_u32 s48, s46, 2")
    a("s_max_i32 s48, s48, 0")
    a("s_lshl_b32 s46, s46, 5")
    a("s_sub_u32 s46, s46, s48")
    a(f"s_add_u32 s{sBIN}, s46, s47")
    a(f"v_and_b32 v{vCS}, 0x3f0, v3")
    a("v_mov_b32 v8, v3")
    a(f"v_bfe_u32 v9, v{vCS}, 4, 4")
    a(f"v_lshrrev_b32 v10, 8, v{vCS}")
    a(f"v_lshlrev_b32 v{vJ16}, 4, v9")
    a(f"v_lshlrev_b32 v{vQ16}, 4, v10")
    a(f"v_lshl_add_u32 v{vK66}, v9, 5, v{vQ16}")
    a(f"v_and_b32 v{vH16}, 16, v{vCS}")
    a(f"v_lshrrev_b32 v{vLH}, 5, v{vCS}")
    a(f"s_mov_b64 {sr(sLO,2)}, 0xffffffff")
    a(f"s_mov_b32 s{sHI}, 0")
    a(f"s_mov_b32 s{sHI+1}, -1")
    a(f"s_mov_b32 s{sCC}, {hex(C_2MK)}")
    a(f"s_mov_b32 s{sCC+1}, {hex(C_2MK)}")
    a(f"s_mov_b32 s{sWIN}, 0")
    a(f"s_mov_b32 s{sE2}, {E2_OFF if ECOPY else 0}")
    a("s_cmp_ge_u32 s28, 8")
    a("s_cbranch_scc1 K2_G")
    vW = 12; vOA = 13; vOf = 14
    vC = 32; vSub = 33; vWb = 34; vEA = 35; vPw = 36; vKB = 37; vSg = 39; vEB = 38
    EN = 56
    a("v_mov_b32 v15, 0")
    a("v_lshrrev_b32 v16, 2, v8")
    a("v_cmp_gt_u32 vcc, 128, v0")
    a(f"v_lshrrev_b32 v{vW}, 1, v0")
    a("s_and_saveexec_b64 s[54:55], vcc")
    a(f"ds_write_b32 v16, v15 offset:{L_CNT}")
    a("s_mov_b64 exec, -1")
    a(f"v_lshlrev_b32 v{vOA}, 10, v{vW}")
    a(f"s_lshl_b32 s{sTMP}, s{sBIN}, 2")
    a(f"s_add_u32 s{sTMP}, s{sTMP}, {OFFS_OFF}")
    a(f"s_mov_b32 s{sTMP+4}, {ENT_OFF}")
    a(f"v_and_b32 v{vSub}, 1, v0")
    a(f"v_mul_u32_u24 v{vSg}, {CE}, v{vW}")
    a("s_waitcnt lgkmcnt(0)")
    srd(a, sWS, 10, WS_END)
    a(f"buffer_load_dword v{vOf}, v{vOA}, {sr(sWS,4)}, s{sTMP} offen")
    a("s_barrier")
    a(f"v_cmp_gt_u32 vcc, 250, v{vW}")
    a(f"v_cmp_eq_u32 s[54:55], 0, v{vSub}")
    a(f"v_mov_b32 v16, {L_TOT}")
    if not ECOPY: a(f"v_mul_u32_u24 v{vWb}, {CE*32}, v{vW}")
    a(f"v_mov_b32 v{vKB}, 0")
    srd(a, sE, 6, E * 32)
    srd(a, sO, 8, N * 256)
    a("s_waitcnt vmcnt(0)")
    a(f"v_lshrrev_b32 v{vC}, 16, v{vOf}")
    a(f"v_and_b32 v{vOf}, 0xffff, v{vOf}")
    a(f"v_cndmask_b32 v{vC}, 0, v{vC}, vcc")
    a(f"v_add_u32 v{vSg}, v{vSg}, v{vOf}")
    def entry_addr():
        a(f"v_lshlrev_b32 v{vEB}, 2, v{vSg}")
        a(f"v_lshl_add_u32 v{vEA}, v{vSub}, 5, v{vEB}")
        a(f"v_lshl_add_u32 v{vEB}, v{vSub}, 3, v{vEB}")
    def entry_loads(soff):
        a(f"buffer_load_dwordx4 {vr(EN,4)}, v{vEA}, {sr(sWS,4)}, s{soff} offen")
        a(f"buffer_load_dwordx4 {vr(EN+4,4)}, v{vEA}, {sr(sWS,4)}, s{soff} offen offset:16")
        a(f"buffer_load_dwordx2 {vr(EN+8,2)}, v{vEB}, {sr(sWS,4)}, s{soff} offen offset:64")
    entry_addr()
    entry_loads(sTMP+4)
    stamp(a, 1)
    a("s_mov_b64 exec, s[54:55]")
    a(f"ds_add_rtn_u32 v{vPw}, v16, v{vC}")
    a("s_mov_b64 exec, -1")
    a("s_barrier")
    a("s_waitcnt lgkmcnt(0)")
    a(f"v_mov_b32_dpp v{vPw}, v{vPw} quad_perm:[0,0,2,2] row_mask:0xf bank_mask:0xf")
    a("s_nop 0")
    a(f"v_mov_b32 v121, v{vPw}")
    a("s_waitcnt vmcnt(0)")
    a.label("K2_WINDOW")
    vKE = 66; vRA = 67
    a(f"s_add_u32 s{sTMP}, s{sWIN}, {CAPE}")
    a(f"v_sub_u32 v{vKE}, s{sTMP}, v{vPw}")
    a(f"v_min_i32 v{vKE}, v{vKE}, v{vC}")
    if ECOPY:
        a(f"v_sub_u32 v{vWb}, v{vSg}, v{vPw}")
        a(f"v_add_lshl_u32 v{vWb}, v{vWb}, s{sWIN}, 5")
    a.label("K2_COPY")
    a(f"v_add_u32 v{vRA}, v{vPw}, v{vKB}")
    a(f"v_subrev_u32 v{vRA}, s{sWIN}, v{vRA}")
    a(f"v_sub_u32 v68, v{vKE}, v{vKB}")
    a(f"v_lshlrev_b32 v69, 3, v{vSub}")
    a("v_sub_u32 v70, v68, v69")
    a(f"v_add_lshl_u32 v69, v{vRA}, v69, 3")
    a(f"v_add_u32 v69, {L_RAW}, v69")
    a(f"v_lshlrev_b32 v71, 1, v{vSub}")
    a("v_sub_u32 v68, v68, v71")
    a(f"v_add_lshl_u32 v71, v{vRA}, v71, 3")
    a(f"v_add_u32 v71, {L_RAW + 128}, v71")
    for i in range(8):
        a(f"v_cmp_lt_i32 vcc, {i}, v70")
        a("s_and_b64 exec, exec, vcc")
        a("s_cbranch_execz K2_CPA")
        a(f"ds_write2_b32 v69, v{EN+i}, v{vWb} offset0:{2*i} offset1:{2*i+1}")
    a.label("K2_CPA")
    a("s_mov_b64 exec, -1")
    for i in range(2):
        a(f"v_cmp_lt_i32 vcc, {16+i}, v68")
        a("s_and_b64 exec, exec, vcc")
        a("s_cbranch_execz K2_CPB")
        a(f"ds_write2_b32 v71, v{EN+8+i}, v{vWb} offset0:{2*i} offset1:{2*i+1}")
    a.label("K2_CPB")
    a("s_mov_b64 exec, -1")
    a(f"v_add_u32 v{vKB}, 20, v{vKB}")
    a(f"v_cmp_lt_i32 vcc, v{vKB}, v{vKE}")
    a("s_cmp_eq_u64 vcc, 0")
    a("s_cbranch_scc1 K2_COPIED")
    a(f"v_add_u32 v{vEA}, 80, v{vEA}")
    a(f"v_add_u32 v{vEB}, 80, v{vEB}")
    a(f"s_mov_b32 s{sTMP+4}, {ENT_OFF}")
    entry_loads(sTMP+4)
    a("s_waitcnt vmcnt(0)")
    a("s_branch K2_COPY")
    a.label("K2_COPIED")
    if "pfB" in OPT: table_prefetch(a)
    a(f"v_mov_b32 v70, {L_TOT}")
    a("s_waitcnt lgkmcnt(0)")
    a("s_barrier")
    stamp(a, 2)
    a("ds_read_b32 v70, v70")
    if "nopf" not in OPT and "pfA" not in OPT and "pfB" not in OPT: table_prefetch(a)
    RE = 56
    ND = 62; RK = 65
    a("v_lshlrev_b32 v68, 3, v0")
    a(f"v_add_u32 v68, {L_RAW}, v68")
    for i in range(3):
        a(f"ds_read_b64 {P2(RE+2*i)}, v68 offset:{4096*i}")
    a("v_mov_b32 v69, 1")
    a("s_waitcnt lgkmcnt(3)")
    a(f"v_readfirstlane_b32 s{sTOT}, v70")
    a("v_add_u32 v71, 512, v0")
    a("v_add_u32 v72, 1024, v0")
    a(f"s_sub_u32 s{sTMP}, s{sTOT}, s{sWIN}")
    a(f"s_min_u32 s{sTMP}, s{sTMP}, {CAPE}")
    a(f"v_cmp_gt_u32 {sr(sM,2)}, s{sTMP}, v0")
    a(f"v_cmp_gt_u32 {sr(sM+2,2)}, s{sTMP}, v71")
    a(f"v_cmp_gt_u32 {sr(sM+4,2)}, s{sTMP}, v72")
    for i in range(3):
        l = lab("K2_RK")
        a(f"s_waitcnt lgkmcnt({2-i if i == 0 else 0})" if i == 0 else "s_waitcnt lgkmcnt(0)" if i == 1 else "")
        a(f"v_bfe_u32 v{ND+i}, v{RE+2*i}, 14, 6")
        a(f"v_lshlrev_b32 v{ND+i}, 2, v{ND+i}")
        a(f"s_mov_b64 exec, {sr(sM+2*i,2)}")
        a(f"s_cbranch_execz {l}")
        a(f"ds_add_rtn_u32 v{RK+i}, v{ND+i}, v69 offset:{L_CNT}")
        a.label(l)
        a("s_mov_b64 exec, -1")
    a(f"v_lshrrev_b32 v68, 2, v{vCS}")
    a(f"v_mov_b32 v80, {L_FLAG}")
    for i in range(3):
        e = RE + 2*i
        if ECOPY:
            a(f"v_lshl_add_u32 v{e+1}, v0, 5, v{e+1}")
            if i: a(f"v_add_u32 v{e+1}, {512*32*i}, v{e+1}")
        else:
            a(f"v_lshrrev_b32 v70, 20, v{e}")
            a(f"v_lshl_add_u32 v{e+1}, v70, 5, v{e+1}")
        a(f"v_and_b32 v{e}, 0x3fff, v{e}")
        a(f"v_lshlrev_b32 v{e}, 8, v{e}")
    a("s_waitcnt lgkmcnt(0)")
    a("s_barrier")
    stamp(a, 3)
    a(f"ds_read_b32 v69, v68 offset:{L_CNT}")
    a("ds_read_b32 v80, v80")
    a("s_waitcnt lgkmcnt(0)")
    a(f"v_readfirstlane_b32 s{sFLAG}, v80")
    a("v_add_u32 v70, 3, v69")
    a("v_and_b32 v70, -4, v70")
    a("v_mov_b32 v71, v70")
    wave_scan(a, 71)
    a("v_sub_u32 v72, v71, v70")
    a("s_nop 0")
    a(f"v_readlane_b32 s{sNIT}, v71, 63")
    for i in range(3):
        a(f"ds_bpermute_b32 v{73+i}, v{ND+i}, v72")
    for i in range(3):
        a(f"v_lshlrev_b32 v{ND+i}, 7, v{ND+i}")
    for i in range(3):
        e = RE + 2*i
        l = lab("K2_PL")
        a(f"s_waitcnt lgkmcnt({2-i})" if i == 0 else "s_waitcnt lgkmcnt(0)" if i == 1 else "")
        a(f"s_mov_b64 exec, {sr(sM+2*i,2)}")
        a(f"s_cbranch_execz {l}")
        a(f"v_add_u32 v{73+i}, v{73+i}, v{RK+i}")
        a(f"v_and_b32 v{RK+i}, 3, v{RK+i}")
        a(f"v_lshlrev_b32 v76, 2, v{73+i}")
        a(f"v_cmp_eq_u32 vcc, 0, v{RK+i}")
        a(f"ds_write_b32 v76, v{e} offset:{L_ROW}")
        a(f"ds_write_b32 v76, v{e+1} offset:{L_EO}")
        a("s_and_b64 exec, exec, vcc")
        a(f"s_cbranch_execz {l}")
        a(f"ds_write_b32 v76, v{ND+i} offset:{L_GN + 8}")
        a(f"s_cmp_eq_u32 s{sFLAG}, 0")
        a(f"s_cbranch_scc1 {l}")
        a(f"v_and_b32 v77, 0xffffffc0, v76")
        a(f"v_bfe_u32 v{RK+i}, v76, 5, 1")
        a(f"v_lshl_add_u32 v77, v{RK+i}, 4, v77")
        a(f"v_bfe_u32 v{RK+i}, v76, 4, 1")
        a(f"v_lshl_add_u32 v77, v{RK+i}, 2, v77")
        a(f"ds_write_b32 v77, v{ND+i} offset:{L_GN + 32}")
        a.label(l)
        a("s_mov_b64 exec, -1")
    a(f"s_add_u32 s{sTMP}, s{sNIT}, 15")
    a(f"s_lshr_b32 s{sTMP+1}, s{sTMP}, 4")
    a("s_cmp_ge_u32 s28, 2")
    a("s_cbranch_scc1 K2_NOTAIL")
    a(f"v_mov_b32 v78, {N*256}")
    a("v_mov_b32 v79, 0")
    a("s_cmp_eq_u32 s28, 0")
    a("s_cbranch_scc0 K2_NOPAD")
    a(f"v_mov_b32 v76, s{sTMP+1}")
    a(f"v_mov_b32 v77, {L_TILES}")
    a("ds_write_b32 v77, v76")
    a("v_add_u32 v76, v72, v69")
    for m in range(3):
        a("v_cmp_lt_u32 vcc, v76, v71")
        a("s_and_b64 exec, exec, vcc")
        a(f"s_cbranch_execz K2_NOTAIL")
        a("v_lshlrev_b32 v77, 2, v76")
        a(f"ds_write_b32 v77, v78 offset:{L_ROW}")
        a(f"ds_write_b32 v77, v79 offset:{L_EO}")
        a("v_add_u32 v76, 1, v76")
    a("s_branch K2_NOTAIL")
    a.label("K2_NOPAD")
    a(f"v_lshrrev_b32 v76, 4, v{vCS}")
    a(f"v_add_u32 v76, s{sNIT}, v76")
    a(f"s_lshl_b32 s{sTMP+2}, s{sTMP+1}, 4")
    a(f"v_cmp_gt_u32 vcc, s{sTMP+2}, v76")
    a("s_and_b64 exec, exec, vcc")
    a("s_cbranch_execz K2_NOTAIL")
    a("v_lshlrev_b32 v77, 2, v76")
    a(f"ds_write_b32 v77, v78 offset:{L_ROW}")
    a(f"ds_write_b32 v77, v79 offset:{L_EO}")
    a("v_and_b32 v76, 3, v76")
    a("v_cmp_eq_u32 vcc, 0, v76")
    a("s_and_b64 exec, exec, vcc")
    a("s_cbranch_execz K2_NOTAIL")
    a(f"ds_write_b32 v77, v79 offset:{L_GN + 8}")
    a(f"v_and_b32 v76, 0xffffffc0, v77")
    a("v_bfe_u32 v78, v77, 5, 1")
    a("v_lshl_add_u32 v76, v78, 4, v76")
    a("v_bfe_u32 v78, v77, 4, 1")
    a("v_lshl_add_u32 v76, v78, 2, v76")
    a(f"ds_write_b32 v76, v79 offset:{L_GN + 32}")
    a.label("K2_NOTAIL")
    a("s_mov_b64 exec, -1")
    a("s_waitcnt lgkmcnt(0)")
    a("s_barrier")
    a("s_branch K2_JOIN")
    a.label("K2_G")
    WP = 8; WU = 24; ACP = 56; ACU = 104; XR = 56; CR = 64
    AFS = [40, 68, 84]
    g2, g4, g5, g6, g7, g1, g3 = 100, 101, 102, 103, 121, 122, 123
    a(f"v_subrev_u32 v{g2}, 0x2000, v8")
    a(f"v_mov_b32 v{g7}, v9")
    a(f"v_mov_b32 v{g6}, v10")
    a(f"s_sub_u32 s{sTMP+6}, s28, 8")
    a(f"s_mul_i32 s{sTMP+1}, s{sBIN}, {NPB*256}")
    a(f"s_add_u32 s{sTMP+2}, s{sTMP+1}, 8192")
    a(f"s_mov_b32 s{sTMP+3}, {CF_OFF}")
    a(f"s_mov_b32 s{sTMP+4}, {CF_OFF + 8192}")
    a(f"s_lshl_b32 s{sTMP+5}, s{sTMP+6}, 12")
    a(f"s_add_u32 s{sTMP+5}, s{sTMP+5}, {WF_OFF}")
    a(f"v_lshrrev_b32 v{g4}, 8, v{g2}")
    a(f"v_mul_u32_u24 v{g4}, 272, v{g4}")
    a(f"v_lshl_add_u32 v{g4}, v{g7}, 4, v{g4}")
    a(f"v_add_u32 v{g4}, {L_XS}, v{g4}")
    a(f"v_cmp_gt_u32 vcc, 0x1000, v{g2}")
    a("s_waitcnt lgkmcnt(0)")
    srd(a, sX, 4, N * 256)
    a(f"buffer_load_dwordx4 {vr(XR,4)}, v{g2}, {sr(sX,4)}, s{sTMP+1} offen")
    a(f"buffer_load_dwordx4 {vr(XR+4,4)}, v{g2}, {sr(sX,4)}, s{sTMP+2} offen")
    srd(a, sWS, 10, WS_END)
    a(f"buffer_load_dwordx4 {vr(CR,4)}, v{g2}, {sr(sWS,4)}, s{sTMP+3} offen")
    a(f"buffer_load_dwordx4 {vr(CR+4,4)}, v{vCS}, {sr(sWS,4)}, s{sTMP+4} offen")
    a("s_barrier")
    srd(a, sE, 6, E * 32)
    srd(a, sO, 8, N * 256)
    a("s_waitcnt vmcnt(3)")
    gstamp(a, 1)
    a(f"ds_write_b128 v{g4}, {vr(XR,4)}")
    a("s_and_saveexec_b64 s[54:55], vcc")
    a("s_waitcnt vmcnt(2)")
    a(f"ds_write_b128 v{g4}, {vr(XR+4,4)} offset:{32*272}")
    a("s_mov_b64 exec, -1")
    a("s_waitcnt vmcnt(1)")
    a(f"ds_write_b128 v{g2}, {vr(CR,4)} offset:{L_CS}")
    a("s_waitcnt vmcnt(0)")
    a(f"s_cmp_eq_u32 s{sTMP+6}, 0")
    a("s_cbranch_scc0 K2_NOA")
    a(f"ds_write_b128 v{vCS}, {vr(CR+4,4)} offset:{L_CS+8192}")
    a.label("K2_NOA")
    a(f"v_mul_u32_u24 v{g4}, 272, v{g7}")
    a(f"v_lshl_add_u32 v{g4}, v{g6}, 4, v{g4}")
    a(f"v_add_u32 v{g4}, {L_XS}, v{g4}")
    a("s_waitcnt lgkmcnt(0)")
    gstamp(a, 2)
    a("s_barrier")
    gstamp(a, 3)
    for ks in range(4):
        a(f"buffer_load_dwordx4 {vr(WP+4*ks,4)}, v{vCS}, {sr(sWS,4)}, s{sTMP+5} offen offset:{1024*ks}")
    a(f"s_add_u32 s{sTMP+5}, s{sTMP+5}, 32768")
    for ks in range(4):
        a(f"buffer_load_dwordx4 {vr(WU+4*ks,4)}, v{vCS}, {sr(sWS,4)}, s{sTMP+5} offen offset:{1024*ks}")
    for rho in range(3):
        for ks in range(4):
            a(f"ds_read_b128 {vr(AFS[rho]+4*ks,4)}, v{g4} offset:{rho*16*272 + ks*64}")
    a(f"v_lshlrev_b32 v{g5}, 11, v{g6}")
    a(f"v_lshl_add_u32 v{g5}, v{g7}, 2, v{g5}")
    a(f"s_lshl_b32 s{sTMP}, s{sTMP+6}, 6")
    a(f"v_add_u32 v{g5}, s{sTMP}, v{g5}")
    a(f"v_mov_b32 v{g1}, {L_TOT}")
    a(f"s_mov_b32 s{sTMP}, {hex(NEG_LOG2E)}")
    a(f"s_mov_b32 s{sTMP+1}, {hex(f2u(P_RANGE / 1.4426950408889634))}")
    a(f"v_lshlrev_b32 v{g4}, 1, v{g5}")
    a(f"v_add_u32 v{g4}, {L_AGG}, v{g4}")
    a(f"s_and_b32 s{sTMP+2}, s{sTMP+6}, 3")
    a(f"s_lshl_b32 s{sTMP+2}, s{sTMP+2}, 1")
    a(f"s_lshr_b32 s{sTMP+3}, 0x72, s{sTMP+2}")
    a(f"s_and_b32 s{sTMP+3}, s{sTMP+3}, 3")
    a(f"s_lshl_b32 s{sTMP+3}, s{sTMP+3}, 2")
    a(f"s_lshr_b32 s{sTMP+2}, s{sTMP+6}, 2")
    a(f"s_lshl_b32 s{sTMP+2}, s{sTMP+2}, 8")
    a(f"s_add_u32 s{sTMP+3}, s{sTMP+2}, s{sTMP+3}")
    a(f"v_lshlrev_b32 v127, 11, v{g6}")
    a(f"v_lshl_add_u32 v127, v{g7}, 4, v127")
    a(f"v_add_u32 v127, s{sTMP+3}, v127")
    a("s_barrier")
    a(f"ds_read_b32 v{g1}, v{g1}")
    a("s_waitcnt vmcnt(0)")
    gstamp(a, 4)
    for rho in range(3):
        AF = AFS[rho]
        a("s_waitcnt lgkmcnt(1)" if rho == 0 else "")
        for ks in range(4):
            c = "0" if ks == 0 else vr(ACP+4*rho, 4)
            a(f"v_mfma_f32_16x16x32_bf16 {vr(ACP+4*rho,4)}, {vr(AF+4*ks,4)}, {vr(WP+4*ks,4)}, {c}")
    for rho in range(3):
        AF = AFS[rho]
        for ks in range(4):
            c = "0" if ks == 0 else vr(ACU+4*rho, 4)
            a(f"v_mfma_f32_16x16x32_bf16 {vr(ACU+4*rho,4)}, {vr(AF+4*ks,4)}, {vr(WU+4*ks,4)}, {c}")
    a("s_waitcnt lgkmcnt(0)")
    a(f"v_readfirstlane_b32 s{sTOT}, v{g1}")
    a(f"v_max3_f32 v{g1}, |v{ACP}|, |v{ACP+1}|, |v{ACP+2}|")
    for i in range(3, 11, 2):
        a(f"v_max3_f32 v{g1}, |v{ACP+i}|, |v{ACP+i+1}|, v{g1}")
    a(f"v_max_f32_e64 v{g1}, |v{ACP+11}|, v{g1}")
    a(f"v_mov_b32 v{g2}, {L_FLAG}")
    a(f"v_cmp_nge_f32 vcc, s{sTMP+1}, v{g1}")
    a(f"v_mov_b32 v{g3}, 1")
    if "nov5" in OPT: a("s_mov_b64 vcc, -1")
    a("s_and_saveexec_b64 s[54:55], vcc")
    a("s_cbranch_execz K2_NOFLAG")
    a(f"ds_write_b32 v{g2}, v{g3}")
    a.label("K2_NOFLAG")
    a("s_mov_b64 exec, -1")
    for rho in range(3):
        if rho == 2: a(f"s_mov_b64 exec, {sr(sLO,2)}")
        for r in range(4):
            a(f"v_cvt_f64_f32 {P2(AFS[rho]+2*r)}, v{ACU+4*rho+r}")
        for r in range(4):
            a(f"ds_write_b64 v{g4}, {P2(AFS[rho]+2*r)} offset:{rho*16384 + r*1024}")
    a("s_mov_b64 exec, -1")
    a(f"v_mov_b32 v{g3}, {hex(f2u(-float(KSH)))}")
    a("s_waitcnt lgkmcnt(0)")
    gstamp(a, 5)
    a("s_barrier")
    a(f"ds_read_b32 v{g2}, v{g2}")
    a("s_waitcnt lgkmcnt(0)")
    a(f"v_readfirstlane_b32 s{sTMP+2}, v{g2}")
    a("s_nop 3")
    a(f"s_cmp_lg_u32 s{sTMP+2}, 0")
    a("s_cbranch_scc1 K2_PADD")
    for i in range(12):
        a(f"v_fma_f32 v{ACP+i}, v{ACP+i}, s{sTMP}, v{g3}")
    for i in range(12):
        a(f"v_exp_f32 v{ACP+i}, v{ACP+i}")
    for rho in range(3):
        if rho == 2: a(f"s_mov_b64 exec, {sr(sLO,2)}")
        for r in range(4):
            a(f"ds_write_b32 v127, v{ACP+4*rho+r} offset:{L_PPK + rho*8192 + r*512}")
    a("s_branch K2_PDONE")
    a.label("K2_PADD")
    for i in range(12):
        a(f"v_mul_f32 v{ACP+i}, s{sTMP}, v{ACP+i}")
    for i in range(12):
        a(f"v_cvt_pk_bf16_f32 v{ACP+i}, v{ACP+i}, 0")
    for rho in range(3):
        if rho == 2: a(f"s_mov_b64 exec, {sr(sLO,2)}")
        for r in range(4):
            a(f"ds_write_b32 v{g5}, v{ACP+4*rho+r} offset:{L_PPK + rho*8192 + r*512}")
    a.label("K2_PDONE")
    a("s_mov_b64 exec, -1")
    a("s_waitcnt lgkmcnt(0)")
    gstamp(a, 6)
    a("s_barrier")
    a("s_branch K2_JOIN")
    a.label("K2_G_WINDOW")
    a("s_barrier")
    a("s_barrier")
    a("s_barrier")
    a.label("K2_JOIN")
    stamp(a, 4)
    a("s_cmp_eq_u32 s28, 0")
    a("s_cbranch_scc0 K2_NOZ2")
    a(f"v_lshrrev_b32 v68, 2, v{vCS}")
    a("v_mov_b32 v69, 0")
    a(f"ds_write_b32 v68, v69 offset:{L_CNT}")
    a("s_waitcnt lgkmcnt(0)")
    a.label("K2_NOZ2")
    a(f"v_mov_b32 v70, {L_TILES}")
    a("ds_read_b64 v[70:71], v70")
    for t in range(4):
        a(f"ds_read_b128 {vr(B+4*t,4)}, v{vCS} offset:{L_CS + 1024*t}")
    a(f"ds_read_b128 {vr(A,4)}, v{vCS} offset:{L_CS + 8192}")
    a(f"v_lshrrev_b32 v{vJ4}, 2, v{vJ16}")
    a(f"v_mov_b32 v{vJ16h}, v{vJ16}")
    a("s_waitcnt lgkmcnt(5)")
    a(f"v_readfirstlane_b32 s{sTMP+1}, v70")
    a(f"v_readfirstlane_b32 s{sFLAG}, v71")
    a(f"s_lshr_b32 s{sTMP+2}, s{sTMP+1}, 4")
    a(f"s_and_b32 s{sTMP+3}, s{sTMP+1}, 15")
    a(f"s_cmp_lt_u32 s28, s{sTMP+3}")
    a(f"s_cselect_b32 s{sL}, 1, 0")
    a(f"s_add_u32 s{sL}, s{sL}, s{sTMP+2}")
    a(f"s_mul_i32 s{sTMP+2}, s{sTMP+2}, s28")
    a(f"s_min_u32 s{sTMP+3}, s{sTMP+3}, s28")
    a(f"s_add_u32 s{sTMP+2}, s{sTMP+2}, s{sTMP+3}")
    a(f"s_lshl_b32 s{sNIT}, s{sL}, {2 if 'dbl' in OPT else 1}")
    a(f"s_cmp_eq_u32 s{sL}, 0")
    a("s_cbranch_scc1 K2_LOOP_DONE")
    if "noprio" not in OPT: a("s_setprio 3")
    a(f"s_lshl_b32 s{sTMP+4}, s{sTMP+2}, 4")
    a(f"v_add_lshl_u32 v{vTd}, v{vLH}, s{sTMP+4}, 2")
    a(f"s_lshl_b32 s{sM0}, s{sTMP+2}, 9")
    a(f"s_add_u32 s{sM0}, s{sM0}, {L_ES}")
    a(f"v_add_u32 v{vTe0}, s{sM0}, v{vK66}")
    a(f"s_lshl_b32 s{sTMP+4}, s{sTMP+2}, 6")
    a(f"v_add_u32 v{vTa0}, s{sTMP+4}, v{vQ16}")
    a(f"s_mov_b32 s{sDI}, 0")
    a(f"s_mov_b32 s{sN}, 0")
    a(f"s_mov_b32 s{sLI}, 0")
    a(f"s_mov_b32 s{sAI}, 0")
    a(f"s_mov_b32 s{sHL}, 0")
    a(f"s_mov_b32 s{sINCP}, 64")
    a(f"s_mov_b32 s{sINCP+1}, 512")
    a(f"s_sub_i32 s{sLM3}, s{sL}, 3")
    a(f"s_sub_u32 s{sNM2}, s{sNIT}, 2")
    eo_read(a)
    a(f"v_mov_b32 v{vTa}, v{vTa0}")
    a(f"v_mov_b32 v{vTe}, v{vTe0}")
    a("s_waitcnt lgkmcnt(0)")
    e_dma(a)
    a(f"s_cmp_lt_u32 s{sDI}, s{sL}")
    a("s_cbranch_scc0 K2_ND1")
    eo_read(a)
    a("s_waitcnt lgkmcnt(0)")
    e_dma(a)
    eo_read(a)
    a.label("K2_ND1")
    a(f"s_cmp_lg_u32 s{sFLAG}, 0")
    a("s_cbranch_scc1 K2_SETUP_ADD")
    for v5 in (True, False):
        sfx = "F" if v5 else "A"
        if v5:
            for i in range(4): a(f"v_mov_b32 v{A+i}, 0")
        else:
            a.label("K2_SETUP_ADD")
        list_reads(a, v5)
        a(f"v_add_u32 v{vTa}, 64, v{vTa}")
        a("s_waitcnt lgkmcnt(0)")
        gather_stage(a, QH[0])
        for i in range(3):
            if not v5 or i == 2: a(f"v_mov_b32 v{EP+i}, v{G+i}")
        list_reads(a, v5)
        a(f"v_add_u32 v{vTa}, 64, v{vTa}")
        a("s_waitcnt lgkmcnt(0)")
        gather_stage(a, QH[1])
        if v5: stamp(a, 5)
        a("s_waitcnt vmcnt(8)")
        ap_stage(a, vGS[0], v5, EP)
        if v5: ep_read(a)
        a(f"v_add_u32 v{vTe}, 512, v{vTe}")
        a("s_waitcnt lgkmcnt(0)")
        a.label(f"K2_LOOP{sfx}")
        for k in range(3):
            tile_body(a, k, v5, "K2_LOOP_DONE")
        a(f"s_branch K2_LOOP{sfx}")
        for blk in deferred: blk()
        deferred.clear()
    a.label("K2_LOOP_DONE")
    a("s_setprio 0")
    a("s_waitcnt vmcnt(0)")
    if "pstamp" not in OPT: stamp(a, 6)
    a("s_waitcnt lgkmcnt(0)")
    a("s_barrier")
    a(f"s_add_u32 s{sWIN}, s{sWIN}, {CAPE}")
    a(f"s_cmp_lt_u32 s{sWIN}, s{sTOT}")
    a("s_cbranch_scc0 K2_EPI")
    a("s_cmp_ge_u32 s28, 8")
    a("s_cbranch_scc1 K2_G_WINDOW")
    a(f"v_lshrrev_b32 v{vW}, 1, v0")
    a(f"v_lshlrev_b32 v{vOA}, 10, v{vW}")
    a(f"s_lshl_b32 s{sTMP}, s{sBIN}, 2")
    a(f"s_add_u32 s{sTMP}, s{sTMP}, {OFFS_OFF}")
    a(f"buffer_load_dword v{vOf}, v{vOA}, {sr(sWS,4)}, s{sTMP} offen")
    a(f"v_and_b32 v{vSub}, 1, v0")
    a(f"v_mul_u32_u24 v{vSg}, {CE}, v{vW}")
    a(f"v_cmp_gt_u32 vcc, 250, v{vW}")
    a(f"v_mov_b32 v{vPw}, v121")
    if not ECOPY: a(f"v_mul_u32_u24 v{vWb}, {CE*32}, v{vW}")
    a("s_waitcnt vmcnt(0)")
    a(f"v_lshrrev_b32 v{vC}, 16, v{vOf}")
    a(f"v_and_b32 v{vOf}, 0xffff, v{vOf}")
    a(f"v_cndmask_b32 v{vC}, 0, v{vC}, vcc")
    a(f"v_add_u32 v{vSg}, v{vSg}, v{vOf}")
    a(f"v_sub_u32 v{vKB}, s{sWIN}, v{vPw}")
    a(f"v_max_i32 v{vKB}, 0, v{vKB}")
    entry_addr()
    a(f"v_lshl_add_u32 v{vEA}, v{vKB}, 2, v{vEA}")
    a(f"v_lshl_add_u32 v{vEB}, v{vKB}, 2, v{vEB}")
    a(f"s_mov_b32 s{sTMP+4}, {ENT_OFF}")
    entry_loads(sTMP+4)
    a("s_waitcnt vmcnt(0)")
    a("s_branch K2_WINDOW")
    a.label("K2_EPI")
    a("v_cmp_gt_u32 vcc, 640, v0")
    a("s_and_saveexec_b64 s[54:55], vcc")
    a("s_cbranch_execz K2_EXIT")
    a("v_lshlrev_b32 v1, 6, v0")
    for i in range(4):
        a(f"ds_read_b128 {vr(32+4*i,4)}, v1 offset:{L_AGG+16*i}")
    a(f"s_mov_b32 s{sTMP}, {hex(C_2MK)}")
    a(f"s_mov_b32 s{sTMP+1}, {hex(NEG_LOG2E)}")
    a("s_waitcnt lgkmcnt(0)")
    for i in range(8):
        a(f"v_cvt_f32_f64 v{8+i}, v[{32+2*i}:{33+2*i}]")
    a(f"s_mov_b32 s{sTMP+2}, {hex(f2u(-1.4426950408889634 * 2.0**-KSH))}")
    a(f"s_mov_b32 s{sTMP+3}, {hex(f2u(-1.4426950408889634 * 2.0**-KSH))}")
    a(f"s_mov_b32 s{sTMP+1}, {hex(C_2MK)}")
    a(f"s_mov_b32 s{sTMP+4}, 1.0")
    a(f"s_mov_b32 s{sTMP+5}, 1.0")
    for i in range(4):
        a(f"v_pk_mul_f32 {P2(16+2*i)}, {P2(8+2*i)}, s[{sTMP+2}:{sTMP+3}]")
    for i in range(4):
        a(f"v_pk_mul_f32 {P2(8+2*i)}, {P2(8+2*i)}, s[{sTMP}:{sTMP+1}]")
    for i in range(8):
        a(f"v_exp_f32 v{16+i}, v{16+i}")
    for i in range(4):
        a(f"v_pk_add_f32 {P2(16+2*i)}, {P2(16+2*i)}, s[{sTMP+4}:{sTMP+5}]")
    for i in range(8):
        a(f"v_rcp_f32 v{16+i}, v{16+i}")
    a("s_nop 0")
    for i in range(4):
        a(f"v_pk_mul_f32 {P2(8+2*i)}, {P2(8+2*i)}, {P2(16+2*i)}")
    for i in range(4):
        a(f"v_cvt_pk_bf16_f32 v{24+i}, v{8+2*i}, v{9+2*i}")
    a("v_lshlrev_b32 v2, 4, v0")
    a(f"s_mul_i32 s{sTMP}, s{sBIN}, {NPB*256}")
    a(f"buffer_store_dwordx4 v[24:27], v2, {sr(sO,4)}, s{sTMP} offen")
    if "diag" in OPT:
        a("s_waitcnt vmcnt(0)")
        diag_mark(a, 1, False, 0)
    if "stamp" in OPT:
        a("s_waitcnt vmcnt(0)")
        stamp(a, 7)
        a("s_memrealtime s[82:83]")
        a("s_waitcnt lgkmcnt(0)")
        stamp_out(a, 10)
    a.label("K2_EXIT")
    a("s_endpgm")

HEADER = f"""; EGC edge-gated message passing: out = silu(x@U + segsum_dst(sigmoid([x_dst,x_src,e]@G) * (x@V)[src]))
; launch 1 (prep): per-node tables Q'=-log2e*(x@B), H=x@V; edge binning by destination; weight fragment images
; @launch kernel=egc_prep_kernel grid=({K1_WGS},1,1) block=(256,1,1) lds={K1_LDS}
; @launch kernel=egc_main_kernel grid=({NB},1,1) block=(1024,1,1) lds={K2_LDS}
.amdgcn_target "amdgcn-amd-amdhsa--gfx950"
.text
"""

def kd(name, vgpr, sgpr, denorm=False):
    extra = "  .amdhsa_float_denorm_mode_32 3\n" if denorm else ""
    return f""".amdhsa_kernel {name}
  .amdhsa_next_free_vgpr {vgpr}
  .amdhsa_next_free_sgpr {sgpr}
  .amdhsa_accum_offset {((vgpr+3)//4)*4}
  .amdhsa_group_segment_fixed_size 0
  .amdhsa_kernarg_size 80
  .amdhsa_user_sgpr_count 2
  .amdhsa_user_sgpr_kernarg_segment_ptr 1
  .amdhsa_system_sgpr_workgroup_id_x 1
{extra}.end_amdhsa_kernel
"""

def k3(a, which):
    a.raw(".globl egc_diag_kernel")
    a.raw(".p2align 8")
    a.raw(".type egc_diag_kernel,@function")
    a.label("egc_diag_kernel")
    a("s_cmp_ge_u32 s2, 1")
    a("s_cbranch_scc1 K3_END")
    a("s_load_dwordx2 s[4:5], s[0:1], 64")
    a("s_waitcnt lgkmcnt(0)")
    a("s_sub_u32 s4, s4, 1024")
    a("s_subb_u32 s5, s5, 0")
    a("s_load_dwordx2 s[6:7], s[4:5], 0")
    a("s_load_dwordx2 s[8:9], s[4:5], 512")
    a("s_memrealtime s[10:11]")
    a("s_waitcnt lgkmcnt(0)")
    a("s_not_b32 s6, s6")
    a("s_not_b32 s8, s8")
    if which == 1: a("s_sub_u32 s12, s7, s6")
    if which == 2: a("s_sub_u32 s12, s8, s7")
    if which == 3: a("s_sub_u32 s12, s9, s8")
    if which == 4: a("s_sub_u32 s12, s10, s9")
    if which == 0: a("s_mov_b32 s12, 0")
    a("s_lshl_b32 s12, s12, 2")
    a("s_min_u32 s12, s12, 20000")
    a.label("K3_SPIN")
    a("s_memrealtime s[14:15]")
    a("s_waitcnt lgkmcnt(0)")
    a("s_sub_u32 s14, s14, s10")
    a("s_cmp_lt_u32 s14, s12")
    a("s_cbranch_scc1 K3_SPIN")
    a.label("K3_END")
    a("s_endpgm")

def main():
    a = Asm()
    a.raw(".globl egc_prep_kernel")
    k1(a)
    a.raw(".globl egc_main_kernel")
    k2(a)
    hdr = HEADER
    which = [int(o[4:]) for o in OPT if o.startswith("dsel")]
    if which:
        k3(a, which[0])
        hdr = hdr.replace(".amdgcn_target", "; @launch kernel=egc_diag_kernel grid=(1,1,1) block=(64,1,1) lds=0\n.amdgcn_target", 1)
    out = hdr + a.text()
    out += '.section .rodata,"a"\n.p2align 6\n' + kd("egc_prep_kernel", 104 if ("stamp1" in OPT or "diag" in OPT) else 96, 96) + ".p2align 6\n" + kd("egc_main_kernel", 128, 96, True) + (".p2align 6\n" + kd("egc_diag_kernel", 8, 32) if which else "")
    path = sys.argv[1] if len(sys.argv) > 1 else f"cdna_kernels/{NAME}.s"
    open(path, "w").write(out)
    print("wrote", path, len(out), "bytes")

if __name__ == "__main__":
    main()
```

```python
import sys, struct, os
OPT = set(os.environ.get("OPT","").split(","))

NAME = "gather_scatter__edge_featured_mpnn_egc__graph"
N = 10000; E = 320000
NB = 250; NPB = 40
NC = 250; CE = 1280
KSH = 26
def f2u(x): return struct.unpack('<I', struct.pack('<f', x))[0]
NEG_LOG2E = f2u(-1.4426950408889634)
C_2MK = f2u(2.0 ** -KSH)
C_2PK = f2u(2.0 ** KSH)
BF16_NEGK = 0xC1D0
assert KSH == 26

HALF_STRIDE = (N + 1) * 256
T_OFF = 0;            T_BYTES = 2 * HALF_STRIDE
ENT_OFF = 0x500000
OFFS_OFF = 0x640000
WF_OFF = 0x680000
CF_OFF = 0x690000
E2_OFF = 0x800000
WS_END = 0x1200000

K1_BLOCK = 512
NT_WG = 158
NBIN_WG = NC // 2
BIN0 = NT_WG
WF0 = BIN0 + NBIN_WG
CF0 = WF0 + 4
K1_WGS = CF0 + 1
K1_LDS = 128 * 288

class Asm:
    def __init__(self): self.lines = []
    def __call__(self, s):
        for l in s.split("\n"):
            l = l.strip()
            if l: self.lines.append("    " + l)
    def label(self, n): self.lines.append(n + ":")
    def raw(self, s): self.lines.append(s)
    def text(self): return "\n".join(self.lines) + "\n"

def vr(i, n=1): return f"v{i}" if n == 1 else f"v[{i}:{i+n-1}]"
def sr(i, n=1): return f"s{i}" if n == 1 else f"s[{i}:{i+n-1}]"

def srd(a, d, base, nbytes):
    a(f"s_mov_b32 s{d}, s{base}")
    a(f"s_and_b32 s{d+1}, s{base+1}, 0xffff")
    a(f"s_mov_b32 s{d+2}, {nbytes}")
    a(f"s_mov_b32 s{d+3}, 0x00020000")

def stamp1(a, i):
    if "stamp1" in OPT:
        a(f"s_memrealtime s[{64+2*i}:{65+2*i}]")
        a("s_waitcnt lgkmcnt(0)")
def stamp1_out(a, n, ws_srd, wgreg, lbl):
    if "stamp1" in OPT:
        a("s_waitcnt vmcnt(0)")
        stamp1(a, n-1)
        a("v_readfirstlane_b32 s60, v0")
        a("s_cmp_eq_u32 s60, 0")
        a(f"s_cbranch_scc0 {lbl}")
        a(f"s_mov_b32 s{ws_srd+2}, 0x1400000")
        for i in range(n):
            a(f"v_mov_b32 v100, s{64+2*i}")
            a(f"v_mov_b32 v101, s{65+2*i}")
            a(f"s_lshl_b32 s60, s{wgreg}, 7")
            a(f"s_add_u32 s60, s60, {0x1310000 + 8*i}")
            a("v_mov_b32 v102, 0")
            a(f"buffer_store_dwordx2 v[100:101], v102, s[{ws_srd}:{ws_srd+3}], s60 offen")
            a("s_nop 1")
        a.label(lbl)

def diag_mark(a, slot, inv, dbgreg):
    if "diag" not in OPT: return
    dl = f"DIAG_{slot}_{len(a.lines)}"
    a("s_and_b32 s84, s2, 15")
    a("s_cmp_eq_u32 s84, 0")
    a(f"s_cbranch_scc0 {dl}")
    a("v_mbcnt_lo_u32_b32 v98, -1, 0") if False else None
    a("v_readfirstlane_b32 s84, v0")
    a("s_nop 3")
    a("s_cmp_lt_u32 s84, 64")
    a(f"s_cbranch_scc0 {dl}")
    a("s_memrealtime s[84:85]")
    a(f"s_load_dwordx2 s[86:87], s[0:1], 64")
    a("s_waitcnt lgkmcnt(0)")
    if inv: a("s_not_b32 s84, s84")
    a("s_mov_b64 s[88:89], exec") if False else None
    a("v_mov_b32 v99, s84")
    a(f"v_mov_b32 v98, {4*slot}")
    a("s_mov_b64 exec, 1")
    a("global_atomic_umax v98, v99, s[86:87]")
    a("s_mov_b64 exec, -1")
    a.label(dl)

def wave_scan(a, v):
    for sh in (1, 2, 4, 8):
        a("s_nop 1")
        a(f"v_add_u32_dpp v{v}, v{v}, v{v} row_shr:{sh} row_mask:0xf bank_mask:0xf bound_ctrl:1")
    a("s_nop 1")
    a(f"v_add_u32_dpp v{v}, v{v}, v{v} row_bcast:15 row_mask:0xa bank_mask:0xf")
    a("s_nop 1")
    a(f"v_add_u32_dpp v{v}, v{v}, v{v} row_bcast:31 row_mask:0xc bank_mask:0xf")

def k1_table(a):
    XF = 40; ACC = 64
    a.label("K1_TABLE")
    stamp1(a, 0)
    a("s_and_b32 s3, s2, 1")
    a("s_lshr_b32 s28, s2, 1")
    srd(a, 20, 16, 69632)
    srd(a, 36, 14, 32768)
    srd(a, 24, 4, N * 256)
    a("s_lshl_b32 s29, s3, 7")
    a("s_add_u32 s30, s29, 32768")
    a("v_lshrrev_b32 v1, 3, v0")
    a("v_and_b32 v2, 7, v0")
    a("v_lshlrev_b32 v3, 8, v1")
    a("v_lshl_add_u32 v3, v2, 4, v3")
    for i in range(2):
        a(f"buffer_load_dwordx4 {vr(8+4*i,4)}, v3, s[20:23], s30 offen")
        if i < 1: a("s_add_u32 s30, s30, 16384")
    for i in range(2):
        a(f"buffer_load_dwordx4 {vr(16+4*i,4)}, v3, s[36:39], s29 offen")
        if i < 1: a("s_add_u32 s29, s29, 16384")
    a("v_mul_u32_u24 v7, 288, v1")
    a("v_lshl_add_u32 v7, v2, 4, v7")
    a("v_and_b32 v2, 15, v0")
    a("v_bfe_u32 v3, v0, 4, 2")
    a("v_lshrrev_b32 v4, 6, v0")
    a("s_lshl_b32 s31, s28, 7")
    a("v_lshl_add_u32 v5, v4, 4, s31")
    a("v_add_u32 v6, v5, v2")
    a("v_lshlrev_b32 v6, 8, v6")
    a("v_lshl_add_u32 v6, v3, 4, v6")
    for ks in range(4):
        a(f"buffer_load_dwordx4 {vr(XF+4*ks,4)}, v6, s[24:27], 0 offen offset:{64*ks}")
    srd(a, 32, 18, 2 * HALF_STRIDE)
    for i in range(4):
        a(f"s_waitcnt vmcnt({7 - i})")
        a(f"ds_write_b128 v7, {vr(8+4*i,4)} offset:{18432*(i&1) + 128*(i>>1)}")
    a("v_lshrrev_b32 v7, 2, v2")
    a("v_lshl_add_u32 v7, v3, 3, v7")
    a("v_mul_u32_u24 v7, 288, v7")
    a("v_and_b32 v1, 3, v0")
    a("v_lshl_add_u32 v7, v1, 3, v7")
    a("v_lshl_add_u32 v1, v3, 2, v5")
    a("v_lshlrev_b32 v6, 8, v1")
    a("v_lshl_add_u32 v6, v2, 4, v6")
    a(f"s_mul_i32 s3, s3, {HALF_STRIDE}")
    a("s_waitcnt lgkmcnt(0)")
    stamp1(a, 1)
    a("s_barrier")
    stamp1(a, 2)
    BF = [8, 24, 96]
    def reads(t):
        b = BF[t % 3]
        for ks in range(4):
            a(f"ds_read_b64_tr_b16 {vr(b+4*ks,2)}, v7 offset:{9216*ks + 32*t}")
            a(f"ds_read_b64_tr_b16 {vr(b+4*ks+2,2)}, v7 offset:{9216*ks + 32*t + 1152}")
    reads(0)
    a("s_waitcnt vmcnt(0)")
    for t in range(8):
        if t < 7:
            reads(t + 1)
            a("s_waitcnt lgkmcnt(8)")
        else:
            a("s_waitcnt lgkmcnt(0)")
        b = BF[t % 3]
        for ks in range(4):
            c = "0" if ks == 0 else vr(ACC+4*t, 4)
            a(f"v_mfma_f32_16x16x32_bf16 {vr(ACC+4*t,4)}, {vr(XF+4*ks,4)}, {vr(b+4*ks,4)}, {c}")
    stamp1(a, 3)
    a("s_mov_b32 s40, 0x00800000")
    a("s_mov_b32 s41, 0x7fff0000")
    a(f"s_mov_b32 s42, {hex(NEG_LOG2E)}")
    a(f"s_movk_i32 s43, {N}")
    a("s_nop 6")
    for r in range(4):
        W = 8 + 8 * (r & 1)
        for t in range(4):
            a(f"v_mul_f32 v{ACC+4*t+r}, s42, v{ACC+4*t+r}")
        for p in range(4):
            lo, hi = ACC + 4*(2*p) + r, ACC + 4*(2*p+1) + r
            a(f"v_cvt_pk_bf16_f32 v{W+p}, v{lo}, v{hi}")
            a(f"v_max_f32_e64 v{hi}, |v{hi}|, s40")
        for p in range(4):
            hi = ACC + 4*(2*p+1) + r
            a(f"v_add_u32 v{hi}, 0x8000, v{hi}")
        for p in range(4):
            hi = ACC + 4*(2*p+1) + r
            a(f"v_sub_u32_sdwa v{hi}, v{hi}, v{W+p} dst_sel:DWORD dst_unused:UNUSED_PAD src0_sel:DWORD src1_sel:WORD_0")
        a(f"v_add_u32 v2, {r}, v1")
        a("v_cmp_ge_u32 vcc, s43, v2")
        for p in range(4):
            hi = ACC + 4*(2*p+1) + r
            a(f"v_bfi_b32 v{W+p}, s41, v{hi}, v{W+p}")
        a("s_and_saveexec_b64 s[44:45], vcc")
        a(f"s_cbranch_execz K1_TAB_SKIP{r}")
        a(f"buffer_store_dwordx4 {vr(W,4)}, v6, s[32:35], s3 offen offset:{256*r} sc1")
        a.label(f"K1_TAB_SKIP{r}")
        a("s_mov_b64 exec, s[44:45]")
    stamp1(a, 4)
    stamp1(a, 5)
    stamp1_out(a, 7, 32, 2, "K1_ST_TAB")
    if "diag" in OPT:
        a("s_waitcnt vmcnt(0)")
        diag_mark(a, 1, False, 0)
    a("s_endpgm")

def k1_bin(a):
    HIST, OFF2, SORT, AREA = 0, 1024, 2048, 7168
    a.label("K1_BIN")
    stamp1(a, 0)
    a("v_lshrrev_b32 v1, 8, v0")
    a(f"s_sub_u32 s3, s2, {BIN0}")
    a("v_readfirstlane_b32 s45, v1")
    a("v_and_b32 v0, 255, v0")
    srd(a, 20, 8, E * 4)
    srd(a, 24, 10, E * 4)
    srd(a, 28, 18, WS_END)
    a("s_lshl_b32 s3, s3, 1")
    a("s_add_u32 s3, s3, s45")
    a(f"s_mul_i32 s46, s45, {AREA}")
    a("v_lshlrev_b32 v1, 2, v0")
    a("s_mul_i32 s32, s3, 5120")
    a("s_add_u32 s33, s32, 4096")
    DST, SRC = 8, 16
    for m in range(5):
        a(f"buffer_load_dword v{DST+m}, v1, s[24:27], s32 offen offset:{1024*m}" if m < 4 else
          f"buffer_load_dword v{DST+m}, v1, s[24:27], s33 offen")
    for m in range(5):
        a(f"buffer_load_dword v{SRC+m}, v1, s[20:23], s32 offen offset:{1024*m}" if m < 4 else
          f"buffer_load_dword v{SRC+m}, v1, s[20:23], s33 offen")
    a("v_mov_b32 v2, 0")
    a("v_add_u32 v6, s46, v1")
    a(f"ds_write_b32 v6, v2 offset:{HIST}")
    a("v_mov_b32 v7, s46")
    a("s_mov_b32 s34, 52429")
    a("s_waitcnt lgkmcnt(0)")
    a("s_barrier")
    BINR, RANK = 24, 32
    if "stamp1" in OPT:
        a("s_waitcnt vmcnt(9)")
        stamp1(a, 1)
    a("v_mov_b32 v3, 1")
    for m in range(5):
        a(f"s_waitcnt vmcnt({9-m})")
        a(f"v_mul_u32_u24 v{BINR+m}, s34, v{DST+m}")
        a(f"v_lshrrev_b32 v{BINR+m}, 21, v{BINR+m}")
        a(f"v_mul_u32_u24 v4, {NPB}, v{BINR+m}")
        a(f"v_sub_u32 v{DST+m}, v{DST+m}, v4")
        a(f"v_lshl_add_u32 v{BINR+m}, v{BINR+m}, 2, v7")
        a(f"ds_add_rtn_u32 v{RANK+m}, v{BINR+m}, v3 offset:{HIST}")
    for m in range(5):
        a(f"s_waitcnt vmcnt({4-m})")
        a(f"v_lshl_or_b32 v{SRC+m}, v{DST+m}, 14, v{SRC+m}")
        a(f"v_add_u32 v4, {256*m}, v0")
        a(f"v_lshl_or_b32 v{SRC+m}, v4, 20, v{SRC+m}")
    a("v_and_b32 v5, 63, v0")
    a("v_lshlrev_b32 v5, 4, v5")
    a("v_add_u32 v6, v5, v7")
    a("s_waitcnt lgkmcnt(0)")
    a("s_barrier")
    stamp1(a, 2)
    a(f"ds_read_b128 v[40:43], v6 offset:{HIST}")
    a(f"s_lshr_b32 s47, s46, 2")
    a("s_waitcnt lgkmcnt(0)")
    a("v_add_u32 v44, v40, v41")
    a("v_add_u32 v45, v42, v43")
    a("v_add_u32 v46, v44, v45")
    a("v_mov_b32 v47, v46")
    wave_scan(a, 47)
    a("v_sub_u32 v48, v47, v46")
    a("v_add_u32 v49, v48, v40")
    a("v_add_u32 v50, v48, v44")
    a("v_add_u32 v51, v50, v42")
    for i in range(4):
        a(f"v_add_u32 v{56+i}, s47, v{48+i}")
    a(f"ds_write_b128 v6, v[56:59] offset:{OFF2}")
    a("v_readfirstlane_b32 s35, v0")
    a("s_lshl_b32 s36, s3, 10")
    a(f"s_add_u32 s36, s36, {OFFS_OFF}")
    a("s_cmp_ge_u32 s35, 64")
    a("s_cbranch_scc1 K1_BIN_NOPUB")
    for i in range(4):
        a(f"v_lshl_or_b32 v{52+i}, v{40+i}, 16, v{48+i}")
    a("buffer_store_dwordx4 v[52:55], v5, s[28:31], s36 offen sc1")
    a.label("K1_BIN_NOPUB")
    a("s_waitcnt lgkmcnt(0)")
    for m in range(5):
        a(f"ds_read_b32 v{40+m}, v{BINR+m} offset:{OFF2}")
    for m in range(5):
        a(f"s_waitcnt lgkmcnt({4-m})")
        a(f"v_add_lshl_u32 v{40+m}, v{40+m}, v{RANK+m}, 2")
        a(f"ds_write_b32 v{40+m}, v{SRC+m} offset:{SORT}")
    stamp1(a, 3)
    a("v_lshlrev_b32 v5, 4, v0")
    a("v_add_u32 v6, v5, v7")
    a("s_waitcnt lgkmcnt(0)")
    a("s_barrier")
    stamp1(a, 4)
    a(f"ds_read_b128 v[40:43], v6 offset:{SORT}")
    a(f"ds_read_b128 v[44:47], v6 offset:{SORT+4096}")
    a(f"s_add_u32 s36, s32, {ENT_OFF}")
    a("s_add_u32 s37, s36, 4096")
    a("v_cmp_gt_u32 vcc, 64, v0")
    a("s_waitcnt lgkmcnt(1)")
    a("buffer_store_dwordx4 v[40:43], v5, s[28:31], s36 offen sc1")
    a("s_and_saveexec_b64 s[38:39], vcc")
    a("s_cbranch_execz K1_BIN_END")
    a("s_waitcnt lgkmcnt(0)")
    a("buffer_store_dwordx4 v[44:47], v5, s[28:31], s37 offen sc1")
    a.label("K1_BIN_END")
    a("s_mov_b64 exec, -1")
    if "epf" in OPT:
        srd(a, 40, 6, E * 32)
        a("v_lshlrev_b32 v8, 7, v0")
        a("s_mul_i32 s44, s3, 40960")
        a("buffer_load_dword v9, v8, s[40:43], s44 offen")
        a("s_add_u32 s44, s44, 32768")
        a("s_cmp_lt_u32 s35, 64")
        a("s_cbranch_scc0 K1_BIN_NOPF")
        a("buffer_load_dword v10, v8, s[40:43], s44 offen")
        a.label("K1_BIN_NOPF")
    stamp1(a, 5)
    stamp1_out(a, 7, 28, 2, "K1_ST_BIN")
    if "diag" in OPT:
        a("s_waitcnt vmcnt(0)")
        diag_mark(a, 1, False, 0)
    a("s_endpgm")

def k1_wf(a):
    a.label("K1_WF")
    a(f"s_sub_u32 s3, s2, {WF0}")
    a("v_lshrrev_b32 v1, 6, v0")
    a("s_nop 0")
    a("v_readfirstlane_b32 s28, v1")
    a("s_lshl_b32 s3, s3, 3")
    a("s_add_u32 s3, s3, s28")
    a("s_lshr_b32 s29, s3, 1")
    a("s_and_b32 s30, s3, 1")
    a("s_cmp_lt_u32 s29, 8")
    a("s_cselect_b32 s20, s16, s12")
    a("s_cselect_b32 s21, s17, s13")
    a("s_and_b32 s21, s21, 0xffff")
    a("s_mov_b32 s22, 32768")
    a("s_mov_b32 s23, 0x00020000")
    srd(a, 24, 18, WS_END)
    a("v_and_b32 v2, 15, v0")
    a("v_bfe_u32 v3, v0, 4, 2")
    a("s_and_b32 s31, s29, 7")
    a("s_lshl_b32 s31, s31, 5")
    a("s_lshl_b32 s32, s30, 14")
    a("s_add_u32 s31, s31, s32")
    a("v_lshlrev_b32 v4, 11, v3")
    a("v_lshl_add_u32 v4, v2, 1, v4")
    a("s_add_u32 s33, s31, 8192")
    for f in range(2):
        for m in range(8):
            a(f"buffer_load_ushort v{8+8*f+m}, v4, s[20:23], s{31 if f==0 else 33} offen offset:{256*m}")
    a("v_and_b32 v5, 63, v0")
    a("v_lshlrev_b32 v5, 4, v5")
    a("s_lshl_b32 s34, s3, 11")
    a(f"s_add_u32 s34, s34, {WF_OFF}")
    a("s_cmp_lt_u32 s29, 8")
    a(f"s_cselect_b32 s35, 1.0, {hex(C_2PK)}")
    a("s_mov_b32 s36, 0x07060302")
    for f in range(2):
        a(f"s_waitcnt vmcnt({8 if f==0 else 1})")
        for m in range(8):
            a(f"v_lshlrev_b32 v{8+8*f+m}, 16, v{8+8*f+m}")
            a(f"v_mul_f32 v{8+8*f+m}, s35, v{8+8*f+m}")
        for p in range(4):
            a(f"v_perm_b32 v{24+4*f+p}, v{8+8*f+2*p+1}, v{8+8*f+2*p}, s36")
        a(f"buffer_store_dwordx4 {vr(24+4*f,4)}, v5, s[24:27], s34 offen offset:{1024*f} sc1")
    a("s_endpgm")

def k1_cf(a):
    a.label("K1_CF")
    a("v_lshrrev_b32 v1, 6, v0")
    a("s_nop 0")
    a("v_readfirstlane_b32 s28, v1")
    a("s_nop 3")
    a("s_cmp_ge_u32 s28, 4")
    a("s_cbranch_scc1 K1_CF_END")
    srd(a, 20, 16, 69632)
    srd(a, 24, 18, WS_END)
    a("v_and_b32 v2, 15, v0")
    a("v_bfe_u32 v3, v0, 4, 2")
    a("v_and_b32 v4, 1, v3")
    a("v_lshlrev_b32 v4, 11, v4")
    a("v_lshl_add_u32 v4, v2, 1, v4")
    a("s_lshl_b32 s29, s28, 6")
    a("s_add_u32 s29, s29, 65536")
    for f in range(2):
        for m in range(8):
            a(f"buffer_load_ushort v{8+8*f+m}, v4, s[20:23], s29 offen offset:{256*m + 32*f}")
    a("v_and_b32 v5, 63, v0")
    a("v_lshlrev_b32 v5, 4, v5")
    a("s_lshl_b32 s34, s28, 11")
    a(f"s_add_u32 s34, s34, {CF_OFF}")
    a(f"s_mov_b32 s30, {hex(NEG_LOG2E)}")
    a("v_cmp_gt_u32 vcc, 2, v3")
    a("v_cmp_eq_u32 s[32:33], 2, v3")
    a(f"v_mov_b32 v6, {hex(BF16_NEGK)}")
    a("v_mov_b32 v7, 0")
    a("s_waitcnt vmcnt(0)")
    for f in range(2):
        for m in range(8):
            a(f"v_lshlrev_b32 v{8+8*f+m}, 16, v{8+8*f+m}")
            a(f"v_mul_f32 v{8+8*f+m}, s30, v{8+8*f+m}")
        for p in range(4):
            a(f"v_cvt_pk_bf16_f32 v{24+4*f+p}, v{8+8*f+2*p}, v{8+8*f+2*p+1}")
        a(f"v_cndmask_b32 v30, v7, v6, s[32:33]" if False else "")
        a(f"v_cndmask_b32 v32, v7, v6, s[32:33]")
        a(f"v_cndmask_b32 v{24+4*f+0}, v7, v{24+4*f+0}, vcc")
        a(f"v_cndmask_b32 v{24+4*f+1}, v7, v{24+4*f+1}, vcc")
        a(f"v_cndmask_b32 v{24+4*f+2}, v32, v{24+4*f+2}, vcc")
        a(f"v_cndmask_b32 v{24+4*f+3}, v7, v{24+4*f+3}, vcc")
        a(f"buffer_store_dwordx4 {vr(24+4*f,4)}, v5, s[24:27], s34 offen offset:{1024*f} sc1")
    a("s_cmp_eq_u32 s28, 0")
    a("s_cbranch_scc0 K1_CF_END")
    a("v_lshrrev_b32 v8, 2, v2")
    a("v_subrev_u32 v9, 2, v3")
    a("v_lshlrev_b32 v9, 1, v9")
    a("v_mov_b32 v10, 0x3f803f80")
    a("v_cmp_eq_u32 vcc, v8, v9")
    a("v_add_u32 v9, 1, v9")
    a("v_cmp_eq_u32 s[36:37], v8, v9")
    a("v_cndmask_b32 v12, v7, v10, vcc")
    a("v_mov_b32 v11, 0x3f80")
    a("v_cndmask_b32 v13, v7, v10, s[36:37]")
    a("v_cndmask_b32 v14, v7, v11, s[32:33]")
    a("v_mov_b32 v15, 0")
    a(f"s_mov_b32 s34, {CF_OFF + 8192}")
    a("buffer_store_dwordx4 v[12:15], v5, s[24:27], s34 offen sc1")
    a.label("K1_CF_END")
    a("s_endpgm")

def k1(a):
    a.raw(".p2align 8")
    a.raw(".type egc_prep_kernel,@function")
    a.label("egc_prep_kernel")
    a(f"s_cmp_ge_u32 s2, {K1_WGS}")
    a("s_cbranch_scc1 K1_EXIT")
    diag_mark(a, 0, True, 0)
    a("s_load_dwordx4 s[4:7], s[0:1], 0")
    a("s_load_dwordx4 s[8:11], s[0:1], 16")
    a("s_load_dwordx4 s[12:15], s[0:1], 32")
    a("s_load_dwordx2 s[16:17], s[0:1], 48")
    a("s_load_dwordx2 s[18:19], s[0:1], 72")
    if "tabfirst" not in OPT:
        a(f"s_add_u32 s20, s2, {NT_WG}")
        a(f"s_sub_u32 s21, s2, {NBIN_WG}")
        a(f"s_cmp_lt_u32 s2, {NBIN_WG}")
        a("s_cselect_b32 s22, s20, s21")
        a(f"s_cmp_lt_u32 s2, {WF0}")
        a("s_cselect_b32 s2, s22, s2")
    a("s_waitcnt lgkmcnt(0)")
    a(f"s_cmp_lt_u32 s2, {BIN0}")
    a("s_cbranch_scc1 K1_TABLE")
    a(f"s_cmp_lt_u32 s2, {WF0}")
    a("s_cbranch_scc1 K1_BIN")
    a(f"s_cmp_lt_u32 s2, {CF0}")
    a("s_cbranch_scc1 K1_WF")
    a("s_branch K1_CF")
    a.label("K1_EXIT")
    a("s_endpgm")
    k1_table(a)
    k1_bin(a)
    k1_wf(a)
    k1_cf(a)

CAPE = 1500
SCAP = 1632
L_CNT = 0; L_TOT = 256; L_TILES = 264; L_FLAG = 268
P_RANGE = 60.0
L_ROW = 512
L_GN = L_ROW + SCAP * 4
L_EO = L_GN + SCAP * 4
L_PPK = L_EO + SCAP * 4
L_CS = L_PPK + 20480
L_AGG = L_CS + 9216
L_XS = L_AGG + 40960
L_ES = L_XS + 48 * 272
L_RAW = L_ES
K2_LDS = L_ES + SCAP * 32
assert K2_LDS <= 163840 and L_AGG + 512 < 65536

QH = [8, 24, 40]; D = 56; B = 72; A = 88; U = 92; T = 100; R = 104; G = 108
vGS = [111, 112, 113]; vTa = 114; vTe = 115; vJ16 = 116; vJ4 = 117; vTa0 = 118; vTe0 = 119; vCS = 120
vDUM = 7
vTd = 122; vEo = 123; vH16 = 5; vEPa = 1; vJ16h = 6; EP = 124
vK66 = 2; vQ16 = 3; vLH = 4
sX = 12; sE = 16; sO = 20; sWS = 24
sWV = 28
sLO = 30
sHI = 32
sCC = 34
sN = 36; sNIT = 37; sL = 38
sLI = 39
sAI = 40
sHL = 41
sHG = 42
sTOT = 43
sWIN = 44
sDI = 45
sM0 = 62
sBIN = 29
sE2 = 63
sINC = 20
sLM3 = 43+48
sFLAG = 90
sNM2 = 89
sINCP = 92
sM = 46
sTMP = 56

STAMP_OFF = 0x1300000
def fstamp(a, i):
    if "fine" in OPT:
        a(f"s_memtime s[{64+2*i}:{65+2*i}]")
        a("s_waitcnt lgkmcnt(0)")
def gstamp(a, i):
    if "gst" in OPT:
        a(f"s_memtime s[{64+2*i}:{65+2*i}]")
        a("s_waitcnt lgkmcnt(0)")
def stamp(a, i):
    if ("fine" in OPT or "gst" in OPT) and i in (1,2,3,4,5,6): return
    if "stamp" in OPT:
        a(f"s_memtime s[{64+2*i}:{65+2*i}]")
        a("s_waitcnt lgkmcnt(0)")
def stamp_out(a, n):
    if "stamp" in OPT:
        a(f"s_cmp_eq_u32 s28, {8 if 'gst' in OPT else 0}")
        a("s_cbranch_scc0 STAMP_SKIP")
        a("s_mov_b64 exec, -1")
        a("s_mov_b32 s26, 0x1400000")
        for i in range(n):
            a(f"v_mov_b32 v100, s{64+2*i}")
            a(f"v_mov_b32 v101, s{65+2*i}")
            a(f"s_lshl_b32 s60, s2, 7")
            a(f"s_add_u32 s60, s60, {STAMP_OFF + 8*i}")
            a("v_mov_b32 v102, 0")
            a(f"buffer_store_dwordx2 v[100:101], v102, {sr(sWS,4)}, s60 offen")
            a("s_nop 1")
        a.label("STAMP_SKIP")
def P2(x): return f"v[{x}:{x+1}]"

def pair_code(ta, tb, h, shl, vG, v5):
    s = []
    if shl:
        for r in range(4):
            s.append(f"v_lshlrev_b32 v{h[r]}, 16, v{h[r]}")
            s.append(f"v_lshlrev_b32 v{h[r]+1}, 16, v{h[r]+1}")
    if v5:
        ep = EP + (2 if shl else 0)
        for r in range(4):
            s.append(f"v_exp_f32 v{U+2*r}, v{D+4*ta+r}")
            s.append(f"v_exp_f32 v{U+2*r+1}, v{D+4*tb+r}")
        if not shl: s.append("s_waitcnt lgkmcnt(3)")
        for r in range(4):
            s.append(f"v_pk_fma_f32 {P2(U+2*r)}, {P2(U+2*r)}, {P2(ep)}, s[{sCC}:{sCC+1}] clamp")
    else:
        for r in range(4):
            s.append(f"v_exp_f32_e64 v{U+2*r}, v{D+4*ta+r} clamp")
            s.append(f"v_exp_f32_e64 v{U+2*r+1}, v{D+4*tb+r} clamp")
        for r in range(4):
            s.append(f"v_pk_add_f32 {P2(U+2*r)}, {P2(U+2*r)}, s[{sCC}:{sCC+1}]")
    d0, d1, d2, d3 = U, U+2, U+4, U+6
    s += [f"v_pk_mul_f32 {P2(T)}, {P2(h[0])}, {P2(d1)}",
          f"v_pk_mul_f32 {P2(T+2)}, {P2(h[2])}, {P2(d3)}",
          f"v_pk_fma_f32 {P2(T)}, {P2(h[1])}, {P2(d0)}, {P2(T)}",
          f"v_pk_fma_f32 {P2(T+2)}, {P2(h[3])}, {P2(d2)}, {P2(T+2)}",
          f"v_pk_mul_f32 {P2(d0)}, {P2(d0)}, {P2(d1)}",
          f"v_pk_mul_f32 {P2(d2)}, {P2(d2)}, {P2(d3)}",
          f"v_pk_mul_f32 {P2(d1)}, {P2(d0)}, {P2(d2)}",
          f"v_pk_mul_f32 {P2(T)}, {P2(T)}, {P2(d2)}",
          f"v_rcp_f32 v{d1}, v{d1}",
          f"v_rcp_f32 v{d1+1}, v{d1+1}",
          f"v_pk_fma_f32 {P2(T)}, {P2(T+2)}, {P2(d0)}, {P2(T)}",
          f"v_pk_mul_f32 {P2(T)}, {P2(T)}, {P2(d1)}"]
    if "noadd" not in OPT:
        s += [f"v_cvt_f64_f32 {P2(U)}, v{T}",
              f"v_cvt_f64_f32 {P2(U+4)}, v{T+1}",
              f"ds_add_f64 v{vG}, {P2(U)} offset:{L_AGG + 128*ta}",
              f"ds_add_f64 v{vG}, {P2(U+4)} offset:{L_AGG + 128*tb}"]
    return s

deferred = []
def defer(fn, inline):
    if inline: fn()
    else: deferred.append(fn)
uid = [0]
def lab(p):
    uid[0] += 1
    return f"{p}_{uid[0]}"

def list_reads(a, v5):
    a(f"ds_read_b128 {vr(R,4)}, v{vTa} offset:{L_ROW}")
    if v5: a(f"ds_read_b32 v{G+2}, v{vTa} offset:{L_GN + 8}")
    else:  a(f"ds_read_b96 {vr(G,3)}, v{vTa} offset:{L_GN}")

def ep_read(a):
    a(f"ds_read_b128 {vr(EP,4)}, v{vEPa} offset:{L_PPK}")

def advance(a):
    a(f"v_pk_add_f32 {P2(vTa)}, {P2(vTa)}, s[{sINCP}:{sINCP+1}]")

def list_wrap(a):
    a(f"s_add_u32 s{sLI}, s{sLI}, 1")
    a(f"s_cmp_eq_u32 s{sLI}, s{sL}")
    l, lb = lab("K2_LW"), lab("K2_LWB")
    a(f"s_cbranch_scc1 {l}")
    a.label(lb)
    def blk():
        a.label(l)
        a(f"s_mov_b32 s{sLI}, 0")
        a(f"s_mov_b32 s{sHL}, {HALF_STRIDE}")
        a(f"v_mov_b32 v{vTa}, v{vTa0}")
        a(f"s_branch {lb}")
    deferred.append(blk)

def eo_read(a):
    a(f"ds_read_b32 v{vEo}, v{vTd} offset:{L_EO}")
    a(f"v_add_u32 v{vTd}, 64, v{vTd}")

def e_dma(a):
    a(f"s_mov_b32 m0, s{sM0}")
    a(f"v_add_u32 v{vEo}, v{vEo}, v{vH16}")
    if "samee" in OPT: a(f"v_and_b32 v{vEo}, 0x1f, v{vEo}")
    a(f"s_add_u32 s{sM0}, s{sM0}, 512")
    a(f"s_add_u32 s{sDI}, s{sDI}, 1")
    a(f"s_mov_b64 exec, {sr(sLO,2)}")
    a(f"buffer_load_dwordx4 v{vEo}, {sr(sWS if 'ecopy' in OPT else sE,4)}, s{sE2} offen{' nt' if 'edmant' in OPT else ''}{' sc1' if 'edmasc1' in OPT else ''} lds")
    a("s_mov_b64 exec, -1")

def gather_stage(a, buf, inloop=False):
    if inloop:
        lsk = lab("K2_SG")
        a(f"s_cmp_ge_u32 s{sN}, s{sNM2}")
        a(f"s_cbranch_scc1 {lsk}")
    for r in (0, 2):
        a(f"v_pk_add_f32 {P2(R+r)}, {P2(R+r)}, {P2(vJ16)} op_sel_hi:[1,0]")
    if "samerow" in OPT:
        for r in range(4): a(f"v_and_b32 v{R+r}, 0xff, v{R+r}")
    for r in range(4):
        a(f"buffer_load_dwordx4 {vr(buf+4*r,4)}, v{R+r}, {sr(sWS,4)}, s{sHL} offen")
    l, lb = lab("K2_ND"), lab("K2_NDB")
    a(f"s_cmp_lt_u32 s{sDI}, s{sL}")
    a(f"s_cbranch_scc1 {l}")
    a.label(lb)
    def blk():
        a.label(l)
        e_dma(a)
        eo_read(a)
        a(f"s_branch {lb}")
    deferred.append(blk)
    list_wrap(a)
    if inloop: a.label(lsk)

def ap_stage(a, dstG, v5, G=G):
    l, lb = lab("K2_AW"), lab("K2_AWB")
    a(f"s_cmp_eq_u32 s{sAI}, s{sL}")
    a(f"s_cbranch_scc1 {l}")
    a.label(lb)
    def blk():
        a.label(l)
        a(f"s_mov_b32 s{sAI}, 0")
        if "pstamp" in OPT:
            lq = lab("K2_PS")
            a(f"s_cmp_lt_u32 s{sN}, s{sL}")
            a(f"s_cbranch_scc0 {lq}")
            a("s_memtime s[76:77]")
            a("s_waitcnt lgkmcnt(0)")
            a.label(lq)
        if "noprio" not in OPT:
            lp = lab("K2_NP")
            a(f"s_cmp_lt_u32 s{sN}, s{sL}")
            a(f"s_cbranch_scc0 {lp}")
            a("s_setprio 2" if "oldprio" not in OPT else "s_setprio 0")
            a.label(lp)
        a(f"v_add_u32 v{vJ4}, 256, v{vJ4}")
        if v5: a(f"v_add_u32 v{vJ16h}, 256, v{vJ16h}")
        a(f"v_mov_b32 v{vTe}, v{vTe0}")
        for t in range(4):
            a(f"ds_read_b128 {vr(B+4*t,4)}, v{vCS} offset:{L_CS + 1024*(4+t)}")
        a(f"s_branch {lb}")
    deferred.append(blk)
    a(f"s_add_u32 s{sAI}, s{sAI}, 1")
    if v5:
        a(f"v_add_lshl_u32 v{dstG}, v{G+2}, v{vJ4}, 1")
        a(f"v_add_u32 v{vEPa}, v{G+2}, v{vJ16h}")
        a(f"s_mov_b64 exec, {sr(sLO,2)}")
        a(f"ds_read_b128 {vr(A,4)}, v{vTe}")
        a("s_mov_b64 exec, -1")
        return
    a(f"v_pk_add_f32 {P2(G)}, {P2(G)}, {P2(vJ16)} op_sel:[0,1] op_sel_hi:[1,1]")
    a(f"v_add_lshl_u32 v{dstG}, v{G+2}, v{vJ4}, 1")
    a(f"s_mov_b64 exec, {sr(sLO,2)}")
    a(f"ds_read_b128 {vr(A,4)}, v{vTe}")
    a(f"s_mov_b64 exec, {sr(sHI,2)}")
    for t in range(4 if "nop" not in OPT else 0):
        a(f"ds_read_b32 v{B+4*t}, v{G} offset:{L_PPK + 64*t}")
        a(f"ds_read_b32 v{B+4*t+1}, v{G+1} offset:{L_PPK + 64*t}")
    a("s_mov_b64 exec, -1")

def tile_body(a, k, v5, done):
    buf = QH[k]; nbuf = QH[(k + 2) % 3]
    vG = vGS[k]; vGn = vGS[(k + 1) % 3]
    l2 = lab("K2_W")
    a(f"s_cmp_lt_i32 s{sN}, s{sLM3}")
    a(f"s_cbranch_scc1 {l2}")
    a("s_waitcnt vmcnt(4)")
    a.label(l2)
    a("s_waitcnt vmcnt(6)")
    for t in (1, 3):
        p = t >> 1
        for rr in (0, 2):
            a(f"v_pk_mov_b32 {P2(D+4*t+rr)}, {P2(buf+4*rr)}, {P2(buf+4*(rr+1))} op_sel:[{p},{p}]")
    for t in (0, 2):
        p = t >> 1
        for r in range(4):
            a(f"v_lshlrev_b32 v{D+4*t+r}, 16, v{buf+4*r+p}")
    a("s_waitcnt lgkmcnt(4)")
    for t in (1, 3, 0, 2):
        a(f"v_mfma_f32_16x16x32_bf16 {vr(D+4*t,4)}, {vr(A,4)}, {vr(B+4*t,4)}, {vr(D+4*t,4)}")
    ap_stage(a, vGn, v5)
    list_reads(a, v5)
    advance(a)
    h = [buf + 4*r + 2 for r in range(4)]
    for ins in pair_code(1, 3, h, False, vG, v5): a(ins)
    a("s_waitcnt lgkmcnt(3)" if "noadd" not in OPT else "s_waitcnt lgkmcnt(1)")
    gather_stage(a, nbuf, True)
    for ins in pair_code(0, 2, h, True, vG, v5): a(ins)
    if v5: ep_read(a)
    a(f"s_add_u32 s{sN}, s{sN}, 1")
    if "noprio" in OPT or "oldprio" in OPT:
        a(f"s_cmp_ge_u32 s{sN}, s{sNIT}")
        a(f"s_cbranch_scc1 {done}")
    else:
        l, lb = lab("K2_PR"), lab("K2_PRB")
        a(f"s_cmp_ge_u32 s{sN}, s{sNM2}")
        a(f"s_cbranch_scc1 {l}")
        a.label(lb)
        def blk():
            l1 = lab("K2_PR1")
            a.label(l)
            a(f"s_cmp_ge_u32 s{sN}, s{sNIT}")
            a(f"s_cbranch_scc1 {done}")
            a(f"s_cmp_eq_u32 s{sN}, s{sNM2}")
            a(f"s_cbranch_scc0 {l1}")
            a("s_setprio 1")
            a(f"s_branch {lb}")
            a.label(l1)
            a("s_setprio 0")
            a("s_waitcnt vmcnt(0)")
            a(f"s_branch {lb}")
        deferred.append(blk)

def table_prefetch(a, vL16):
    if "nopf" in OPT: return
    a(f"s_lshr_b32 s{sTMP+5}, s2, 3")
    a(f"s_mul_i32 s{sTMP+5}, s{sTMP+5}, 81920")
    a(f"s_lshl_b32 s{sTMP+6}, s28, 13")
    a(f"s_add_u32 s{sTMP+5}, s{sTMP+5}, s{sTMP+6}")
    a(f"s_cmp_lt_u32 s28, 10")
    a(f"s_cselect_b32 s{sTMP+5}, s{sTMP+5}, {WS_END}")
    a(f"v_lshlrev_b32 v{vDUM}, 3, v{vL16}")
    a(f"buffer_load_dword v{vDUM}, v{vDUM}, {sr(sWS,4)}, s{sTMP+5} offen")

def table_prefetch(a):
    a(f"s_lshr_b32 s{sTMP}, s2, 3")
    a(f"s_mul_i32 s{sTMP}, s{sTMP}, 81920")
    a(f"s_lshl_b32 s{sTMP+1}, s28, 13")
    a(f"s_add_u32 s{sTMP+1}, s{sTMP+1}, s{sTMP}")
    a(f"v_lshlrev_b32 v{vDUM}, 3, v{vCS}")
    a(f"buffer_load_dword v{vDUM}, v{vDUM}, {sr(sWS,4)}, s{sTMP+1} offen")
    return
    a(f"s_add_u32 s{sTMP+1}, s{sTMP+1}, 65536")
    a(f"s_cmp_lt_u32 s28, 2")
    a(f"s_cselect_b32 s{sTMP+1}, s{sTMP+1}, {WS_END}")
    a(f"buffer_load_dword v127, v{vDUM}, {sr(sWS,4)}, s{sTMP+1} offen")

def k2(a):
    ECOPY = "ecopy" in OPT
    a.raw(".p2align 8")
    a.raw(".type egc_main_kernel,@function")
    a.label("egc_main_kernel")
    a(f"s_cmp_ge_u32 s2, {NB}")
    a("s_cbranch_scc1 K2_EXIT")
    diag_mark(a, 0, True, 0)
    stamp(a, 0)
    if "stamp" in OPT:
        a("s_memrealtime s[80:81]")
        a("s_waitcnt lgkmcnt(0)")
    a("s_load_dwordx4 s[4:7], s[0:1], 0")
    a("s_load_dwordx2 s[8:9], s[0:1], 56")
    a("s_load_dwordx2 s[10:11], s[0:1], 72")
    a("v_lshrrev_b32 v1, 6, v0")
    a("v_lshlrev_b32 v3, 4, v0")
    a("s_and_b32 s46, s2, 7")
    a("v_readfirstlane_b32 s28, v1")
    a("s_lshr_b32 s47, s2, 3")
    a("s_sub_u32 s48, s46, 2")
    a("s_max_i32 s48, s48, 0")
    a("s_lshl_b32 s46, s46, 5")
    a("s_sub_u32 s46, s46, s48")
    a(f"s_add_u32 s{sBIN}, s46, s47")
    a(f"v_and_b32 v{vCS}, 0x3f0, v3")
    a("v_mov_b32 v8, v3")
    a(f"v_bfe_u32 v9, v{vCS}, 4, 4")
    a(f"v_lshrrev_b32 v10, 8, v{vCS}")
    a(f"v_lshlrev_b32 v{vJ16}, 4, v9")
    a(f"v_lshlrev_b32 v{vQ16}, 4, v10")
    a(f"v_lshl_add_u32 v{vK66}, v9, 5, v{vQ16}")
    a(f"v_and_b32 v{vH16}, 16, v{vCS}")
    a(f"v_lshrrev_b32 v{vLH}, 5, v{vCS}")
    a(f"s_mov_b64 {sr(sLO,2)}, 0xffffffff")
    a(f"s_mov_b32 s{sHI}, 0")
    a(f"s_mov_b32 s{sHI+1}, -1")
    a(f"s_mov_b32 s{sCC}, {hex(C_2MK)}")
    a(f"s_mov_b32 s{sCC+1}, {hex(C_2MK)}")
    a(f"s_mov_b32 s{sWIN}, 0")
    a(f"s_mov_b32 s{sE2}, {E2_OFF if ECOPY else 0}")
    a("s_cmp_ge_u32 s28, 8")
    a("s_cbranch_scc1 K2_G")
    vW = 12; vOA = 13; vOf = 14
    vC = 32; vSub = 33; vWb = 34; vEA = 35; vPw = 36; vKB = 37; vSg = 39; vEB = 38
    EN = 56
    a("v_mov_b32 v15, 0")
    a("v_lshrrev_b32 v16, 2, v8")
    a("v_cmp_gt_u32 vcc, 128, v0")
    a(f"v_lshrrev_b32 v{vW}, 1, v0")
    a("s_and_saveexec_b64 s[54:55], vcc")
    a(f"ds_write_b32 v16, v15 offset:{L_CNT}")
    a("s_mov_b64 exec, -1")
    a(f"v_lshlrev_b32 v{vOA}, 10, v{vW}")
    a(f"s_lshl_b32 s{sTMP}, s{sBIN}, 2")
    a(f"s_add_u32 s{sTMP}, s{sTMP}, {OFFS_OFF}")
    a(f"s_mov_b32 s{sTMP+4}, {ENT_OFF}")
    a(f"v_and_b32 v{vSub}, 1, v0")
    a(f"v_mul_u32_u24 v{vSg}, {CE}, v{vW}")
    a("s_waitcnt lgkmcnt(0)")
    srd(a, sWS, 10, WS_END)
    a(f"buffer_load_dword v{vOf}, v{vOA}, {sr(sWS,4)}, s{sTMP} offen")
    a("s_barrier")
    a(f"v_cmp_gt_u32 vcc, 250, v{vW}")
    a(f"v_cmp_eq_u32 s[54:55], 0, v{vSub}")
    a(f"v_mov_b32 v16, {L_TOT}")
    if not ECOPY: a(f"v_mul_u32_u24 v{vWb}, {CE*32}, v{vW}")
    a(f"v_mov_b32 v{vKB}, 0")
    srd(a, sE, 6, E * 32)
    srd(a, sO, 8, N * 256)
    a("s_waitcnt vmcnt(0)")
    a(f"v_lshrrev_b32 v{vC}, 16, v{vOf}")
    a(f"v_and_b32 v{vOf}, 0xffff, v{vOf}")
    a(f"v_cndmask_b32 v{vC}, 0, v{vC}, vcc")
    a(f"v_add_u32 v{vSg}, v{vSg}, v{vOf}")
    def entry_addr():
        a(f"v_lshlrev_b32 v{vEB}, 2, v{vSg}")
        a(f"v_lshl_add_u32 v{vEA}, v{vSub}, 5, v{vEB}")
        a(f"v_lshl_add_u32 v{vEB}, v{vSub}, 3, v{vEB}")
    def entry_loads(soff):
        a(f"buffer_load_dwordx4 {vr(EN,4)}, v{vEA}, {sr(sWS,4)}, s{soff} offen")
        a(f"buffer_load_dwordx4 {vr(EN+4,4)}, v{vEA}, {sr(sWS,4)}, s{soff} offen offset:16")
        a(f"buffer_load_dwordx2 {vr(EN+8,2)}, v{vEB}, {sr(sWS,4)}, s{soff} offen offset:64")
    entry_addr()
    entry_loads(sTMP+4)
    stamp(a, 1)
    a("s_mov_b64 exec, s[54:55]")
    a(f"ds_add_rtn_u32 v{vPw}, v16, v{vC}")
    a("s_mov_b64 exec, -1")
    a("s_barrier")
    a("s_waitcnt lgkmcnt(0)")
    a(f"v_mov_b32_dpp v{vPw}, v{vPw} quad_perm:[0,0,2,2] row_mask:0xf bank_mask:0xf")
    a("s_nop 0")
    a(f"v_mov_b32 v121, v{vPw}")
    a("s_waitcnt vmcnt(0)")
    a.label("K2_WINDOW")
    vKE = 66; vRA = 67
    a(f"s_add_u32 s{sTMP}, s{sWIN}, {CAPE}")
    a(f"v_sub_u32 v{vKE}, s{sTMP}, v{vPw}")
    a(f"v_min_i32 v{vKE}, v{vKE}, v{vC}")
    if ECOPY:
        a(f"v_sub_u32 v{vWb}, v{vSg}, v{vPw}")
        a(f"v_add_lshl_u32 v{vWb}, v{vWb}, s{sWIN}, 5")
    a.label("K2_COPY")
    a(f"v_add_u32 v{vRA}, v{vPw}, v{vKB}")
    a(f"v_subrev_u32 v{vRA}, s{sWIN}, v{vRA}")
    a(f"v_sub_u32 v68, v{vKE}, v{vKB}")
    a(f"v_lshlrev_b32 v69, 3, v{vSub}")
    a("v_sub_u32 v70, v68, v69")
    a(f"v_add_lshl_u32 v69, v{vRA}, v69, 3")
    a(f"v_add_u32 v69, {L_RAW}, v69")
    a(f"v_lshlrev_b32 v71, 1, v{vSub}")
    a("v_sub_u32 v68, v68, v71")
    a(f"v_add_lshl_u32 v71, v{vRA}, v71, 3")
    a(f"v_add_u32 v71, {L_RAW + 128}, v71")
    for i in range(8):
        a(f"v_cmp_lt_i32 vcc, {i}, v70")
        a("s_and_b64 exec, exec, vcc")
        a("s_cbranch_execz K2_CPA")
        a(f"ds_write2_b32 v69, v{EN+i}, v{vWb} offset0:{2*i} offset1:{2*i+1}")
    a.label("K2_CPA")
    a("s_mov_b64 exec, -1")
    for i in range(2):
        a(f"v_cmp_lt_i32 vcc, {16+i}, v68")
        a("s_and_b64 exec, exec, vcc")
        a("s_cbranch_execz K2_CPB")
        a(f"ds_write2_b32 v71, v{EN+8+i}, v{vWb} offset0:{2*i} offset1:{2*i+1}")
    a.label("K2_CPB")
    a("s_mov_b64 exec, -1")
    a(f"v_add_u32 v{vKB}, 20, v{vKB}")
    a(f"v_cmp_lt_i32 vcc, v{vKB}, v{vKE}")
    a("s_cmp_eq_u64 vcc, 0")
    a("s_cbranch_scc1 K2_COPIED")
    a(f"v_add_u32 v{vEA}, 80, v{vEA}")
    a(f"v_add_u32 v{vEB}, 80, v{vEB}")
    a(f"s_mov_b32 s{sTMP+4}, {ENT_OFF}")
    entry_loads(sTMP+4)
    a("s_waitcnt vmcnt(0)")
    a("s_branch K2_COPY")
    a.label("K2_COPIED")
    if "pfB" in OPT: table_prefetch(a)
    a(f"v_mov_b32 v70, {L_TOT}")
    a("s_waitcnt lgkmcnt(0)")
    a("s_barrier")
    stamp(a, 2)
    a("ds_read_b32 v70, v70")
    if "nopf" not in OPT and "pfA" not in OPT and "pfB" not in OPT: table_prefetch(a)
    RE = 56
    ND = 62; RK = 65
    a("v_lshlrev_b32 v68, 3, v0")
    a(f"v_add_u32 v68, {L_RAW}, v68")
    for i in range(3):
        a(f"ds_read_b64 {P2(RE+2*i)}, v68 offset:{4096*i}")
    a("v_mov_b32 v69, 1")
    a("s_waitcnt lgkmcnt(3)")
    a(f"v_readfirstlane_b32 s{sTOT}, v70")
    a("v_add_u32 v71, 512, v0")
    a("v_add_u32 v72, 1024, v0")
    a(f"s_sub_u32 s{sTMP}, s{sTOT}, s{sWIN}")
    a(f"s_min_u32 s{sTMP}, s{sTMP}, {CAPE}")
    a(f"v_cmp_gt_u32 {sr(sM,2)}, s{sTMP}, v0")
    a(f"v_cmp_gt_u32 {sr(sM+2,2)}, s{sTMP}, v71")
    a(f"v_cmp_gt_u32 {sr(sM+4,2)}, s{sTMP}, v72")
    for i in range(3):
        l = lab("K2_RK")
        a(f"s_waitcnt lgkmcnt({2-i if i == 0 else 0})" if i == 0 else "s_waitcnt lgkmcnt(0)" if i == 1 else "")
        a(f"v_bfe_u32 v{ND+i}, v{RE+2*i}, 14, 6")
        a(f"v_lshlrev_b32 v{ND+i}, 2, v{ND+i}")
        a(f"s_mov_b64 exec, {sr(sM+2*i,2)}")
        a(f"s_cbranch_execz {l}")
        a(f"ds_add_rtn_u32 v{RK+i}, v{ND+i}, v69 offset:{L_CNT}")
        a.label(l)
        a("s_mov_b64 exec, -1")
    a(f"v_lshrrev_b32 v68, 2, v{vCS}")
    a(f"v_mov_b32 v80, {L_FLAG}")
    for i in range(3):
        e = RE + 2*i
        if ECOPY:
            a(f"v_lshl_add_u32 v{e+1}, v0, 5, v{e+1}")
            if i: a(f"v_add_u32 v{e+1}, {512*32*i}, v{e+1}")
        else:
            a(f"v_lshrrev_b32 v70, 20, v{e}")
            a(f"v_lshl_add_u32 v{e+1}, v70, 5, v{e+1}")
        a(f"v_and_b32 v{e}, 0x3fff, v{e}")
        a(f"v_lshlrev_b32 v{e}, 8, v{e}")
    a("s_waitcnt lgkmcnt(0)")
    a("s_barrier")
    stamp(a, 3)
    a(f"ds_read_b32 v69, v68 offset:{L_CNT}")
    a("ds_read_b32 v80, v80")
    a("s_waitcnt lgkmcnt(0)")
    a(f"v_readfirstlane_b32 s{sFLAG}, v80")
    a("v_add_u32 v70, 3, v69")
    a("v_and_b32 v70, -4, v70")
    a("v_mov_b32 v71, v70")
    wave_scan(a, 71)
    a("v_sub_u32 v72, v71, v70")
    a("s_nop 0")
    a(f"v_readlane_b32 s{sNIT}, v71, 63")
    for i in range(3):
        a(f"ds_bpermute_b32 v{73+i}, v{ND+i}, v72")
    for i in range(3):
        a(f"v_lshlrev_b32 v{ND+i}, 7, v{ND+i}")
    for i in range(3):
        e = RE + 2*i
        l = lab("K2_PL")
        a(f"s_waitcnt lgkmcnt({2-i})" if i == 0 else "s_waitcnt lgkmcnt(0)" if i == 1 else "")
        a(f"s_mov_b64 exec, {sr(sM+2*i,2)}")
        a(f"s_cbranch_execz {l}")
        a(f"v_add_u32 v{73+i}, v{73+i}, v{RK+i}")
        a(f"v_and_b32 v{RK+i}, 3, v{RK+i}")
        a(f"v_lshlrev_b32 v76, 2, v{73+i}")
        a(f"v_cmp_eq_u32 vcc, 0, v{RK+i}")
        a(f"ds_write_b32 v76, v{e} offset:{L_ROW}")
        a(f"ds_write_b32 v76, v{e+1} offset:{L_EO}")
        a("s_and_b64 exec, exec, vcc")
        a(f"s_cbranch_execz {l}")
        a(f"ds_write_b32 v76, v{ND+i} offset:{L_GN + 8}")
        a(f"s_cmp_eq_u32 s{sFLAG}, 0")
        a(f"s_cbranch_scc1 {l}")
        a(f"v_and_b32 v77, 0xffffffc0, v76")
        a(f"v_bfe_u32 v{RK+i}, v76, 5, 1")
        a(f"v_lshl_add_u32 v77, v{RK+i}, 4, v77")
        a(f"v_bfe_u32 v{RK+i}, v76, 4, 1")
        a(f"v_lshl_add_u32 v77, v{RK+i}, 2, v77")
        a(f"ds_write_b32 v77, v{ND+i} offset:{L_GN + 32}")
        a.label(l)
        a("s_mov_b64 exec, -1")
    a(f"s_add_u32 s{sTMP}, s{sNIT}, 15")
    a(f"s_lshr_b32 s{sTMP+1}, s{sTMP}, 4")
    a("s_cmp_ge_u32 s28, 2")
    a("s_cbranch_scc1 K2_NOTAIL")
    a(f"v_mov_b32 v78, {N*256}")
    a("v_mov_b32 v79, 0")
    a("s_cmp_eq_u32 s28, 0")
    a("s_cbranch_scc0 K2_NOPAD")
    a(f"v_mov_b32 v76, s{sTMP+1}")
    a(f"v_mov_b32 v77, {L_TILES}")
    a("ds_write_b32 v77, v76")
    a("v_add_u32 v76, v72, v69")
    for m in range(3):
        a("v_cmp_lt_u32 vcc, v76, v71")
        a("s_and_b64 exec, exec, vcc")
        a(f"s_cbranch_execz K2_NOTAIL")
        a("v_lshlrev_b32 v77, 2, v76")
        a(f"ds_write_b32 v77, v78 offset:{L_ROW}")
        a(f"ds_write_b32 v77, v79 offset:{L_EO}")
        a("v_add_u32 v76, 1, v76")
    a("s_branch K2_NOTAIL")
    a.label("K2_NOPAD")
    a(f"v_lshrrev_b32 v76, 4, v{vCS}")
    a(f"v_add_u32 v76, s{sNIT}, v76")
    a(f"s_lshl_b32 s{sTMP+2}, s{sTMP+1}, 4")
    a(f"v_cmp_gt_u32 vcc, s{sTMP+2}, v76")
    a("s_and_b64 exec, exec, vcc")
    a("s_cbranch_execz K2_NOTAIL")
    a("v_lshlrev_b32 v77, 2, v76")
    a(f"ds_write_b32 v77, v78 offset:{L_ROW}")
    a(f"ds_write_b32 v77, v79 offset:{L_EO}")
    a("v_and_b32 v76, 3, v76")
    a("v_cmp_eq_u32 vcc, 0, v76")
    a("s_and_b64 exec, exec, vcc")
    a("s_cbranch_execz K2_NOTAIL")
    a(f"ds_write_b32 v77, v79 offset:{L_GN + 8}")
    a(f"v_and_b32 v76, 0xffffffc0, v77")
    a("v_bfe_u32 v78, v77, 5, 1")
    a("v_lshl_add_u32 v76, v78, 4, v76")
    a("v_bfe_u32 v78, v77, 4, 1")
    a("v_lshl_add_u32 v76, v78, 2, v76")
    a(f"ds_write_b32 v76, v79 offset:{L_GN + 32}")
    a.label("K2_NOTAIL")
    a("s_mov_b64 exec, -1")
    a("s_waitcnt lgkmcnt(0)")
    a("s_barrier")
    a("s_branch K2_JOIN")
    a.label("K2_G")
    WP = 8; WU = 24; ACP = 56; ACU = 104; XR = 56; CR = 64
    AFS = [40, 68, 84]
    g2, g4, g5, g6, g7, g1, g3 = 100, 101, 102, 103, 121, 122, 123
    a(f"v_subrev_u32 v{g2}, 0x2000, v8")
    a(f"v_mov_b32 v{g7}, v9")
    a(f"v_mov_b32 v{g6}, v10")
    a(f"s_sub_u32 s{sTMP+6}, s28, 8")
    a(f"s_mul_i32 s{sTMP+1}, s{sBIN}, {NPB*256}")
    a(f"s_add_u32 s{sTMP+2}, s{sTMP+1}, 8192")
    a(f"s_mov_b32 s{sTMP+3}, {CF_OFF}")
    a(f"s_mov_b32 s{sTMP+4}, {CF_OFF + 8192}")
    a(f"s_lshl_b32 s{sTMP+5}, s{sTMP+6}, 12")
    a(f"s_add_u32 s{sTMP+5}, s{sTMP+5}, {WF_OFF}")
    a(f"v_lshrrev_b32 v{g4}, 8, v{g2}")
    a(f"v_mul_u32_u24 v{g4}, 272, v{g4}")
    a(f"v_lshl_add_u32 v{g4}, v{g7}, 4, v{g4}")
    a(f"v_add_u32 v{g4}, {L_XS}, v{g4}")
    a(f"v_cmp_gt_u32 vcc, 0x1000, v{g2}")
    a("s_waitcnt lgkmcnt(0)")
    srd(a, sX, 4, N * 256)
    a(f"buffer_load_dwordx4 {vr(XR,4)}, v{g2}, {sr(sX,4)}, s{sTMP+1} offen")
    a(f"buffer_load_dwordx4 {vr(XR+4,4)}, v{g2}, {sr(sX,4)}, s{sTMP+2} offen")
    srd(a, sWS, 10, WS_END)
    a(f"buffer_load_dwordx4 {vr(CR,4)}, v{g2}, {sr(sWS,4)}, s{sTMP+3} offen")
    a(f"buffer_load_dwordx4 {vr(CR+4,4)}, v{vCS}, {sr(sWS,4)}, s{sTMP+4} offen")
    a("s_barrier")
    srd(a, sE, 6, E * 32)
    srd(a, sO, 8, N * 256)
    a("s_waitcnt vmcnt(3)")
    gstamp(a, 1)
    a(f"ds_write_b128 v{g4}, {vr(XR,4)}")
    a("s_and_saveexec_b64 s[54:55], vcc")
    a("s_waitcnt vmcnt(2)")
    a(f"ds_write_b128 v{g4}, {vr(XR+4,4)} offset:{32*272}")
    a("s_mov_b64 exec, -1")
    a("s_waitcnt vmcnt(1)")
    a(f"ds_write_b128 v{g2}, {vr(CR,4)} offset:{L_CS}")
    a("s_waitcnt vmcnt(0)")
    a(f"s_cmp_eq_u32 s{sTMP+6}, 0")
    a("s_cbranch_scc0 K2_NOA")
    a(f"ds_write_b128 v{vCS}, {vr(CR+4,4)} offset:{L_CS+8192}")
    a.label("K2_NOA")
    a(f"v_mul_u32_u24 v{g4}, 272, v{g7}")
    a(f"v_lshl_add_u32 v{g4}, v{g6}, 4, v{g4}")
    a(f"v_add_u32 v{g4}, {L_XS}, v{g4}")
    a("s_waitcnt lgkmcnt(0)")
    gstamp(a, 2)
    a("s_barrier")
    gstamp(a, 3)
    for ks in range(4):
        a(f"buffer_load_dwordx4 {vr(WP+4*ks,4)}, v{vCS}, {sr(sWS,4)}, s{sTMP+5} offen offset:{1024*ks}")
    a(f"s_add_u32 s{sTMP+5}, s{sTMP+5}, 32768")
    for ks in range(4):
        a(f"buffer_load_dwordx4 {vr(WU+4*ks,4)}, v{vCS}, {sr(sWS,4)}, s{sTMP+5} offen offset:{1024*ks}")
    for rho in range(3):
        for ks in range(4):
            a(f"ds_read_b128 {vr(AFS[rho]+4*ks,4)}, v{g4} offset:{rho*16*272 + ks*64}")
    a(f"v_lshlrev_b32 v{g5}, 11, v{g6}")
    a(f"v_lshl_add_u32 v{g5}, v{g7}, 2, v{g5}")
    a(f"s_lshl_b32 s{sTMP}, s{sTMP+6}, 6")
    a(f"v_add_u32 v{g5}, s{sTMP}, v{g5}")
    a(f"v_mov_b32 v{g1}, {L_TOT}")
    a(f"s_mov_b32 s{sTMP}, {hex(NEG_LOG2E)}")
    a(f"s_mov_b32 s{sTMP+1}, {hex(f2u(P_RANGE / 1.4426950408889634))}")
    a(f"v_lshlrev_b32 v{g4}, 1, v{g5}")
    a(f"v_add_u32 v{g4}, {L_AGG}, v{g4}")
    a(f"s_and_b32 s{sTMP+2}, s{sTMP+6}, 3")
    a(f"s_lshl_b32 s{sTMP+2}, s{sTMP+2}, 1")
    a(f"s_lshr_b32 s{sTMP+3}, 0x72, s{sTMP+2}")
    a(f"s_and_b32 s{sTMP+3}, s{sTMP+3}, 3")
    a(f"s_lshl_b32 s{sTMP+3}, s{sTMP+3}, 2")
    a(f"s_lshr_b32 s{sTMP+2}, s{sTMP+6}, 2")
    a(f"s_lshl_b32 s{sTMP+2}, s{sTMP+2}, 8")
    a(f"s_add_u32 s{sTMP+3}, s{sTMP+2}, s{sTMP+3}")
    a(f"v_lshlrev_b32 v127, 11, v{g6}")
    a(f"v_lshl_add_u32 v127, v{g7}, 4, v127")
    a(f"v_add_u32 v127, s{sTMP+3}, v127")
    a("s_barrier")
    a(f"ds_read_b32 v{g1}, v{g1}")
    a("s_waitcnt vmcnt(0)")
    gstamp(a, 4)
    for rho in range(3):
        AF = AFS[rho]
        a("s_waitcnt lgkmcnt(1)" if rho == 0 else "")
        for ks in range(4):
            c = "0" if ks == 0 else vr(ACP+4*rho, 4)
            a(f"v_mfma_f32_16x16x32_bf16 {vr(ACP+4*rho,4)}, {vr(AF+4*ks,4)}, {vr(WP+4*ks,4)}, {c}")
    for rho in range(3):
        AF = AFS[rho]
        for ks in range(4):
            c = "0" if ks == 0 else vr(ACU+4*rho, 4)
            a(f"v_mfma_f32_16x16x32_bf16 {vr(ACU+4*rho,4)}, {vr(AF+4*ks,4)}, {vr(WU+4*ks,4)}, {c}")
    a("s_waitcnt lgkmcnt(0)")
    a(f"v_readfirstlane_b32 s{sTOT}, v{g1}")
    a(f"v_max3_f32 v{g1}, |v{ACP}|, |v{ACP+1}|, |v{ACP+2}|")
    for i in range(3, 11, 2):
        a(f"v_max3_f32 v{g1}, |v{ACP+i}|, |v{ACP+i+1}|, v{g1}")
    a(f"v_max_f32_e64 v{g1}, |v{ACP+11}|, v{g1}")
    a(f"v_mov_b32 v{g2}, {L_FLAG}")
    a(f"v_cmp_nge_f32 vcc, s{sTMP+1}, v{g1}")
    a(f"v_mov_b32 v{g3}, 1")
    if "nov5" in OPT: a("s_mov_b64 vcc, -1")
    a("s_and_saveexec_b64 s[54:55], vcc")
    a("s_cbranch_execz K2_NOFLAG")
    a(f"ds_write_b32 v{g2}, v{g3}")
    a.label("K2_NOFLAG")
    a("s_mov_b64 exec, -1")
    for rho in range(3):
        if rho == 2: a(f"s_mov_b64 exec, {sr(sLO,2)}")
        for r in range(4):
            a(f"v_cvt_f64_f32 {P2(AFS[rho]+2*r)}, v{ACU+4*rho+r}")
        for r in range(4):
            a(f"ds_write_b64 v{g4}, {P2(AFS[rho]+2*r)} offset:{rho*16384 + r*1024}")
    a("s_mov_b64 exec, -1")
    a(f"v_mov_b32 v{g3}, {hex(f2u(-float(KSH)))}")
    a("s_waitcnt lgkmcnt(0)")
    gstamp(a, 5)
    a("s_barrier")
    a(f"ds_read_b32 v{g2}, v{g2}")
    a("s_waitcnt lgkmcnt(0)")
    a(f"v_readfirstlane_b32 s{sTMP+2}, v{g2}")
    a("s_nop 3")
    a(f"s_cmp_lg_u32 s{sTMP+2}, 0")
    a("s_cbranch_scc1 K2_PADD")
    for i in range(12):
        a(f"v_fma_f32 v{ACP+i}, v{ACP+i}, s{sTMP}, v{g3}")
    for i in range(12):
        a(f"v_exp_f32 v{ACP+i}, v{ACP+i}")
    for rho in range(3):
        if rho == 2: a(f"s_mov_b64 exec, {sr(sLO,2)}")
        for r in range(4):
            a(f"ds_write_b32 v127, v{ACP+4*rho+r} offset:{L_PPK + rho*8192 + r*512}")
    a("s_branch K2_PDONE")
    a.label("K2_PADD")
    for i in range(12):
        a(f"v_mul_f32 v{ACP+i}, s{sTMP}, v{ACP+i}")
    for i in range(12):
        a(f"v_cvt_pk_bf16_f32 v{ACP+i}, v{ACP+i}, 0")
    for rho in range(3):
        if rho == 2: a(f"s_mov_b64 exec, {sr(sLO,2)}")
        for r in range(4):
            a(f"ds_write_b32 v{g5}, v{ACP+4*rho+r} offset:{L_PPK + rho*8192 + r*512}")
    a.label("K2_PDONE")
    a("s_mov_b64 exec, -1")
    a("s_waitcnt lgkmcnt(0)")
    gstamp(a, 6)
    a("s_barrier")
    a("s_branch K2_JOIN")
    a.label("K2_G_WINDOW")
    a("s_barrier")
    a("s_barrier")
    a("s_barrier")
    a.label("K2_JOIN")
    stamp(a, 4)
    a("s_cmp_eq_u32 s28, 0")
    a("s_cbranch_scc0 K2_NOZ2")
    a(f"v_lshrrev_b32 v68, 2, v{vCS}")
    a("v_mov_b32 v69, 0")
    a(f"ds_write_b32 v68, v69 offset:{L_CNT}")
    a("s_waitcnt lgkmcnt(0)")
    a.label("K2_NOZ2")
    a(f"v_mov_b32 v70, {L_TILES}")
    a("ds_read_b64 v[70:71], v70")
    for t in range(4):
        a(f"ds_read_b128 {vr(B+4*t,4)}, v{vCS} offset:{L_CS + 1024*t}")
    a(f"ds_read_b128 {vr(A,4)}, v{vCS} offset:{L_CS + 8192}")
    a(f"v_lshrrev_b32 v{vJ4}, 2, v{vJ16}")
    a(f"v_mov_b32 v{vJ16h}, v{vJ16}")
    a("s_waitcnt lgkmcnt(5)")
    a(f"v_readfirstlane_b32 s{sTMP+1}, v70")
    a(f"v_readfirstlane_b32 s{sFLAG}, v71")
    a(f"s_lshr_b32 s{sTMP+2}, s{sTMP+1}, 4")
    a(f"s_and_b32 s{sTMP+3}, s{sTMP+1}, 15")
    a(f"s_cmp_lt_u32 s28, s{sTMP+3}")
    a(f"s_cselect_b32 s{sL}, 1, 0")
    a(f"s_add_u32 s{sL}, s{sL}, s{sTMP+2}")
    a(f"s_mul_i32 s{sTMP+2}, s{sTMP+2}, s28")
    a(f"s_min_u32 s{sTMP+3}, s{sTMP+3}, s28")
    a(f"s_add_u32 s{sTMP+2}, s{sTMP+2}, s{sTMP+3}")
    a(f"s_lshl_b32 s{sNIT}, s{sL}, {2 if 'dbl' in OPT else 1}")
    a(f"s_cmp_eq_u32 s{sL}, 0")
    a("s_cbranch_scc1 K2_LOOP_DONE")
    if "noprio" not in OPT: a("s_setprio 3")
    a(f"s_lshl_b32 s{sTMP+4}, s{sTMP+2}, 4")
    a(f"v_add_lshl_u32 v{vTd}, v{vLH}, s{sTMP+4}, 2")
    a(f"s_lshl_b32 s{sM0}, s{sTMP+2}, 9")
    a(f"s_add_u32 s{sM0}, s{sM0}, {L_ES}")
    a(f"v_add_u32 v{vTe0}, s{sM0}, v{vK66}")
    a(f"s_lshl_b32 s{sTMP+4}, s{sTMP+2}, 6")
    a(f"v_add_u32 v{vTa0}, s{sTMP+4}, v{vQ16}")
    a(f"s_mov_b32 s{sDI}, 0")
    a(f"s_mov_b32 s{sN}, 0")
    a(f"s_mov_b32 s{sLI}, 0")
    a(f"s_mov_b32 s{sAI}, 0")
    a(f"s_mov_b32 s{sHL}, 0")
    a(f"s_mov_b32 s{sINCP}, 64")
    a(f"s_mov_b32 s{sINCP+1}, 512")
    a(f"s_sub_i32 s{sLM3}, s{sL}, 3")
    a(f"s_sub_u32 s{sNM2}, s{sNIT}, 2")
    eo_read(a)
    a(f"v_mov_b32 v{vTa}, v{vTa0}")
    a(f"v_mov_b32 v{vTe}, v{vTe0}")
    a("s_waitcnt lgkmcnt(0)")
    e_dma(a)
    a(f"s_cmp_lt_u32 s{sDI}, s{sL}")
    a("s_cbranch_scc0 K2_ND1")
    eo_read(a)
    a("s_waitcnt lgkmcnt(0)")
    e_dma(a)
    eo_read(a)
    a.label("K2_ND1")
    a(f"s_cmp_lg_u32 s{sFLAG}, 0")
    a("s_cbranch_scc1 K2_SETUP_ADD")
    for v5 in (True, False):
        sfx = "F" if v5 else "A"
        if v5:
            for i in range(4): a(f"v_mov_b32 v{A+i}, 0")
        else:
            a.label("K2_SETUP_ADD")
        list_reads(a, v5)
        a(f"v_add_u32 v{vTa}, 64, v{vTa}")
        a("s_waitcnt lgkmcnt(0)")
        gather_stage(a, QH[0])
        for i in range(3):
            if not v5 or i == 2: a(f"v_mov_b32 v{EP+i}, v{G+i}")
        list_reads(a, v5)
        a(f"v_add_u32 v{vTa}, 64, v{vTa}")
        a("s_waitcnt lgkmcnt(0)")
        gather_stage(a, QH[1])
        if v5: stamp(a, 5)
        a("s_waitcnt vmcnt(8)")
        ap_stage(a, vGS[0], v5, EP)
        if v5: ep_read(a)
        a(f"v_add_u32 v{vTe}, 512, v{vTe}")
        a("s_waitcnt lgkmcnt(0)")
        a.label(f"K2_LOOP{sfx}")
        for k in range(3):
            tile_body(a, k, v5, "K2_LOOP_DONE")
        a(f"s_branch K2_LOOP{sfx}")
        for blk in deferred: blk()
        deferred.clear()
    a.label("K2_LOOP_DONE")
    a("s_setprio 0")
    a("s_waitcnt vmcnt(0)")
    if "pstamp" not in OPT: stamp(a, 6)
    a("s_waitcnt lgkmcnt(0)")
    a("s_barrier")
    a(f"s_add_u32 s{sWIN}, s{sWIN}, {CAPE}")
    a(f"s_cmp_lt_u32 s{sWIN}, s{sTOT}")
    a("s_cbranch_scc0 K2_EPI")
    a("s_cmp_ge_u32 s28, 8")
    a("s_cbranch_scc1 K2_G_WINDOW")
    a(f"v_lshrrev_b32 v{vW}, 1, v0")
    a(f"v_lshlrev_b32 v{vOA}, 10, v{vW}")
    a(f"s_lshl_b32 s{sTMP}, s{sBIN}, 2")
    a(f"s_add_u32 s{sTMP}, s{sTMP}, {OFFS_OFF}")
    a(f"buffer_load_dword v{vOf}, v{vOA}, {sr(sWS,4)}, s{sTMP} offen")
    a(f"v_and_b32 v{vSub}, 1, v0")
    a(f"v_mul_u32_u24 v{vSg}, {CE}, v{vW}")
    a(f"v_cmp_gt_u32 vcc, 250, v{vW}")
    a(f"v_mov_b32 v{vPw}, v121")
    if not ECOPY: a(f"v_mul_u32_u24 v{vWb}, {CE*32}, v{vW}")
    a("s_waitcnt vmcnt(0)")
    a(f"v_lshrrev_b32 v{vC}, 16, v{vOf}")
    a(f"v_and_b32 v{vOf}, 0xffff, v{vOf}")
    a(f"v_cndmask_b32 v{vC}, 0, v{vC}, vcc")
    a(f"v_add_u32 v{vSg}, v{vSg}, v{vOf}")
    a(f"v_sub_u32 v{vKB}, s{sWIN}, v{vPw}")
    a(f"v_max_i32 v{vKB}, 0, v{vKB}")
    entry_addr()
    a(f"v_lshl_add_u32 v{vEA}, v{vKB}, 2, v{vEA}")
    a(f"v_lshl_add_u32 v{vEB}, v{vKB}, 2, v{vEB}")
    a(f"s_mov_b32 s{sTMP+4}, {ENT_OFF}")
    entry_loads(sTMP+4)
    a("s_waitcnt vmcnt(0)")
    a("s_branch K2_WINDOW")
    a.label("K2_EPI")
    a("v_cmp_gt_u32 vcc, 640, v0")
    a("s_and_saveexec_b64 s[54:55], vcc")
    a("s_cbranch_execz K2_EXIT")
    a("v_lshlrev_b32 v1, 6, v0")
    for i in range(4):
        a(f"ds_read_b128 {vr(32+4*i,4)}, v1 offset:{L_AGG+16*i}")
    a(f"s_mov_b32 s{sTMP}, {hex(C_2MK)}")
    a(f"s_mov_b32 s{sTMP+1}, {hex(NEG_LOG2E)}")
    a("s_waitcnt lgkmcnt(0)")
    for i in range(8):
        a(f"v_cvt_f32_f64 v{8+i}, v[{32+2*i}:{33+2*i}]")
    a(f"s_mov_b32 s{sTMP+2}, {hex(f2u(-1.4426950408889634 * 2.0**-KSH))}")
    a(f"s_mov_b32 s{sTMP+3}, {hex(f2u(-1.4426950408889634 * 2.0**-KSH))}")
    a(f"s_mov_b32 s{sTMP+1}, {hex(C_2MK)}")
    a(f"s_mov_b32 s{sTMP+4}, 1.0")
    a(f"s_mov_b32 s{sTMP+5}, 1.0")
    for i in range(4):
        a(f"v_pk_mul_f32 {P2(16+2*i)}, {P2(8+2*i)}, s[{sTMP+2}:{sTMP+3}]")
    for i in range(4):
        a(f"v_pk_mul_f32 {P2(8+2*i)}, {P2(8+2*i)}, s[{sTMP}:{sTMP+1}]")
    for i in range(8):
        a(f"v_exp_f32 v{16+i}, v{16+i}")
    for i in range(4):
        a(f"v_pk_add_f32 {P2(16+2*i)}, {P2(16+2*i)}, s[{sTMP+4}:{sTMP+5}]")
    for i in range(8):
        a(f"v_rcp_f32 v{16+i}, v{16+i}")
    a("s_nop 0")
    for i in range(4):
        a(f"v_pk_mul_f32 {P2(8+2*i)}, {P2(8+2*i)}, {P2(16+2*i)}")
    for i in range(4):
        a(f"v_cvt_pk_bf16_f32 v{24+i}, v{8+2*i}, v{9+2*i}")
    a("v_lshlrev_b32 v2, 4, v0")
    a(f"s_mul_i32 s{sTMP}, s{sBIN}, {NPB*256}")
    a(f"buffer_store_dwordx4 v[24:27], v2, {sr(sO,4)}, s{sTMP} offen" + ("" if "outplain" in OPT else " sc1"))
    if "diag" in OPT:
        a("s_waitcnt vmcnt(0)")
        diag_mark(a, 1, False, 0)
    if "stamp" in OPT:
        a("s_waitcnt vmcnt(0)")
        stamp(a, 7)
        a("s_memrealtime s[82:83]")
        a("s_waitcnt lgkmcnt(0)")
        stamp_out(a, 10)
    a.label("K2_EXIT")
    a("s_endpgm")

HEADER = f"""; EGC edge-gated message passing: out = silu(x@U + segsum_dst(sigmoid([x_dst,x_src,e]@G) * (x@V)[src]))
; @launch kernel=egc_prep_kernel grid=({K1_WGS},1,1) block=({K1_BLOCK},1,1) lds={K1_LDS}
; @launch kernel=egc_main_kernel grid=({NB},1,1) block=(1024,1,1) lds={K2_LDS}
.amdgcn_target "amdgcn-amd-amdhsa--gfx950"
.text
"""

def kd(name, vgpr, sgpr, denorm=False):
    extra = "  .amdhsa_float_denorm_mode_32 3\n" if denorm else ""
    return f""".amdhsa_kernel {name}
  .amdhsa_next_free_vgpr {vgpr}
  .amdhsa_next_free_sgpr {sgpr}
  .amdhsa_accum_offset {((vgpr+3)//4)*4}
  .amdhsa_group_segment_fixed_size 0
  .amdhsa_kernarg_size 80
  .amdhsa_user_sgpr_count 2
  .amdhsa_user_sgpr_kernarg_segment_ptr 1
  .amdhsa_system_sgpr_workgroup_id_x 1
{extra}.end_amdhsa_kernel
"""

def k3(a, which):
    a.raw(".globl egc_diag_kernel")
    a.raw(".p2align 8")
    a.raw(".type egc_diag_kernel,@function")
    a.label("egc_diag_kernel")
    a("s_cmp_ge_u32 s2, 1")
    a("s_cbranch_scc1 K3_END")
    a("s_load_dwordx2 s[4:5], s[0:1], 64")
    a("s_waitcnt lgkmcnt(0)")
    a("s_sub_u32 s4, s4, 1024")
    a("s_subb_u32 s5, s5, 0")
    a("s_load_dwordx2 s[6:7], s[4:5], 0")
    a("s_load_dwordx2 s[8:9], s[4:5], 512")
    a("s_memrealtime s[10:11]")
    a("s_waitcnt lgkmcnt(0)")
    a("s_not_b32 s6, s6")
    a("s_not_b32 s8, s8")
    if which == 1: a("s_sub_u32 s12, s7, s6")
    if which == 2: a("s_sub_u32 s12, s8, s7")
    if which == 3: a("s_sub_u32 s12, s9, s8")
    if which == 4: a("s_sub_u32 s12, s10, s9")
    if which == 0: a("s_mov_b32 s12, 0")
    a("s_lshl_b32 s12, s12, 2")
    a("s_min_u32 s12, s12, 20000")
    a.label("K3_SPIN")
    a("s_memrealtime s[14:15]")
    a("s_waitcnt lgkmcnt(0)")
    a("s_sub_u32 s14, s14, s10")
    a("s_cmp_lt_u32 s14, s12")
    a("s_cbranch_scc1 K3_SPIN")
    a.label("K3_END")
    a("s_endpgm")

def main():
    a = Asm()
    a.raw(".globl egc_prep_kernel")
    k1(a)
    a.raw(".globl egc_main_kernel")
    k2(a)
    hdr = HEADER
    which = [int(o[4:]) for o in OPT if o.startswith("dsel")]
    if which:
        k3(a, which[0])
        hdr = hdr.replace(".amdgcn_target", "; @launch kernel=egc_diag_kernel grid=(1,1,1) block=(64,1,1) lds=0\n.amdgcn_target", 1)
    out = hdr + a.text()
    out += '.section .rodata,"a"\n.p2align 6\n' + kd("egc_prep_kernel", 112, 96) + ".p2align 6\n" + kd("egc_main_kernel", 128, 96, True) + (".p2align 6\n" + kd("egc_diag_kernel", 8, 32) if which else "")
    path = sys.argv[1] if len(sys.argv) > 1 else f"cdna_kernels/{NAME}.s"
    open(path, "w").write(out)
    print("wrote", path, len(out), "bytes")

if __name__ == "__main__":
    main()
```

```python
import sys, struct, os
OPT = set(os.environ.get("OPT","").split(","))

NAME = "gather_scatter__edge_featured_mpnn_egc__graph"
N = 10000; E = 320000
NB = 250; NPB = 40
NC = 250; CE = 1280
KSH = 26
def f2u(x): return struct.unpack('<I', struct.pack('<f', x))[0]
NEG_LOG2E = f2u(-1.4426950408889634)
C_2MK = f2u(2.0 ** -KSH)
C_2PK = f2u(2.0 ** KSH)
BF16_NEGK = 0xC1D0
assert KSH == 26

HALF_STRIDE = (N + 1) * 256
T_OFF = 0;            T_BYTES = 2 * HALF_STRIDE
ENT_OFF = 0x500000
OFFS_OFF = 0x640000
WF_OFF = 0x680000
CF_OFF = 0x690000
E2_OFF = 0x800000
WS_END = 0x1200000

K1_BLOCK = 512
NT_WG = 158
NBIN_WG = NC // 2
BIN0 = NT_WG
WF0 = BIN0 + NBIN_WG
CF0 = WF0 + 4
K1_WGS = CF0 + 1
K1_LDS = 128 * 288

class Asm:
    def __init__(self): self.lines = []
    def __call__(self, s):
        for l in s.split("\n"):
            l = l.strip()
            if l: self.lines.append("    " + l)
    def label(self, n): self.lines.append(n + ":")
    def raw(self, s): self.lines.append(s)
    def text(self): return "\n".join(self.lines) + "\n"

def vr(i, n=1): return f"v{i}" if n == 1 else f"v[{i}:{i+n-1}]"
def sr(i, n=1): return f"s{i}" if n == 1 else f"s[{i}:{i+n-1}]"

def srd(a, d, base, nbytes):
    a(f"s_mov_b32 s{d}, s{base}")
    a(f"s_and_b32 s{d+1}, s{base+1}, 0xffff")
    a(f"s_mov_b32 s{d+2}, {nbytes}")
    a(f"s_mov_b32 s{d+3}, 0x00020000")

def stamp1(a, i):
    if "stamp1" in OPT:
        a(f"s_memrealtime s[{64+2*i}:{65+2*i}]")
        a("s_waitcnt lgkmcnt(0)")
def stamp1_out(a, n, ws_srd, wgreg, lbl):
    if "stamp1" in OPT:
        a("s_waitcnt vmcnt(0)")
        stamp1(a, n-1)
        a("v_readfirstlane_b32 s60, v0")
        a("s_cmp_eq_u32 s60, 0")
        a(f"s_cbranch_scc0 {lbl}")
        a(f"s_mov_b32 s{ws_srd+2}, 0x1400000")
        for i in range(n):
            a(f"v_mov_b32 v100, s{64+2*i}")
            a(f"v_mov_b32 v101, s{65+2*i}")
            a(f"s_lshl_b32 s60, s{wgreg}, 7")
            a(f"s_add_u32 s60, s60, {0x1310000 + 8*i}")
            a("v_mov_b32 v102, 0")
            a(f"buffer_store_dwordx2 v[100:101], v102, s[{ws_srd}:{ws_srd+3}], s60 offen")
            a("s_nop 1")
        a.label(lbl)

def diag_mark(a, slot, inv, dbgreg):
    if "diag" not in OPT: return
    dl = f"DIAG_{slot}_{len(a.lines)}"
    a("s_and_b32 s84, s2, 15")
    a("s_cmp_eq_u32 s84, 0")
    a(f"s_cbranch_scc0 {dl}")
    a("v_mbcnt_lo_u32_b32 v98, -1, 0") if False else None
    a("v_readfirstlane_b32 s84, v0")
    a("s_nop 3")
    a("s_cmp_lt_u32 s84, 64")
    a(f"s_cbranch_scc0 {dl}")
    a("s_memrealtime s[84:85]")
    a(f"s_load_dwordx2 s[86:87], s[0:1], 64")
    a("s_waitcnt lgkmcnt(0)")
    if inv: a("s_not_b32 s84, s84")
    a("s_mov_b64 s[88:89], exec") if False else None
    a("v_mov_b32 v99, s84")
    a(f"v_mov_b32 v98, {4*slot}")
    a("s_mov_b64 exec, 1")
    a("global_atomic_umax v98, v99, s[86:87]")
    a("s_mov_b64 exec, -1")
    a.label(dl)

def code_prefetch(a, start, end, vtmp, lanereg):
    l = f"CPF_{len(a.lines)}"
    a("s_getpc_b64 s[94:95]")
    a.label(l)
    a(f"s_add_u32 s94, s94, {start}-{l}")
    a("s_addc_u32 s95, s95, 0")
    a(f"v_lshlrev_b32 v{vtmp}, 7, v{lanereg}")
    a(f".set CPFN_{l}, ({end}-{start}+8191)/8192")
    return l

def wave_scan(a, v):
    for sh in (1, 2, 4, 8):
        a("s_nop 1")
        a(f"v_add_u32_dpp v{v}, v{v}, v{v} row_shr:{sh} row_mask:0xf bank_mask:0xf bound_ctrl:1")
    a("s_nop 1")
    a(f"v_add_u32_dpp v{v}, v{v}, v{v} row_bcast:15 row_mask:0xa bank_mask:0xf")
    a("s_nop 1")
    a(f"v_add_u32_dpp v{v}, v{v}, v{v} row_bcast:31 row_mask:0xc bank_mask:0xf")

def k1_table(a):
    XF = 40; ACC = 64
    a.label("K1_TABLE")
    stamp1(a, 0)
    a("s_and_b32 s3, s2, 1")
    a("s_lshr_b32 s28, s2, 1")
    srd(a, 20, 16, 69632)
    srd(a, 36, 14, 32768)
    srd(a, 24, 4, N * 256)
    a("s_lshl_b32 s29, s3, 7")
    a("s_add_u32 s30, s29, 32768")
    a("v_lshrrev_b32 v1, 3, v0")
    a("v_and_b32 v2, 7, v0")
    a("v_lshlrev_b32 v3, 8, v1")
    a("v_lshl_add_u32 v3, v2, 4, v3")
    for i in range(2):
        a(f"buffer_load_dwordx4 {vr(8+4*i,4)}, v3, s[20:23], s30 offen")
        if i < 1: a("s_add_u32 s30, s30, 16384")
    for i in range(2):
        a(f"buffer_load_dwordx4 {vr(16+4*i,4)}, v3, s[36:39], s29 offen")
        if i < 1: a("s_add_u32 s29, s29, 16384")
    a("v_mul_u32_u24 v7, 288, v1")
    a("v_lshl_add_u32 v7, v2, 4, v7")
    a("v_and_b32 v2, 15, v0")
    a("v_bfe_u32 v3, v0, 4, 2")
    a("v_lshrrev_b32 v4, 6, v0")
    a("s_lshl_b32 s31, s28, 7")
    a("v_lshl_add_u32 v5, v4, 4, s31")
    a("v_add_u32 v6, v5, v2")
    a("v_lshlrev_b32 v6, 8, v6")
    a("v_lshl_add_u32 v6, v3, 4, v6")
    for ks in range(4):
        a(f"buffer_load_dwordx4 {vr(XF+4*ks,4)}, v6, s[24:27], 0 offen offset:{64*ks}")
    srd(a, 32, 18, 2 * HALF_STRIDE)
    for i in range(4):
        a(f"s_waitcnt vmcnt({7 - i})")
        a(f"ds_write_b128 v7, {vr(8+4*i,4)} offset:{18432*(i&1) + 128*(i>>1)}")
    a("v_lshrrev_b32 v7, 2, v2")
    a("v_lshl_add_u32 v7, v3, 3, v7")
    a("v_mul_u32_u24 v7, 288, v7")
    a("v_and_b32 v1, 3, v0")
    a("v_lshl_add_u32 v7, v1, 3, v7")
    a("v_lshl_add_u32 v1, v3, 2, v5")
    a("v_lshlrev_b32 v6, 8, v1")
    a("v_lshl_add_u32 v6, v2, 4, v6")
    a(f"s_mul_i32 s3, s3, {HALF_STRIDE}")
    a("s_waitcnt lgkmcnt(0)")
    stamp1(a, 1)
    a("s_barrier")
    stamp1(a, 2)
    BF = [8, 24, 96]
    def reads(t):
        b = BF[t % 3]
        for ks in range(4):
            a(f"ds_read_b64_tr_b16 {vr(b+4*ks,2)}, v7 offset:{9216*ks + 32*t}")
            a(f"ds_read_b64_tr_b16 {vr(b+4*ks+2,2)}, v7 offset:{9216*ks + 32*t + 1152}")
    reads(0)
    a("s_waitcnt vmcnt(0)")
    for t in range(8):
        if t < 7:
            reads(t + 1)
            a("s_waitcnt lgkmcnt(8)")
        else:
            a("s_waitcnt lgkmcnt(0)")
        b = BF[t % 3]
        for ks in range(4):
            c = "0" if ks == 0 else vr(ACC+4*t, 4)
            a(f"v_mfma_f32_16x16x32_bf16 {vr(ACC+4*t,4)}, {vr(XF+4*ks,4)}, {vr(b+4*ks,4)}, {c}")
    stamp1(a, 3)
    a("s_mov_b32 s40, 0x00800000")
    a("s_mov_b32 s41, 0x7fff0000")
    a(f"s_mov_b32 s42, {hex(NEG_LOG2E)}")
    a(f"s_movk_i32 s43, {N}")
    a("s_nop 6")
    for r in range(4):
        W = 8 + 8 * (r & 1)
        for t in range(4):
            a(f"v_mul_f32 v{ACC+4*t+r}, s42, v{ACC+4*t+r}")
        for p in range(4):
            lo, hi = ACC + 4*(2*p) + r, ACC + 4*(2*p+1) + r
            a(f"v_cvt_pk_bf16_f32 v{W+p}, v{lo}, v{hi}")
            a(f"v_max_f32_e64 v{hi}, |v{hi}|, s40")
        for p in range(4):
            hi = ACC + 4*(2*p+1) + r
            a(f"v_add_u32 v{hi}, 0x8000, v{hi}")
        for p in range(4):
            hi = ACC + 4*(2*p+1) + r
            a(f"v_sub_u32_sdwa v{hi}, v{hi}, v{W+p} dst_sel:DWORD dst_unused:UNUSED_PAD src0_sel:DWORD src1_sel:WORD_0")
        a(f"v_add_u32 v2, {r}, v1")
        a("v_cmp_ge_u32 vcc, s43, v2")
        for p in range(4):
            hi = ACC + 4*(2*p+1) + r
            a(f"v_bfi_b32 v{W+p}, s41, v{hi}, v{W+p}")
        a("s_and_saveexec_b64 s[44:45], vcc")
        a(f"s_cbranch_execz K1_TAB_SKIP{r}")
        a(f"buffer_store_dwordx4 {vr(W,4)}, v6, s[32:35], s3 offen offset:{256*r} sc1")
        a.label(f"K1_TAB_SKIP{r}")
        a("s_mov_b64 exec, s[44:45]")
    stamp1(a, 4)
    stamp1(a, 5)
    stamp1_out(a, 7, 32, 2, "K1_ST_TAB")
    if "diag" in OPT:
        a("s_waitcnt vmcnt(0)")
        diag_mark(a, 1, False, 0)
    a("s_endpgm")

def k1_bin(a):
    HIST, OFF2, SORT, AREA = 0, 1024, 2048, 7168
    a.label("K1_BIN")
    stamp1(a, 0)
    a("v_lshrrev_b32 v1, 8, v0")
    a(f"s_sub_u32 s3, s2, {BIN0}")
    a("v_readfirstlane_b32 s45, v1")
    a("v_and_b32 v0, 255, v0")
    srd(a, 20, 8, E * 4)
    srd(a, 24, 10, E * 4)
    srd(a, 28, 18, WS_END)
    a("s_lshl_b32 s3, s3, 1")
    a("s_add_u32 s3, s3, s45")
    a(f"s_mul_i32 s46, s45, {AREA}")
    a("v_lshlrev_b32 v1, 2, v0")
    a("s_mul_i32 s32, s3, 5120")
    a("s_add_u32 s33, s32, 4096")
    DST, SRC = 8, 16
    for m in range(5):
        a(f"buffer_load_dword v{DST+m}, v1, s[24:27], s32 offen offset:{1024*m}" if m < 4 else
          f"buffer_load_dword v{DST+m}, v1, s[24:27], s33 offen")
    for m in range(5):
        a(f"buffer_load_dword v{SRC+m}, v1, s[20:23], s32 offen offset:{1024*m}" if m < 4 else
          f"buffer_load_dword v{SRC+m}, v1, s[20:23], s33 offen")
    a("v_mov_b32 v2, 0")
    a("v_add_u32 v6, s46, v1")
    a(f"ds_write_b32 v6, v2 offset:{HIST}")
    a("v_mov_b32 v7, s46")
    a("s_mov_b32 s34, 52429")
    a("s_waitcnt lgkmcnt(0)")
    a("s_barrier")
    BINR, RANK = 24, 32
    if "stamp1" in OPT:
        a("s_waitcnt vmcnt(9)")
        stamp1(a, 1)
    a("v_mov_b32 v3, 1")
    for m in range(5):
        a(f"s_waitcnt vmcnt({9-m})")
        a(f"v_mul_u32_u24 v{BINR+m}, s34, v{DST+m}")
        a(f"v_lshrrev_b32 v{BINR+m}, 21, v{BINR+m}")
        a(f"v_mul_u32_u24 v4, {NPB}, v{BINR+m}")
        a(f"v_sub_u32 v{DST+m}, v{DST+m}, v4")
        a(f"v_lshl_add_u32 v{BINR+m}, v{BINR+m}, 2, v7")
        a(f"ds_add_rtn_u32 v{RANK+m}, v{BINR+m}, v3 offset:{HIST}")
    for m in range(5):
        a(f"s_waitcnt vmcnt({4-m})")
        a(f"v_lshl_or_b32 v{SRC+m}, v{DST+m}, 14, v{SRC+m}")
        a(f"v_add_u32 v4, {256*m}, v0")
        a(f"v_lshl_or_b32 v{SRC+m}, v4, 20, v{SRC+m}")
    a("v_and_b32 v5, 63, v0")
    a("v_lshlrev_b32 v5, 4, v5")
    a("v_add_u32 v6, v5, v7")
    a("s_waitcnt lgkmcnt(0)")
    a("s_barrier")
    stamp1(a, 2)
    a(f"ds_read_b128 v[40:43], v6 offset:{HIST}")
    a(f"s_lshr_b32 s47, s46, 2")
    a("s_waitcnt lgkmcnt(0)")
    a("v_add_u32 v44, v40, v41")
    a("v_add_u32 v45, v42, v43")
    a("v_add_u32 v46, v44, v45")
    a("v_mov_b32 v47, v46")
    wave_scan(a, 47)
    a("v_sub_u32 v48, v47, v46")
    a("v_add_u32 v49, v48, v40")
    a("v_add_u32 v50, v48, v44")
    a("v_add_u32 v51, v50, v42")
    for i in range(4):
        a(f"v_add_u32 v{56+i}, s47, v{48+i}")
    a(f"ds_write_b128 v6, v[56:59] offset:{OFF2}")
    a("v_readfirstlane_b32 s35, v0")
    a("s_lshl_b32 s36, s3, 10")
    a(f"s_add_u32 s36, s36, {OFFS_OFF}")
    a("s_cmp_ge_u32 s35, 64")
    a("s_cbranch_scc1 K1_BIN_NOPUB")
    for i in range(4):
        a(f"v_lshl_or_b32 v{52+i}, v{40+i}, 16, v{48+i}")
    a("buffer_store_dwordx4 v[52:55], v5, s[28:31], s36 offen sc1")
    a.label("K1_BIN_NOPUB")
    a("s_waitcnt lgkmcnt(0)")
    for m in range(5):
        a(f"ds_read_b32 v{40+m}, v{BINR+m} offset:{OFF2}")
    for m in range(5):
        a(f"s_waitcnt lgkmcnt({4-m})")
        a(f"v_add_lshl_u32 v{40+m}, v{40+m}, v{RANK+m}, 2")
        a(f"ds_write_b32 v{40+m}, v{SRC+m} offset:{SORT}")
    stamp1(a, 3)
    a("v_lshlrev_b32 v5, 4, v0")
    a("v_add_u32 v6, v5, v7")
    a("s_waitcnt lgkmcnt(0)")
    a("s_barrier")
    stamp1(a, 4)
    a(f"ds_read_b128 v[40:43], v6 offset:{SORT}")
    a(f"ds_read_b128 v[44:47], v6 offset:{SORT+4096}")
    a(f"s_add_u32 s36, s32, {ENT_OFF}")
    a("s_add_u32 s37, s36, 4096")
    a("v_cmp_gt_u32 vcc, 64, v0")
    a("s_waitcnt lgkmcnt(1)")
    a("buffer_store_dwordx4 v[40:43], v5, s[28:31], s36 offen sc1")
    a("s_and_saveexec_b64 s[38:39], vcc")
    a("s_cbranch_execz K1_BIN_END")
    a("s_waitcnt lgkmcnt(0)")
    a("buffer_store_dwordx4 v[44:47], v5, s[28:31], s37 offen sc1")
    a.label("K1_BIN_END")
    a("s_mov_b64 exec, -1")
    if "epf" in OPT:
        srd(a, 40, 6, E * 32)
        a("v_lshlrev_b32 v8, 7, v0")
        a("s_mul_i32 s44, s3, 40960")
        a("buffer_load_dword v9, v8, s[40:43], s44 offen")
        a("s_add_u32 s44, s44, 32768")
        a("s_cmp_lt_u32 s35, 64")
        a("s_cbranch_scc0 K1_BIN_NOPF")
        a("buffer_load_dword v10, v8, s[40:43], s44 offen")
        a.label("K1_BIN_NOPF")
    stamp1(a, 5)
    stamp1_out(a, 7, 28, 2, "K1_ST_BIN")
    if "diag" in OPT:
        a("s_waitcnt vmcnt(0)")
        diag_mark(a, 1, False, 0)
    a("s_endpgm")

def k1_wf(a):
    a.label("K1_WF")
    a(f"s_sub_u32 s3, s2, {WF0}")
    a("v_lshrrev_b32 v1, 6, v0")
    a("s_nop 0")
    a("v_readfirstlane_b32 s28, v1")
    a("s_lshl_b32 s3, s3, 3")
    a("s_add_u32 s3, s3, s28")
    a("s_lshr_b32 s29, s3, 1")
    a("s_and_b32 s30, s3, 1")
    a("s_cmp_lt_u32 s29, 8")
    a("s_cselect_b32 s20, s16, s12")
    a("s_cselect_b32 s21, s17, s13")
    a("s_and_b32 s21, s21, 0xffff")
    a("s_mov_b32 s22, 32768")
    a("s_mov_b32 s23, 0x00020000")
    srd(a, 24, 18, WS_END)
    a("v_and_b32 v2, 15, v0")
    a("v_bfe_u32 v3, v0, 4, 2")
    a("s_and_b32 s31, s29, 7")
    a("s_lshl_b32 s31, s31, 5")
    a("s_lshl_b32 s32, s30, 14")
    a("s_add_u32 s31, s31, s32")
    a("v_lshlrev_b32 v4, 11, v3")
    a("v_lshl_add_u32 v4, v2, 1, v4")
    a("s_add_u32 s33, s31, 8192")
    for f in range(2):
        for m in range(8):
            a(f"buffer_load_ushort v{8+8*f+m}, v4, s[20:23], s{31 if f==0 else 33} offen offset:{256*m}")
    a("v_and_b32 v5, 63, v0")
    a("v_lshlrev_b32 v5, 4, v5")
    a("s_lshl_b32 s34, s3, 11")
    a(f"s_add_u32 s34, s34, {WF_OFF}")
    a("s_cmp_lt_u32 s29, 8")
    a(f"s_cselect_b32 s35, 1.0, {hex(C_2PK)}")
    a("s_mov_b32 s36, 0x07060302")
    for f in range(2):
        a(f"s_waitcnt vmcnt({8 if f==0 else 1})")
        for m in range(8):
            a(f"v_lshlrev_b32 v{8+8*f+m}, 16, v{8+8*f+m}")
            a(f"v_mul_f32 v{8+8*f+m}, s35, v{8+8*f+m}")
        for p in range(4):
            a(f"v_perm_b32 v{24+4*f+p}, v{8+8*f+2*p+1}, v{8+8*f+2*p}, s36")
        a(f"buffer_store_dwordx4 {vr(24+4*f,4)}, v5, s[24:27], s34 offen offset:{1024*f} sc1")
    a("s_endpgm")

def k1_cf(a):
    a.label("K1_CF")
    a("v_lshrrev_b32 v1, 6, v0")
    a("s_nop 0")
    a("v_readfirstlane_b32 s28, v1")
    a("s_nop 3")
    a("s_cmp_ge_u32 s28, 4")
    a("s_cbranch_scc1 K1_CF_END")
    srd(a, 20, 16, 69632)
    srd(a, 24, 18, WS_END)
    a("v_and_b32 v2, 15, v0")
    a("v_bfe_u32 v3, v0, 4, 2")
    a("v_and_b32 v4, 1, v3")
    a("v_lshlrev_b32 v4, 11, v4")
    a("v_lshl_add_u32 v4, v2, 1, v4")
    a("s_lshl_b32 s29, s28, 6")
    a("s_add_u32 s29, s29, 65536")
    for f in range(2):
        for m in range(8):
            a(f"buffer_load_ushort v{8+8*f+m}, v4, s[20:23], s29 offen offset:{256*m + 32*f}")
    a("v_and_b32 v5, 63, v0")
    a("v_lshlrev_b32 v5, 4, v5")
    a("s_lshl_b32 s34, s28, 11")
    a(f"s_add_u32 s34, s34, {CF_OFF}")
    a(f"s_mov_b32 s30, {hex(NEG_LOG2E)}")
    a("v_cmp_gt_u32 vcc, 2, v3")
    a("v_cmp_eq_u32 s[32:33], 2, v3")
    a(f"v_mov_b32 v6, {hex(BF16_NEGK)}")
    a("v_mov_b32 v7, 0")
    a("s_waitcnt vmcnt(0)")
    for f in range(2):
        for m in range(8):
            a(f"v_lshlrev_b32 v{8+8*f+m}, 16, v{8+8*f+m}")
            a(f"v_mul_f32 v{8+8*f+m}, s30, v{8+8*f+m}")
        for p in range(4):
            a(f"v_cvt_pk_bf16_f32 v{24+4*f+p}, v{8+8*f+2*p}, v{8+8*f+2*p+1}")
        a(f"v_cndmask_b32 v30, v7, v6, s[32:33]" if False else "")
        a(f"v_cndmask_b32 v32, v7, v6, s[32:33]")
        a(f"v_cndmask_b32 v{24+4*f+0}, v7, v{24+4*f+0}, vcc")
        a(f"v_cndmask_b32 v{24+4*f+1}, v7, v{24+4*f+1}, vcc")
        a(f"v_cndmask_b32 v{24+4*f+2}, v32, v{24+4*f+2}, vcc")
        a(f"v_cndmask_b32 v{24+4*f+3}, v7, v{24+4*f+3}, vcc")
        a(f"buffer_store_dwordx4 {vr(24+4*f,4)}, v5, s[24:27], s34 offen offset:{1024*f} sc1")
    a("s_cmp_eq_u32 s28, 0")
    a("s_cbranch_scc0 K1_CF_END")
    a("v_lshrrev_b32 v8, 2, v2")
    a("v_subrev_u32 v9, 2, v3")
    a("v_lshlrev_b32 v9, 1, v9")
    a("v_mov_b32 v10, 0x3f803f80")
    a("v_cmp_eq_u32 vcc, v8, v9")
    a("v_add_u32 v9, 1, v9")
    a("v_cmp_eq_u32 s[36:37], v8, v9")
    a("v_cndmask_b32 v12, v7, v10, vcc")
    a("v_mov_b32 v11, 0x3f80")
    a("v_cndmask_b32 v13, v7, v10, s[36:37]")
    a("v_cndmask_b32 v14, v7, v11, s[32:33]")
    a("v_mov_b32 v15, 0")
    a(f"s_mov_b32 s34, {CF_OFF + 8192}")
    a("buffer_store_dwordx4 v[12:15], v5, s[24:27], s34 offen sc1")
    a.label("K1_CF_END")
    a("s_endpgm")

def k1(a):
    a.raw(".p2align 8")
    a.raw(".type egc_prep_kernel,@function")
    a.label("egc_prep_kernel")
    a(f"s_cmp_ge_u32 s2, {K1_WGS}")
    a("s_cbranch_scc1 K1_EXIT")
    diag_mark(a, 0, True, 0)
    a("s_load_dwordx4 s[4:7], s[0:1], 0")
    a("s_load_dwordx4 s[8:11], s[0:1], 16")
    a("s_load_dwordx4 s[12:15], s[0:1], 32")
    a("s_load_dwordx2 s[16:17], s[0:1], 48")
    a("s_load_dwordx2 s[18:19], s[0:1], 72")
    if "tabfirst" not in OPT:
        a(f"s_add_u32 s20, s2, {NT_WG}")
        a(f"s_sub_u32 s21, s2, {NBIN_WG}")
        a(f"s_cmp_lt_u32 s2, {NBIN_WG}")
        a("s_cselect_b32 s22, s20, s21")
        a(f"s_cmp_lt_u32 s2, {WF0}")
        a("s_cselect_b32 s2, s22, s2")
    a("s_waitcnt lgkmcnt(0)")
    a(f"s_cmp_lt_u32 s2, {BIN0}")
    a("s_cbranch_scc1 K1_TABLE")
    a(f"s_cmp_lt_u32 s2, {WF0}")
    a("s_cbranch_scc1 K1_BIN")
    a(f"s_cmp_lt_u32 s2, {CF0}")
    a("s_cbranch_scc1 K1_WF")
    a("s_branch K1_CF")
    a.label("K1_EXIT")
    a("s_endpgm")
    k1_table(a)
    k1_bin(a)
    k1_wf(a)
    k1_cf(a)

CAPE = 1500
SCAP = 1632
L_CNT = 0; L_TOT = 256; L_TILES = 264; L_FLAG = 268
P_RANGE = 60.0
L_ROW = 512
L_GN = L_ROW + SCAP * 4
L_EO = L_GN + SCAP * 4
L_PPK = L_EO + SCAP * 4
L_CS = L_PPK + 20480
L_AGG = L_CS + 9216
L_XS = L_AGG + 40960
L_ES = L_XS + 48 * 272
L_RAW = L_ES
K2_LDS = L_ES + SCAP * 32
assert K2_LDS <= 163840 and L_AGG + 512 < 65536

QH = [8, 24, 40]; D = 56; B = 72; A = 88; U = 92; T = 100; R = 104; G = 108
vGS = [111, 112, 113]; vTa = 114; vTe = 115; vJ16 = 116; vJ4 = 117; vTa0 = 118; vTe0 = 119; vCS = 120
vDUM = 7
vTd = 122; vEo = 123; vH16 = 5; vEPa = 1; vJ16h = 6; EP = 124
vK66 = 2; vQ16 = 3; vLH = 4
sX = 12; sE = 16; sO = 20; sWS = 24
sWV = 28
sLO = 30
sHI = 32
sCC = 34
sN = 36; sNIT = 37; sL = 38
sLI = 39
sAI = 40
sHL = 41
sHG = 42
sTOT = 43
sWIN = 44
sDI = 45
sM0 = 62
sBIN = 29
sE2 = 63
sINC = 20
sLM3 = 43+48
sFLAG = 90
sNM2 = 89
sINCP = 92
sM = 46
sTMP = 56

STAMP_OFF = 0x1300000
def fstamp(a, i):
    if "fine" in OPT:
        a(f"s_memtime s[{64+2*i}:{65+2*i}]")
        a("s_waitcnt lgkmcnt(0)")
def gstamp(a, i):
    if "gst" in OPT:
        a(f"s_memtime s[{64+2*i}:{65+2*i}]")
        a("s_waitcnt lgkmcnt(0)")
def stamp(a, i):
    if ("fine" in OPT or "gst" in OPT) and i in (1,2,3,4,5,6): return
    if "stamp" in OPT:
        a(f"s_memtime s[{64+2*i}:{65+2*i}]")
        a("s_waitcnt lgkmcnt(0)")
def stamp_out(a, n):
    if "stamp" in OPT:
        a(f"s_cmp_eq_u32 s28, {8 if 'gst' in OPT else 0}")
        a("s_cbranch_scc0 STAMP_SKIP")
        a("s_mov_b64 exec, -1")
        a("s_mov_b32 s26, 0x1400000")
        for i in range(n):
            a(f"v_mov_b32 v100, s{64+2*i}")
            a(f"v_mov_b32 v101, s{65+2*i}")
            a(f"s_lshl_b32 s60, s2, 7")
            a(f"s_add_u32 s60, s60, {STAMP_OFF + 8*i}")
            a("v_mov_b32 v102, 0")
            a(f"buffer_store_dwordx2 v[100:101], v102, {sr(sWS,4)}, s60 offen")
            a("s_nop 1")
        a.label("STAMP_SKIP")
def P2(x): return f"v[{x}:{x+1}]"

def pair_code(ta, tb, h, shl, vG, v5):
    s = []
    if shl:
        for r in range(4):
            s.append(f"v_lshlrev_b32 v{h[r]}, 16, v{h[r]}")
            s.append(f"v_lshlrev_b32 v{h[r]+1}, 16, v{h[r]+1}")
    if v5:
        ep = EP + (2 if shl else 0)
        for r in range(4):
            s.append(f"v_exp_f32 v{U+2*r}, v{D+4*ta+r}")
            s.append(f"v_exp_f32 v{U+2*r+1}, v{D+4*tb+r}")
        if not shl: s.append("s_waitcnt lgkmcnt(3)")
        for r in range(4):
            s.append(f"v_pk_fma_f32 {P2(U+2*r)}, {P2(U+2*r)}, {P2(ep)}, s[{sCC}:{sCC+1}] clamp")
    else:
        for r in range(4):
            s.append(f"v_exp_f32_e64 v{U+2*r}, v{D+4*ta+r} clamp")
            s.append(f"v_exp_f32_e64 v{U+2*r+1}, v{D+4*tb+r} clamp")
        for r in range(4):
            s.append(f"v_pk_add_f32 {P2(U+2*r)}, {P2(U+2*r)}, s[{sCC}:{sCC+1}]")
    d0, d1, d2, d3 = U, U+2, U+4, U+6
    s += [f"v_pk_mul_f32 {P2(T)}, {P2(h[0])}, {P2(d1)}",
          f"v_pk_mul_f32 {P2(T+2)}, {P2(h[2])}, {P2(d3)}",
          f"v_pk_fma_f32 {P2(T)}, {P2(h[1])}, {P2(d0)}, {P2(T)}",
          f"v_pk_fma_f32 {P2(T+2)}, {P2(h[3])}, {P2(d2)}, {P2(T+2)}",
          f"v_pk_mul_f32 {P2(d0)}, {P2(d0)}, {P2(d1)}",
          f"v_pk_mul_f32 {P2(d2)}, {P2(d2)}, {P2(d3)}",
          f"v_pk_mul_f32 {P2(d1)}, {P2(d0)}, {P2(d2)}",
          f"v_pk_mul_f32 {P2(T)}, {P2(T)}, {P2(d2)}",
          f"v_rcp_f32 v{d1}, v{d1}",
          f"v_rcp_f32 v{d1+1}, v{d1+1}",
          f"v_pk_fma_f32 {P2(T)}, {P2(T+2)}, {P2(d0)}, {P2(T)}",
          f"v_pk_mul_f32 {P2(T)}, {P2(T)}, {P2(d1)}"]
    if "noadd" not in OPT:
        s += [f"v_cvt_f64_f32 {P2(U)}, v{T}",
              f"v_cvt_f64_f32 {P2(U+4)}, v{T+1}",
              f"ds_add_f64 v{vG}, {P2(U)} offset:{L_AGG + 128*ta}",
              f"ds_add_f64 v{vG}, {P2(U+4)} offset:{L_AGG + 128*tb}"]
    return s

deferred = []
def defer(fn, inline):
    if inline: fn()
    else: deferred.append(fn)
uid = [0]
def lab(p):
    uid[0] += 1
    return f"{p}_{uid[0]}"

def list_reads(a, v5):
    a(f"ds_read_b128 {vr(R,4)}, v{vTa} offset:{L_ROW}")
    if v5: a(f"ds_read_b32 v{G+2}, v{vTa} offset:{L_GN + 8}")
    else:  a(f"ds_read_b96 {vr(G,3)}, v{vTa} offset:{L_GN}")

def ep_read(a):
    a(f"ds_read_b128 {vr(EP,4)}, v{vEPa} offset:{L_PPK}")

def advance(a):
    a(f"v_pk_add_f32 {P2(vTa)}, {P2(vTa)}, s[{sINCP}:{sINCP+1}]")

def list_wrap(a):
    a(f"s_add_u32 s{sLI}, s{sLI}, 1")
    a(f"s_cmp_eq_u32 s{sLI}, s{sL}")
    l, lb = lab("K2_LW"), lab("K2_LWB")
    a(f"s_cbranch_scc1 {l}")
    a.label(lb)
    def blk():
        a.label(l)
        a(f"s_mov_b32 s{sLI}, 0")
        a(f"s_mov_b32 s{sHL}, {HALF_STRIDE}")
        a(f"v_mov_b32 v{vTa}, v{vTa0}")
        a(f"s_branch {lb}")
    deferred.append(blk)

def eo_read(a):
    a(f"ds_read_b32 v{vEo}, v{vTd} offset:{L_EO}")
    a(f"v_add_u32 v{vTd}, 64, v{vTd}")

def e_dma(a):
    a(f"s_mov_b32 m0, s{sM0}")
    a(f"v_add_u32 v{vEo}, v{vEo}, v{vH16}")
    if "samee" in OPT: a(f"v_and_b32 v{vEo}, 0x1f, v{vEo}")
    a(f"s_add_u32 s{sM0}, s{sM0}, 512")
    a(f"s_add_u32 s{sDI}, s{sDI}, 1")
    a(f"s_mov_b64 exec, {sr(sLO,2)}")
    a(f"buffer_load_dwordx4 v{vEo}, {sr(sWS if 'ecopy' in OPT else sE,4)}, s{sE2} offen{' nt' if 'edmant' in OPT else ''}{' sc1' if 'edmasc1' in OPT else ''} lds")
    a("s_mov_b64 exec, -1")

def gather_stage(a, buf, inloop=False):
    if inloop:
        lsk = lab("K2_SG")
        a(f"s_cmp_ge_u32 s{sN}, s{sNM2}")
        a(f"s_cbranch_scc1 {lsk}")
    for r in (0, 2):
        a(f"v_pk_add_f32 {P2(R+r)}, {P2(R+r)}, {P2(vJ16)} op_sel_hi:[1,0]")
    if "samerow" in OPT:
        for r in range(4): a(f"v_and_b32 v{R+r}, 0xff, v{R+r}")
    for r in range(4):
        a(f"buffer_load_dwordx4 {vr(buf+4*r,4)}, v{R+r}, {sr(sWS,4)}, s{sHL} offen")
    l, lb = lab("K2_ND"), lab("K2_NDB")
    a(f"s_cmp_lt_u32 s{sDI}, s{sL}")
    a(f"s_cbranch_scc1 {l}")
    a.label(lb)
    def blk():
        a.label(l)
        e_dma(a)
        eo_read(a)
        a(f"s_branch {lb}")
    deferred.append(blk)
    list_wrap(a)
    if inloop: a.label(lsk)

def ap_stage(a, dstG, v5, G=G):
    l, lb = lab("K2_AW"), lab("K2_AWB")
    a(f"s_cmp_eq_u32 s{sAI}, s{sL}")
    a(f"s_cbranch_scc1 {l}")
    a.label(lb)
    def blk():
        a.label(l)
        a(f"s_mov_b32 s{sAI}, 0")
        if "pstamp" in OPT:
            lq = lab("K2_PS")
            a(f"s_cmp_lt_u32 s{sN}, s{sL}")
            a(f"s_cbranch_scc0 {lq}")
            a("s_memtime s[76:77]")
            a("s_waitcnt lgkmcnt(0)")
            a.label(lq)
        if "noprio" not in OPT:
            lp = lab("K2_NP")
            a(f"s_cmp_lt_u32 s{sN}, s{sL}")
            a(f"s_cbranch_scc0 {lp}")
            a("s_setprio 2" if "oldprio" not in OPT else "s_setprio 0")
            a.label(lp)
        a(f"v_add_u32 v{vJ4}, 256, v{vJ4}")
        if v5: a(f"v_add_u32 v{vJ16h}, 256, v{vJ16h}")
        a(f"v_mov_b32 v{vTe}, v{vTe0}")
        for t in range(4):
            a(f"ds_read_b128 {vr(B+4*t,4)}, v{vCS} offset:{L_CS + 1024*(4+t)}")
        a(f"s_branch {lb}")
    deferred.append(blk)
    a(f"s_add_u32 s{sAI}, s{sAI}, 1")
    if v5:
        a(f"v_add_lshl_u32 v{dstG}, v{G+2}, v{vJ4}, 1")
        a(f"v_add_u32 v{vEPa}, v{G+2}, v{vJ16h}")
        a(f"s_mov_b64 exec, {sr(sLO,2)}")
        a(f"ds_read_b128 {vr(A,4)}, v{vTe}")
        a("s_mov_b64 exec, -1")
        return
    a(f"v_pk_add_f32 {P2(G)}, {P2(G)}, {P2(vJ16)} op_sel:[0,1] op_sel_hi:[1,1]")
    a(f"v_add_lshl_u32 v{dstG}, v{G+2}, v{vJ4}, 1")
    a(f"s_mov_b64 exec, {sr(sLO,2)}")
    a(f"ds_read_b128 {vr(A,4)}, v{vTe}")
    a(f"s_mov_b64 exec, {sr(sHI,2)}")
    for t in range(4 if "nop" not in OPT else 0):
        a(f"ds_read_b32 v{B+4*t}, v{G} offset:{L_PPK + 64*t}")
        a(f"ds_read_b32 v{B+4*t+1}, v{G+1} offset:{L_PPK + 64*t}")
    a("s_mov_b64 exec, -1")

def tile_body(a, k, v5, done):
    buf = QH[k]; nbuf = QH[(k + 2) % 3]
    vG = vGS[k]; vGn = vGS[(k + 1) % 3]
    l2 = lab("K2_W")
    a(f"s_cmp_lt_i32 s{sN}, s{sLM3}")
    a(f"s_cbranch_scc1 {l2}")
    a("s_waitcnt vmcnt(4)")
    a.label(l2)
    a("s_waitcnt vmcnt(6)")
    for t in (1, 3):
        p = t >> 1
        for rr in (0, 2):
            a(f"v_pk_mov_b32 {P2(D+4*t+rr)}, {P2(buf+4*rr)}, {P2(buf+4*(rr+1))} op_sel:[{p},{p}]")
    for t in (0, 2):
        p = t >> 1
        for r in range(4):
            a(f"v_lshlrev_b32 v{D+4*t+r}, 16, v{buf+4*r+p}")
    a("s_waitcnt lgkmcnt(4)")
    for t in (1, 3, 0, 2):
        a(f"v_mfma_f32_16x16x32_bf16 {vr(D+4*t,4)}, {vr(A,4)}, {vr(B+4*t,4)}, {vr(D+4*t,4)}")
    ap_stage(a, vGn, v5)
    list_reads(a, v5)
    advance(a)
    h = [buf + 4*r + 2 for r in range(4)]
    for ins in pair_code(1, 3, h, False, vG, v5): a(ins)
    a("s_waitcnt lgkmcnt(3)" if "noadd" not in OPT else "s_waitcnt lgkmcnt(1)")
    gather_stage(a, nbuf, True)
    for ins in pair_code(0, 2, h, True, vG, v5): a(ins)
    if v5: ep_read(a)
    a(f"s_add_u32 s{sN}, s{sN}, 1")
    if "noprio" in OPT or "oldprio" in OPT:
        a(f"s_cmp_ge_u32 s{sN}, s{sNIT}")
        a(f"s_cbranch_scc1 {done}")
    else:
        l, lb = lab("K2_PR"), lab("K2_PRB")
        a(f"s_cmp_ge_u32 s{sN}, s{sNM2}")
        a(f"s_cbranch_scc1 {l}")
        a.label(lb)
        def blk():
            l1 = lab("K2_PR1")
            a.label(l)
            a(f"s_cmp_ge_u32 s{sN}, s{sNIT}")
            a(f"s_cbranch_scc1 {done}")
            a(f"s_cmp_eq_u32 s{sN}, s{sNM2}")
            a(f"s_cbranch_scc0 {l1}")
            a("s_setprio 1")
            a(f"s_branch {lb}")
            a.label(l1)
            a("s_setprio 0")
            a("s_waitcnt vmcnt(0)")
            a(f"s_branch {lb}")
        deferred.append(blk)

def table_prefetch(a, vL16):
    if "nopf" in OPT: return
    a(f"s_lshr_b32 s{sTMP+5}, s2, 3")
    a(f"s_mul_i32 s{sTMP+5}, s{sTMP+5}, 81920")
    a(f"s_lshl_b32 s{sTMP+6}, s28, 13")
    a(f"s_add_u32 s{sTMP+5}, s{sTMP+5}, s{sTMP+6}")
    a(f"s_cmp_lt_u32 s28, 10")
    a(f"s_cselect_b32 s{sTMP+5}, s{sTMP+5}, {WS_END}")
    a(f"v_lshlrev_b32 v{vDUM}, 3, v{vL16}")
    a(f"buffer_load_dword v{vDUM}, v{vDUM}, {sr(sWS,4)}, s{sTMP+5} offen")

def table_prefetch(a):
    a(f"s_lshr_b32 s{sTMP}, s2, 3")
    a(f"s_mul_i32 s{sTMP}, s{sTMP}, 81920")
    a(f"s_lshl_b32 s{sTMP+1}, s28, 13")
    a(f"s_add_u32 s{sTMP+1}, s{sTMP+1}, s{sTMP}")
    a(f"v_lshlrev_b32 v{vDUM}, 3, v{vCS}")
    a(f"buffer_load_dword v{vDUM}, v{vDUM}, {sr(sWS,4)}, s{sTMP+1} offen")
    return
    a(f"s_add_u32 s{sTMP+1}, s{sTMP+1}, 65536")
    a(f"s_cmp_lt_u32 s28, 2")
    a(f"s_cselect_b32 s{sTMP+1}, s{sTMP+1}, {WS_END}")
    a(f"buffer_load_dword v127, v{vDUM}, {sr(sWS,4)}, s{sTMP+1} offen")

def k2(a):
    ECOPY = "ecopy" in OPT
    a.raw(".p2align 8")
    a.raw(".type egc_main_kernel,@function")
    a.label("egc_main_kernel")
    a(f"s_cmp_ge_u32 s2, {NB}")
    a("s_cbranch_scc1 K2_EXIT")
    diag_mark(a, 0, True, 0)
    stamp(a, 0)
    if "stamp" in OPT:
        a("s_memrealtime s[80:81]")
        a("s_waitcnt lgkmcnt(0)")
    a("s_load_dwordx4 s[4:7], s[0:1], 0")
    a("s_load_dwordx2 s[8:9], s[0:1], 56")
    a("s_load_dwordx2 s[10:11], s[0:1], 72")
    if "cpf" in OPT:
        a("s_getpc_b64 s[94:95]")
        a.label("K2_PC")
        a("v_and_b32 v9, 63, v0")
        a("v_lshrrev_b32 v10, 6, v0")
        a("v_lshlrev_b32 v9, 7, v9")
        a("v_lshl_add_u32 v9, v10, 13, v9")
        a("v_cmp_gt_u32 vcc, K2_EXIT-K2_PC, v9")
        a("s_and_saveexec_b64 s[54:55], vcc")
        a("s_cbranch_execz K2_NOCPF")
        a("global_load_dword v126, v9, s[94:95]")
        a.label("K2_NOCPF")
        a("s_mov_b64 exec, -1")
    a("v_lshrrev_b32 v1, 6, v0")
    a("v_lshlrev_b32 v3, 4, v0")
    a("s_and_b32 s46, s2, 7")
    a("v_readfirstlane_b32 s28, v1")
    a("s_lshr_b32 s47, s2, 3")
    a("s_sub_u32 s48, s46, 2")
    a("s_max_i32 s48, s48, 0")
    a("s_lshl_b32 s46, s46, 5")
    a("s_sub_u32 s46, s46, s48")
    a(f"s_add_u32 s{sBIN}, s46, s47")
    a(f"v_and_b32 v{vCS}, 0x3f0, v3")
    a("v_mov_b32 v8, v3")
    a(f"v_bfe_u32 v9, v{vCS}, 4, 4")
    a(f"v_lshrrev_b32 v10, 8, v{vCS}")
    a(f"v_lshlrev_b32 v{vJ16}, 4, v9")
    a(f"v_lshlrev_b32 v{vQ16}, 4, v10")
    a(f"v_lshl_add_u32 v{vK66}, v9, 5, v{vQ16}")
    a(f"v_and_b32 v{vH16}, 16, v{vCS}")
    a(f"v_lshrrev_b32 v{vLH}, 5, v{vCS}")
    a(f"s_mov_b64 {sr(sLO,2)}, 0xffffffff")
    a(f"s_mov_b32 s{sHI}, 0")
    a(f"s_mov_b32 s{sHI+1}, -1")
    a(f"s_mov_b32 s{sCC}, {hex(C_2MK)}")
    a(f"s_mov_b32 s{sCC+1}, {hex(C_2MK)}")
    a(f"s_mov_b32 s{sWIN}, 0")
    a(f"s_mov_b32 s{sE2}, {E2_OFF if ECOPY else 0}")
    a("s_cmp_ge_u32 s28, 8")
    a("s_cbranch_scc1 K2_G")
    vW = 12; vOA = 13; vOf = 14
    vC = 32; vSub = 33; vWb = 34; vEA = 35; vPw = 36; vKB = 37; vSg = 39; vEB = 38
    EN = 56
    a("v_mov_b32 v15, 0")
    a("v_lshrrev_b32 v16, 2, v8")
    a("v_cmp_gt_u32 vcc, 128, v0")
    a(f"v_lshrrev_b32 v{vW}, 1, v0")
    a("s_and_saveexec_b64 s[54:55], vcc")
    a(f"ds_write_b32 v16, v15 offset:{L_CNT}")
    a("s_mov_b64 exec, -1")
    a(f"v_lshlrev_b32 v{vOA}, 10, v{vW}")
    a(f"s_lshl_b32 s{sTMP}, s{sBIN}, 2")
    a(f"s_add_u32 s{sTMP}, s{sTMP}, {OFFS_OFF}")
    a(f"s_mov_b32 s{sTMP+4}, {ENT_OFF}")
    a(f"v_and_b32 v{vSub}, 1, v0")
    a(f"v_mul_u32_u24 v{vSg}, {CE}, v{vW}")
    a("s_waitcnt lgkmcnt(0)")
    srd(a, sWS, 10, WS_END)
    a(f"buffer_load_dword v{vOf}, v{vOA}, {sr(sWS,4)}, s{sTMP} offen")
    a("s_barrier")
    a(f"v_cmp_gt_u32 vcc, 250, v{vW}")
    a(f"v_cmp_eq_u32 s[54:55], 0, v{vSub}")
    a(f"v_mov_b32 v16, {L_TOT}")
    if not ECOPY: a(f"v_mul_u32_u24 v{vWb}, {CE*32}, v{vW}")
    a(f"v_mov_b32 v{vKB}, 0")
    srd(a, sE, 6, E * 32)
    srd(a, sO, 8, N * 256)
    a("s_waitcnt vmcnt(0)")
    a(f"v_lshrrev_b32 v{vC}, 16, v{vOf}")
    a(f"v_and_b32 v{vOf}, 0xffff, v{vOf}")
    a(f"v_cndmask_b32 v{vC}, 0, v{vC}, vcc")
    a(f"v_add_u32 v{vSg}, v{vSg}, v{vOf}")
    def entry_addr():
        a(f"v_lshlrev_b32 v{vEB}, 2, v{vSg}")
        a(f"v_lshl_add_u32 v{vEA}, v{vSub}, 5, v{vEB}")
        a(f"v_lshl_add_u32 v{vEB}, v{vSub}, 3, v{vEB}")
    def entry_loads(soff):
        a(f"buffer_load_dwordx4 {vr(EN,4)}, v{vEA}, {sr(sWS,4)}, s{soff} offen")
        a(f"buffer_load_dwordx4 {vr(EN+4,4)}, v{vEA}, {sr(sWS,4)}, s{soff} offen offset:16")
        a(f"buffer_load_dwordx2 {vr(EN+8,2)}, v{vEB}, {sr(sWS,4)}, s{soff} offen offset:64")
    entry_addr()
    entry_loads(sTMP+4)
    stamp(a, 1)
    a("s_mov_b64 exec, s[54:55]")
    a(f"ds_add_rtn_u32 v{vPw}, v16, v{vC}")
    a("s_mov_b64 exec, -1")
    a("s_barrier")
    a("s_waitcnt lgkmcnt(0)")
    a(f"v_mov_b32_dpp v{vPw}, v{vPw} quad_perm:[0,0,2,2] row_mask:0xf bank_mask:0xf")
    a("s_nop 0")
    a(f"v_mov_b32 v121, v{vPw}")
    a("s_waitcnt vmcnt(0)")
    a.label("K2_WINDOW")
    vKE = 66; vRA = 67
    a(f"s_add_u32 s{sTMP}, s{sWIN}, {CAPE}")
    a(f"v_sub_u32 v{vKE}, s{sTMP}, v{vPw}")
    a(f"v_min_i32 v{vKE}, v{vKE}, v{vC}")
    if ECOPY:
        a(f"v_sub_u32 v{vWb}, v{vSg}, v{vPw}")
        a(f"v_add_lshl_u32 v{vWb}, v{vWb}, s{sWIN}, 5")
    a.label("K2_COPY")
    a(f"v_add_u32 v{vRA}, v{vPw}, v{vKB}")
    a(f"v_subrev_u32 v{vRA}, s{sWIN}, v{vRA}")
    a(f"v_sub_u32 v68, v{vKE}, v{vKB}")
    a(f"v_lshlrev_b32 v69, 3, v{vSub}")
    a("v_sub_u32 v70, v68, v69")
    a(f"v_add_lshl_u32 v69, v{vRA}, v69, 3")
    a(f"v_add_u32 v69, {L_RAW}, v69")
    a(f"v_lshlrev_b32 v71, 1, v{vSub}")
    a("v_sub_u32 v68, v68, v71")
    a(f"v_add_lshl_u32 v71, v{vRA}, v71, 3")
    a(f"v_add_u32 v71, {L_RAW + 128}, v71")
    for i in range(8):
        a(f"v_cmp_lt_i32 vcc, {i}, v70")
        a("s_and_b64 exec, exec, vcc")
        a("s_cbranch_execz K2_CPA")
        a(f"ds_write2_b32 v69, v{EN+i}, v{vWb} offset0:{2*i} offset1:{2*i+1}")
    a.label("K2_CPA")
    a("s_mov_b64 exec, -1")
    for i in range(2):
        a(f"v_cmp_lt_i32 vcc, {16+i}, v68")
        a("s_and_b64 exec, exec, vcc")
        a("s_cbranch_execz K2_CPB")
        a(f"ds_write2_b32 v71, v{EN+8+i}, v{vWb} offset0:{2*i} offset1:{2*i+1}")
    a.label("K2_CPB")
    a("s_mov_b64 exec, -1")
    a(f"v_add_u32 v{vKB}, 20, v{vKB}")
    a(f"v_cmp_lt_i32 vcc, v{vKB}, v{vKE}")
    a("s_cmp_eq_u64 vcc, 0")
    a("s_cbranch_scc1 K2_COPIED")
    a(f"v_add_u32 v{vEA}, 80, v{vEA}")
    a(f"v_add_u32 v{vEB}, 80, v{vEB}")
    a(f"s_mov_b32 s{sTMP+4}, {ENT_OFF}")
    entry_loads(sTMP+4)
    a("s_waitcnt vmcnt(0)")
    a("s_branch K2_COPY")
    a.label("K2_COPIED")
    if "pfB" in OPT: table_prefetch(a)
    a(f"v_mov_b32 v70, {L_TOT}")
    a("s_waitcnt lgkmcnt(0)")
    a("s_barrier")
    stamp(a, 2)
    a("ds_read_b32 v70, v70")
    if "nopf" not in OPT and "pfA" not in OPT and "pfB" not in OPT: table_prefetch(a)
    RE = 56
    ND = 62; RK = 65
    a("v_lshlrev_b32 v68, 3, v0")
    a(f"v_add_u32 v68, {L_RAW}, v68")
    for i in range(3):
        a(f"ds_read_b64 {P2(RE+2*i)}, v68 offset:{4096*i}")
    a("v_mov_b32 v69, 1")
    a("s_waitcnt lgkmcnt(3)")
    a(f"v_readfirstlane_b32 s{sTOT}, v70")
    a("v_add_u32 v71, 512, v0")
    a("v_add_u32 v72, 1024, v0")
    a(f"s_sub_u32 s{sTMP}, s{sTOT}, s{sWIN}")
    a(f"s_min_u32 s{sTMP}, s{sTMP}, {CAPE}")
    a(f"v_cmp_gt_u32 {sr(sM,2)}, s{sTMP}, v0")
    a(f"v_cmp_gt_u32 {sr(sM+2,2)}, s{sTMP}, v71")
    a(f"v_cmp_gt_u32 {sr(sM+4,2)}, s{sTMP}, v72")
    for i in range(3):
        l = lab("K2_RK")
        a(f"s_waitcnt lgkmcnt({2-i if i == 0 else 0})" if i == 0 else "s_waitcnt lgkmcnt(0)" if i == 1 else "")
        a(f"v_bfe_u32 v{ND+i}, v{RE+2*i}, 14, 6")
        a(f"v_lshlrev_b32 v{ND+i}, 2, v{ND+i}")
        a(f"s_mov_b64 exec, {sr(sM+2*i,2)}")
        a(f"s_cbranch_execz {l}")
        a(f"ds_add_rtn_u32 v{RK+i}, v{ND+i}, v69 offset:{L_CNT}")
        a.label(l)
        a("s_mov_b64 exec, -1")
    a(f"v_lshrrev_b32 v68, 2, v{vCS}")
    a(f"v_mov_b32 v80, {L_FLAG}")
    for i in range(3):
        e = RE + 2*i
        if ECOPY:
            a(f"v_lshl_add_u32 v{e+1}, v0, 5, v{e+1}")
            if i: a(f"v_add_u32 v{e+1}, {512*32*i}, v{e+1}")
        else:
            a(f"v_lshrrev_b32 v70, 20, v{e}")
            a(f"v_lshl_add_u32 v{e+1}, v70, 5, v{e+1}")
        a(f"v_and_b32 v{e}, 0x3fff, v{e}")
        a(f"v_lshlrev_b32 v{e}, 8, v{e}")
    a("s_waitcnt lgkmcnt(0)")
    a("s_barrier")
    stamp(a, 3)
    a(f"ds_read_b32 v69, v68 offset:{L_CNT}")
    a("ds_read_b32 v80, v80")
    a("s_waitcnt lgkmcnt(0)")
    a(f"v_readfirstlane_b32 s{sFLAG}, v80")
    a("v_add_u32 v70, 3, v69")
    a("v_and_b32 v70, -4, v70")
    a("v_mov_b32 v71, v70")
    wave_scan(a, 71)
    a("v_sub_u32 v72, v71, v70")
    a("s_nop 0")
    a(f"v_readlane_b32 s{sNIT}, v71, 63")
    for i in range(3):
        a(f"ds_bpermute_b32 v{73+i}, v{ND+i}, v72")
    for i in range(3):
        a(f"v_lshlrev_b32 v{ND+i}, 7, v{ND+i}")
    for i in range(3):
        e = RE + 2*i
        l = lab("K2_PL")
        a(f"s_waitcnt lgkmcnt({2-i})" if i == 0 else "s_waitcnt lgkmcnt(0)" if i == 1 else "")
        a(f"s_mov_b64 exec, {sr(sM+2*i,2)}")
        a(f"s_cbranch_execz {l}")
        a(f"v_add_u32 v{73+i}, v{73+i}, v{RK+i}")
        a(f"v_and_b32 v{RK+i}, 3, v{RK+i}")
        a(f"v_lshlrev_b32 v76, 2, v{73+i}")
        a(f"v_cmp_eq_u32 vcc, 0, v{RK+i}")
        a(f"ds_write_b32 v76, v{e} offset:{L_ROW}")
        a(f"ds_write_b32 v76, v{e+1} offset:{L_EO}")
        a("s_and_b64 exec, exec, vcc")
        a(f"s_cbranch_execz {l}")
        a(f"ds_write_b32 v76, v{ND+i} offset:{L_GN + 8}")
        a(f"s_cmp_eq_u32 s{sFLAG}, 0")
        a(f"s_cbranch_scc1 {l}")
        a(f"v_and_b32 v77, 0xffffffc0, v76")
        a(f"v_bfe_u32 v{RK+i}, v76, 5, 1")
        a(f"v_lshl_add_u32 v77, v{RK+i}, 4, v77")
        a(f"v_bfe_u32 v{RK+i}, v76, 4, 1")
        a(f"v_lshl_add_u32 v77, v{RK+i}, 2, v77")
        a(f"ds_write_b32 v77, v{ND+i} offset:{L_GN + 32}")
        a.label(l)
        a("s_mov_b64 exec, -1")
    a(f"s_add_u32 s{sTMP}, s{sNIT}, 15")
    a(f"s_lshr_b32 s{sTMP+1}, s{sTMP}, 4")
    a("s_cmp_ge_u32 s28, 2")
    a("s_cbranch_scc1 K2_NOTAIL")
    a(f"v_mov_b32 v78, {N*256}")
    a("v_mov_b32 v79, 0")
    a("s_cmp_eq_u32 s28, 0")
    a("s_cbranch_scc0 K2_NOPAD")
    a(f"v_mov_b32 v76, s{sTMP+1}")
    a(f"v_mov_b32 v77, {L_TILES}")
    a("ds_write_b32 v77, v76")
    a("v_add_u32 v76, v72, v69")
    for m in range(3):
        a("v_cmp_lt_u32 vcc, v76, v71")
        a("s_and_b64 exec, exec, vcc")
        a(f"s_cbranch_execz K2_NOTAIL")
        a("v_lshlrev_b32 v77, 2, v76")
        a(f"ds_write_b32 v77, v78 offset:{L_ROW}")
        a(f"ds_write_b32 v77, v79 offset:{L_EO}")
        a("v_add_u32 v76, 1, v76")
    a("s_branch K2_NOTAIL")
    a.label("K2_NOPAD")
    a(f"v_lshrrev_b32 v76, 4, v{vCS}")
    a(f"v_add_u32 v76, s{sNIT}, v76")
    a(f"s_lshl_b32 s{sTMP+2}, s{sTMP+1}, 4")
    a(f"v_cmp_gt_u32 vcc, s{sTMP+2}, v76")
    a("s_and_b64 exec, exec, vcc")
    a("s_cbranch_execz K2_NOTAIL")
    a("v_lshlrev_b32 v77, 2, v76")
    a(f"ds_write_b32 v77, v78 offset:{L_ROW}")
    a(f"ds_write_b32 v77, v79 offset:{L_EO}")
    a("v_and_b32 v76, 3, v76")
    a("v_cmp_eq_u32 vcc, 0, v76")
    a("s_and_b64 exec, exec, vcc")
    a("s_cbranch_execz K2_NOTAIL")
    a(f"ds_write_b32 v77, v79 offset:{L_GN + 8}")
    a(f"v_and_b32 v76, 0xffffffc0, v77")
    a("v_bfe_u32 v78, v77, 5, 1")
    a("v_lshl_add_u32 v76, v78, 4, v76")
    a("v_bfe_u32 v78, v77, 4, 1")
    a("v_lshl_add_u32 v76, v78, 2, v76")
    a(f"ds_write_b32 v76, v79 offset:{L_GN + 32}")
    a.label("K2_NOTAIL")
    a("s_mov_b64 exec, -1")
    a("s_waitcnt lgkmcnt(0)")
    a("s_barrier")
    a("s_branch K2_JOIN")
    a.label("K2_G")
    WP = 8; WU = 24; ACP = 56; ACU = 104; XR = 56; CR = 64
    AFS = [40, 68, 84]
    g2, g4, g5, g6, g7, g1, g3 = 100, 101, 102, 103, 121, 122, 123
    a(f"v_subrev_u32 v{g2}, 0x2000, v8")
    a(f"v_mov_b32 v{g7}, v9")
    a(f"v_mov_b32 v{g6}, v10")
    a(f"s_sub_u32 s{sTMP+6}, s28, 8")
    a(f"s_mul_i32 s{sTMP+1}, s{sBIN}, {NPB*256}")
    a(f"s_add_u32 s{sTMP+2}, s{sTMP+1}, 8192")
    a(f"s_mov_b32 s{sTMP+3}, {CF_OFF}")
    a(f"s_mov_b32 s{sTMP+4}, {CF_OFF + 8192}")
    a(f"s_lshl_b32 s{sTMP+5}, s{sTMP+6}, 12")
    a(f"s_add_u32 s{sTMP+5}, s{sTMP+5}, {WF_OFF}")
    a(f"v_lshrrev_b32 v{g4}, 8, v{g2}")
    a(f"v_mul_u32_u24 v{g4}, 272, v{g4}")
    a(f"v_lshl_add_u32 v{g4}, v{g7}, 4, v{g4}")
    a(f"v_add_u32 v{g4}, {L_XS}, v{g4}")
    a(f"v_cmp_gt_u32 vcc, 0x1000, v{g2}")
    a("s_waitcnt lgkmcnt(0)")
    srd(a, sX, 4, N * 256)
    a(f"buffer_load_dwordx4 {vr(XR,4)}, v{g2}, {sr(sX,4)}, s{sTMP+1} offen")
    a(f"buffer_load_dwordx4 {vr(XR+4,4)}, v{g2}, {sr(sX,4)}, s{sTMP+2} offen")
    srd(a, sWS, 10, WS_END)
    a(f"buffer_load_dwordx4 {vr(CR,4)}, v{g2}, {sr(sWS,4)}, s{sTMP+3} offen")
    a(f"buffer_load_dwordx4 {vr(CR+4,4)}, v{vCS}, {sr(sWS,4)}, s{sTMP+4} offen")
    a("s_barrier")
    srd(a, sE, 6, E * 32)
    srd(a, sO, 8, N * 256)
    a("s_waitcnt vmcnt(3)")
    gstamp(a, 1)
    a(f"ds_write_b128 v{g4}, {vr(XR,4)}")
    a("s_and_saveexec_b64 s[54:55], vcc")
    a("s_waitcnt vmcnt(2)")
    a(f"ds_write_b128 v{g4}, {vr(XR+4,4)} offset:{32*272}")
    a("s_mov_b64 exec, -1")
    a("s_waitcnt vmcnt(1)")
    a(f"ds_write_b128 v{g2}, {vr(CR,4)} offset:{L_CS}")
    a("s_waitcnt vmcnt(0)")
    a(f"s_cmp_eq_u32 s{sTMP+6}, 0")
    a("s_cbranch_scc0 K2_NOA")
    a(f"ds_write_b128 v{vCS}, {vr(CR+4,4)} offset:{L_CS+8192}")
    a.label("K2_NOA")
    a(f"v_mul_u32_u24 v{g4}, 272, v{g7}")
    a(f"v_lshl_add_u32 v{g4}, v{g6}, 4, v{g4}")
    a(f"v_add_u32 v{g4}, {L_XS}, v{g4}")
    a("s_waitcnt lgkmcnt(0)")
    gstamp(a, 2)
    a("s_barrier")
    gstamp(a, 3)
    for ks in range(4):
        a(f"buffer_load_dwordx4 {vr(WP+4*ks,4)}, v{vCS}, {sr(sWS,4)}, s{sTMP+5} offen offset:{1024*ks}")
    a(f"s_add_u32 s{sTMP+5}, s{sTMP+5}, 32768")
    for ks in range(4):
        a(f"buffer_load_dwordx4 {vr(WU+4*ks,4)}, v{vCS}, {sr(sWS,4)}, s{sTMP+5} offen offset:{1024*ks}")
    for rho in range(3):
        for ks in range(4):
            a(f"ds_read_b128 {vr(AFS[rho]+4*ks,4)}, v{g4} offset:{rho*16*272 + ks*64}")
    a(f"v_lshlrev_b32 v{g5}, 11, v{g6}")
    a(f"v_lshl_add_u32 v{g5}, v{g7}, 2, v{g5}")
    a(f"s_lshl_b32 s{sTMP}, s{sTMP+6}, 6")
    a(f"v_add_u32 v{g5}, s{sTMP}, v{g5}")
    a(f"v_mov_b32 v{g1}, {L_TOT}")
    a(f"s_mov_b32 s{sTMP}, {hex(NEG_LOG2E)}")
    a(f"s_mov_b32 s{sTMP+1}, {hex(f2u(P_RANGE / 1.4426950408889634))}")
    a(f"v_lshlrev_b32 v{g4}, 1, v{g5}")
    a(f"v_add_u32 v{g4}, {L_AGG}, v{g4}")
    a(f"s_and_b32 s{sTMP+2}, s{sTMP+6}, 3")
    a(f"s_lshl_b32 s{sTMP+2}, s{sTMP+2}, 1")
    a(f"s_lshr_b32 s{sTMP+3}, 0x72, s{sTMP+2}")
    a(f"s_and_b32 s{sTMP+3}, s{sTMP+3}, 3")
    a(f"s_lshl_b32 s{sTMP+3}, s{sTMP+3}, 2")
    a(f"s_lshr_b32 s{sTMP+2}, s{sTMP+6}, 2")
    a(f"s_lshl_b32 s{sTMP+2}, s{sTMP+2}, 8")
    a(f"s_add_u32 s{sTMP+3}, s{sTMP+2}, s{sTMP+3}")
    a(f"v_lshlrev_b32 v127, 11, v{g6}")
    a(f"v_lshl_add_u32 v127, v{g7}, 4, v127")
    a(f"v_add_u32 v127, s{sTMP+3}, v127")
    a("s_barrier")
    a(f"ds_read_b32 v{g1}, v{g1}")
    a("s_waitcnt vmcnt(0)")
    gstamp(a, 4)
    for rho in range(3):
        AF = AFS[rho]
        a("s_waitcnt lgkmcnt(1)" if rho == 0 else "")
        for ks in range(4):
            c = "0" if ks == 0 else vr(ACP+4*rho, 4)
            a(f"v_mfma_f32_16x16x32_bf16 {vr(ACP+4*rho,4)}, {vr(AF+4*ks,4)}, {vr(WP+4*ks,4)}, {c}")
    for rho in range(3):
        AF = AFS[rho]
        for ks in range(4):
            c = "0" if ks == 0 else vr(ACU+4*rho, 4)
            a(f"v_mfma_f32_16x16x32_bf16 {vr(ACU+4*rho,4)}, {vr(AF+4*ks,4)}, {vr(WU+4*ks,4)}, {c}")
    a("s_waitcnt lgkmcnt(0)")
    a(f"v_readfirstlane_b32 s{sTOT}, v{g1}")
    a(f"v_max3_f32 v{g1}, |v{ACP}|, |v{ACP+1}|, |v{ACP+2}|")
    for i in range(3, 11, 2):
        a(f"v_max3_f32 v{g1}, |v{ACP+i}|, |v{ACP+i+1}|, v{g1}")
    a(f"v_max_f32_e64 v{g1}, |v{ACP+11}|, v{g1}")
    a(f"v_mov_b32 v{g2}, {L_FLAG}")
    a(f"v_cmp_nge_f32 vcc, s{sTMP+1}, v{g1}")
    a(f"v_mov_b32 v{g3}, 1")
    if "nov5" in OPT: a("s_mov_b64 vcc, -1")
    a("s_and_saveexec_b64 s[54:55], vcc")
    a("s_cbranch_execz K2_NOFLAG")
    a(f"ds_write_b32 v{g2}, v{g3}")
    a.label("K2_NOFLAG")
    a("s_mov_b64 exec, -1")
    for rho in range(3):
        if rho == 2: a(f"s_mov_b64 exec, {sr(sLO,2)}")
        for r in range(4):
            a(f"v_cvt_f64_f32 {P2(AFS[rho]+2*r)}, v{ACU+4*rho+r}")
        for r in range(4):
            a(f"ds_write_b64 v{g4}, {P2(AFS[rho]+2*r)} offset:{rho*16384 + r*1024}")
    a("s_mov_b64 exec, -1")
    a(f"v_mov_b32 v{g3}, {hex(f2u(-float(KSH)))}")
    a("s_waitcnt lgkmcnt(0)")
    gstamp(a, 5)
    a("s_barrier")
    a(f"ds_read_b32 v{g2}, v{g2}")
    a("s_waitcnt lgkmcnt(0)")
    a(f"v_readfirstlane_b32 s{sTMP+2}, v{g2}")
    a("s_nop 3")
    a(f"s_cmp_lg_u32 s{sTMP+2}, 0")
    a("s_cbranch_scc1 K2_PADD")
    for i in range(12):
        a(f"v_fma_f32 v{ACP+i}, v{ACP+i}, s{sTMP}, v{g3}")
    for i in range(12):
        a(f"v_exp_f32 v{ACP+i}, v{ACP+i}")
    for rho in range(3):
        if rho == 2: a(f"s_mov_b64 exec, {sr(sLO,2)}")
        for r in range(4):
            a(f"ds_write_b32 v127, v{ACP+4*rho+r} offset:{L_PPK + rho*8192 + r*512}")
    a("s_branch K2_PDONE")
    a.label("K2_PADD")
    for i in range(12):
        a(f"v_mul_f32 v{ACP+i}, s{sTMP}, v{ACP+i}")
    for i in range(12):
        a(f"v_cvt_pk_bf16_f32 v{ACP+i}, v{ACP+i}, 0")
    for rho in range(3):
        if rho == 2: a(f"s_mov_b64 exec, {sr(sLO,2)}")
        for r in range(4):
            a(f"ds_write_b32 v{g5}, v{ACP+4*rho+r} offset:{L_PPK + rho*8192 + r*512}")
    a.label("K2_PDONE")
    a("s_mov_b64 exec, -1")
    a("s_waitcnt lgkmcnt(0)")
    gstamp(a, 6)
    a("s_barrier")
    a("s_branch K2_JOIN")
    a.label("K2_G_WINDOW")
    a("s_barrier")
    a("s_barrier")
    a("s_barrier")
    a.label("K2_JOIN")
    stamp(a, 4)
    a("s_cmp_eq_u32 s28, 0")
    a("s_cbranch_scc0 K2_NOZ2")
    a(f"v_lshrrev_b32 v68, 2, v{vCS}")
    a("v_mov_b32 v69, 0")
    a(f"ds_write_b32 v68, v69 offset:{L_CNT}")
    a("s_waitcnt lgkmcnt(0)")
    a.label("K2_NOZ2")
    a(f"v_mov_b32 v70, {L_TILES}")
    a("ds_read_b64 v[70:71], v70")
    for t in range(4):
        a(f"ds_read_b128 {vr(B+4*t,4)}, v{vCS} offset:{L_CS + 1024*t}")
    a(f"ds_read_b128 {vr(A,4)}, v{vCS} offset:{L_CS + 8192}")
    a(f"v_lshrrev_b32 v{vJ4}, 2, v{vJ16}")
    a(f"v_mov_b32 v{vJ16h}, v{vJ16}")
    a("s_waitcnt lgkmcnt(5)")
    a(f"v_readfirstlane_b32 s{sTMP+1}, v70")
    a(f"v_readfirstlane_b32 s{sFLAG}, v71")
    a(f"s_lshr_b32 s{sTMP+2}, s{sTMP+1}, 4")
    a(f"s_and_b32 s{sTMP+3}, s{sTMP+1}, 15")
    a(f"s_cmp_lt_u32 s28, s{sTMP+3}")
    a(f"s_cselect_b32 s{sL}, 1, 0")
    a(f"s_add_u32 s{sL}, s{sL}, s{sTMP+2}")
    a(f"s_mul_i32 s{sTMP+2}, s{sTMP+2}, s28")
    a(f"s_min_u32 s{sTMP+3}, s{sTMP+3}, s28")
    a(f"s_add_u32 s{sTMP+2}, s{sTMP+2}, s{sTMP+3}")
    a(f"s_lshl_b32 s{sNIT}, s{sL}, {2 if 'dbl' in OPT else 1}")
    a(f"s_cmp_eq_u32 s{sL}, 0")
    a("s_cbranch_scc1 K2_LOOP_DONE")
    if "noprio" not in OPT: a("s_setprio 3")
    a(f"s_lshl_b32 s{sTMP+4}, s{sTMP+2}, 4")
    a(f"v_add_lshl_u32 v{vTd}, v{vLH}, s{sTMP+4}, 2")
    a(f"s_lshl_b32 s{sM0}, s{sTMP+2}, 9")
    a(f"s_add_u32 s{sM0}, s{sM0}, {L_ES}")
    a(f"v_add_u32 v{vTe0}, s{sM0}, v{vK66}")
    a(f"s_lshl_b32 s{sTMP+4}, s{sTMP+2}, 6")
    a(f"v_add_u32 v{vTa0}, s{sTMP+4}, v{vQ16}")
    a(f"s_mov_b32 s{sDI}, 0")
    a(f"s_mov_b32 s{sN}, 0")
    a(f"s_mov_b32 s{sLI}, 0")
    a(f"s_mov_b32 s{sAI}, 0")
    a(f"s_mov_b32 s{sHL}, 0")
    a(f"s_mov_b32 s{sINCP}, 64")
    a(f"s_mov_b32 s{sINCP+1}, 512")
    a(f"s_sub_i32 s{sLM3}, s{sL}, 3")
    a(f"s_sub_u32 s{sNM2}, s{sNIT}, 2")
    eo_read(a)
    a(f"v_mov_b32 v{vTa}, v{vTa0}")
    a(f"v_mov_b32 v{vTe}, v{vTe0}")
    a("s_waitcnt lgkmcnt(0)")
    e_dma(a)
    a(f"s_cmp_lt_u32 s{sDI}, s{sL}")
    a("s_cbranch_scc0 K2_ND1")
    eo_read(a)
    a("s_waitcnt lgkmcnt(0)")
    e_dma(a)
    eo_read(a)
    a.label("K2_ND1")
    a(f"s_cmp_lg_u32 s{sFLAG}, 0")
    a("s_cbranch_scc1 K2_SETUP_ADD")
    for v5 in (True, False):
        sfx = "F" if v5 else "A"
        if v5:
            for i in range(4): a(f"v_mov_b32 v{A+i}, 0")
        else:
            a.label("K2_SETUP_ADD")
        list_reads(a, v5)
        a(f"v_add_u32 v{vTa}, 64, v{vTa}")
        a("s_waitcnt lgkmcnt(0)")
        gather_stage(a, QH[0])
        for i in range(3):
            if not v5 or i == 2: a(f"v_mov_b32 v{EP+i}, v{G+i}")
        list_reads(a, v5)
        a(f"v_add_u32 v{vTa}, 64, v{vTa}")
        a("s_waitcnt lgkmcnt(0)")
        gather_stage(a, QH[1])
        if v5: stamp(a, 5)
        a("s_waitcnt vmcnt(8)")
        ap_stage(a, vGS[0], v5, EP)
        if v5: ep_read(a)
        a(f"v_add_u32 v{vTe}, 512, v{vTe}")
        a("s_waitcnt lgkmcnt(0)")
        a.label(f"K2_LOOP{sfx}")
        for k in range(3):
            tile_body(a, k, v5, "K2_LOOP_DONE")
        a(f"s_branch K2_LOOP{sfx}")
        for blk in deferred: blk()
        deferred.clear()
    a.label("K2_LOOP_DONE")
    a("s_setprio 0")
    a("s_waitcnt vmcnt(0)")
    if "pstamp" not in OPT: stamp(a, 6)
    a("s_waitcnt lgkmcnt(0)")
    a("s_barrier")
    a(f"s_add_u32 s{sWIN}, s{sWIN}, {CAPE}")
    a(f"s_cmp_lt_u32 s{sWIN}, s{sTOT}")
    a("s_cbranch_scc0 K2_EPI")
    a("s_cmp_ge_u32 s28, 8")
    a("s_cbranch_scc1 K2_G_WINDOW")
    a(f"v_lshrrev_b32 v{vW}, 1, v0")
    a(f"v_lshlrev_b32 v{vOA}, 10, v{vW}")
    a(f"s_lshl_b32 s{sTMP}, s{sBIN}, 2")
    a(f"s_add_u32 s{sTMP}, s{sTMP}, {OFFS_OFF}")
    a(f"buffer_load_dword v{vOf}, v{vOA}, {sr(sWS,4)}, s{sTMP} offen")
    a(f"v_and_b32 v{vSub}, 1, v0")
    a(f"v_mul_u32_u24 v{vSg}, {CE}, v{vW}")
    a(f"v_cmp_gt_u32 vcc, 250, v{vW}")
    a(f"v_mov_b32 v{vPw}, v121")
    if not ECOPY: a(f"v_mul_u32_u24 v{vWb}, {CE*32}, v{vW}")
    a("s_waitcnt vmcnt(0)")
    a(f"v_lshrrev_b32 v{vC}, 16, v{vOf}")
    a(f"v_and_b32 v{vOf}, 0xffff, v{vOf}")
    a(f"v_cndmask_b32 v{vC}, 0, v{vC}, vcc")
    a(f"v_add_u32 v{vSg}, v{vSg}, v{vOf}")
    a(f"v_sub_u32 v{vKB}, s{sWIN}, v{vPw}")
    a(f"v_max_i32 v{vKB}, 0, v{vKB}")
    entry_addr()
    a(f"v_lshl_add_u32 v{vEA}, v{vKB}, 2, v{vEA}")
    a(f"v_lshl_add_u32 v{vEB}, v{vKB}, 2, v{vEB}")
    a(f"s_mov_b32 s{sTMP+4}, {ENT_OFF}")
    entry_loads(sTMP+4)
    a("s_waitcnt vmcnt(0)")
    a("s_branch K2_WINDOW")
    a.label("K2_EPI")
    a("v_cmp_gt_u32 vcc, 640, v0")
    a("s_and_saveexec_b64 s[54:55], vcc")
    a("s_cbranch_execz K2_EXIT")
    a("v_lshlrev_b32 v1, 6, v0")
    for i in range(4):
        a(f"ds_read_b128 {vr(32+4*i,4)}, v1 offset:{L_AGG+16*i}")
    a(f"s_mov_b32 s{sTMP}, {hex(C_2MK)}")
    a(f"s_mov_b32 s{sTMP+1}, {hex(NEG_LOG2E)}")
    a("s_waitcnt lgkmcnt(0)")
    for i in range(8):
        a(f"v_cvt_f32_f64 v{8+i}, v[{32+2*i}:{33+2*i}]")
    a(f"s_mov_b32 s{sTMP+2}, {hex(f2u(-1.4426950408889634 * 2.0**-KSH))}")
    a(f"s_mov_b32 s{sTMP+3}, {hex(f2u(-1.4426950408889634 * 2.0**-KSH))}")
    a(f"s_mov_b32 s{sTMP+1}, {hex(C_2MK)}")
    a(f"s_mov_b32 s{sTMP+4}, 1.0")
    a(f"s_mov_b32 s{sTMP+5}, 1.0")
    for i in range(4):
        a(f"v_pk_mul_f32 {P2(16+2*i)}, {P2(8+2*i)}, s[{sTMP+2}:{sTMP+3}]")
    for i in range(4):
        a(f"v_pk_mul_f32 {P2(8+2*i)}, {P2(8+2*i)}, s[{sTMP}:{sTMP+1}]")
    for i in range(8):
        a(f"v_exp_f32 v{16+i}, v{16+i}")
    for i in range(4):
        a(f"v_pk_add_f32 {P2(16+2*i)}, {P2(16+2*i)}, s[{sTMP+4}:{sTMP+5}]")
    for i in range(8):
        a(f"v_rcp_f32 v{16+i}, v{16+i}")
    a("s_nop 0")
    for i in range(4):
        a(f"v_pk_mul_f32 {P2(8+2*i)}, {P2(8+2*i)}, {P2(16+2*i)}")
    for i in range(4):
        a(f"v_cvt_pk_bf16_f32 v{24+i}, v{8+2*i}, v{9+2*i}")
    a("v_lshlrev_b32 v2, 4, v0")
    a(f"s_mul_i32 s{sTMP}, s{sBIN}, {NPB*256}")
    a(f"buffer_store_dwordx4 v[24:27], v2, {sr(sO,4)}, s{sTMP} offen" + ("" if "outplain" in OPT else " sc1"))
    if "diag" in OPT:
        a("s_waitcnt vmcnt(0)")
        diag_mark(a, 1, False, 0)
    if "stamp" in OPT:
        a("s_waitcnt vmcnt(0)")
        stamp(a, 7)
        a("s_memrealtime s[82:83]")
        a("s_waitcnt lgkmcnt(0)")
        stamp_out(a, 10)
    a.label("K2_EXIT")
    a("s_endpgm")

HEADER = f"""; EGC edge-gated message passing: out = silu(x@U + segsum_dst(sigmoid([x_dst,x_src,e]@G) * (x@V)[src]))
; @launch kernel=egc_prep_kernel grid=({K1_WGS},1,1) block=({K1_BLOCK},1,1) lds={K1_LDS}
; @launch kernel=egc_main_kernel grid=({NB},1,1) block=(1024,1,1) lds={K2_LDS}
.amdgcn_target "amdgcn-amd-amdhsa--gfx950"
.text
"""

def kd(name, vgpr, sgpr, denorm=False):
    extra = "  .amdhsa_float_denorm_mode_32 3\n" if denorm else ""
    return f""".amdhsa_kernel {name}
  .amdhsa_next_free_vgpr {vgpr}
  .amdhsa_next_free_sgpr {sgpr}
  .amdhsa_accum_offset {((vgpr+3)//4)*4}
  .amdhsa_group_segment_fixed_size 0
  .amdhsa_kernarg_size 80
  .amdhsa_user_sgpr_count 2
  .amdhsa_user_sgpr_kernarg_segment_ptr 1
  .amdhsa_system_sgpr_workgroup_id_x 1
{extra}.end_amdhsa_kernel
"""

def k3(a, which):
    a.raw(".globl egc_diag_kernel")
    a.raw(".p2align 8")
    a.raw(".type egc_diag_kernel,@function")
    a.label("egc_diag_kernel")
    a("s_cmp_ge_u32 s2, 1")
    a("s_cbranch_scc1 K3_END")
    a("s_load_dwordx2 s[4:5], s[0:1], 64")
    a("s_waitcnt lgkmcnt(0)")
    a("s_sub_u32 s4, s4, 1024")
    a("s_subb_u32 s5, s5, 0")
    a("s_load_dwordx2 s[6:7], s[4:5], 0")
    a("s_load_dwordx2 s[8:9], s[4:5], 512")
    a("s_memrealtime s[10:11]")
    a("s_waitcnt lgkmcnt(0)")
    a("s_not_b32 s6, s6")
    a("s_not_b32 s8, s8")
    if which == 1: a("s_sub_u32 s12, s7, s6")
    if which == 2: a("s_sub_u32 s12, s8, s7")
    if which == 3: a("s_sub_u32 s12, s9, s8")
    if which == 4: a("s_sub_u32 s12, s10, s9")
    if which == 0: a("s_mov_b32 s12, 0")
    a("s_lshl_b32 s12, s12, 2")
    a("s_min_u32 s12, s12, 20000")
    a.label("K3_SPIN")
    a("s_memrealtime s[14:15]")
    a("s_waitcnt lgkmcnt(0)")
    a("s_sub_u32 s14, s14, s10")
    a("s_cmp_lt_u32 s14, s12")
    a("s_cbranch_scc1 K3_SPIN")
    a.label("K3_END")
    a("s_endpgm")

def main():
    a = Asm()
    a.raw(".globl egc_prep_kernel")
    k1(a)
    a.raw(".globl egc_main_kernel")
    k2(a)
    hdr = HEADER
    which = [int(o[4:]) for o in OPT if o.startswith("dsel")]
    if which:
        k3(a, which[0])
        hdr = hdr.replace(".amdgcn_target", "; @launch kernel=egc_diag_kernel grid=(1,1,1) block=(64,1,1) lds=0\n.amdgcn_target", 1)
    out = hdr + a.text()
    out += '.section .rodata,"a"\n.p2align 6\n' + kd("egc_prep_kernel", 112, 96) + ".p2align 6\n" + kd("egc_main_kernel", 128, 96, True) + (".p2align 6\n" + kd("egc_diag_kernel", 8, 32) if which else "")
    path = sys.argv[1] if len(sys.argv) > 1 else f"cdna_kernels/{NAME}.s"
    open(path, "w").write(out)
    print("wrote", path, len(out), "bytes")

if __name__ == "__main__":
    main()
```

```python
import sys, struct, os
OPT = set(os.environ.get("OPT","").split(","))

NAME = "gather_scatter__edge_featured_mpnn_egc__graph"
N = 10000; E = 320000
NB = 250; NPB = 40
NC = 250; CE = 1280
KSH = 26
def f2u(x): return struct.unpack('<I', struct.pack('<f', x))[0]
NEG_LOG2E = f2u(-1.4426950408889634)
C_2MK = f2u(2.0 ** -KSH)
C_2PK = f2u(2.0 ** KSH)
BF16_NEGK = 0xC1D0
assert KSH == 26

HALF_STRIDE = (N + 1) * 256
T_OFF = 0;            T_BYTES = 2 * HALF_STRIDE
ENT_OFF = 0x500000
OFFS_OFF = 0x640000
WF_OFF = 0x680000
CF_OFF = 0x690000
E2_OFF = 0x800000
WS_END = 0x1200000

T128 = 't64' not in OPT
NT_WG = 158 if T128 else 314
BIN0 = NT_WG
WF0 = BIN0 + NC
CF0 = WF0 + 8
K1_WGS = CF0 + 1
K1_LDS = (7168 + 40960) if 'ecopy' in OPT else 128 * 288

class Asm:
    def __init__(self): self.lines = []
    def __call__(self, s):
        for l in s.split("\n"):
            l = l.strip()
            if l: self.lines.append("    " + l)
    def label(self, n): self.lines.append(n + ":")
    def raw(self, s): self.lines.append(s)
    def text(self): return "\n".join(self.lines) + "\n"

def vr(i, n=1): return f"v{i}" if n == 1 else f"v[{i}:{i+n-1}]"
def sr(i, n=1): return f"s{i}" if n == 1 else f"s[{i}:{i+n-1}]"

def srd(a, d, base, nbytes):
    a(f"s_mov_b32 s{d}, s{base}")
    a(f"s_and_b32 s{d+1}, s{base+1}, 0xffff")
    a(f"s_mov_b32 s{d+2}, {nbytes}")
    a(f"s_mov_b32 s{d+3}, 0x00020000")

def stamp1(a, i):
    if "stamp1" in OPT:
        a(f"s_memrealtime s[{64+2*i}:{65+2*i}]")
        a("s_waitcnt lgkmcnt(0)")
def stamp1_out(a, n, ws_srd, wgreg, lbl):
    if "stamp1" in OPT:
        a("s_waitcnt vmcnt(0)")
        stamp1(a, n-1)
        a("v_readfirstlane_b32 s60, v0")
        a("s_cmp_eq_u32 s60, 0")
        a(f"s_cbranch_scc0 {lbl}")
        a(f"s_mov_b32 s{ws_srd+2}, 0x1400000")
        for i in range(n):
            a(f"v_mov_b32 v100, s{64+2*i}")
            a(f"v_mov_b32 v101, s{65+2*i}")
            a(f"s_lshl_b32 s60, s{wgreg}, 7")
            a(f"s_add_u32 s60, s60, {0x1310000 + 8*i}")
            a("v_mov_b32 v102, 0")
            a(f"buffer_store_dwordx2 v[100:101], v102, s[{ws_srd}:{ws_srd+3}], s60 offen")
            a("s_nop 1")
        a.label(lbl)

def diag_mark(a, slot, inv, dbgreg):
    if "diag" not in OPT: return
    dl = f"DIAG_{slot}_{len(a.lines)}"
    a("s_and_b32 s84, s2, 15")
    a("s_cmp_eq_u32 s84, 0")
    a(f"s_cbranch_scc0 {dl}")
    a("v_mbcnt_lo_u32_b32 v98, -1, 0") if False else None
    a("v_readfirstlane_b32 s84, v0")
    a("s_nop 3")
    a("s_cmp_lt_u32 s84, 64")
    a(f"s_cbranch_scc0 {dl}")
    a("s_memrealtime s[84:85]")
    a(f"s_load_dwordx2 s[86:87], s[0:1], 64")
    a("s_waitcnt lgkmcnt(0)")
    if inv: a("s_not_b32 s84, s84")
    a("s_mov_b64 s[88:89], exec") if False else None
    a("v_mov_b32 v99, s84")
    a(f"v_mov_b32 v98, {4*slot}")
    a("s_mov_b64 exec, 1")
    a("global_atomic_umax v98, v99, s[86:87]")
    a("s_mov_b64 exec, -1")
    a.label(dl)

def wave_scan(a, v):
    for sh in (1, 2, 4, 8):
        a("s_nop 1")
        a(f"v_add_u32_dpp v{v}, v{v}, v{v} row_shr:{sh} row_mask:0xf bank_mask:0xf bound_ctrl:1")
    a("s_nop 1")
    a(f"v_add_u32_dpp v{v}, v{v}, v{v} row_bcast:15 row_mask:0xa bank_mask:0xf")
    a("s_nop 1")
    a(f"v_add_u32_dpp v{v}, v{v}, v{v} row_bcast:31 row_mask:0xc bank_mask:0xf")

def k1_table(a):
    NU = 2 if T128 else 1
    XF = [40, 96]; ACCS = [64, 112]
    a.label("K1_TABLE")
    stamp1(a, 0)
    a("s_and_b32 s3, s2, 1")
    a("s_lshr_b32 s28, s2, 1")
    srd(a, 20, 16, 69632)
    srd(a, 36, 14, 32768)
    srd(a, 24, 4, N * 256)
    a("s_lshl_b32 s29, s3, 7")
    a("s_add_u32 s30, s29, 32768")
    a("v_lshrrev_b32 v1, 3, v0")
    a("v_and_b32 v2, 7, v0")
    a("v_lshlrev_b32 v3, 8, v1")
    a("v_lshl_add_u32 v3, v2, 4, v3")
    for i in range(4):
        a(f"buffer_load_dwordx4 {vr(8+4*i,4)}, v3, s[20:23], s30 offen")
        if i < 3: a("s_add_u32 s30, s30, 8192")
    for i in range(4):
        a(f"buffer_load_dwordx4 {vr(24+4*i,4)}, v3, s[36:39], s29 offen")
        if i < 3: a("s_add_u32 s29, s29, 8192")
    a("v_mul_u32_u24 v7, 288, v1")
    a("v_lshl_add_u32 v7, v2, 4, v7")
    a("v_and_b32 v2, 15, v0")
    a("v_bfe_u32 v3, v0, 4, 2")
    a("v_lshrrev_b32 v4, 6, v0")
    a(f"s_lshl_b32 s31, s28, {6 + (NU-1)}")
    a(f"v_lshl_add_u32 v5, v4, {4 + (NU-1)}, s31")
    a("v_add_u32 v6, v5, v2")
    a("v_lshlrev_b32 v6, 8, v6")
    a("v_lshl_add_u32 v6, v3, 4, v6")
    a("s_movk_i32 s46, 4096")
    for u in range(NU):
        for ks in range(4):
            a(f"buffer_load_dwordx4 {vr(XF[u]+4*ks,4)}, v6, s[24:27], {'0' if u == 0 else 's46'} offen offset:{64*ks}")
    srd(a, 32, 18, 2 * HALF_STRIDE)
    for i in range(8):
        a(f"s_waitcnt vmcnt({7 + 4*NU - i})")
        a(f"ds_write_b128 v7, {vr(8+4*i,4)} offset:{9216*(i&3) + 128*(i>>2)}")
    a("v_lshrrev_b32 v7, 2, v2")
    a("v_lshl_add_u32 v7, v3, 3, v7")
    a("v_mul_u32_u24 v7, 288, v7")
    a("v_and_b32 v1, 3, v0")
    a("v_lshl_add_u32 v7, v1, 3, v7")
    a("v_lshl_add_u32 v1, v3, 2, v5")
    a("v_lshlrev_b32 v6, 8, v1")
    a("v_lshl_add_u32 v6, v2, 4, v6")
    a(f"s_mul_i32 s3, s3, {HALF_STRIDE}")
    a("s_add_u32 s47, s3, 4096")
    a("s_waitcnt vmcnt(0) lgkmcnt(0)")
    stamp1(a, 1)
    a("s_barrier")
    stamp1(a, 2)
    BF = [8, 24]
    def reads(t):
        b = BF[t & 1]
        for ks in range(4):
            a(f"ds_read_b64_tr_b16 {vr(b+4*ks,2)}, v7 offset:{9216*ks + 32*t}")
            a(f"ds_read_b64_tr_b16 {vr(b+4*ks+2,2)}, v7 offset:{9216*ks + 32*t + 1152}")
    reads(0)
    for t in range(8):
        if t < 7:
            reads(t + 1)
            a("s_waitcnt lgkmcnt(8)")
        else:
            a("s_waitcnt lgkmcnt(0)")
        b = BF[t & 1]
        for ks in range(4):
            for u in range(NU):
                c = "0" if ks == 0 else vr(ACCS[u]+4*t, 4)
                a(f"v_mfma_f32_16x16x32_bf16 {vr(ACCS[u]+4*t,4)}, {vr(XF[u]+4*ks,4)}, {vr(b+4*ks,4)}, {c}")
    stamp1(a, 3)
    a("s_mov_b32 s40, 0x00800000")
    a("s_mov_b32 s41, 0x7fff0000")
    a(f"s_mov_b32 s42, {hex(NEG_LOG2E)}")
    a(f"s_movk_i32 s43, {N}")
    a("s_nop 6")
    for u in range(NU):
        ACC = ACCS[u]
        for r in range(4):
            W = 8 + 8 * (r & 1)
            for t in range(4):
                a(f"v_mul_f32 v{ACC+4*t+r}, s42, v{ACC+4*t+r}")
            for p in range(4):
                lo, hi = ACC + 4*(2*p) + r, ACC + 4*(2*p+1) + r
                a(f"v_cvt_pk_bf16_f32 v{W+p}, v{lo}, v{hi}")
                a(f"v_max_f32_e64 v{hi}, |v{hi}|, s40")
            for p in range(4):
                hi = ACC + 4*(2*p+1) + r
                a(f"v_add_u32 v{hi}, 0x8000, v{hi}")
            for p in range(4):
                hi = ACC + 4*(2*p+1) + r
                a(f"v_sub_u32_sdwa v{hi}, v{hi}, v{W+p} dst_sel:DWORD dst_unused:UNUSED_PAD src0_sel:DWORD src1_sel:WORD_0")
            a(f"v_add_u32 v2, {r + 16*u}, v1")
            a("v_cmp_ge_u32 vcc, s43, v2")
            for p in range(4):
                hi = ACC + 4*(2*p+1) + r
                a(f"v_bfi_b32 v{W+p}, s41, v{hi}, v{W+p}")
            a("s_and_saveexec_b64 s[44:45], vcc")
            a(f"s_cbranch_execz K1_TAB_SKIP{u}{r}")
            a(f"buffer_store_dwordx4 {vr(W,4)}, v6, s[32:35], {'s3' if u == 0 else 's47'} offen offset:{256*r} sc1")
            a.label(f"K1_TAB_SKIP{u}{r}")
            a("s_mov_b64 exec, s[44:45]")
    stamp1(a, 4)
    stamp1(a, 5)
    stamp1_out(a, 7, 32, 2, "K1_ST_TAB")
    if "diag" in OPT:
        a("s_waitcnt vmcnt(0)")
        diag_mark(a, 1, False, 0)
    a("s_endpgm")

def k1_bin(a):
    HIST, OFF2, SORT, ESORT = 0, 1024, 2048, 7168
    a.label("K1_BIN")
    stamp1(a, 0)
    a(f"s_sub_u32 s3, s2, {BIN0}")
    srd(a, 20, 8, E * 4)
    srd(a, 24, 10, E * 4)
    srd(a, 28, 18, WS_END)
    a("v_lshlrev_b32 v1, 2, v0")
    a("s_mul_i32 s32, s3, 5120")
    a("v_mov_b32 v2, 0")
    a(f"ds_write_b32 v1, v2 offset:{HIST}")
    DST, SRC = 8, 16
    for m in range(5):
        a(f"buffer_load_dword v{DST+m}, v1, s[24:27], s32 offen offset:{1024*m if m<4 else 0}" if m < 4 else
          f"s_add_u32 s33, s32, 4096\nbuffer_load_dword v{DST+m}, v1, s[24:27], s33 offen")
    for m in range(5):
        a(f"buffer_load_dword v{SRC+m}, v1, s[20:23], s32 offen offset:{1024*m}" if m < 4 else
          f"buffer_load_dword v{SRC+m}, v1, s[20:23], s33 offen")
    ECOPY = "ecopy" in OPT
    NE = 10 if ECOPY else 0
    srd(a, 40, 6, E * 32)
    a("v_lshlrev_b32 v6, 5, v0")
    a("s_mul_i32 s44, s3, 40960")
    ER = 56
    if "noeload" in OPT: a("s_mov_b32 s42, 0")
    NT = " nt" if "ent" in OPT else ""
    ELATE = "elate" in OPT and ECOPY
    def e_loads():
        for m in range(5 if ECOPY else 0):
            a(f"buffer_load_dwordx4 {vr(ER+8*m,4)}, v6, s[40:43], s44 offen{NT}")
            a(f"buffer_load_dwordx4 {vr(ER+8*m+4,4)}, v6, s[40:43], s44 offen offset:16{NT}")
            if m < 4: a("s_add_u32 s44, s44, 8192")
    if not ELATE: e_loads()
    NE0 = 0 if ELATE else NE
    a("s_mov_b32 s34, 52429")
    a("s_waitcnt lgkmcnt(0)")
    a("s_barrier")
    BINR, RANK = 24, 32
    if "stamp1" in OPT:
        a(f"s_waitcnt vmcnt({9+NE})")
        stamp1(a, 1)
    a("v_mov_b32 v3, 1")
    for m in range(5):
        a(f"s_waitcnt vmcnt({9+NE0-m})" if not (ELATE and m > 0) else "")
        if ELATE and m == 0:
            a("s_waitcnt vmcnt(5)")
            e_loads()
        a(f"v_mul_u32_u24 v{BINR+m}, s34, v{DST+m}")
        a(f"v_lshrrev_b32 v{BINR+m}, 21, v{BINR+m}")
        a(f"v_mul_u32_u24 v4, 40, v{BINR+m}")
        a(f"v_sub_u32 v{DST+m}, v{DST+m}, v4")
        a(f"v_lshlrev_b32 v{BINR+m}, 2, v{BINR+m}")
        a(f"ds_add_rtn_u32 v{RANK+m}, v{BINR+m}, v3 offset:{HIST}")
    for m in range(5):
        a(f"s_waitcnt vmcnt({4+NE-m})")
        a(f"v_lshl_or_b32 v{SRC+m}, v{DST+m}, 14, v{SRC+m}")
        if not ECOPY:
            a(f"v_add_u32 v4, {256*m}, v0")
            a(f"v_lshl_or_b32 v{SRC+m}, v4, 20, v{SRC+m}")
    a("s_waitcnt lgkmcnt(0)")
    a("s_barrier")
    stamp1(a, 2)
    a("v_and_b32 v5, 63, v0")
    a("v_lshlrev_b32 v5, 4, v5")
    a(f"ds_read_b128 v[40:43], v5 offset:{HIST}")
    a("s_waitcnt lgkmcnt(0)")
    a("v_add_u32 v44, v40, v41")
    a("v_add_u32 v45, v42, v43")
    a("v_add_u32 v46, v44, v45")
    a("v_mov_b32 v47, v46")
    wave_scan(a, 47)
    a("v_sub_u32 v48, v47, v46")
    a("v_add_u32 v49, v48, v40")
    a("v_add_u32 v50, v48, v44")
    a("v_add_u32 v51, v50, v42")
    a(f"ds_write_b128 v5, v[48:51] offset:{OFF2}")
    a("v_readfirstlane_b32 s35, v0")
    a("s_lshl_b32 s36, s3, 10")
    a(f"s_add_u32 s36, s36, {OFFS_OFF}")
    a("s_cmp_ge_u32 s35, 64")
    a("s_cbranch_scc1 K1_BIN_NOPUB")
    for i in range(4):
        a(f"v_lshl_or_b32 v{52+i}, v{40+i}, 16, v{48+i}")
    a("buffer_store_dwordx4 v[52:55], v5, s[28:31], s36 offen sc1")
    a.label("K1_BIN_NOPUB")
    a("s_waitcnt lgkmcnt(0)")
    for m in range(5):
        a(f"ds_read_b32 v{40+m}, v{BINR+m} offset:{OFF2}")
    for m in range(5):
        a(f"s_waitcnt lgkmcnt({4-m})")
        a(f"v_add_lshl_u32 v{40+m}, v{40+m}, v{RANK+m}, 2")
        a(f"ds_write_b32 v{40+m}, v{SRC+m} offset:{SORT}")
    stamp1(a, 3)
    for m in range(5 if ECOPY else 0):
        a(f"v_lshlrev_b32 v{40+m}, 3, v{40+m}")
        a(f"s_waitcnt vmcnt({9 - 2*m})")
        a(f"ds_write_b128 v{40+m}, {vr(ER+8*m,4)} offset:{ESORT}")
        a(f"s_waitcnt vmcnt({8 - 2*m})")
        a(f"ds_write_b128 v{40+m}, {vr(ER+8*m+4,4)} offset:{ESORT+16}")
    a("s_waitcnt lgkmcnt(0)")
    a("s_barrier")
    stamp1(a, 4)
    a("v_lshlrev_b32 v5, 4, v0")
    a(f"ds_read_b128 v[40:43], v5 offset:{SORT}")
    a(f"s_add_u32 s36, s32, {ENT_OFF}")
    a("v_cmp_gt_u32 vcc, 64, v0")
    a("s_waitcnt lgkmcnt(0)")
    a("buffer_store_dwordx4 v[40:43], v5, s[28:31], s36 offen sc1")
    a("s_and_saveexec_b64 s[38:39], vcc")
    a("s_cbranch_execz K1_BIN_END")
    a(f"ds_read_b128 v[44:47], v5 offset:{SORT+4096}")
    a("s_add_u32 s36, s36, 4096")
    a("s_waitcnt lgkmcnt(0)")
    a("buffer_store_dwordx4 v[44:47], v5, s[28:31], s36 offen sc1")
    a.label("K1_BIN_END")
    a("s_mov_b64 exec, -1")
    a("s_mul_i32 s36, s3, 40960")
    a(f"s_add_u32 s36, s36, {E2_OFF}")
    for i in range(NE):
        a(f"ds_read_b128 {vr(ER+4*i,4)}, v5 offset:{ESORT + 4096*i}")
    for i in range(NE):
        a(f"s_waitcnt lgkmcnt({9-i})")
        pol = "" if "eplain" in OPT else (" nt" if "estnt" in OPT else " sc1")
        if "noestore" not in OPT: a(f"buffer_store_dwordx4 {vr(ER+4*i,4)}, v5, s[28:31], s36 offen{pol}")
        if i < 9: a("s_add_u32 s36, s36, 4096")
    stamp1(a, 5)
    stamp1_out(a, 7, 28, 2, "K1_ST_BIN")
    if "diag" in OPT:
        a("s_waitcnt vmcnt(0)")
        diag_mark(a, 1, False, 0)
    a("s_endpgm")

def k1_wf(a):
    a.label("K1_WF")
    a(f"s_sub_u32 s3, s2, {WF0}")
    a("v_lshrrev_b32 v1, 6, v0")
    a("s_nop 0")
    a("v_readfirstlane_b32 s28, v1")
    a("s_lshl_b32 s3, s3, 2")
    a("s_add_u32 s3, s3, s28")
    a("s_lshr_b32 s29, s3, 1")
    a("s_and_b32 s30, s3, 1")
    a("s_cmp_lt_u32 s29, 8")
    a("s_cselect_b32 s20, s16, s12")
    a("s_cselect_b32 s21, s17, s13")
    a("s_and_b32 s21, s21, 0xffff")
    a("s_mov_b32 s22, 32768")
    a("s_mov_b32 s23, 0x00020000")
    srd(a, 24, 18, WS_END)
    a("v_and_b32 v2, 15, v0")
    a("v_bfe_u32 v3, v0, 4, 2")
    a("s_and_b32 s31, s29, 7")
    a("s_lshl_b32 s31, s31, 5")
    a("s_lshl_b32 s32, s30, 14")
    a("s_add_u32 s31, s31, s32")
    a("v_lshlrev_b32 v4, 11, v3")
    a("v_lshl_add_u32 v4, v2, 1, v4")
    a("s_add_u32 s33, s31, 8192")
    for f in range(2):
        for m in range(8):
            a(f"buffer_load_ushort v{8+8*f+m}, v4, s[20:23], s{31 if f==0 else 33} offen offset:{256*m}")
    a("v_and_b32 v5, 63, v0")
    a("v_lshlrev_b32 v5, 4, v5")
    a("s_lshl_b32 s34, s3, 11")
    a(f"s_add_u32 s34, s34, {WF_OFF}")
    a("s_cmp_lt_u32 s29, 8")
    a(f"s_cselect_b32 s35, 1.0, {hex(C_2PK)}")
    a("s_mov_b32 s36, 0x07060302")
    for f in range(2):
        a(f"s_waitcnt vmcnt({8 if f==0 else 1})")
        for m in range(8):
            a(f"v_lshlrev_b32 v{8+8*f+m}, 16, v{8+8*f+m}")
            a(f"v_mul_f32 v{8+8*f+m}, s35, v{8+8*f+m}")
        for p in range(4):
            a(f"v_perm_b32 v{24+4*f+p}, v{8+8*f+2*p+1}, v{8+8*f+2*p}, s36")
        a(f"buffer_store_dwordx4 {vr(24+4*f,4)}, v5, s[24:27], s34 offen offset:{1024*f} sc1")
    a("s_endpgm")

def k1_cf(a):
    a.label("K1_CF")
    a("v_lshrrev_b32 v1, 6, v0")
    a("s_nop 0")
    a("v_readfirstlane_b32 s28, v1")
    srd(a, 20, 16, 69632)
    srd(a, 24, 18, WS_END)
    a("v_and_b32 v2, 15, v0")
    a("v_bfe_u32 v3, v0, 4, 2")
    a("v_and_b32 v4, 1, v3")
    a("v_lshlrev_b32 v4, 11, v4")
    a("v_lshl_add_u32 v4, v2, 1, v4")
    a("s_lshl_b32 s29, s28, 6")
    a("s_add_u32 s29, s29, 65536")
    for f in range(2):
        for m in range(8):
            a(f"buffer_load_ushort v{8+8*f+m}, v4, s[20:23], s29 offen offset:{256*m + 32*f}")
    a("v_and_b32 v5, 63, v0")
    a("v_lshlrev_b32 v5, 4, v5")
    a("s_lshl_b32 s34, s28, 11")
    a(f"s_add_u32 s34, s34, {CF_OFF}")
    a(f"s_mov_b32 s30, {hex(NEG_LOG2E)}")
    a("v_cmp_gt_u32 vcc, 2, v3")
    a("v_cmp_eq_u32 s[32:33], 2, v3")
    a(f"v_mov_b32 v6, {hex(BF16_NEGK)}")
    a("v_mov_b32 v7, 0")
    a("s_waitcnt vmcnt(0)")
    for f in range(2):
        for m in range(8):
            a(f"v_lshlrev_b32 v{8+8*f+m}, 16, v{8+8*f+m}")
            a(f"v_mul_f32 v{8+8*f+m}, s30, v{8+8*f+m}")
        for p in range(4):
            a(f"v_cvt_pk_bf16_f32 v{24+4*f+p}, v{8+8*f+2*p}, v{8+8*f+2*p+1}")
        a(f"v_cndmask_b32 v30, v7, v6, s[32:33]" if False else "")
        a(f"v_cndmask_b32 v32, v7, v6, s[32:33]")
        a(f"v_cndmask_b32 v{24+4*f+0}, v7, v{24+4*f+0}, vcc")
        a(f"v_cndmask_b32 v{24+4*f+1}, v7, v{24+4*f+1}, vcc")
        a(f"v_cndmask_b32 v{24+4*f+2}, v32, v{24+4*f+2}, vcc")
        a(f"v_cndmask_b32 v{24+4*f+3}, v7, v{24+4*f+3}, vcc")
        a(f"buffer_store_dwordx4 {vr(24+4*f,4)}, v5, s[24:27], s34 offen offset:{1024*f} sc1")
    a("s_cmp_eq_u32 s28, 0")
    a("s_cbranch_scc0 K1_CF_END")
    a("v_lshrrev_b32 v8, 2, v2")
    a("v_subrev_u32 v9, 2, v3")
    a("v_lshlrev_b32 v9, 1, v9")
    a("v_mov_b32 v10, 0x3f803f80")
    a("v_cmp_eq_u32 vcc, v8, v9")
    a("v_add_u32 v9, 1, v9")
    a("v_cmp_eq_u32 s[36:37], v8, v9")
    a("v_cndmask_b32 v12, v7, v10, vcc")
    a("v_mov_b32 v11, 0x3f80")
    a("v_cndmask_b32 v13, v7, v10, s[36:37]")
    a("v_cndmask_b32 v14, v7, v11, s[32:33]")
    a("v_mov_b32 v15, 0")
    a(f"s_mov_b32 s34, {CF_OFF + 8192}")
    a("buffer_store_dwordx4 v[12:15], v5, s[24:27], s34 offen sc1")
    a.label("K1_CF_END")
    a("s_endpgm")

def k1(a):
    a.raw(".p2align 8")
    a.raw(".type egc_prep_kernel,@function")
    a.label("egc_prep_kernel")
    a(f"s_cmp_ge_u32 s2, {K1_WGS}")
    a("s_cbranch_scc1 K1_EXIT")
    diag_mark(a, 0, True, 0)
    a("s_load_dwordx4 s[4:7], s[0:1], 0")
    a("s_load_dwordx4 s[8:11], s[0:1], 16")
    a("s_load_dwordx4 s[12:15], s[0:1], 32")
    a("s_load_dwordx2 s[16:17], s[0:1], 48")
    a("s_load_dwordx2 s[18:19], s[0:1], 72")
    if "tabfirst" not in OPT:
        a(f"s_add_u32 s20, s2, {NT_WG}")
        a(f"s_sub_u32 s21, s2, {NC}")
        a(f"s_cmp_lt_u32 s2, {NC}")
        a("s_cselect_b32 s22, s20, s21")
        a(f"s_cmp_lt_u32 s2, {WF0}")
        a("s_cselect_b32 s2, s22, s2")
    a("s_waitcnt lgkmcnt(0)")
    a(f"s_cmp_lt_u32 s2, {BIN0}")
    a("s_cbranch_scc1 K1_TABLE")
    a(f"s_cmp_lt_u32 s2, {WF0}")
    a("s_cbranch_scc1 K1_BIN")
    a(f"s_cmp_lt_u32 s2, {CF0}")
    a("s_cbranch_scc1 K1_WF")
    a("s_branch K1_CF")
    a.label("K1_EXIT")
    a("s_endpgm")
    k1_table(a)
    k1_bin(a)
    k1_wf(a)
    k1_cf(a)

CAPE = 1500
SCAP = 1632
L_CNT = 0; L_TOT = 256; L_TILES = 264; L_FLAG = 268
P_RANGE = 60.0
L_ROW = 512
L_GN = L_ROW + SCAP * 4
L_EO = L_GN + SCAP * 4
L_PPK = L_EO + SCAP * 4
L_CS = L_PPK + 20480
L_AGG = L_CS + 9216
L_XS = L_AGG + 40960
L_ES = L_XS + 48 * 272
L_RAW = L_ES
K2_LDS = L_ES + SCAP * 32
assert K2_LDS <= 163840 and L_AGG + 512 < 65536

QH = [8, 24, 40]; D = 56; B = 72; A = 88; U = 92; T = 100; R = 104; G = 108
vGS = [111, 112, 113]; vTa = 114; vTe = 115; vJ16 = 116; vJ4 = 117; vTa0 = 118; vTe0 = 119; vCS = 120
vDUM = 7
vTd = 122; vEo = 123; vH16 = 5; vEPa = 1; vJ16h = 6; EP = 124
vK66 = 2; vQ16 = 3; vLH = 4
sX = 12; sE = 16; sO = 20; sWS = 24
sWV = 28
sLO = 30
sHI = 32
sCC = 34
sN = 36; sNIT = 37; sL = 38
sLI = 39
sAI = 40
sHL = 41
sHG = 42
sTOT = 43
sWIN = 44
sDI = 45
sM0 = 62
sBIN = 29
sE2 = 63
sINC = 20
sLM3 = 43+48
sFLAG = 90
sNM2 = 89
sINCP = 92
sM = 46
sTMP = 56

STAMP_OFF = 0x1300000
def fstamp(a, i):
    if "fine" in OPT:
        a(f"s_memtime s[{64+2*i}:{65+2*i}]")
        a("s_waitcnt lgkmcnt(0)")
def gstamp(a, i):
    if "gst" in OPT:
        a(f"s_memtime s[{64+2*i}:{65+2*i}]")
        a("s_waitcnt lgkmcnt(0)")
def stamp(a, i):
    if ("fine" in OPT or "gst" in OPT) and i in (1,2,3,4,5,6): return
    if "stamp" in OPT:
        a(f"s_memtime s[{64+2*i}:{65+2*i}]")
        a("s_waitcnt lgkmcnt(0)")
def stamp_out(a, n):
    if "stamp" in OPT:
        a(f"s_cmp_eq_u32 s28, {8 if 'gst' in OPT else 0}")
        a("s_cbranch_scc0 STAMP_SKIP")
        a("s_mov_b64 exec, -1")
        a("s_mov_b32 s26, 0x1400000")
        for i in range(n):
            a(f"v_mov_b32 v100, s{64+2*i}")
            a(f"v_mov_b32 v101, s{65+2*i}")
            a(f"s_lshl_b32 s60, s2, 7")
            a(f"s_add_u32 s60, s60, {STAMP_OFF + 8*i}")
            a("v_mov_b32 v102, 0")
            a(f"buffer_store_dwordx2 v[100:101], v102, {sr(sWS,4)}, s60 offen")
            a("s_nop 1")
        a.label("STAMP_SKIP")
def P2(x): return f"v[{x}:{x+1}]"

def pair_code(ta, tb, h, shl, vG, v5):
    s = []
    if shl:
        for r in range(4):
            s.append(f"v_lshlrev_b32 v{h[r]}, 16, v{h[r]}")
            s.append(f"v_lshlrev_b32 v{h[r]+1}, 16, v{h[r]+1}")
    if v5:
        ep = EP + (2 if shl else 0)
        for r in range(4):
            s.append(f"v_exp_f32 v{U+2*r}, v{D+4*ta+r}")
            s.append(f"v_exp_f32 v{U+2*r+1}, v{D+4*tb+r}")
        if not shl: s.append("s_waitcnt lgkmcnt(3)")
        for r in range(4):
            s.append(f"v_pk_fma_f32 {P2(U+2*r)}, {P2(U+2*r)}, {P2(ep)}, s[{sCC}:{sCC+1}] clamp")
    else:
        for r in range(4):
            s.append(f"v_exp_f32_e64 v{U+2*r}, v{D+4*ta+r} clamp")
            s.append(f"v_exp_f32_e64 v{U+2*r+1}, v{D+4*tb+r} clamp")
        for r in range(4):
            s.append(f"v_pk_add_f32 {P2(U+2*r)}, {P2(U+2*r)}, s[{sCC}:{sCC+1}]")
    d0, d1, d2, d3 = U, U+2, U+4, U+6
    s += [f"v_pk_mul_f32 {P2(T)}, {P2(h[0])}, {P2(d1)}",
          f"v_pk_mul_f32 {P2(T+2)}, {P2(h[2])}, {P2(d3)}",
          f"v_pk_fma_f32 {P2(T)}, {P2(h[1])}, {P2(d0)}, {P2(T)}",
          f"v_pk_fma_f32 {P2(T+2)}, {P2(h[3])}, {P2(d2)}, {P2(T+2)}",
          f"v_pk_mul_f32 {P2(d0)}, {P2(d0)}, {P2(d1)}",
          f"v_pk_mul_f32 {P2(d2)}, {P2(d2)}, {P2(d3)}",
          f"v_pk_mul_f32 {P2(d1)}, {P2(d0)}, {P2(d2)}",
          f"v_pk_mul_f32 {P2(T)}, {P2(T)}, {P2(d2)}",
          f"v_rcp_f32 v{d1}, v{d1}",
          f"v_rcp_f32 v{d1+1}, v{d1+1}",
          f"v_pk_fma_f32 {P2(T)}, {P2(T+2)}, {P2(d0)}, {P2(T)}",
          f"v_pk_mul_f32 {P2(T)}, {P2(T)}, {P2(d1)}"]
    if "noadd" not in OPT:
        s += [f"v_cvt_f64_f32 {P2(U)}, v{T}",
              f"v_cvt_f64_f32 {P2(U+4)}, v{T+1}",
              f"ds_add_f64 v{vG}, {P2(U)} offset:{L_AGG + 128*ta}",
              f"ds_add_f64 v{vG}, {P2(U+4)} offset:{L_AGG + 128*tb}"]
    return s

deferred = []
def defer(fn, inline):
    if inline: fn()
    else: deferred.append(fn)
uid = [0]
def lab(p):
    uid[0] += 1
    return f"{p}_{uid[0]}"

def list_reads(a, v5):
    a(f"ds_read_b128 {vr(R,4)}, v{vTa} offset:{L_ROW}")
    if v5: a(f"ds_read_b32 v{G+2}, v{vTa} offset:{L_GN + 8}")
    else:  a(f"ds_read_b96 {vr(G,3)}, v{vTa} offset:{L_GN}")

def ep_read(a):
    a(f"ds_read_b128 {vr(EP,4)}, v{vEPa} offset:{L_PPK}")

def advance(a):
    a(f"v_pk_add_f32 {P2(vTa)}, {P2(vTa)}, s[{sINCP}:{sINCP+1}]")

def list_wrap(a):
    a(f"s_add_u32 s{sLI}, s{sLI}, 1")
    a(f"s_cmp_eq_u32 s{sLI}, s{sL}")
    l, lb = lab("K2_LW"), lab("K2_LWB")
    a(f"s_cbranch_scc1 {l}")
    a.label(lb)
    def blk():
        a.label(l)
        a(f"s_mov_b32 s{sLI}, 0")
        a(f"s_mov_b32 s{sHL}, {HALF_STRIDE}")
        a(f"v_mov_b32 v{vTa}, v{vTa0}")
        a(f"s_branch {lb}")
    deferred.append(blk)

def eo_read(a):
    a(f"ds_read_b32 v{vEo}, v{vTd} offset:{L_EO}")
    a(f"v_add_u32 v{vTd}, 64, v{vTd}")

def e_dma(a):
    a(f"s_mov_b32 m0, s{sM0}")
    a(f"v_add_u32 v{vEo}, v{vEo}, v{vH16}")
    if "samee" in OPT: a(f"v_and_b32 v{vEo}, 0x1f, v{vEo}")
    a(f"s_add_u32 s{sM0}, s{sM0}, 512")
    a(f"s_add_u32 s{sDI}, s{sDI}, 1")
    a(f"s_mov_b64 exec, {sr(sLO,2)}")
    a(f"buffer_load_dwordx4 v{vEo}, {sr(sWS if 'ecopy' in OPT else sE,4)}, s{sE2} offen{' nt' if 'edmant' in OPT else ''}{' sc1' if 'edmasc1' in OPT else ''} lds")
    a("s_mov_b64 exec, -1")

def gather_stage(a, buf, inloop=False):
    if inloop:
        lsk = lab("K2_SG")
        a(f"s_cmp_ge_u32 s{sN}, s{sNM2}")
        a(f"s_cbranch_scc1 {lsk}")
    for r in (0, 2):
        a(f"v_pk_add_f32 {P2(R+r)}, {P2(R+r)}, {P2(vJ16)} op_sel_hi:[1,0]")
    if "samerow" in OPT:
        for r in range(4): a(f"v_and_b32 v{R+r}, 0xff, v{R+r}")
    for r in range(4):
        a(f"buffer_load_dwordx4 {vr(buf+4*r,4)}, v{R+r}, {sr(sWS,4)}, s{sHL} offen")
    l, lb = lab("K2_ND"), lab("K2_NDB")
    a(f"s_cmp_lt_u32 s{sDI}, s{sL}")
    a(f"s_cbranch_scc1 {l}")
    a.label(lb)
    def blk():
        a.label(l)
        e_dma(a)
        eo_read(a)
        a(f"s_branch {lb}")
    deferred.append(blk)
    list_wrap(a)
    if inloop: a.label(lsk)

def ap_stage(a, dstG, v5, G=G):
    l, lb = lab("K2_AW"), lab("K2_AWB")
    a(f"s_cmp_eq_u32 s{sAI}, s{sL}")
    a(f"s_cbranch_scc1 {l}")
    a.label(lb)
    def blk():
        a.label(l)
        a(f"s_mov_b32 s{sAI}, 0")
        if "pstamp" in OPT:
            lq = lab("K2_PS")
            a(f"s_cmp_lt_u32 s{sN}, s{sL}")
            a(f"s_cbranch_scc0 {lq}")
            a("s_memtime s[76:77]")
            a("s_waitcnt lgkmcnt(0)")
            a.label(lq)
        if "noprio" not in OPT:
            lp = lab("K2_NP")
            a(f"s_cmp_lt_u32 s{sN}, s{sL}")
            a(f"s_cbranch_scc0 {lp}")
            a("s_setprio 2" if "oldprio" not in OPT else "s_setprio 0")
            a.label(lp)
        a(f"v_add_u32 v{vJ4}, 256, v{vJ4}")
        if v5: a(f"v_add_u32 v{vJ16h}, 256, v{vJ16h}")
        a(f"v_mov_b32 v{vTe}, v{vTe0}")
        for t in range(4):
            a(f"ds_read_b128 {vr(B+4*t,4)}, v{vCS} offset:{L_CS + 1024*(4+t)}")
        a(f"s_branch {lb}")
    deferred.append(blk)
    a(f"s_add_u32 s{sAI}, s{sAI}, 1")
    if v5:
        a(f"v_add_lshl_u32 v{dstG}, v{G+2}, v{vJ4}, 1")
        a(f"v_add_u32 v{vEPa}, v{G+2}, v{vJ16h}")
        a(f"s_mov_b64 exec, {sr(sLO,2)}")
        a(f"ds_read_b128 {vr(A,4)}, v{vTe}")
        a("s_mov_b64 exec, -1")
        return
    a(f"v_pk_add_f32 {P2(G)}, {P2(G)}, {P2(vJ16)} op_sel:[0,1] op_sel_hi:[1,1]")
    a(f"v_add_lshl_u32 v{dstG}, v{G+2}, v{vJ4}, 1")
    a(f"s_mov_b64 exec, {sr(sLO,2)}")
    a(f"ds_read_b128 {vr(A,4)}, v{vTe}")
    a(f"s_mov_b64 exec, {sr(sHI,2)}")
    for t in range(4 if "nop" not in OPT else 0):
        a(f"ds_read_b32 v{B+4*t}, v{G} offset:{L_PPK + 64*t}")
        a(f"ds_read_b32 v{B+4*t+1}, v{G+1} offset:{L_PPK + 64*t}")
    a("s_mov_b64 exec, -1")

def tile_body(a, k, v5, done):
    buf = QH[k]; nbuf = QH[(k + 2) % 3]
    vG = vGS[k]; vGn = vGS[(k + 1) % 3]
    l2 = lab("K2_W")
    a(f"s_cmp_lt_i32 s{sN}, s{sLM3}")
    a(f"s_cbranch_scc1 {l2}")
    a("s_waitcnt vmcnt(4)")
    a.label(l2)
    a("s_waitcnt vmcnt(6)")
    for t in (1, 3):
        p = t >> 1
        for rr in (0, 2):
            a(f"v_pk_mov_b32 {P2(D+4*t+rr)}, {P2(buf+4*rr)}, {P2(buf+4*(rr+1))} op_sel:[{p},{p}]")
    for t in (0, 2):
        p = t >> 1
        for r in range(4):
            a(f"v_lshlrev_b32 v{D+4*t+r}, 16, v{buf+4*r+p}")
    a("s_waitcnt lgkmcnt(4)")
    for t in (1, 3, 0, 2):
        a(f"v_mfma_f32_16x16x32_bf16 {vr(D+4*t,4)}, {vr(A,4)}, {vr(B+4*t,4)}, {vr(D+4*t,4)}")
    ap_stage(a, vGn, v5)
    list_reads(a, v5)
    advance(a)
    h = [buf + 4*r + 2 for r in range(4)]
    for ins in pair_code(1, 3, h, False, vG, v5): a(ins)
    a("s_waitcnt lgkmcnt(3)" if "noadd" not in OPT else "s_waitcnt lgkmcnt(1)")
    gather_stage(a, nbuf, True)
    for ins in pair_code(0, 2, h, True, vG, v5): a(ins)
    if v5: ep_read(a)
    a(f"s_add_u32 s{sN}, s{sN}, 1")
    if "noprio" in OPT or "oldprio" in OPT:
        a(f"s_cmp_ge_u32 s{sN}, s{sNIT}")
        a(f"s_cbranch_scc1 {done}")
    else:
        l, lb = lab("K2_PR"), lab("K2_PRB")
        a(f"s_cmp_ge_u32 s{sN}, s{sNM2}")
        a(f"s_cbranch_scc1 {l}")
        a.label(lb)
        def blk():
            l1 = lab("K2_PR1")
            a.label(l)
            a(f"s_cmp_ge_u32 s{sN}, s{sNIT}")
            a(f"s_cbranch_scc1 {done}")
            a(f"s_cmp_eq_u32 s{sN}, s{sNM2}")
            a(f"s_cbranch_scc0 {l1}")
            a("s_setprio 1")
            a(f"s_branch {lb}")
            a.label(l1)
            a("s_setprio 0")
            a("s_waitcnt vmcnt(0)")
            a(f"s_branch {lb}")
        deferred.append(blk)

def table_prefetch(a, vL16):
    if "nopf" in OPT: return
    a(f"s_lshr_b32 s{sTMP+5}, s2, 3")
    a(f"s_mul_i32 s{sTMP+5}, s{sTMP+5}, 81920")
    a(f"s_lshl_b32 s{sTMP+6}, s28, 13")
    a(f"s_add_u32 s{sTMP+5}, s{sTMP+5}, s{sTMP+6}")
    a(f"s_cmp_lt_u32 s28, 10")
    a(f"s_cselect_b32 s{sTMP+5}, s{sTMP+5}, {WS_END}")
    a(f"v_lshlrev_b32 v{vDUM}, 3, v{vL16}")
    a(f"buffer_load_dword v{vDUM}, v{vDUM}, {sr(sWS,4)}, s{sTMP+5} offen")

def table_prefetch(a):
    a(f"s_lshr_b32 s{sTMP}, s2, 3")
    a(f"s_mul_i32 s{sTMP}, s{sTMP}, 81920")
    a(f"s_lshl_b32 s{sTMP+1}, s28, 13")
    a(f"s_add_u32 s{sTMP+1}, s{sTMP+1}, s{sTMP}")
    a(f"v_lshlrev_b32 v{vDUM}, 3, v{vCS}")
    a(f"buffer_load_dword v{vDUM}, v{vDUM}, {sr(sWS,4)}, s{sTMP+1} offen")
    return
    a(f"s_add_u32 s{sTMP+1}, s{sTMP+1}, 65536")
    a(f"s_cmp_lt_u32 s28, 2")
    a(f"s_cselect_b32 s{sTMP+1}, s{sTMP+1}, {WS_END}")
    a(f"buffer_load_dword v127, v{vDUM}, {sr(sWS,4)}, s{sTMP+1} offen")

def k2(a):
    ECOPY = "ecopy" in OPT
    a.raw(".p2align 8")
    a.raw(".type egc_main_kernel,@function")
    a.label("egc_main_kernel")
    a(f"s_cmp_ge_u32 s2, {NB}")
    a("s_cbranch_scc1 K2_EXIT")
    diag_mark(a, 0, True, 0)
    stamp(a, 0)
    if "stamp" in OPT:
        a("s_memrealtime s[80:81]")
        a("s_waitcnt lgkmcnt(0)")
    a("s_load_dwordx4 s[4:7], s[0:1], 0")
    a("s_load_dwordx2 s[8:9], s[0:1], 56")
    a("s_load_dwordx2 s[10:11], s[0:1], 72")
    a("v_lshrrev_b32 v1, 6, v0")
    a("v_lshlrev_b32 v3, 4, v0")
    a("s_and_b32 s46, s2, 7")
    a("v_readfirstlane_b32 s28, v1")
    a("s_lshr_b32 s47, s2, 3")
    a("s_sub_u32 s48, s46, 2")
    a("s_max_i32 s48, s48, 0")
    a("s_lshl_b32 s46, s46, 5")
    a("s_sub_u32 s46, s46, s48")
    a(f"s_add_u32 s{sBIN}, s46, s47")
    a(f"v_and_b32 v{vCS}, 0x3f0, v3")
    a("v_mov_b32 v8, v3")
    a(f"v_bfe_u32 v9, v{vCS}, 4, 4")
    a(f"v_lshrrev_b32 v10, 8, v{vCS}")
    a(f"v_lshlrev_b32 v{vJ16}, 4, v9")
    a(f"v_lshlrev_b32 v{vQ16}, 4, v10")
    a(f"v_lshl_add_u32 v{vK66}, v9, 5, v{vQ16}")
    a(f"v_and_b32 v{vH16}, 16, v{vCS}")
    a(f"v_lshrrev_b32 v{vLH}, 5, v{vCS}")
    a(f"s_mov_b64 {sr(sLO,2)}, 0xffffffff")
    a(f"s_mov_b32 s{sHI}, 0")
    a(f"s_mov_b32 s{sHI+1}, -1")
    a(f"s_mov_b32 s{sCC}, {hex(C_2MK)}")
    a(f"s_mov_b32 s{sCC+1}, {hex(C_2MK)}")
    a(f"s_mov_b32 s{sWIN}, 0")
    a(f"s_mov_b32 s{sE2}, {E2_OFF if ECOPY else 0}")
    a("s_cmp_ge_u32 s28, 8")
    a("s_cbranch_scc1 K2_G")
    vW = 12; vOA = 13; vOf = 14
    vC = 32; vSub = 33; vWb = 34; vEA = 35; vPw = 36; vKB = 37; vSg = 39; vEB = 38
    EN = 56
    a("v_mov_b32 v15, 0")
    a("v_lshrrev_b32 v16, 2, v8")
    a("v_cmp_gt_u32 vcc, 128, v0")
    a(f"v_lshrrev_b32 v{vW}, 1, v0")
    a("s_and_saveexec_b64 s[54:55], vcc")
    a(f"ds_write_b32 v16, v15 offset:{L_CNT}")
    a("s_mov_b64 exec, -1")
    a(f"v_lshlrev_b32 v{vOA}, 10, v{vW}")
    a(f"s_lshl_b32 s{sTMP}, s{sBIN}, 2")
    a(f"s_add_u32 s{sTMP}, s{sTMP}, {OFFS_OFF}")
    a(f"s_mov_b32 s{sTMP+4}, {ENT_OFF}")
    a(f"v_and_b32 v{vSub}, 1, v0")
    a(f"v_mul_u32_u24 v{vSg}, {CE}, v{vW}")
    a("s_waitcnt lgkmcnt(0)")
    srd(a, sWS, 10, WS_END)
    a(f"buffer_load_dword v{vOf}, v{vOA}, {sr(sWS,4)}, s{sTMP} offen")
    a("s_barrier")
    a(f"v_cmp_gt_u32 vcc, 250, v{vW}")
    a(f"v_cmp_eq_u32 s[54:55], 0, v{vSub}")
    a(f"v_mov_b32 v16, {L_TOT}")
    if not ECOPY: a(f"v_mul_u32_u24 v{vWb}, {CE*32}, v{vW}")
    a(f"v_mov_b32 v{vKB}, 0")
    srd(a, sE, 6, E * 32)
    srd(a, sO, 8, N * 256)
    a("s_waitcnt vmcnt(0)")
    a(f"v_lshrrev_b32 v{vC}, 16, v{vOf}")
    a(f"v_and_b32 v{vOf}, 0xffff, v{vOf}")
    a(f"v_cndmask_b32 v{vC}, 0, v{vC}, vcc")
    a(f"v_add_u32 v{vSg}, v{vSg}, v{vOf}")
    def entry_addr():
        a(f"v_lshlrev_b32 v{vEB}, 2, v{vSg}")
        a(f"v_lshl_add_u32 v{vEA}, v{vSub}, 5, v{vEB}")
        a(f"v_lshl_add_u32 v{vEB}, v{vSub}, 3, v{vEB}")
    def entry_loads(soff):
        a(f"buffer_load_dwordx4 {vr(EN,4)}, v{vEA}, {sr(sWS,4)}, s{soff} offen")
        a(f"buffer_load_dwordx4 {vr(EN+4,4)}, v{vEA}, {sr(sWS,4)}, s{soff} offen offset:16")
        a(f"buffer_load_dwordx2 {vr(EN+8,2)}, v{vEB}, {sr(sWS,4)}, s{soff} offen offset:64")
    entry_addr()
    entry_loads(sTMP+4)
    stamp(a, 1)
    a("s_mov_b64 exec, s[54:55]")
    a(f"ds_add_rtn_u32 v{vPw}, v16, v{vC}")
    a("s_mov_b64 exec, -1")
    a("s_barrier")
    a("s_waitcnt lgkmcnt(0)")
    a(f"v_mov_b32_dpp v{vPw}, v{vPw} quad_perm:[0,0,2,2] row_mask:0xf bank_mask:0xf")
    a("s_nop 0")
    a(f"v_mov_b32 v121, v{vPw}")
    a("s_waitcnt vmcnt(0)")
    a.label("K2_WINDOW")
    vKE = 66; vRA = 67
    a(f"s_add_u32 s{sTMP}, s{sWIN}, {CAPE}")
    a(f"v_sub_u32 v{vKE}, s{sTMP}, v{vPw}")
    a(f"v_min_i32 v{vKE}, v{vKE}, v{vC}")
    if ECOPY:
        a(f"v_sub_u32 v{vWb}, v{vSg}, v{vPw}")
        a(f"v_add_lshl_u32 v{vWb}, v{vWb}, s{sWIN}, 5")
    a.label("K2_COPY")
    a(f"v_add_u32 v{vRA}, v{vPw}, v{vKB}")
    a(f"v_subrev_u32 v{vRA}, s{sWIN}, v{vRA}")
    a(f"v_sub_u32 v68, v{vKE}, v{vKB}")
    a(f"v_lshlrev_b32 v69, 3, v{vSub}")
    a("v_sub_u32 v70, v68, v69")
    a(f"v_add_lshl_u32 v69, v{vRA}, v69, 3")
    a(f"v_add_u32 v69, {L_RAW}, v69")
    a(f"v_lshlrev_b32 v71, 1, v{vSub}")
    a("v_sub_u32 v68, v68, v71")
    a(f"v_add_lshl_u32 v71, v{vRA}, v71, 3")
    a(f"v_add_u32 v71, {L_RAW + 128}, v71")
    for i in range(8):
        a(f"v_cmp_lt_i32 vcc, {i}, v70")
        a("s_and_b64 exec, exec, vcc")
        a("s_cbranch_execz K2_CPA")
        a(f"ds_write2_b32 v69, v{EN+i}, v{vWb} offset0:{2*i} offset1:{2*i+1}")
    a.label("K2_CPA")
    a("s_mov_b64 exec, -1")
    for i in range(2):
        a(f"v_cmp_lt_i32 vcc, {16+i}, v68")
        a("s_and_b64 exec, exec, vcc")
        a("s_cbranch_execz K2_CPB")
        a(f"ds_write2_b32 v71, v{EN+8+i}, v{vWb} offset0:{2*i} offset1:{2*i+1}")
    a.label("K2_CPB")
    a("s_mov_b64 exec, -1")
    a(f"v_add_u32 v{vKB}, 20, v{vKB}")
    a(f"v_cmp_lt_i32 vcc, v{vKB}, v{vKE}")
    a("s_cmp_eq_u64 vcc, 0")
    a("s_cbranch_scc1 K2_COPIED")
    a(f"v_add_u32 v{vEA}, 80, v{vEA}")
    a(f"v_add_u32 v{vEB}, 80, v{vEB}")
    a(f"s_mov_b32 s{sTMP+4}, {ENT_OFF}")
    entry_loads(sTMP+4)
    a("s_waitcnt vmcnt(0)")
    a("s_branch K2_COPY")
    a.label("K2_COPIED")
    if "pfB" in OPT: table_prefetch(a)
    a(f"v_mov_b32 v70, {L_TOT}")
    a("s_waitcnt lgkmcnt(0)")
    a("s_barrier")
    stamp(a, 2)
    a("ds_read_b32 v70, v70")
    if "nopf" not in OPT and "pfA" not in OPT and "pfB" not in OPT: table_prefetch(a)
    RE = 56
    ND = 62; RK = 65
    a("v_lshlrev_b32 v68, 3, v0")
    a(f"v_add_u32 v68, {L_RAW}, v68")
    for i in range(3):
        a(f"ds_read_b64 {P2(RE+2*i)}, v68 offset:{4096*i}")
    a("v_mov_b32 v69, 1")
    a("s_waitcnt lgkmcnt(3)")
    a(f"v_readfirstlane_b32 s{sTOT}, v70")
    a("v_add_u32 v71, 512, v0")
    a("v_add_u32 v72, 1024, v0")
    a(f"s_sub_u32 s{sTMP}, s{sTOT}, s{sWIN}")
    a(f"s_min_u32 s{sTMP}, s{sTMP}, {CAPE}")
    a(f"v_cmp_gt_u32 {sr(sM,2)}, s{sTMP}, v0")
    a(f"v_cmp_gt_u32 {sr(sM+2,2)}, s{sTMP}, v71")
    a(f"v_cmp_gt_u32 {sr(sM+4,2)}, s{sTMP}, v72")
    for i in range(3):
        l = lab("K2_RK")
        a(f"s_waitcnt lgkmcnt({2-i if i == 0 else 0})" if i == 0 else "s_waitcnt lgkmcnt(0)" if i == 1 else "")
        a(f"v_bfe_u32 v{ND+i}, v{RE+2*i}, 14, 6")
        a(f"v_lshlrev_b32 v{ND+i}, 2, v{ND+i}")
        a(f"s_mov_b64 exec, {sr(sM+2*i,2)}")
        a(f"s_cbranch_execz {l}")
        a(f"ds_add_rtn_u32 v{RK+i}, v{ND+i}, v69 offset:{L_CNT}")
        a.label(l)
        a("s_mov_b64 exec, -1")
    a(f"v_lshrrev_b32 v68, 2, v{vCS}")
    a(f"v_mov_b32 v80, {L_FLAG}")
    for i in range(3):
        e = RE + 2*i
        if ECOPY:
            a(f"v_lshl_add_u32 v{e+1}, v0, 5, v{e+1}")
            if i: a(f"v_add_u32 v{e+1}, {512*32*i}, v{e+1}")
        else:
            a(f"v_lshrrev_b32 v70, 20, v{e}")
            a(f"v_lshl_add_u32 v{e+1}, v70, 5, v{e+1}")
        a(f"v_and_b32 v{e}, 0x3fff, v{e}")
        a(f"v_lshlrev_b32 v{e}, 8, v{e}")
    a("s_waitcnt lgkmcnt(0)")
    a("s_barrier")
    stamp(a, 3)
    a(f"ds_read_b32 v69, v68 offset:{L_CNT}")
    a("ds_read_b32 v80, v80")
    a("s_waitcnt lgkmcnt(0)")
    a(f"v_readfirstlane_b32 s{sFLAG}, v80")
    a("v_add_u32 v70, 3, v69")
    a("v_and_b32 v70, -4, v70")
    a("v_mov_b32 v71, v70")
    wave_scan(a, 71)
    a("v_sub_u32 v72, v71, v70")
    a("s_nop 0")
    a(f"v_readlane_b32 s{sNIT}, v71, 63")
    for i in range(3):
        a(f"ds_bpermute_b32 v{73+i}, v{ND+i}, v72")
    for i in range(3):
        a(f"v_lshlrev_b32 v{ND+i}, 7, v{ND+i}")
    for i in range(3):
        e = RE + 2*i
        l = lab("K2_PL")
        a(f"s_waitcnt lgkmcnt({2-i})" if i == 0 else "s_waitcnt lgkmcnt(0)" if i == 1 else "")
        a(f"s_mov_b64 exec, {sr(sM+2*i,2)}")
        a(f"s_cbranch_execz {l}")
        a(f"v_add_u32 v{73+i}, v{73+i}, v{RK+i}")
        a(f"v_and_b32 v{RK+i}, 3, v{RK+i}")
        a(f"v_lshlrev_b32 v76, 2, v{73+i}")
        a(f"v_cmp_eq_u32 vcc, 0, v{RK+i}")
        a(f"ds_write_b32 v76, v{e} offset:{L_ROW}")
        a(f"ds_write_b32 v76, v{e+1} offset:{L_EO}")
        a("s_and_b64 exec, exec, vcc")
        a(f"s_cbranch_execz {l}")
        a(f"ds_write_b32 v76, v{ND+i} offset:{L_GN + 8}")
        a(f"s_cmp_eq_u32 s{sFLAG}, 0")
        a(f"s_cbranch_scc1 {l}")
        a(f"v_and_b32 v77, 0xffffffc0, v76")
        a(f"v_bfe_u32 v{RK+i}, v76, 5, 1")
        a(f"v_lshl_add_u32 v77, v{RK+i}, 4, v77")
        a(f"v_bfe_u32 v{RK+i}, v76, 4, 1")
        a(f"v_lshl_add_u32 v77, v{RK+i}, 2, v77")
        a(f"ds_write_b32 v77, v{ND+i} offset:{L_GN + 32}")
        a.label(l)
        a("s_mov_b64 exec, -1")
    a(f"s_add_u32 s{sTMP}, s{sNIT}, 15")
    a(f"s_lshr_b32 s{sTMP+1}, s{sTMP}, 4")
    a("s_cmp_ge_u32 s28, 2")
    a("s_cbranch_scc1 K2_NOTAIL")
    a(f"v_mov_b32 v78, {N*256}")
    a("v_mov_b32 v79, 0")
    a("s_cmp_eq_u32 s28, 0")
    a("s_cbranch_scc0 K2_NOPAD")
    a(f"v_mov_b32 v76, s{sTMP+1}")
    a(f"v_mov_b32 v77, {L_TILES}")
    a("ds_write_b32 v77, v76")
    a("v_add_u32 v76, v72, v69")
    for m in range(3):
        a("v_cmp_lt_u32 vcc, v76, v71")
        a("s_and_b64 exec, exec, vcc")
        a(f"s_cbranch_execz K2_NOTAIL")
        a("v_lshlrev_b32 v77, 2, v76")
        a(f"ds_write_b32 v77, v78 offset:{L_ROW}")
        a(f"ds_write_b32 v77, v79 offset:{L_EO}")
        a("v_add_u32 v76, 1, v76")
    a("s_branch K2_NOTAIL")
    a.label("K2_NOPAD")
    a(f"v_lshrrev_b32 v76, 4, v{vCS}")
    a(f"v_add_u32 v76, s{sNIT}, v76")
    a(f"s_lshl_b32 s{sTMP+2}, s{sTMP+1}, 4")
    a(f"v_cmp_gt_u32 vcc, s{sTMP+2}, v76")
    a("s_and_b64 exec, exec, vcc")
    a("s_cbranch_execz K2_NOTAIL")
    a("v_lshlrev_b32 v77, 2, v76")
    a(f"ds_write_b32 v77, v78 offset:{L_ROW}")
    a(f"ds_write_b32 v77, v79 offset:{L_EO}")
    a("v_and_b32 v76, 3, v76")
    a("v_cmp_eq_u32 vcc, 0, v76")
    a("s_and_b64 exec, exec, vcc")
    a("s_cbranch_execz K2_NOTAIL")
    a(f"ds_write_b32 v77, v79 offset:{L_GN + 8}")
    a(f"v_and_b32 v76, 0xffffffc0, v77")
    a("v_bfe_u32 v78, v77, 5, 1")
    a("v_lshl_add_u32 v76, v78, 4, v76")
    a("v_bfe_u32 v78, v77, 4, 1")
    a("v_lshl_add_u32 v76, v78, 2, v76")
    a(f"ds_write_b32 v76, v79 offset:{L_GN + 32}")
    a.label("K2_NOTAIL")
    a("s_mov_b64 exec, -1")
    a("s_waitcnt lgkmcnt(0)")
    a("s_barrier")
    a("s_branch K2_JOIN")
    a.label("K2_G")
    WP = 8; WU = 24; ACP = 56; ACU = 104; XR = 56; CR = 64
    AFS = [40, 68, 84]
    g2, g4, g5, g6, g7, g1, g3 = 100, 101, 102, 103, 121, 122, 123
    a(f"v_subrev_u32 v{g2}, 0x2000, v8")
    a(f"v_mov_b32 v{g7}, v9")
    a(f"v_mov_b32 v{g6}, v10")
    a(f"s_sub_u32 s{sTMP+6}, s28, 8")
    a(f"s_mul_i32 s{sTMP+1}, s{sBIN}, {NPB*256}")
    a(f"s_add_u32 s{sTMP+2}, s{sTMP+1}, 8192")
    a(f"s_mov_b32 s{sTMP+3}, {CF_OFF}")
    a(f"s_mov_b32 s{sTMP+4}, {CF_OFF + 8192}")
    a(f"s_lshl_b32 s{sTMP+5}, s{sTMP+6}, 12")
    a(f"s_add_u32 s{sTMP+5}, s{sTMP+5}, {WF_OFF}")
    a(f"v_lshrrev_b32 v{g4}, 8, v{g2}")
    a(f"v_mul_u32_u24 v{g4}, 272, v{g4}")
    a(f"v_lshl_add_u32 v{g4}, v{g7}, 4, v{g4}")
    a(f"v_add_u32 v{g4}, {L_XS}, v{g4}")
    a(f"v_cmp_gt_u32 vcc, 0x1000, v{g2}")
    a("s_waitcnt lgkmcnt(0)")
    srd(a, sX, 4, N * 256)
    a(f"buffer_load_dwordx4 {vr(XR,4)}, v{g2}, {sr(sX,4)}, s{sTMP+1} offen")
    a(f"buffer_load_dwordx4 {vr(XR+4,4)}, v{g2}, {sr(sX,4)}, s{sTMP+2} offen")
    srd(a, sWS, 10, WS_END)
    a(f"buffer_load_dwordx4 {vr(CR,4)}, v{g2}, {sr(sWS,4)}, s{sTMP+3} offen")
    a(f"buffer_load_dwordx4 {vr(CR+4,4)}, v{vCS}, {sr(sWS,4)}, s{sTMP+4} offen")
    a("s_barrier")
    srd(a, sE, 6, E * 32)
    srd(a, sO, 8, N * 256)
    a("s_waitcnt vmcnt(3)")
    gstamp(a, 1)
    a(f"ds_write_b128 v{g4}, {vr(XR,4)}")
    a("s_and_saveexec_b64 s[54:55], vcc")
    a("s_waitcnt vmcnt(2)")
    a(f"ds_write_b128 v{g4}, {vr(XR+4,4)} offset:{32*272}")
    a("s_mov_b64 exec, -1")
    a("s_waitcnt vmcnt(1)")
    a(f"ds_write_b128 v{g2}, {vr(CR,4)} offset:{L_CS}")
    a("s_waitcnt vmcnt(0)")
    a(f"s_cmp_eq_u32 s{sTMP+6}, 0")
    a("s_cbranch_scc0 K2_NOA")
    a(f"ds_write_b128 v{vCS}, {vr(CR+4,4)} offset:{L_CS+8192}")
    a.label("K2_NOA")
    a(f"v_mul_u32_u24 v{g4}, 272, v{g7}")
    a(f"v_lshl_add_u32 v{g4}, v{g6}, 4, v{g4}")
    a(f"v_add_u32 v{g4}, {L_XS}, v{g4}")
    a("s_waitcnt lgkmcnt(0)")
    gstamp(a, 2)
    a("s_barrier")
    gstamp(a, 3)
    for ks in range(4):
        a(f"buffer_load_dwordx4 {vr(WP+4*ks,4)}, v{vCS}, {sr(sWS,4)}, s{sTMP+5} offen offset:{1024*ks}")
    a(f"s_add_u32 s{sTMP+5}, s{sTMP+5}, 32768")
    for ks in range(4):
        a(f"buffer_load_dwordx4 {vr(WU+4*ks,4)}, v{vCS}, {sr(sWS,4)}, s{sTMP+5} offen offset:{1024*ks}")
    for rho in range(3):
        for ks in range(4):
            a(f"ds_read_b128 {vr(AFS[rho]+4*ks,4)}, v{g4} offset:{rho*16*272 + ks*64}")
    a(f"v_lshlrev_b32 v{g5}, 11, v{g6}")
    a(f"v_lshl_add_u32 v{g5}, v{g7}, 2, v{g5}")
    a(f"s_lshl_b32 s{sTMP}, s{sTMP+6}, 6")
    a(f"v_add_u32 v{g5}, s{sTMP}, v{g5}")
    a(f"v_mov_b32 v{g1}, {L_TOT}")
    a(f"s_mov_b32 s{sTMP}, {hex(NEG_LOG2E)}")
    a(f"s_mov_b32 s{sTMP+1}, {hex(f2u(P_RANGE / 1.4426950408889634))}")
    a(f"v_lshlrev_b32 v{g4}, 1, v{g5}")
    a(f"v_add_u32 v{g4}, {L_AGG}, v{g4}")
    a(f"s_and_b32 s{sTMP+2}, s{sTMP+6}, 3")
    a(f"s_lshl_b32 s{sTMP+2}, s{sTMP+2}, 1")
    a(f"s_lshr_b32 s{sTMP+3}, 0x72, s{sTMP+2}")
    a(f"s_and_b32 s{sTMP+3}, s{sTMP+3}, 3")
    a(f"s_lshl_b32 s{sTMP+3}, s{sTMP+3}, 2")
    a(f"s_lshr_b32 s{sTMP+2}, s{sTMP+6}, 2")
    a(f"s_lshl_b32 s{sTMP+2}, s{sTMP+2}, 8")
    a(f"s_add_u32 s{sTMP+3}, s{sTMP+2}, s{sTMP+3}")
    a(f"v_lshlrev_b32 v127, 11, v{g6}")
    a(f"v_lshl_add_u32 v127, v{g7}, 4, v127")
    a(f"v_add_u32 v127, s{sTMP+3}, v127")
    a("s_barrier")
    a(f"ds_read_b32 v{g1}, v{g1}")
    a("s_waitcnt vmcnt(0)")
    gstamp(a, 4)
    for rho in range(3):
        AF = AFS[rho]
        a("s_waitcnt lgkmcnt(1)" if rho == 0 else "")
        for ks in range(4):
            c = "0" if ks == 0 else vr(ACP+4*rho, 4)
            a(f"v_mfma_f32_16x16x32_bf16 {vr(ACP+4*rho,4)}, {vr(AF+4*ks,4)}, {vr(WP+4*ks,4)}, {c}")
    for rho in range(3):
        AF = AFS[rho]
        for ks in range(4):
            c = "0" if ks == 0 else vr(ACU+4*rho, 4)
            a(f"v_mfma_f32_16x16x32_bf16 {vr(ACU+4*rho,4)}, {vr(AF+4*ks,4)}, {vr(WU+4*ks,4)}, {c}")
    a("s_waitcnt lgkmcnt(0)")
    a(f"v_readfirstlane_b32 s{sTOT}, v{g1}")
    a(f"v_max3_f32 v{g1}, |v{ACP}|, |v{ACP+1}|, |v{ACP+2}|")
    for i in range(3, 11, 2):
        a(f"v_max3_f32 v{g1}, |v{ACP+i}|, |v{ACP+i+1}|, v{g1}")
    a(f"v_max_f32_e64 v{g1}, |v{ACP+11}|, v{g1}")
    a(f"v_mov_b32 v{g2}, {L_FLAG}")
    a(f"v_cmp_nge_f32 vcc, s{sTMP+1}, v{g1}")
    a(f"v_mov_b32 v{g3}, 1")
    if "nov5" in OPT: a("s_mov_b64 vcc, -1")
    a("s_and_saveexec_b64 s[54:55], vcc")
    a("s_cbranch_execz K2_NOFLAG")
    a(f"ds_write_b32 v{g2}, v{g3}")
    a.label("K2_NOFLAG")
    a("s_mov_b64 exec, -1")
    for rho in range(3):
        if rho == 2: a(f"s_mov_b64 exec, {sr(sLO,2)}")
        for r in range(4):
            a(f"v_cvt_f64_f32 {P2(AFS[rho]+2*r)}, v{ACU+4*rho+r}")
        for r in range(4):
            a(f"ds_write_b64 v{g4}, {P2(AFS[rho]+2*r)} offset:{rho*16384 + r*1024}")
    a("s_mov_b64 exec, -1")
    a(f"v_mov_b32 v{g3}, {hex(f2u(-float(KSH)))}")
    a("s_waitcnt lgkmcnt(0)")
    gstamp(a, 5)
    a("s_barrier")
    a(f"ds_read_b32 v{g2}, v{g2}")
    a("s_waitcnt lgkmcnt(0)")
    a(f"v_readfirstlane_b32 s{sTMP+2}, v{g2}")
    a("s_nop 3")
    a(f"s_cmp_lg_u32 s{sTMP+2}, 0")
    a("s_cbranch_scc1 K2_PADD")
    for i in range(12):
        a(f"v_fma_f32 v{ACP+i}, v{ACP+i}, s{sTMP}, v{g3}")
    for i in range(12):
        a(f"v_exp_f32 v{ACP+i}, v{ACP+i}")
    for rho in range(3):
        if rho == 2: a(f"s_mov_b64 exec, {sr(sLO,2)}")
        for r in range(4):
            a(f"ds_write_b32 v127, v{ACP+4*rho+r} offset:{L_PPK + rho*8192 + r*512}")
    a("s_branch K2_PDONE")
    a.label("K2_PADD")
    for i in range(12):
        a(f"v_mul_f32 v{ACP+i}, s{sTMP}, v{ACP+i}")
    for i in range(12):
        a(f"v_cvt_pk_bf16_f32 v{ACP+i}, v{ACP+i}, 0")
    for rho in range(3):
        if rho == 2: a(f"s_mov_b64 exec, {sr(sLO,2)}")
        for r in range(4):
            a(f"ds_write_b32 v{g5}, v{ACP+4*rho+r} offset:{L_PPK + rho*8192 + r*512}")
    a.label("K2_PDONE")
    a("s_mov_b64 exec, -1")
    a("s_waitcnt lgkmcnt(0)")
    gstamp(a, 6)
    a("s_barrier")
    a("s_branch K2_JOIN")
    a.label("K2_G_WINDOW")
    a("s_barrier")
    a("s_barrier")
    a("s_barrier")
    a.label("K2_JOIN")
    stamp(a, 4)
    a("s_cmp_eq_u32 s28, 0")
    a("s_cbranch_scc0 K2_NOZ2")
    a(f"v_lshrrev_b32 v68, 2, v{vCS}")
    a("v_mov_b32 v69, 0")
    a(f"ds_write_b32 v68, v69 offset:{L_CNT}")
    a("s_waitcnt lgkmcnt(0)")
    a.label("K2_NOZ2")
    a(f"v_mov_b32 v70, {L_TILES}")
    a("ds_read_b64 v[70:71], v70")
    for t in range(4):
        a(f"ds_read_b128 {vr(B+4*t,4)}, v{vCS} offset:{L_CS + 1024*t}")
    a(f"ds_read_b128 {vr(A,4)}, v{vCS} offset:{L_CS + 8192}")
    a(f"v_lshrrev_b32 v{vJ4}, 2, v{vJ16}")
    a(f"v_mov_b32 v{vJ16h}, v{vJ16}")
    a("s_waitcnt lgkmcnt(5)")
    a(f"v_readfirstlane_b32 s{sTMP+1}, v70")
    a(f"v_readfirstlane_b32 s{sFLAG}, v71")
    a(f"s_lshr_b32 s{sTMP+2}, s{sTMP+1}, 4")
    a(f"s_and_b32 s{sTMP+3}, s{sTMP+1}, 15")
    a(f"s_cmp_lt_u32 s28, s{sTMP+3}")
    a(f"s_cselect_b32 s{sL}, 1, 0")
    a(f"s_add_u32 s{sL}, s{sL}, s{sTMP+2}")
    a(f"s_mul_i32 s{sTMP+2}, s{sTMP+2}, s28")
    a(f"s_min_u32 s{sTMP+3}, s{sTMP+3}, s28")
    a(f"s_add_u32 s{sTMP+2}, s{sTMP+2}, s{sTMP+3}")
    a(f"s_lshl_b32 s{sNIT}, s{sL}, {2 if 'dbl' in OPT else 1}")
    a(f"s_cmp_eq_u32 s{sL}, 0")
    a("s_cbranch_scc1 K2_LOOP_DONE")
    if "noprio" not in OPT: a("s_setprio 3")
    a(f"s_lshl_b32 s{sTMP+4}, s{sTMP+2}, 4")
    a(f"v_add_lshl_u32 v{vTd}, v{vLH}, s{sTMP+4}, 2")
    a(f"s_lshl_b32 s{sM0}, s{sTMP+2}, 9")
    a(f"s_add_u32 s{sM0}, s{sM0}, {L_ES}")
    a(f"v_add_u32 v{vTe0}, s{sM0}, v{vK66}")
    a(f"s_lshl_b32 s{sTMP+4}, s{sTMP+2}, 6")
    a(f"v_add_u32 v{vTa0}, s{sTMP+4}, v{vQ16}")
    a(f"s_mov_b32 s{sDI}, 0")
    a(f"s_mov_b32 s{sN}, 0")
    a(f"s_mov_b32 s{sLI}, 0")
    a(f"s_mov_b32 s{sAI}, 0")
    a(f"s_mov_b32 s{sHL}, 0")
    a(f"s_mov_b32 s{sINCP}, 64")
    a(f"s_mov_b32 s{sINCP+1}, 512")
    a(f"s_sub_i32 s{sLM3}, s{sL}, 3")
    a(f"s_sub_u32 s{sNM2}, s{sNIT}, 2")
    eo_read(a)
    a(f"v_mov_b32 v{vTa}, v{vTa0}")
    a(f"v_mov_b32 v{vTe}, v{vTe0}")
    a("s_waitcnt lgkmcnt(0)")
    e_dma(a)
    a(f"s_cmp_lt_u32 s{sDI}, s{sL}")
    a("s_cbranch_scc0 K2_ND1")
    eo_read(a)
    a("s_waitcnt lgkmcnt(0)")
    e_dma(a)
    eo_read(a)
    a.label("K2_ND1")
    a(f"s_cmp_lg_u32 s{sFLAG}, 0")
    a("s_cbranch_scc1 K2_SETUP_ADD")
    for v5 in (True, False):
        sfx = "F" if v5 else "A"
        if v5:
            for i in range(4): a(f"v_mov_b32 v{A+i}, 0")
        else:
            a.label("K2_SETUP_ADD")
        list_reads(a, v5)
        a(f"v_add_u32 v{vTa}, 64, v{vTa}")
        a("s_waitcnt lgkmcnt(0)")
        gather_stage(a, QH[0])
        for i in range(3):
            if not v5 or i == 2: a(f"v_mov_b32 v{EP+i}, v{G+i}")
        list_reads(a, v5)
        a(f"v_add_u32 v{vTa}, 64, v{vTa}")
        a("s_waitcnt lgkmcnt(0)")
        gather_stage(a, QH[1])
        if v5: stamp(a, 5)
        a("s_waitcnt vmcnt(8)")
        ap_stage(a, vGS[0], v5, EP)
        if v5: ep_read(a)
        a(f"v_add_u32 v{vTe}, 512, v{vTe}")
        a("s_waitcnt lgkmcnt(0)")
        a.label(f"K2_LOOP{sfx}")
        for k in range(3):
            tile_body(a, k, v5, "K2_LOOP_DONE")
        a(f"s_branch K2_LOOP{sfx}")
        for blk in deferred: blk()
        deferred.clear()
    a.label("K2_LOOP_DONE")
    a("s_setprio 0")
    a("s_waitcnt vmcnt(0)")
    if "pstamp" not in OPT: stamp(a, 6)
    a("s_waitcnt lgkmcnt(0)")
    a("s_barrier")
    a(f"s_add_u32 s{sWIN}, s{sWIN}, {CAPE}")
    a(f"s_cmp_lt_u32 s{sWIN}, s{sTOT}")
    a("s_cbranch_scc0 K2_EPI")
    a("s_cmp_ge_u32 s28, 8")
    a("s_cbranch_scc1 K2_G_WINDOW")
    a(f"v_lshrrev_b32 v{vW}, 1, v0")
    a(f"v_lshlrev_b32 v{vOA}, 10, v{vW}")
    a(f"s_lshl_b32 s{sTMP}, s{sBIN}, 2")
    a(f"s_add_u32 s{sTMP}, s{sTMP}, {OFFS_OFF}")
    a(f"buffer_load_dword v{vOf}, v{vOA}, {sr(sWS,4)}, s{sTMP} offen")
    a(f"v_and_b32 v{vSub}, 1, v0")
    a(f"v_mul_u32_u24 v{vSg}, {CE}, v{vW}")
    a(f"v_cmp_gt_u32 vcc, 250, v{vW}")
    a(f"v_mov_b32 v{vPw}, v121")
    if not ECOPY: a(f"v_mul_u32_u24 v{vWb}, {CE*32}, v{vW}")
    a("s_waitcnt vmcnt(0)")
    a(f"v_lshrrev_b32 v{vC}, 16, v{vOf}")
    a(f"v_and_b32 v{vOf}, 0xffff, v{vOf}")
    a(f"v_cndmask_b32 v{vC}, 0, v{vC}, vcc")
    a(f"v_add_u32 v{vSg}, v{vSg}, v{vOf}")
    a(f"v_sub_u32 v{vKB}, s{sWIN}, v{vPw}")
    a(f"v_max_i32 v{vKB}, 0, v{vKB}")
    entry_addr()
    a(f"v_lshl_add_u32 v{vEA}, v{vKB}, 2, v{vEA}")
    a(f"v_lshl_add_u32 v{vEB}, v{vKB}, 2, v{vEB}")
    a(f"s_mov_b32 s{sTMP+4}, {ENT_OFF}")
    entry_loads(sTMP+4)
    a("s_waitcnt vmcnt(0)")
    a("s_branch K2_WINDOW")
    a.label("K2_EPI")
    a("v_cmp_gt_u32 vcc, 640, v0")
    a("s_and_saveexec_b64 s[54:55], vcc")
    a("s_cbranch_execz K2_EXIT")
    a("v_lshlrev_b32 v1, 6, v0")
    for i in range(4):
        a(f"ds_read_b128 {vr(32+4*i,4)}, v1 offset:{L_AGG+16*i}")
    a(f"s_mov_b32 s{sTMP}, {hex(C_2MK)}")
    a(f"s_mov_b32 s{sTMP+1}, {hex(NEG_LOG2E)}")
    a("s_waitcnt lgkmcnt(0)")
    for i in range(8):
        a(f"v_cvt_f32_f64 v{8+i}, v[{32+2*i}:{33+2*i}]")
    a(f"s_mov_b32 s{sTMP+2}, {hex(f2u(-1.4426950408889634 * 2.0**-KSH))}")
    a(f"s_mov_b32 s{sTMP+3}, {hex(f2u(-1.4426950408889634 * 2.0**-KSH))}")
    a(f"s_mov_b32 s{sTMP+1}, {hex(C_2MK)}")
    a(f"s_mov_b32 s{sTMP+4}, 1.0")
    a(f"s_mov_b32 s{sTMP+5}, 1.0")
    for i in range(4):
        a(f"v_pk_mul_f32 {P2(16+2*i)}, {P2(8+2*i)}, s[{sTMP+2}:{sTMP+3}]")
    for i in range(4):
        a(f"v_pk_mul_f32 {P2(8+2*i)}, {P2(8+2*i)}, s[{sTMP}:{sTMP+1}]")
    for i in range(8):
        a(f"v_exp_f32 v{16+i}, v{16+i}")
    for i in range(4):
        a(f"v_pk_add_f32 {P2(16+2*i)}, {P2(16+2*i)}, s[{sTMP+4}:{sTMP+5}]")
    for i in range(8):
        a(f"v_rcp_f32 v{16+i}, v{16+i}")
    a("s_nop 0")
    for i in range(4):
        a(f"v_pk_mul_f32 {P2(8+2*i)}, {P2(8+2*i)}, {P2(16+2*i)}")
    for i in range(4):
        a(f"v_cvt_pk_bf16_f32 v{24+i}, v{8+2*i}, v{9+2*i}")
    a("v_lshlrev_b32 v2, 4, v0")
    a(f"s_mul_i32 s{sTMP}, s{sBIN}, {NPB*256}")
    a(f"buffer_store_dwordx4 v[24:27], v2, {sr(sO,4)}, s{sTMP} offen")
    if "diag" in OPT:
        a("s_waitcnt vmcnt(0)")
        diag_mark(a, 1, False, 0)
    if "stamp" in OPT:
        a("s_waitcnt vmcnt(0)")
        stamp(a, 7)
        a("s_memrealtime s[82:83]")
        a("s_waitcnt lgkmcnt(0)")
        stamp_out(a, 10)
    a.label("K2_EXIT")
    a("s_endpgm")

HEADER = f"""; EGC edge-gated message passing: out = silu(x@U + segsum_dst(sigmoid([x_dst,x_src,e]@G) * (x@V)[src]))
; launch 1 (prep): per-node tables Q'=-log2e*(x@B), H=x@V; edge binning by destination; weight fragment images
; @launch kernel=egc_prep_kernel grid=({K1_WGS},1,1) block=(256,1,1) lds={K1_LDS}
; @launch kernel=egc_main_kernel grid=({NB},1,1) block=(1024,1,1) lds={K2_LDS}
.amdgcn_target "amdgcn-amd-amdhsa--gfx950"
.text
"""

def kd(name, vgpr, sgpr, denorm=False):
    extra = "  .amdhsa_float_denorm_mode_32 3\n" if denorm else ""
    return f""".amdhsa_kernel {name}
  .amdhsa_next_free_vgpr {vgpr}
  .amdhsa_next_free_sgpr {sgpr}
  .amdhsa_accum_offset {((vgpr+3)//4)*4}
  .amdhsa_group_segment_fixed_size 0
  .amdhsa_kernarg_size 80
  .amdhsa_user_sgpr_count 2
  .amdhsa_user_sgpr_kernarg_segment_ptr 1
  .amdhsa_system_sgpr_workgroup_id_x 1
{extra}.end_amdhsa_kernel
"""

def k3(a, which):
    a.raw(".globl egc_diag_kernel")
    a.raw(".p2align 8")
    a.raw(".type egc_diag_kernel,@function")
    a.label("egc_diag_kernel")
    a("s_cmp_ge_u32 s2, 1")
    a("s_cbranch_scc1 K3_END")
    a("s_load_dwordx2 s[4:5], s[0:1], 64")
    a("s_waitcnt lgkmcnt(0)")
    a("s_sub_u32 s4, s4, 1024")
    a("s_subb_u32 s5, s5, 0")
    a("s_load_dwordx2 s[6:7], s[4:5], 0")
    a("s_load_dwordx2 s[8:9], s[4:5], 512")
    a("s_memrealtime s[10:11]")
    a("s_waitcnt lgkmcnt(0)")
    a("s_not_b32 s6, s6")
    a("s_not_b32 s8, s8")
    if which == 1: a("s_sub_u32 s12, s7, s6")
    if which == 2: a("s_sub_u32 s12, s8, s7")
    if which == 3: a("s_sub_u32 s12, s9, s8")
    if which == 4: a("s_sub_u32 s12, s10, s9")
    if which == 0: a("s_mov_b32 s12, 0")
    a("s_lshl_b32 s12, s12, 2")
    a("s_min_u32 s12, s12, 20000")
    a.label("K3_SPIN")
    a("s_memrealtime s[14:15]")
    a("s_waitcnt lgkmcnt(0)")
    a("s_sub_u32 s14, s14, s10")
    a("s_cmp_lt_u32 s14, s12")
    a("s_cbranch_scc1 K3_SPIN")
    a.label("K3_END")
    a("s_endpgm")

def main():
    a = Asm()
    a.raw(".globl egc_prep_kernel")
    k1(a)
    a.raw(".globl egc_main_kernel")
    k2(a)
    hdr = HEADER
    which = [int(o[4:]) for o in OPT if o.startswith("dsel")]
    if which:
        k3(a, which[0])
        hdr = hdr.replace(".amdgcn_target", "; @launch kernel=egc_diag_kernel grid=(1,1,1) block=(64,1,1) lds=0\n.amdgcn_target", 1)
    out = hdr + a.text()
    out += '.section .rodata,"a"\n.p2align 6\n' + kd("egc_prep_kernel", 144 if T128 else (104 if ("stamp1" in OPT or "diag" in OPT) else 96), 96) + ".p2align 6\n" + kd("egc_main_kernel", 128, 96, True) + (".p2align 6\n" + kd("egc_diag_kernel", 8, 32) if which else "")
    path = sys.argv[1] if len(sys.argv) > 1 else f"cdna_kernels/{NAME}.s"
    open(path, "w").write(out)
    print("wrote", path, len(out), "bytes")

if __name__ == "__main__":
    main()
```

```python
import sys, struct, os
OPT = set(os.environ.get("OPT","").split(","))

NAME = "gather_scatter__edge_featured_mpnn_egc__graph"
N = 10000; E = 320000
NB = 250; NPB = 40
NC = 250; CE = 1280
KSH = 26
def f2u(x): return struct.unpack('<I', struct.pack('<f', x))[0]
NEG_LOG2E = f2u(-1.4426950408889634)
C_2MK = f2u(2.0 ** -KSH)
C_2PK = f2u(2.0 ** KSH)
BF16_NEGK = 0xC1D0
assert KSH == 26

HALF_STRIDE = (N + 1) * 256
T_OFF = 0;            T_BYTES = 2 * HALF_STRIDE
ENT_OFF = 0x500000
OFFS_OFF = 0x640000
WF_OFF = 0x680000
CF_OFF = 0x690000
E2_OFF = 0x800000
WS_END = 0x1200000

K1_BLOCK = 512
NT_WG = 158
NBIN_WG = NC // 2
BIN0 = NT_WG
WF0 = BIN0 + NBIN_WG
CF0 = WF0 + 4
K1_WGS = CF0 + 1
K1_LDS = 128 * 288

class Asm:
    def __init__(self): self.lines = []
    def __call__(self, s):
        for l in s.split("\n"):
            l = l.strip()
            if l: self.lines.append("    " + l)
    def label(self, n): self.lines.append(n + ":")
    def raw(self, s): self.lines.append(s)
    def text(self): return "\n".join(self.lines) + "\n"

def vr(i, n=1): return f"v{i}" if n == 1 else f"v[{i}:{i+n-1}]"
def sr(i, n=1): return f"s{i}" if n == 1 else f"s[{i}:{i+n-1}]"

def srd(a, d, base, nbytes):
    a(f"s_mov_b32 s{d}, s{base}")
    a(f"s_and_b32 s{d+1}, s{base+1}, 0xffff")
    a(f"s_mov_b32 s{d+2}, {nbytes}")
    a(f"s_mov_b32 s{d+3}, 0x00020000")

def stamp1(a, i):
    if "stamp1" in OPT:
        a(f"s_memrealtime s[{64+2*i}:{65+2*i}]")
        a("s_waitcnt lgkmcnt(0)")
def stamp1_out(a, n, ws_srd, wgreg, lbl):
    if "stamp1" in OPT:
        a("s_waitcnt vmcnt(0)")
        stamp1(a, n-1)
        a("v_readfirstlane_b32 s60, v0")
        a("s_cmp_eq_u32 s60, 0")
        a(f"s_cbranch_scc0 {lbl}")
        a(f"s_mov_b32 s{ws_srd+2}, 0x1400000")
        for i in range(n):
            a(f"v_mov_b32 v100, s{64+2*i}")
            a(f"v_mov_b32 v101, s{65+2*i}")
            a(f"s_lshl_b32 s60, s{wgreg}, 7")
            a(f"s_add_u32 s60, s60, {0x1310000 + 8*i}")
            a("v_mov_b32 v102, 0")
            a(f"buffer_store_dwordx2 v[100:101], v102, s[{ws_srd}:{ws_srd+3}], s60 offen")
            a("s_nop 1")
        a.label(lbl)

def diag_mark(a, slot, inv, dbgreg):
    if "diag" not in OPT: return
    dl = f"DIAG_{slot}_{len(a.lines)}"
    a("s_and_b32 s84, s2, 15")
    a("s_cmp_eq_u32 s84, 0")
    a(f"s_cbranch_scc0 {dl}")
    a("v_mbcnt_lo_u32_b32 v98, -1, 0") if False else None
    a("v_readfirstlane_b32 s84, v0")
    a("s_nop 3")
    a("s_cmp_lt_u32 s84, 64")
    a(f"s_cbranch_scc0 {dl}")
    a("s_memrealtime s[84:85]")
    a(f"s_load_dwordx2 s[86:87], s[0:1], 64")
    a("s_waitcnt lgkmcnt(0)")
    if inv: a("s_not_b32 s84, s84")
    a("s_mov_b64 s[88:89], exec") if False else None
    a("v_mov_b32 v99, s84")
    a(f"v_mov_b32 v98, {4*slot}")
    a("s_mov_b64 exec, 1")
    a("global_atomic_umax v98, v99, s[86:87]")
    a("s_mov_b64 exec, -1")
    a.label(dl)

def code_prefetch(a, start, end, vtmp, lanereg):
    l = f"CPF_{len(a.lines)}"
    a("s_getpc_b64 s[94:95]")
    a.label(l)
    a(f"s_add_u32 s94, s94, {start}-{l}")
    a("s_addc_u32 s95, s95, 0")
    a(f"v_lshlrev_b32 v{vtmp}, 7, v{lanereg}")
    a(f".set CPFN_{l}, ({end}-{start}+8191)/8192")
    return l

def wave_scan(a, v):
    for sh in (1, 2, 4, 8):
        a("s_nop 1")
        a(f"v_add_u32_dpp v{v}, v{v}, v{v} row_shr:{sh} row_mask:0xf bank_mask:0xf bound_ctrl:1")
    a("s_nop 1")
    a(f"v_add_u32_dpp v{v}, v{v}, v{v} row_bcast:15 row_mask:0xa bank_mask:0xf")
    a("s_nop 1")
    a(f"v_add_u32_dpp v{v}, v{v}, v{v} row_bcast:31 row_mask:0xc bank_mask:0xf")

def k1_table(a):
    XF = 40; ACC = 64
    a.label("K1_TABLE")
    stamp1(a, 0)
    a("s_and_b32 s3, s2, 1")
    a("s_lshr_b32 s28, s2, 1")
    srd(a, 20, 16, 69632)
    srd(a, 36, 14, 32768)
    srd(a, 24, 4, N * 256)
    a("s_lshl_b32 s29, s3, 7")
    a("s_add_u32 s30, s29, 32768")
    a("v_lshrrev_b32 v1, 3, v0")
    a("v_and_b32 v2, 7, v0")
    a("v_lshlrev_b32 v3, 8, v1")
    a("v_lshl_add_u32 v3, v2, 4, v3")
    for i in range(2):
        a(f"buffer_load_dwordx4 {vr(8+4*i,4)}, v3, s[20:23], s30 offen")
        if i < 1: a("s_add_u32 s30, s30, 16384")
    for i in range(2):
        a(f"buffer_load_dwordx4 {vr(16+4*i,4)}, v3, s[36:39], s29 offen")
        if i < 1: a("s_add_u32 s29, s29, 16384")
    a("v_mul_u32_u24 v7, 288, v1")
    a("v_lshl_add_u32 v7, v2, 4, v7")
    a("v_and_b32 v2, 15, v0")
    a("v_bfe_u32 v3, v0, 4, 2")
    a("v_lshrrev_b32 v4, 6, v0")
    a("s_lshl_b32 s31, s28, 7")
    a("v_lshl_add_u32 v5, v4, 4, s31")
    a("v_add_u32 v6, v5, v2")
    a("v_lshlrev_b32 v6, 8, v6")
    a("v_lshl_add_u32 v6, v3, 4, v6")
    for ks in range(4):
        a(f"buffer_load_dwordx4 {vr(XF+4*ks,4)}, v6, s[24:27], 0 offen offset:{64*ks}")
    srd(a, 32, 18, 2 * HALF_STRIDE)
    for i in range(4):
        a(f"s_waitcnt vmcnt({7 - i})")
        a(f"ds_write_b128 v7, {vr(8+4*i,4)} offset:{18432*(i&1) + 128*(i>>1)}")
    a("v_lshrrev_b32 v7, 2, v2")
    a("v_lshl_add_u32 v7, v3, 3, v7")
    a("v_mul_u32_u24 v7, 288, v7")
    a("v_and_b32 v1, 3, v0")
    a("v_lshl_add_u32 v7, v1, 3, v7")
    a("v_lshl_add_u32 v1, v3, 2, v5")
    a("v_lshlrev_b32 v6, 8, v1")
    a("v_lshl_add_u32 v6, v2, 4, v6")
    a(f"s_mul_i32 s3, s3, {HALF_STRIDE}")
    a("s_waitcnt lgkmcnt(0)")
    stamp1(a, 1)
    a("s_barrier")
    stamp1(a, 2)
    BF = [8, 24, 96]
    def reads(t):
        b = BF[t % 3]
        for ks in range(4):
            a(f"ds_read_b64_tr_b16 {vr(b+4*ks,2)}, v7 offset:{9216*ks + 32*t}")
            a(f"ds_read_b64_tr_b16 {vr(b+4*ks+2,2)}, v7 offset:{9216*ks + 32*t + 1152}")
    reads(0)
    a("s_waitcnt vmcnt(0)")
    for t in range(8):
        if t < 7:
            reads(t + 1)
            a("s_waitcnt lgkmcnt(8)")
        else:
            a("s_waitcnt lgkmcnt(0)")
        b = BF[t % 3]
        for ks in range(4):
            c = "0" if ks == 0 else vr(ACC+4*t, 4)
            a(f"v_mfma_f32_16x16x32_bf16 {vr(ACC+4*t,4)}, {vr(XF+4*ks,4)}, {vr(b+4*ks,4)}, {c}")
    stamp1(a, 3)
    a("s_mov_b32 s40, 0x00800000")
    a("s_mov_b32 s41, 0x7fff0000")
    a(f"s_mov_b32 s42, {hex(NEG_LOG2E)}")
    a(f"s_movk_i32 s43, {N}")
    a("s_nop 6")
    for r in range(4):
        W = 8 + 8 * (r & 1)
        for t in range(4):
            a(f"v_mul_f32 v{ACC+4*t+r}, s42, v{ACC+4*t+r}")
        for p in range(4):
            lo, hi = ACC + 4*(2*p) + r, ACC + 4*(2*p+1) + r
            a(f"v_cvt_pk_bf16_f32 v{W+p}, v{lo}, v{hi}")
            a(f"v_max_f32_e64 v{hi}, |v{hi}|, s40")
        for p in range(4):
            hi = ACC + 4*(2*p+1) + r
            a(f"v_add_u32 v{hi}, 0x8000, v{hi}")
        for p in range(4):
            hi = ACC + 4*(2*p+1) + r
            a(f"v_sub_u32_sdwa v{hi}, v{hi}, v{W+p} dst_sel:DWORD dst_unused:UNUSED_PAD src0_sel:DWORD src1_sel:WORD_0")
        a(f"v_add_u32 v2, {r}, v1")
        a("v_cmp_ge_u32 vcc, s43, v2")
        for p in range(4):
            hi = ACC + 4*(2*p+1) + r
            a(f"v_bfi_b32 v{W+p}, s41, v{hi}, v{W+p}")
        a("s_and_saveexec_b64 s[44:45], vcc")
        a(f"s_cbranch_execz K1_TAB_SKIP{r}")
        a(f"buffer_store_dwordx4 {vr(W,4)}, v6, s[32:35], s3 offen offset:{256*r} sc1")
        a.label(f"K1_TAB_SKIP{r}")
        a("s_mov_b64 exec, s[44:45]")
    stamp1(a, 4)
    stamp1(a, 5)
    stamp1_out(a, 7, 32, 2, "K1_ST_TAB")
    if "diag" in OPT:
        a("s_waitcnt vmcnt(0)")
        diag_mark(a, 1, False, 0)
    a("s_endpgm")

def k1_bin(a):
    HIST, OFF2, SORT, AREA = 0, 1024, 2048, 7168
    a.label("K1_BIN")
    stamp1(a, 0)
    a("v_lshrrev_b32 v1, 8, v0")
    a(f"s_sub_u32 s3, s2, {BIN0}")
    a("v_readfirstlane_b32 s45, v1")
    a("v_and_b32 v0, 255, v0")
    srd(a, 20, 8, E * 4)
    srd(a, 24, 10, E * 4)
    srd(a, 28, 18, WS_END)
    a("s_lshl_b32 s3, s3, 1")
    a("s_add_u32 s3, s3, s45")
    a(f"s_mul_i32 s46, s45, {AREA}")
    a("v_lshlrev_b32 v1, 2, v0")
    a("s_mul_i32 s32, s3, 5120")
    a("s_add_u32 s33, s32, 4096")
    DST, SRC = 8, 16
    for m in range(5):
        a(f"buffer_load_dword v{DST+m}, v1, s[24:27], s32 offen offset:{1024*m}" if m < 4 else
          f"buffer_load_dword v{DST+m}, v1, s[24:27], s33 offen")
    for m in range(5):
        a(f"buffer_load_dword v{SRC+m}, v1, s[20:23], s32 offen offset:{1024*m}" if m < 4 else
          f"buffer_load_dword v{SRC+m}, v1, s[20:23], s33 offen")
    a("v_mov_b32 v2, 0")
    a("v_add_u32 v6, s46, v1")
    a(f"ds_write_b32 v6, v2 offset:{HIST}")
    a("v_mov_b32 v7, s46")
    a("s_mov_b32 s34, 52429")
    a("s_waitcnt lgkmcnt(0)")
    a("s_barrier")
    BINR, RANK = 24, 32
    if "stamp1" in OPT:
        a("s_waitcnt vmcnt(9)")
        stamp1(a, 1)
    a("v_mov_b32 v3, 1")
    for m in range(5):
        a(f"s_waitcnt vmcnt({9-m})")
        a(f"v_mul_u32_u24 v{BINR+m}, s34, v{DST+m}")
        a(f"v_lshrrev_b32 v{BINR+m}, 21, v{BINR+m}")
        a(f"v_mul_u32_u24 v4, {NPB}, v{BINR+m}")
        a(f"v_sub_u32 v{DST+m}, v{DST+m}, v4")
        a(f"v_lshl_add_u32 v{BINR+m}, v{BINR+m}, 2, v7")
        a(f"ds_add_rtn_u32 v{RANK+m}, v{BINR+m}, v3 offset:{HIST}")
    for m in range(5):
        a(f"s_waitcnt vmcnt({4-m})")
        a(f"v_lshl_or_b32 v{SRC+m}, v{DST+m}, 14, v{SRC+m}")
        a(f"v_add_u32 v4, {256*m}, v0")
        a(f"v_lshl_or_b32 v{SRC+m}, v4, 20, v{SRC+m}")
    a("v_and_b32 v5, 63, v0")
    a("v_lshlrev_b32 v5, 4, v5")
    a("v_add_u32 v6, v5, v7")
    a("s_waitcnt lgkmcnt(0)")
    a("s_barrier")
    stamp1(a, 2)
    a(f"ds_read_b128 v[40:43], v6 offset:{HIST}")
    a(f"s_lshr_b32 s47, s46, 2")
    a("s_waitcnt lgkmcnt(0)")
    a("v_add_u32 v44, v40, v41")
    a("v_add_u32 v45, v42, v43")
    a("v_add_u32 v46, v44, v45")
    a("v_mov_b32 v47, v46")
    wave_scan(a, 47)
    a("v_sub_u32 v48, v47, v46")
    a("v_add_u32 v49, v48, v40")
    a("v_add_u32 v50, v48, v44")
    a("v_add_u32 v51, v50, v42")
    for i in range(4):
        a(f"v_add_u32 v{56+i}, s47, v{48+i}")
    a(f"ds_write_b128 v6, v[56:59] offset:{OFF2}")
    a("v_readfirstlane_b32 s35, v0")
    a("s_lshl_b32 s36, s3, 10")
    a(f"s_add_u32 s36, s36, {OFFS_OFF}")
    a("s_cmp_ge_u32 s35, 64")
    a("s_cbranch_scc1 K1_BIN_NOPUB")
    for i in range(4):
        a(f"v_lshl_or_b32 v{52+i}, v{40+i}, 16, v{48+i}")
    a("buffer_store_dwordx4 v[52:55], v5, s[28:31], s36 offen sc1")
    a.label("K1_BIN_NOPUB")
    a("s_waitcnt lgkmcnt(0)")
    for m in range(5):
        a(f"ds_read_b32 v{40+m}, v{BINR+m} offset:{OFF2}")
    for m in range(5):
        a(f"s_waitcnt lgkmcnt({4-m})")
        a(f"v_add_lshl_u32 v{40+m}, v{40+m}, v{RANK+m}, 2")
        a(f"ds_write_b32 v{40+m}, v{SRC+m} offset:{SORT}")
    stamp1(a, 3)
    a("v_lshlrev_b32 v5, 4, v0")
    a("v_add_u32 v6, v5, v7")
    a("s_waitcnt lgkmcnt(0)")
    a("s_barrier")
    stamp1(a, 4)
    a(f"ds_read_b128 v[40:43], v6 offset:{SORT}")
    a(f"ds_read_b128 v[44:47], v6 offset:{SORT+4096}")
    a(f"s_add_u32 s36, s32, {ENT_OFF}")
    a("s_add_u32 s37, s36, 4096")
    a("v_cmp_gt_u32 vcc, 64, v0")
    a("s_waitcnt lgkmcnt(1)")
    a("buffer_store_dwordx4 v[40:43], v5, s[28:31], s36 offen sc1")
    a("s_and_saveexec_b64 s[38:39], vcc")
    a("s_cbranch_execz K1_BIN_END")
    a("s_waitcnt lgkmcnt(0)")
    a("buffer_store_dwordx4 v[44:47], v5, s[28:31], s37 offen sc1")
    a.label("K1_BIN_END")
    a("s_mov_b64 exec, -1")
    if "epf" in OPT:
        srd(a, 40, 6, E * 32)
        a("v_lshlrev_b32 v8, 7, v0")
        a("s_mul_i32 s44, s3, 40960")
        a("buffer_load_dword v9, v8, s[40:43], s44 offen")
        a("s_add_u32 s44, s44, 32768")
        a("s_cmp_lt_u32 s35, 64")
        a("s_cbranch_scc0 K1_BIN_NOPF")
        a("buffer_load_dword v10, v8, s[40:43], s44 offen")
        a.label("K1_BIN_NOPF")
    stamp1(a, 5)
    stamp1_out(a, 7, 28, 2, "K1_ST_BIN")
    if "diag" in OPT:
        a("s_waitcnt vmcnt(0)")
        diag_mark(a, 1, False, 0)
    a("s_endpgm")

def k1_wf(a):
    a.label("K1_WF")
    a(f"s_sub_u32 s3, s2, {WF0}")
    a("v_lshrrev_b32 v1, 6, v0")
    a("s_nop 0")
    a("v_readfirstlane_b32 s28, v1")
    a("s_lshl_b32 s3, s3, 3")
    a("s_add_u32 s3, s3, s28")
    a("s_lshr_b32 s29, s3, 1")
    a("s_and_b32 s30, s3, 1")
    a("s_cmp_lt_u32 s29, 8")
    a("s_cselect_b32 s20, s16, s12")
    a("s_cselect_b32 s21, s17, s13")
    a("s_and_b32 s21, s21, 0xffff")
    a("s_mov_b32 s22, 32768")
    a("s_mov_b32 s23, 0x00020000")
    srd(a, 24, 18, WS_END)
    a("v_and_b32 v2, 15, v0")
    a("v_bfe_u32 v3, v0, 4, 2")
    a("s_and_b32 s31, s29, 7")
    a("s_lshl_b32 s31, s31, 5")
    a("s_lshl_b32 s32, s30, 14")
    a("s_add_u32 s31, s31, s32")
    a("v_lshlrev_b32 v4, 11, v3")
    a("v_lshl_add_u32 v4, v2, 1, v4")
    a("s_add_u32 s33, s31, 8192")
    for f in range(2):
        for m in range(8):
            a(f"buffer_load_ushort v{8+8*f+m}, v4, s[20:23], s{31 if f==0 else 33} offen offset:{256*m}")
    a("v_and_b32 v5, 63, v0")
    a("v_lshlrev_b32 v5, 4, v5")
    a("s_lshl_b32 s34, s3, 11")
    a(f"s_add_u32 s34, s34, {WF_OFF}")
    a("s_cmp_lt_u32 s29, 8")
    a(f"s_cselect_b32 s35, 1.0, {hex(C_2PK)}")
    a("s_mov_b32 s36, 0x07060302")
    for f in range(2):
        a(f"s_waitcnt vmcnt({8 if f==0 else 1})")
        for m in range(8):
            a(f"v_lshlrev_b32 v{8+8*f+m}, 16, v{8+8*f+m}")
            a(f"v_mul_f32 v{8+8*f+m}, s35, v{8+8*f+m}")
        for p in range(4):
            a(f"v_perm_b32 v{24+4*f+p}, v{8+8*f+2*p+1}, v{8+8*f+2*p}, s36")
        a(f"buffer_store_dwordx4 {vr(24+4*f,4)}, v5, s[24:27], s34 offen offset:{1024*f} sc1")
    a("s_endpgm")

def k1_cf(a):
    a.label("K1_CF")
    a("v_lshrrev_b32 v1, 6, v0")
    a("s_nop 0")
    a("v_readfirstlane_b32 s28, v1")
    a("s_nop 3")
    a("s_cmp_ge_u32 s28, 4")
    a("s_cbranch_scc1 K1_CF_END")
    srd(a, 20, 16, 69632)
    srd(a, 24, 18, WS_END)
    a("v_and_b32 v2, 15, v0")
    a("v_bfe_u32 v3, v0, 4, 2")
    a("v_and_b32 v4, 1, v3")
    a("v_lshlrev_b32 v4, 11, v4")
    a("v_lshl_add_u32 v4, v2, 1, v4")
    a("s_lshl_b32 s29, s28, 6")
    a("s_add_u32 s29, s29, 65536")
    for f in range(2):
        for m in range(8):
            a(f"buffer_load_ushort v{8+8*f+m}, v4, s[20:23], s29 offen offset:{256*m + 32*f}")
    a("v_and_b32 v5, 63, v0")
    a("v_lshlrev_b32 v5, 4, v5")
    a("s_lshl_b32 s34, s28, 11")
    a(f"s_add_u32 s34, s34, {CF_OFF}")
    a(f"s_mov_b32 s30, {hex(NEG_LOG2E)}")
    a("v_cmp_gt_u32 vcc, 2, v3")
    a("v_cmp_eq_u32 s[32:33], 2, v3")
    a(f"v_mov_b32 v6, {hex(BF16_NEGK)}")
    a("v_mov_b32 v7, 0")
    a("s_waitcnt vmcnt(0)")
    for f in range(2):
        for m in range(8):
            a(f"v_lshlrev_b32 v{8+8*f+m}, 16, v{8+8*f+m}")
            a(f"v_mul_f32 v{8+8*f+m}, s30, v{8+8*f+m}")
        for p in range(4):
            a(f"v_cvt_pk_bf16_f32 v{24+4*f+p}, v{8+8*f+2*p}, v{8+8*f+2*p+1}")
        a(f"v_cndmask_b32 v30, v7, v6, s[32:33]" if False else "")
        a(f"v_cndmask_b32 v32, v7, v6, s[32:33]")
        a(f"v_cndmask_b32 v{24+4*f+0}, v7, v{24+4*f+0}, vcc")
        a(f"v_cndmask_b32 v{24+4*f+1}, v7, v{24+4*f+1}, vcc")
        a(f"v_cndmask_b32 v{24+4*f+2}, v32, v{24+4*f+2}, vcc")
        a(f"v_cndmask_b32 v{24+4*f+3}, v7, v{24+4*f+3}, vcc")
        a(f"buffer_store_dwordx4 {vr(24+4*f,4)}, v5, s[24:27], s34 offen offset:{1024*f} sc1")
    a("s_cmp_eq_u32 s28, 0")
    a("s_cbranch_scc0 K1_CF_END")
    a("v_lshrrev_b32 v8, 2, v2")
    a("v_subrev_u32 v9, 2, v3")
    a("v_lshlrev_b32 v9, 1, v9")
    a("v_mov_b32 v10, 0x3f803f80")
    a("v_cmp_eq_u32 vcc, v8, v9")
    a("v_add_u32 v9, 1, v9")
    a("v_cmp_eq_u32 s[36:37], v8, v9")
    a("v_cndmask_b32 v12, v7, v10, vcc")
    a("v_mov_b32 v11, 0x3f80")
    a("v_cndmask_b32 v13, v7, v10, s[36:37]")
    a("v_cndmask_b32 v14, v7, v11, s[32:33]")
    a("v_mov_b32 v15, 0")
    a(f"s_mov_b32 s34, {CF_OFF + 8192}")
    a("buffer_store_dwordx4 v[12:15], v5, s[24:27], s34 offen sc1")
    a.label("K1_CF_END")
    a("s_endpgm")

def k1(a):
    a.raw(".p2align 8")
    a.raw(".type egc_prep_kernel,@function")
    a.label("egc_prep_kernel")
    a(f"s_cmp_ge_u32 s2, {K1_WGS}")
    a("s_cbranch_scc1 K1_EXIT")
    diag_mark(a, 0, True, 0)
    a("s_load_dwordx4 s[4:7], s[0:1], 0")
    a("s_load_dwordx4 s[8:11], s[0:1], 16")
    a("s_load_dwordx4 s[12:15], s[0:1], 32")
    a("s_load_dwordx2 s[16:17], s[0:1], 48")
    a("s_load_dwordx2 s[18:19], s[0:1], 72")
    if "tabfirst" not in OPT:
        a(f"s_add_u32 s20, s2, {NT_WG}")
        a(f"s_sub_u32 s21, s2, {NBIN_WG}")
        a(f"s_cmp_lt_u32 s2, {NBIN_WG}")
        a("s_cselect_b32 s22, s20, s21")
        a(f"s_cmp_lt_u32 s2, {WF0}")
        a("s_cselect_b32 s2, s22, s2")
    a("s_waitcnt lgkmcnt(0)")
    a(f"s_cmp_lt_u32 s2, {BIN0}")
    a("s_cbranch_scc1 K1_TABLE")
    a(f"s_cmp_lt_u32 s2, {WF0}")
    a("s_cbranch_scc1 K1_BIN")
    a(f"s_cmp_lt_u32 s2, {CF0}")
    a("s_cbranch_scc1 K1_WF")
    a("s_branch K1_CF")
    a.label("K1_EXIT")
    a("s_endpgm")
    k1_table(a)
    k1_bin(a)
    k1_wf(a)
    k1_cf(a)

CAPE = 1500
SCAP = 1632
L_CNT = 0; L_TOT = 256; L_TILES = 264; L_FLAG = 268
P_RANGE = 60.0
L_ROW = 512
L_GN = L_ROW + SCAP * 4
L_EO = L_GN + SCAP * 4
L_PPK = L_EO + SCAP * 4
L_CS = L_PPK + 20480
L_AGG = L_CS + 9216
L_XS = L_AGG + 40960
L_ES = L_XS + 48 * 272
L_RAW = L_ES
K2_LDS = L_ES + SCAP * 32
assert K2_LDS <= 163840 and L_AGG + 512 < 65536

QH = [8, 24, 40]; D = 56; B = 72; A = 88; U = 92; T = 100; R = 104; G = 108
vGS = [111, 112, 113]; vTa = 114; vTe = 115; vJ16 = 116; vJ4 = 117; vTa0 = 118; vTe0 = 119; vCS = 120
vDUM = 7
vTd = 122; vEo = 123; vH16 = 5; vEPa = 1; vJ16h = 6; EP = 124
vK66 = 2; vQ16 = 3; vLH = 4
sX = 12; sE = 16; sO = 20; sWS = 24
sWV = 28
sLO = 30
sHI = 32
sCC = 34
sN = 36; sNIT = 37; sL = 38
sLI = 39
sAI = 40
sHL = 41
sHG = 42
sTOT = 43
sWIN = 44
sDI = 45
sM0 = 62
sBIN = 29
sE2 = 63
sINC = 20
sLM3 = 43+48
sFLAG = 90
sNM2 = 89
sINCP = 92
sM = 46
sTMP = 56

STAMP_OFF = 0x1300000
def fstamp(a, i):
    if "fine" in OPT:
        a(f"s_memtime s[{64+2*i}:{65+2*i}]")
        a("s_waitcnt lgkmcnt(0)")
def gstamp(a, i):
    if "gst" in OPT:
        a(f"s_memtime s[{64+2*i}:{65+2*i}]")
        a("s_waitcnt lgkmcnt(0)")
def stamp(a, i):
    if ("fine" in OPT or "gst" in OPT) and i in (1,2,3,4,5,6): return
    if "stamp" in OPT:
        a(f"s_memtime s[{64+2*i}:{65+2*i}]")
        a("s_waitcnt lgkmcnt(0)")
def stamp_out(a, n):
    if "stamp" in OPT:
        a(f"s_cmp_eq_u32 s28, {8 if 'gst' in OPT else 0}")
        a("s_cbranch_scc0 STAMP_SKIP")
        a("s_mov_b64 exec, -1")
        a("s_mov_b32 s26, 0x1400000")
        for i in range(n):
            a(f"v_mov_b32 v100, s{64+2*i}")
            a(f"v_mov_b32 v101, s{65+2*i}")
            a(f"s_lshl_b32 s60, s2, 7")
            a(f"s_add_u32 s60, s60, {STAMP_OFF + 8*i}")
            a("v_mov_b32 v102, 0")
            a(f"buffer_store_dwordx2 v[100:101], v102, {sr(sWS,4)}, s60 offen")
            a("s_nop 1")
        a.label("STAMP_SKIP")
def P2(x): return f"v[{x}:{x+1}]"

def pair_code(ta, tb, h, shl, vG, v5):
    s = []
    if shl:
        for r in range(4):
            s.append(f"v_lshlrev_b32 v{h[r]}, 16, v{h[r]}")
            s.append(f"v_lshlrev_b32 v{h[r]+1}, 16, v{h[r]+1}")
    if v5:
        ep = EP + (2 if shl else 0)
        for r in range(4):
            s.append(f"v_exp_f32 v{U+2*r}, v{D+4*ta+r}")
            s.append(f"v_exp_f32 v{U+2*r+1}, v{D+4*tb+r}")
        if not shl: s.append("s_waitcnt lgkmcnt(3)")
        for r in range(4):
            s.append(f"v_pk_fma_f32 {P2(U+2*r)}, {P2(U+2*r)}, {P2(ep)}, s[{sCC}:{sCC+1}] clamp")
    else:
        for r in range(4):
            s.append(f"v_exp_f32_e64 v{U+2*r}, v{D+4*ta+r} clamp")
            s.append(f"v_exp_f32_e64 v{U+2*r+1}, v{D+4*tb+r} clamp")
        for r in range(4):
            s.append(f"v_pk_add_f32 {P2(U+2*r)}, {P2(U+2*r)}, s[{sCC}:{sCC+1}]")
    d0, d1, d2, d3 = U, U+2, U+4, U+6
    s += [f"v_pk_mul_f32 {P2(T)}, {P2(h[0])}, {P2(d1)}",
          f"v_pk_mul_f32 {P2(T+2)}, {P2(h[2])}, {P2(d3)}",
          f"v_pk_fma_f32 {P2(T)}, {P2(h[1])}, {P2(d0)}, {P2(T)}",
          f"v_pk_fma_f32 {P2(T+2)}, {P2(h[3])}, {P2(d2)}, {P2(T+2)}",
          f"v_pk_mul_f32 {P2(d0)}, {P2(d0)}, {P2(d1)}",
          f"v_pk_mul_f32 {P2(d2)}, {P2(d2)}, {P2(d3)}",
          f"v_pk_mul_f32 {P2(d1)}, {P2(d0)}, {P2(d2)}",
          f"v_pk_mul_f32 {P2(T)}, {P2(T)}, {P2(d2)}",
          f"v_rcp_f32 v{d1}, v{d1}",
          f"v_rcp_f32 v{d1+1}, v{d1+1}",
          f"v_pk_fma_f32 {P2(T)}, {P2(T+2)}, {P2(d0)}, {P2(T)}",
          f"v_pk_mul_f32 {P2(T)}, {P2(T)}, {P2(d1)}"]
    if "noadd" not in OPT:
        s += [f"v_cvt_f64_f32 {P2(U)}, v{T}",
              f"v_cvt_f64_f32 {P2(U+4)}, v{T+1}",
              f"ds_add_f64 v{vG}, {P2(U)} offset:{L_AGG + 128*ta}",
              f"ds_add_f64 v{vG}, {P2(U+4)} offset:{L_AGG + 128*tb}"]
    return s

deferred = []
def defer(fn, inline):
    if inline: fn()
    else: deferred.append(fn)
uid = [0]
def lab(p):
    uid[0] += 1
    return f"{p}_{uid[0]}"

def list_reads(a, v5):
    a(f"ds_read_b128 {vr(R,4)}, v{vTa} offset:{L_ROW}")
    if v5: a(f"ds_read_b32 v{G+2}, v{vTa} offset:{L_GN + 8}")
    else:  a(f"ds_read_b96 {vr(G,3)}, v{vTa} offset:{L_GN}")

def ep_read(a):
    a(f"ds_read_b128 {vr(EP,4)}, v{vEPa} offset:{L_PPK}")

def advance(a):
    a(f"v_pk_add_f32 {P2(vTa)}, {P2(vTa)}, s[{sINCP}:{sINCP+1}]")

def list_wrap(a):
    a(f"s_add_u32 s{sLI}, s{sLI}, 1")
    a(f"s_cmp_eq_u32 s{sLI}, s{sL}")
    l, lb = lab("K2_LW"), lab("K2_LWB")
    a(f"s_cbranch_scc1 {l}")
    a.label(lb)
    def blk():
        a.label(l)
        a(f"s_mov_b32 s{sLI}, 0")
        a(f"s_mov_b32 s{sHL}, {HALF_STRIDE}")
        a(f"v_mov_b32 v{vTa}, v{vTa0}")
        a(f"s_branch {lb}")
    deferred.append(blk)

def eo_read(a):
    a(f"ds_read_b32 v{vEo}, v{vTd} offset:{L_EO}")
    a(f"v_add_u32 v{vTd}, 64, v{vTd}")

def e_dma(a):
    a(f"s_mov_b32 m0, s{sM0}")
    a(f"v_add_u32 v{vEo}, v{vEo}, v{vH16}")
    if "samee" in OPT: a(f"v_and_b32 v{vEo}, 0x1f, v{vEo}")
    a(f"s_add_u32 s{sM0}, s{sM0}, 512")
    a(f"s_add_u32 s{sDI}, s{sDI}, 1")
    a(f"s_mov_b64 exec, {sr(sLO,2)}")
    a(f"buffer_load_dwordx4 v{vEo}, {sr(sWS if 'ecopy' in OPT else sE,4)}, s{sE2} offen{'' if 'eplainld' in OPT else ' sc0 sc1'} lds")
    a("s_mov_b64 exec, -1")

def gather_stage(a, buf, inloop=False):
    if inloop:
        lsk = lab("K2_SG")
        a(f"s_cmp_ge_u32 s{sN}, s{sNM2}")
        a(f"s_cbranch_scc1 {lsk}")
    for r in (0, 2):
        a(f"v_pk_add_f32 {P2(R+r)}, {P2(R+r)}, {P2(vJ16)} op_sel_hi:[1,0]")
    if "samerow" in OPT:
        for r in range(4): a(f"v_and_b32 v{R+r}, 0xff, v{R+r}")
    for r in range(4):
        pol = " sc1" if "g1" in OPT else " sc0 sc1" if "g01" in OPT else " sc0" if "g0" in OPT else ""
        a(f"buffer_load_dwordx4 {vr(buf+4*r,4)}, v{R+r}, {sr(sWS,4)}, s{sHL} offen{pol}")
    l, lb = lab("K2_ND"), lab("K2_NDB")
    a(f"s_cmp_lt_u32 s{sDI}, s{sL}")
    a(f"s_cbranch_scc1 {l}")
    a.label(lb)
    def blk():
        a.label(l)
        e_dma(a)
        eo_read(a)
        a(f"s_branch {lb}")
    deferred.append(blk)
    list_wrap(a)
    if inloop: a.label(lsk)

def ap_stage(a, dstG, v5, G=G):
    l, lb = lab("K2_AW"), lab("K2_AWB")
    a(f"s_cmp_eq_u32 s{sAI}, s{sL}")
    a(f"s_cbranch_scc1 {l}")
    a.label(lb)
    def blk():
        a.label(l)
        a(f"s_mov_b32 s{sAI}, 0")
        if "pstamp" in OPT:
            lq = lab("K2_PS")
            a(f"s_cmp_lt_u32 s{sN}, s{sL}")
            a(f"s_cbranch_scc0 {lq}")
            a("s_memtime s[76:77]")
            a("s_waitcnt lgkmcnt(0)")
            a.label(lq)
        if "noprio" not in OPT:
            lp = lab("K2_NP")
            a(f"s_cmp_lt_u32 s{sN}, s{sL}")
            a(f"s_cbranch_scc0 {lp}")
            a("s_setprio 2" if "oldprio" not in OPT else "s_setprio 0")
            a.label(lp)
        a(f"v_add_u32 v{vJ4}, 256, v{vJ4}")
        if v5: a(f"v_add_u32 v{vJ16h}, 256, v{vJ16h}")
        a(f"v_mov_b32 v{vTe}, v{vTe0}")
        for t in range(4):
            a(f"ds_read_b128 {vr(B+4*t,4)}, v{vCS} offset:{L_CS + 1024*(4+t)}")
        a(f"s_branch {lb}")
    deferred.append(blk)
    a(f"s_add_u32 s{sAI}, s{sAI}, 1")
    if v5:
        a(f"v_add_lshl_u32 v{dstG}, v{G+2}, v{vJ4}, 1")
        a(f"v_add_u32 v{vEPa}, v{G+2}, v{vJ16h}")
        a(f"s_mov_b64 exec, {sr(sLO,2)}")
        a(f"ds_read_b128 {vr(A,4)}, v{vTe}")
        a("s_mov_b64 exec, -1")
        return
    a(f"v_pk_add_f32 {P2(G)}, {P2(G)}, {P2(vJ16)} op_sel:[0,1] op_sel_hi:[1,1]")
    a(f"v_add_lshl_u32 v{dstG}, v{G+2}, v{vJ4}, 1")
    a(f"s_mov_b64 exec, {sr(sLO,2)}")
    a(f"ds_read_b128 {vr(A,4)}, v{vTe}")
    a(f"s_mov_b64 exec, {sr(sHI,2)}")
    for t in range(4 if "nop" not in OPT else 0):
        a(f"ds_read_b32 v{B+4*t}, v{G} offset:{L_PPK + 64*t}")
        a(f"ds_read_b32 v{B+4*t+1}, v{G+1} offset:{L_PPK + 64*t}")
    a("s_mov_b64 exec, -1")

def tile_body(a, k, v5, done):
    buf = QH[k]; nbuf = QH[(k + 2) % 3]
    vG = vGS[k]; vGn = vGS[(k + 1) % 3]
    l2 = lab("K2_W")
    a(f"s_cmp_lt_i32 s{sN}, s{sLM3}")
    a(f"s_cbranch_scc1 {l2}")
    a("s_waitcnt vmcnt(4)")
    a.label(l2)
    a("s_waitcnt vmcnt(6)")
    for t in (1, 3):
        p = t >> 1
        for rr in (0, 2):
            a(f"v_pk_mov_b32 {P2(D+4*t+rr)}, {P2(buf+4*rr)}, {P2(buf+4*(rr+1))} op_sel:[{p},{p}]")
    for t in (0, 2):
        p = t >> 1
        for r in range(4):
            a(f"v_lshlrev_b32 v{D+4*t+r}, 16, v{buf+4*r+p}")
    a("s_waitcnt lgkmcnt(4)")
    for t in (1, 3, 0, 2):
        a(f"v_mfma_f32_16x16x32_bf16 {vr(D+4*t,4)}, {vr(A,4)}, {vr(B+4*t,4)}, {vr(D+4*t,4)}")
    ap_stage(a, vGn, v5)
    list_reads(a, v5)
    advance(a)
    h = [buf + 4*r + 2 for r in range(4)]
    for ins in pair_code(1, 3, h, False, vG, v5): a(ins)
    a("s_waitcnt lgkmcnt(3)" if "noadd" not in OPT else "s_waitcnt lgkmcnt(1)")
    gather_stage(a, nbuf, True)
    for ins in pair_code(0, 2, h, True, vG, v5): a(ins)
    if v5: ep_read(a)
    a(f"s_add_u32 s{sN}, s{sN}, 1")
    if "noprio" in OPT or "oldprio" in OPT:
        a(f"s_cmp_ge_u32 s{sN}, s{sNIT}")
        a(f"s_cbranch_scc1 {done}")
    else:
        l, lb = lab("K2_PR"), lab("K2_PRB")
        a(f"s_cmp_ge_u32 s{sN}, s{sNM2}")
        a(f"s_cbranch_scc1 {l}")
        a.label(lb)
        def blk():
            l1 = lab("K2_PR1")
            a.label(l)
            a(f"s_cmp_ge_u32 s{sN}, s{sNIT}")
            a(f"s_cbranch_scc1 {done}")
            a(f"s_cmp_eq_u32 s{sN}, s{sNM2}")
            a(f"s_cbranch_scc0 {l1}")
            a("s_setprio 1")
            a(f"s_branch {lb}")
            a.label(l1)
            a("s_setprio 0")
            a("s_waitcnt vmcnt(0)")
            a(f"s_branch {lb}")
        deferred.append(blk)

def table_prefetch(a, vL16):
    if "nopf" in OPT: return
    a(f"s_lshr_b32 s{sTMP+5}, s2, 3")
    a(f"s_mul_i32 s{sTMP+5}, s{sTMP+5}, 81920")
    a(f"s_lshl_b32 s{sTMP+6}, s28, 13")
    a(f"s_add_u32 s{sTMP+5}, s{sTMP+5}, s{sTMP+6}")
    a(f"s_cmp_lt_u32 s28, 10")
    a(f"s_cselect_b32 s{sTMP+5}, s{sTMP+5}, {WS_END}")
    a(f"v_lshlrev_b32 v{vDUM}, 3, v{vL16}")
    a(f"buffer_load_dword v{vDUM}, v{vDUM}, {sr(sWS,4)}, s{sTMP+5} offen")

def table_prefetch(a):
    a(f"s_lshr_b32 s{sTMP}, s2, 3")
    a(f"s_mul_i32 s{sTMP}, s{sTMP}, 81920")
    a(f"s_lshl_b32 s{sTMP+1}, s28, 13")
    a(f"s_add_u32 s{sTMP+1}, s{sTMP+1}, s{sTMP}")
    a(f"v_lshlrev_b32 v{vDUM}, 3, v{vCS}")
    a(f"buffer_load_dword v{vDUM}, v{vDUM}, {sr(sWS,4)}, s{sTMP+1} offen" + (" sc0 sc1" if "pf01" in OPT else ""))
    return
    a(f"s_add_u32 s{sTMP+1}, s{sTMP+1}, 65536")
    a(f"s_cmp_lt_u32 s28, 2")
    a(f"s_cselect_b32 s{sTMP+1}, s{sTMP+1}, {WS_END}")
    a(f"buffer_load_dword v127, v{vDUM}, {sr(sWS,4)}, s{sTMP+1} offen")

def k2(a):
    ECOPY = "ecopy" in OPT
    a.raw(".p2align 8")
    a.raw(".type egc_main_kernel,@function")
    a.label("egc_main_kernel")
    a(f"s_cmp_ge_u32 s2, {NB}")
    a("s_cbranch_scc1 K2_EXIT")
    diag_mark(a, 0, True, 0)
    stamp(a, 0)
    if "stamp" in OPT:
        a("s_memrealtime s[80:81]")
        a("s_waitcnt lgkmcnt(0)")
    a("s_load_dwordx4 s[4:7], s[0:1], 0")
    a("s_load_dwordx2 s[8:9], s[0:1], 56")
    a("s_load_dwordx2 s[10:11], s[0:1], 72")
    if "cpf" in OPT:
        a("s_getpc_b64 s[94:95]")
        a.label("K2_PC")
        a("v_and_b32 v9, 63, v0")
        a("v_lshrrev_b32 v10, 6, v0")
        a("v_lshlrev_b32 v9, 7, v9")
        a("v_lshl_add_u32 v9, v10, 13, v9")
        a("v_cmp_gt_u32 vcc, K2_EXIT-K2_PC, v9")
        a("s_and_saveexec_b64 s[54:55], vcc")
        a("s_cbranch_execz K2_NOCPF")
        a("global_load_dword v126, v9, s[94:95]")
        a.label("K2_NOCPF")
        a("s_mov_b64 exec, -1")
    a("v_lshrrev_b32 v1, 6, v0")
    a("v_lshlrev_b32 v3, 4, v0")
    a("s_and_b32 s46, s2, 7")
    a("v_readfirstlane_b32 s28, v1")
    a("s_lshr_b32 s47, s2, 3")
    a("s_sub_u32 s48, s46, 2")
    a("s_max_i32 s48, s48, 0")
    a("s_lshl_b32 s46, s46, 5")
    a("s_sub_u32 s46, s46, s48")
    a(f"s_add_u32 s{sBIN}, s46, s47")
    a(f"v_and_b32 v{vCS}, 0x3f0, v3")
    a("v_mov_b32 v8, v3")
    a(f"v_bfe_u32 v9, v{vCS}, 4, 4")
    a(f"v_lshrrev_b32 v10, 8, v{vCS}")
    a(f"v_lshlrev_b32 v{vJ16}, 4, v9")
    a(f"v_lshlrev_b32 v{vQ16}, 4, v10")
    a(f"v_lshl_add_u32 v{vK66}, v9, 5, v{vQ16}")
    a(f"v_and_b32 v{vH16}, 16, v{vCS}")
    a(f"v_lshrrev_b32 v{vLH}, 5, v{vCS}")
    a(f"s_mov_b64 {sr(sLO,2)}, 0xffffffff")
    a(f"s_mov_b32 s{sHI}, 0")
    a(f"s_mov_b32 s{sHI+1}, -1")
    a(f"s_mov_b32 s{sCC}, {hex(C_2MK)}")
    a(f"s_mov_b32 s{sCC+1}, {hex(C_2MK)}")
    a(f"s_mov_b32 s{sWIN}, 0")
    a(f"s_mov_b32 s{sE2}, {E2_OFF if ECOPY else 0}")
    a("s_cmp_ge_u32 s28, 8")
    a("s_cbranch_scc1 K2_G")
    vW = 12; vOA = 13; vOf = 14
    vC = 32; vSub = 33; vWb = 34; vEA = 35; vPw = 36; vKB = 37; vSg = 39; vEB = 38
    EN = 56
    a("v_mov_b32 v15, 0")
    a("v_lshrrev_b32 v16, 2, v8")
    a("v_cmp_gt_u32 vcc, 128, v0")
    a(f"v_lshrrev_b32 v{vW}, 1, v0")
    a("s_and_saveexec_b64 s[54:55], vcc")
    a(f"ds_write_b32 v16, v15 offset:{L_CNT}")
    a("s_mov_b64 exec, -1")
    a(f"v_lshlrev_b32 v{vOA}, 10, v{vW}")
    a(f"s_lshl_b32 s{sTMP}, s{sBIN}, 2")
    a(f"s_add_u32 s{sTMP}, s{sTMP}, {OFFS_OFF}")
    a(f"s_mov_b32 s{sTMP+4}, {ENT_OFF}")
    a(f"v_and_b32 v{vSub}, 1, v0")
    a(f"v_mul_u32_u24 v{vSg}, {CE}, v{vW}")
    a("s_waitcnt lgkmcnt(0)")
    srd(a, sWS, 10, WS_END)
    a(f"buffer_load_dword v{vOf}, v{vOA}, {sr(sWS,4)}, s{sTMP} offen")
    a("s_barrier")
    a(f"v_cmp_gt_u32 vcc, 250, v{vW}")
    a(f"v_cmp_eq_u32 s[54:55], 0, v{vSub}")
    a(f"v_mov_b32 v16, {L_TOT}")
    if not ECOPY: a(f"v_mul_u32_u24 v{vWb}, {CE*32}, v{vW}")
    a(f"v_mov_b32 v{vKB}, 0")
    srd(a, sE, 6, E * 32)
    srd(a, sO, 8, N * 256)
    a("s_waitcnt vmcnt(0)")
    a(f"v_lshrrev_b32 v{vC}, 16, v{vOf}")
    a(f"v_and_b32 v{vOf}, 0xffff, v{vOf}")
    a(f"v_cndmask_b32 v{vC}, 0, v{vC}, vcc")
    a(f"v_add_u32 v{vSg}, v{vSg}, v{vOf}")
    def entry_addr():
        a(f"v_lshlrev_b32 v{vEB}, 2, v{vSg}")
        a(f"v_lshl_add_u32 v{vEA}, v{vSub}, 5, v{vEB}")
        a(f"v_lshl_add_u32 v{vEB}, v{vSub}, 3, v{vEB}")
    def entry_loads(soff):
        a(f"buffer_load_dwordx4 {vr(EN,4)}, v{vEA}, {sr(sWS,4)}, s{soff} offen")
        a(f"buffer_load_dwordx4 {vr(EN+4,4)}, v{vEA}, {sr(sWS,4)}, s{soff} offen offset:16")
        a(f"buffer_load_dwordx2 {vr(EN+8,2)}, v{vEB}, {sr(sWS,4)}, s{soff} offen offset:64")
    entry_addr()
    entry_loads(sTMP+4)
    stamp(a, 1)
    a("s_mov_b64 exec, s[54:55]")
    a(f"ds_add_rtn_u32 v{vPw}, v16, v{vC}")
    a("s_mov_b64 exec, -1")
    a("s_barrier")
    a("s_waitcnt lgkmcnt(0)")
    a(f"v_mov_b32_dpp v{vPw}, v{vPw} quad_perm:[0,0,2,2] row_mask:0xf bank_mask:0xf")
    a("s_nop 0")
    a(f"v_mov_b32 v121, v{vPw}")
    a("s_waitcnt vmcnt(0)")
    a.label("K2_WINDOW")
    vKE = 66; vRA = 67
    a(f"s_add_u32 s{sTMP}, s{sWIN}, {CAPE}")
    a(f"v_sub_u32 v{vKE}, s{sTMP}, v{vPw}")
    a(f"v_min_i32 v{vKE}, v{vKE}, v{vC}")
    if ECOPY:
        a(f"v_sub_u32 v{vWb}, v{vSg}, v{vPw}")
        a(f"v_add_lshl_u32 v{vWb}, v{vWb}, s{sWIN}, 5")
    a.label("K2_COPY")
    a(f"v_add_u32 v{vRA}, v{vPw}, v{vKB}")
    a(f"v_subrev_u32 v{vRA}, s{sWIN}, v{vRA}")
    a(f"v_sub_u32 v68, v{vKE}, v{vKB}")
    a(f"v_lshlrev_b32 v69, 3, v{vSub}")
    a("v_sub_u32 v70, v68, v69")
    a(f"v_add_lshl_u32 v69, v{vRA}, v69, 3")
    a(f"v_add_u32 v69, {L_RAW}, v69")
    a(f"v_lshlrev_b32 v71, 1, v{vSub}")
    a("v_sub_u32 v68, v68, v71")
    a(f"v_add_lshl_u32 v71, v{vRA}, v71, 3")
    a(f"v_add_u32 v71, {L_RAW + 128}, v71")
    for i in range(8):
        a(f"v_cmp_lt_i32 vcc, {i}, v70")
        a("s_and_b64 exec, exec, vcc")
        a("s_cbranch_execz K2_CPA")
        a(f"ds_write2_b32 v69, v{EN+i}, v{vWb} offset0:{2*i} offset1:{2*i+1}")
    a.label("K2_CPA")
    a("s_mov_b64 exec, -1")
    for i in range(2):
        a(f"v_cmp_lt_i32 vcc, {16+i}, v68")
        a("s_and_b64 exec, exec, vcc")
        a("s_cbranch_execz K2_CPB")
        a(f"ds_write2_b32 v71, v{EN+8+i}, v{vWb} offset0:{2*i} offset1:{2*i+1}")
    a.label("K2_CPB")
    a("s_mov_b64 exec, -1")
    a(f"v_add_u32 v{vKB}, 20, v{vKB}")
    a(f"v_cmp_lt_i32 vcc, v{vKB}, v{vKE}")
    a("s_cmp_eq_u64 vcc, 0")
    a("s_cbranch_scc1 K2_COPIED")
    a(f"v_add_u32 v{vEA}, 80, v{vEA}")
    a(f"v_add_u32 v{vEB}, 80, v{vEB}")
    a(f"s_mov_b32 s{sTMP+4}, {ENT_OFF}")
    entry_loads(sTMP+4)
    a("s_waitcnt vmcnt(0)")
    a("s_branch K2_COPY")
    a.label("K2_COPIED")
    if "pfB" in OPT: table_prefetch(a)
    a(f"v_mov_b32 v70, {L_TOT}")
    a("s_waitcnt lgkmcnt(0)")
    a("s_barrier")
    stamp(a, 2)
    a("ds_read_b32 v70, v70")
    if "nopf" not in OPT and "pfA" not in OPT and "pfB" not in OPT: table_prefetch(a)
    RE = 56
    ND = 62; RK = 65
    a("v_lshlrev_b32 v68, 3, v0")
    a(f"v_add_u32 v68, {L_RAW}, v68")
    for i in range(3):
        a(f"ds_read_b64 {P2(RE+2*i)}, v68 offset:{4096*i}")
    a("v_mov_b32 v69, 1")
    a("s_waitcnt lgkmcnt(3)")
    a(f"v_readfirstlane_b32 s{sTOT}, v70")
    a("v_add_u32 v71, 512, v0")
    a("v_add_u32 v72, 1024, v0")
    a(f"s_sub_u32 s{sTMP}, s{sTOT}, s{sWIN}")
    a(f"s_min_u32 s{sTMP}, s{sTMP}, {CAPE}")
    a(f"v_cmp_gt_u32 {sr(sM,2)}, s{sTMP}, v0")
    a(f"v_cmp_gt_u32 {sr(sM+2,2)}, s{sTMP}, v71")
    a(f"v_cmp_gt_u32 {sr(sM+4,2)}, s{sTMP}, v72")
    for i in range(3):
        l = lab("K2_RK")
        a(f"s_waitcnt lgkmcnt({2-i if i == 0 else 0})" if i == 0 else "s_waitcnt lgkmcnt(0)" if i == 1 else "")
        a(f"v_bfe_u32 v{ND+i}, v{RE+2*i}, 14, 6")
        a(f"v_lshlrev_b32 v{ND+i}, 2, v{ND+i}")
        a(f"s_mov_b64 exec, {sr(sM+2*i,2)}")
        a(f"s_cbranch_execz {l}")
        a(f"ds_add_rtn_u32 v{RK+i}, v{ND+i}, v69 offset:{L_CNT}")
        a.label(l)
        a("s_mov_b64 exec, -1")
    a(f"v_lshrrev_b32 v68, 2, v{vCS}")
    a(f"v_mov_b32 v80, {L_FLAG}")
    for i in range(3):
        e = RE + 2*i
        if ECOPY:
            a(f"v_lshl_add_u32 v{e+1}, v0, 5, v{e+1}")
            if i: a(f"v_add_u32 v{e+1}, {512*32*i}, v{e+1}")
        else:
            a(f"v_lshrrev_b32 v70, 20, v{e}")
            a(f"v_lshl_add_u32 v{e+1}, v70, 5, v{e+1}")
        a(f"v_and_b32 v{e}, 0x3fff, v{e}")
        a(f"v_lshlrev_b32 v{e}, 8, v{e}")
    a("s_waitcnt lgkmcnt(0)")
    a("s_barrier")
    stamp(a, 3)
    a(f"ds_read_b32 v69, v68 offset:{L_CNT}")
    a("ds_read_b32 v80, v80")
    a("s_waitcnt lgkmcnt(0)")
    a(f"v_readfirstlane_b32 s{sFLAG}, v80")
    a("v_add_u32 v70, 3, v69")
    a("v_and_b32 v70, -4, v70")
    a("v_mov_b32 v71, v70")
    wave_scan(a, 71)
    a("v_sub_u32 v72, v71, v70")
    a("s_nop 0")
    a(f"v_readlane_b32 s{sNIT}, v71, 63")
    for i in range(3):
        a(f"ds_bpermute_b32 v{73+i}, v{ND+i}, v72")
    for i in range(3):
        a(f"v_lshlrev_b32 v{ND+i}, 7, v{ND+i}")
    for i in range(3):
        e = RE + 2*i
        l = lab("K2_PL")
        a(f"s_waitcnt lgkmcnt({2-i})" if i == 0 else "s_waitcnt lgkmcnt(0)" if i == 1 else "")
        a(f"s_mov_b64 exec, {sr(sM+2*i,2)}")
        a(f"s_cbranch_execz {l}")
        a(f"v_add_u32 v{73+i}, v{73+i}, v{RK+i}")
        a(f"v_and_b32 v{RK+i}, 3, v{RK+i}")
        a(f"v_lshlrev_b32 v76, 2, v{73+i}")
        a(f"v_cmp_eq_u32 vcc, 0, v{RK+i}")
        a(f"ds_write_b32 v76, v{e} offset:{L_ROW}")
        a(f"ds_write_b32 v76, v{e+1} offset:{L_EO}")
        a("s_and_b64 exec, exec, vcc")
        a(f"s_cbranch_execz {l}")
        a(f"ds_write_b32 v76, v{ND+i} offset:{L_GN + 8}")
        a(f"s_cmp_eq_u32 s{sFLAG}, 0")
        a(f"s_cbranch_scc1 {l}")
        a(f"v_and_b32 v77, 0xffffffc0, v76")
        a(f"v_bfe_u32 v{RK+i}, v76, 5, 1")
        a(f"v_lshl_add_u32 v77, v{RK+i}, 4, v77")
        a(f"v_bfe_u32 v{RK+i}, v76, 4, 1")
        a(f"v_lshl_add_u32 v77, v{RK+i}, 2, v77")
        a(f"ds_write_b32 v77, v{ND+i} offset:{L_GN + 32}")
        a.label(l)
        a("s_mov_b64 exec, -1")
    a(f"s_add_u32 s{sTMP}, s{sNIT}, 15")
    a(f"s_lshr_b32 s{sTMP+1}, s{sTMP}, 4")
    a("s_cmp_ge_u32 s28, 2")
    a("s_cbranch_scc1 K2_NOTAIL")
    a(f"v_mov_b32 v78, {N*256}")
    a("v_mov_b32 v79, 0")
    a("s_cmp_eq_u32 s28, 0")
    a("s_cbranch_scc0 K2_NOPAD")
    a(f"v_mov_b32 v76, s{sTMP+1}")
    a(f"v_mov_b32 v77, {L_TILES}")
    a("ds_write_b32 v77, v76")
    a("v_add_u32 v76, v72, v69")
    for m in range(3):
        a("v_cmp_lt_u32 vcc, v76, v71")
        a("s_and_b64 exec, exec, vcc")
        a(f"s_cbranch_execz K2_NOTAIL")
        a("v_lshlrev_b32 v77, 2, v76")
        a(f"ds_write_b32 v77, v78 offset:{L_ROW}")
        a(f"ds_write_b32 v77, v79 offset:{L_EO}")
        a("v_add_u32 v76, 1, v76")
    a("s_branch K2_NOTAIL")
    a.label("K2_NOPAD")
    a(f"v_lshrrev_b32 v76, 4, v{vCS}")
    a(f"v_add_u32 v76, s{sNIT}, v76")
    a(f"s_lshl_b32 s{sTMP+2}, s{sTMP+1}, 4")
    a(f"v_cmp_gt_u32 vcc, s{sTMP+2}, v76")
    a("s_and_b64 exec, exec, vcc")
    a("s_cbranch_execz K2_NOTAIL")
    a("v_lshlrev_b32 v77, 2, v76")
    a(f"ds_write_b32 v77, v78 offset:{L_ROW}")
    a(f"ds_write_b32 v77, v79 offset:{L_EO}")
    a("v_and_b32 v76, 3, v76")
    a("v_cmp_eq_u32 vcc, 0, v76")
    a("s_and_b64 exec, exec, vcc")
    a("s_cbranch_execz K2_NOTAIL")
    a(f"ds_write_b32 v77, v79 offset:{L_GN + 8}")
    a(f"v_and_b32 v76, 0xffffffc0, v77")
    a("v_bfe_u32 v78, v77, 5, 1")
    a("v_lshl_add_u32 v76, v78, 4, v76")
    a("v_bfe_u32 v78, v77, 4, 1")
    a("v_lshl_add_u32 v76, v78, 2, v76")
    a(f"ds_write_b32 v76, v79 offset:{L_GN + 32}")
    a.label("K2_NOTAIL")
    a("s_mov_b64 exec, -1")
    a("s_waitcnt lgkmcnt(0)")
    a("s_barrier")
    a("s_branch K2_JOIN")
    a.label("K2_G")
    WP = 8; WU = 24; ACP = 56; ACU = 104; XR = 56; CR = 64
    AFS = [40, 68, 84]
    g2, g4, g5, g6, g7, g1, g3 = 100, 101, 102, 103, 121, 122, 123
    a(f"v_subrev_u32 v{g2}, 0x2000, v8")
    a(f"v_mov_b32 v{g7}, v9")
    a(f"v_mov_b32 v{g6}, v10")
    a(f"s_sub_u32 s{sTMP+6}, s28, 8")
    a(f"s_mul_i32 s{sTMP+1}, s{sBIN}, {NPB*256}")
    a(f"s_add_u32 s{sTMP+2}, s{sTMP+1}, 8192")
    a(f"s_mov_b32 s{sTMP+3}, {CF_OFF}")
    a(f"s_mov_b32 s{sTMP+4}, {CF_OFF + 8192}")
    a(f"s_lshl_b32 s{sTMP+5}, s{sTMP+6}, 12")
    a(f"s_add_u32 s{sTMP+5}, s{sTMP+5}, {WF_OFF}")
    a(f"v_lshrrev_b32 v{g4}, 8, v{g2}")
    a(f"v_mul_u32_u24 v{g4}, 272, v{g4}")
    a(f"v_lshl_add_u32 v{g4}, v{g7}, 4, v{g4}")
    a(f"v_add_u32 v{g4}, {L_XS}, v{g4}")
    a(f"v_cmp_gt_u32 vcc, 0x1000, v{g2}")
    a("s_waitcnt lgkmcnt(0)")
    srd(a, sX, 4, N * 256)
    a(f"buffer_load_dwordx4 {vr(XR,4)}, v{g2}, {sr(sX,4)}, s{sTMP+1} offen")
    a(f"buffer_load_dwordx4 {vr(XR+4,4)}, v{g2}, {sr(sX,4)}, s{sTMP+2} offen")
    srd(a, sWS, 10, WS_END)
    a(f"buffer_load_dwordx4 {vr(CR,4)}, v{g2}, {sr(sWS,4)}, s{sTMP+3} offen")
    a(f"buffer_load_dwordx4 {vr(CR+4,4)}, v{vCS}, {sr(sWS,4)}, s{sTMP+4} offen")
    a("s_barrier")
    srd(a, sE, 6, E * 32)
    srd(a, sO, 8, N * 256)
    a("s_waitcnt vmcnt(3)")
    gstamp(a, 1)
    a(f"ds_write_b128 v{g4}, {vr(XR,4)}")
    a("s_and_saveexec_b64 s[54:55], vcc")
    a("s_waitcnt vmcnt(2)")
    a(f"ds_write_b128 v{g4}, {vr(XR+4,4)} offset:{32*272}")
    a("s_mov_b64 exec, -1")
    a("s_waitcnt vmcnt(1)")
    a(f"ds_write_b128 v{g2}, {vr(CR,4)} offset:{L_CS}")
    a("s_waitcnt vmcnt(0)")
    a(f"s_cmp_eq_u32 s{sTMP+6}, 0")
    a("s_cbranch_scc0 K2_NOA")
    a(f"ds_write_b128 v{vCS}, {vr(CR+4,4)} offset:{L_CS+8192}")
    a.label("K2_NOA")
    a(f"v_mul_u32_u24 v{g4}, 272, v{g7}")
    a(f"v_lshl_add_u32 v{g4}, v{g6}, 4, v{g4}")
    a(f"v_add_u32 v{g4}, {L_XS}, v{g4}")
    a("s_waitcnt lgkmcnt(0)")
    gstamp(a, 2)
    a("s_barrier")
    gstamp(a, 3)
    for ks in range(4):
        a(f"buffer_load_dwordx4 {vr(WP+4*ks,4)}, v{vCS}, {sr(sWS,4)}, s{sTMP+5} offen offset:{1024*ks}")
    a(f"s_add_u32 s{sTMP+5}, s{sTMP+5}, 32768")
    for ks in range(4):
        a(f"buffer_load_dwordx4 {vr(WU+4*ks,4)}, v{vCS}, {sr(sWS,4)}, s{sTMP+5} offen offset:{1024*ks}")
    for rho in range(3):
        for ks in range(4):
            a(f"ds_read_b128 {vr(AFS[rho]+4*ks,4)}, v{g4} offset:{rho*16*272 + ks*64}")
    a(f"v_lshlrev_b32 v{g5}, 11, v{g6}")
    a(f"v_lshl_add_u32 v{g5}, v{g7}, 2, v{g5}")
    a(f"s_lshl_b32 s{sTMP}, s{sTMP+6}, 6")
    a(f"v_add_u32 v{g5}, s{sTMP}, v{g5}")
    a(f"v_mov_b32 v{g1}, {L_TOT}")
    a(f"s_mov_b32 s{sTMP}, {hex(NEG_LOG2E)}")
    a(f"s_mov_b32 s{sTMP+1}, {hex(f2u(P_RANGE / 1.4426950408889634))}")
    a(f"v_lshlrev_b32 v{g4}, 1, v{g5}")
    a(f"v_add_u32 v{g4}, {L_AGG}, v{g4}")
    a(f"s_and_b32 s{sTMP+2}, s{sTMP+6}, 3")
    a(f"s_lshl_b32 s{sTMP+2}, s{sTMP+2}, 1")
    a(f"s_lshr_b32 s{sTMP+3}, 0x72, s{sTMP+2}")
    a(f"s_and_b32 s{sTMP+3}, s{sTMP+3}, 3")
    a(f"s_lshl_b32 s{sTMP+3}, s{sTMP+3}, 2")
    a(f"s_lshr_b32 s{sTMP+2}, s{sTMP+6}, 2")
    a(f"s_lshl_b32 s{sTMP+2}, s{sTMP+2}, 8")
    a(f"s_add_u32 s{sTMP+3}, s{sTMP+2}, s{sTMP+3}")
    a(f"v_lshlrev_b32 v127, 11, v{g6}")
    a(f"v_lshl_add_u32 v127, v{g7}, 4, v127")
    a(f"v_add_u32 v127, s{sTMP+3}, v127")
    a("s_barrier")
    a(f"ds_read_b32 v{g1}, v{g1}")
    a("s_waitcnt vmcnt(0)")
    gstamp(a, 4)
    for rho in range(3):
        AF = AFS[rho]
        a("s_waitcnt lgkmcnt(1)" if rho == 0 else "")
        for ks in range(4):
            c = "0" if ks == 0 else vr(ACP+4*rho, 4)
            a(f"v_mfma_f32_16x16x32_bf16 {vr(ACP+4*rho,4)}, {vr(AF+4*ks,4)}, {vr(WP+4*ks,4)}, {c}")
    for rho in range(3):
        AF = AFS[rho]
        for ks in range(4):
            c = "0" if ks == 0 else vr(ACU+4*rho, 4)
            a(f"v_mfma_f32_16x16x32_bf16 {vr(ACU+4*rho,4)}, {vr(AF+4*ks,4)}, {vr(WU+4*ks,4)}, {c}")
    a("s_waitcnt lgkmcnt(0)")
    a(f"v_readfirstlane_b32 s{sTOT}, v{g1}")
    a(f"v_max3_f32 v{g1}, |v{ACP}|, |v{ACP+1}|, |v{ACP+2}|")
    for i in range(3, 11, 2):
        a(f"v_max3_f32 v{g1}, |v{ACP+i}|, |v{ACP+i+1}|, v{g1}")
    a(f"v_max_f32_e64 v{g1}, |v{ACP+11}|, v{g1}")
    a(f"v_mov_b32 v{g2}, {L_FLAG}")
    a(f"v_cmp_nge_f32 vcc, s{sTMP+1}, v{g1}")
    a(f"v_mov_b32 v{g3}, 1")
    if "nov5" in OPT: a("s_mov_b64 vcc, -1")
    a("s_and_saveexec_b64 s[54:55], vcc")
    a("s_cbranch_execz K2_NOFLAG")
    a(f"ds_write_b32 v{g2}, v{g3}")
    a.label("K2_NOFLAG")
    a("s_mov_b64 exec, -1")
    for rho in range(3):
        if rho == 2: a(f"s_mov_b64 exec, {sr(sLO,2)}")
        for r in range(4):
            a(f"v_cvt_f64_f32 {P2(AFS[rho]+2*r)}, v{ACU+4*rho+r}")
        for r in range(4):
            a(f"ds_write_b64 v{g4}, {P2(AFS[rho]+2*r)} offset:{rho*16384 + r*1024}")
    a("s_mov_b64 exec, -1")
    a(f"v_mov_b32 v{g3}, {hex(f2u(-float(KSH)))}")
    a("s_waitcnt lgkmcnt(0)")
    gstamp(a, 5)
    a("s_barrier")
    a(f"ds_read_b32 v{g2}, v{g2}")
    a("s_waitcnt lgkmcnt(0)")
    a(f"v_readfirstlane_b32 s{sTMP+2}, v{g2}")
    a("s_nop 3")
    a(f"s_cmp_lg_u32 s{sTMP+2}, 0")
    a("s_cbranch_scc1 K2_PADD")
    for i in range(12):
        a(f"v_fma_f32 v{ACP+i}, v{ACP+i}, s{sTMP}, v{g3}")
    for i in range(12):
        a(f"v_exp_f32 v{ACP+i}, v{ACP+i}")
    for rho in range(3):
        if rho == 2: a(f"s_mov_b64 exec, {sr(sLO,2)}")
        for r in range(4):
            a(f"ds_write_b32 v127, v{ACP+4*rho+r} offset:{L_PPK + rho*8192 + r*512}")
    a("s_branch K2_PDONE")
    a.label("K2_PADD")
    for i in range(12):
        a(f"v_mul_f32 v{ACP+i}, s{sTMP}, v{ACP+i}")
    for i in range(12):
        a(f"v_cvt_pk_bf16_f32 v{ACP+i}, v{ACP+i}, 0")
    for rho in range(3):
        if rho == 2: a(f"s_mov_b64 exec, {sr(sLO,2)}")
        for r in range(4):
            a(f"ds_write_b32 v{g5}, v{ACP+4*rho+r} offset:{L_PPK + rho*8192 + r*512}")
    a.label("K2_PDONE")
    a("s_mov_b64 exec, -1")
    a("s_waitcnt lgkmcnt(0)")
    gstamp(a, 6)
    a("s_barrier")
    a("s_branch K2_JOIN")
    a.label("K2_G_WINDOW")
    a("s_barrier")
    a("s_barrier")
    a("s_barrier")
    a.label("K2_JOIN")
    stamp(a, 4)
    a("s_cmp_eq_u32 s28, 0")
    a("s_cbranch_scc0 K2_NOZ2")
    a(f"v_lshrrev_b32 v68, 2, v{vCS}")
    a("v_mov_b32 v69, 0")
    a(f"ds_write_b32 v68, v69 offset:{L_CNT}")
    a("s_waitcnt lgkmcnt(0)")
    a.label("K2_NOZ2")
    a(f"v_mov_b32 v70, {L_TILES}")
    a("ds_read_b64 v[70:71], v70")
    for t in range(4):
        a(f"ds_read_b128 {vr(B+4*t,4)}, v{vCS} offset:{L_CS + 1024*t}")
    a(f"ds_read_b128 {vr(A,4)}, v{vCS} offset:{L_CS + 8192}")
    a(f"v_lshrrev_b32 v{vJ4}, 2, v{vJ16}")
    a(f"v_mov_b32 v{vJ16h}, v{vJ16}")
    a("s_waitcnt lgkmcnt(5)")
    a(f"v_readfirstlane_b32 s{sTMP+1}, v70")
    a(f"v_readfirstlane_b32 s{sFLAG}, v71")
    a(f"s_lshr_b32 s{sTMP+2}, s{sTMP+1}, 4")
    a(f"s_and_b32 s{sTMP+3}, s{sTMP+1}, 15")
    a(f"s_cmp_lt_u32 s28, s{sTMP+3}")
    a(f"s_cselect_b32 s{sL}, 1, 0")
    a(f"s_add_u32 s{sL}, s{sL}, s{sTMP+2}")
    a(f"s_mul_i32 s{sTMP+2}, s{sTMP+2}, s28")
    a(f"s_min_u32 s{sTMP+3}, s{sTMP+3}, s28")
    a(f"s_add_u32 s{sTMP+2}, s{sTMP+2}, s{sTMP+3}")
    a(f"s_lshl_b32 s{sNIT}, s{sL}, {2 if 'dbl' in OPT else 1}")
    a(f"s_cmp_eq_u32 s{sL}, 0")
    a("s_cbranch_scc1 K2_LOOP_DONE")
    if "noprio" not in OPT: a("s_setprio 3")
    a(f"s_lshl_b32 s{sTMP+4}, s{sTMP+2}, 4")
    a(f"v_add_lshl_u32 v{vTd}, v{vLH}, s{sTMP+4}, 2")
    a(f"s_lshl_b32 s{sM0}, s{sTMP+2}, 9")
    a(f"s_add_u32 s{sM0}, s{sM0}, {L_ES}")
    a(f"v_add_u32 v{vTe0}, s{sM0}, v{vK66}")
    a(f"s_lshl_b32 s{sTMP+4}, s{sTMP+2}, 6")
    a(f"v_add_u32 v{vTa0}, s{sTMP+4}, v{vQ16}")
    a(f"s_mov_b32 s{sDI}, 0")
    a(f"s_mov_b32 s{sN}, 0")
    a(f"s_mov_b32 s{sLI}, 0")
    a(f"s_mov_b32 s{sAI}, 0")
    a(f"s_mov_b32 s{sHL}, 0")
    a(f"s_mov_b32 s{sINCP}, 64")
    a(f"s_mov_b32 s{sINCP+1}, 512")
    a(f"s_sub_i32 s{sLM3}, s{sL}, 3")
    a(f"s_sub_u32 s{sNM2}, s{sNIT}, 2")
    eo_read(a)
    a(f"v_mov_b32 v{vTa}, v{vTa0}")
    a(f"v_mov_b32 v{vTe}, v{vTe0}")
    a("s_waitcnt lgkmcnt(0)")
    e_dma(a)
    a(f"s_cmp_lt_u32 s{sDI}, s{sL}")
    a("s_cbranch_scc0 K2_ND1")
    eo_read(a)
    a("s_waitcnt lgkmcnt(0)")
    e_dma(a)
    eo_read(a)
    a.label("K2_ND1")
    a(f"s_cmp_lg_u32 s{sFLAG}, 0")
    a("s_cbranch_scc1 K2_SETUP_ADD")
    for v5 in (True, False):
        sfx = "F" if v5 else "A"
        if v5:
            for i in range(4): a(f"v_mov_b32 v{A+i}, 0")
        else:
            a.label("K2_SETUP_ADD")
        list_reads(a, v5)
        a(f"v_add_u32 v{vTa}, 64, v{vTa}")
        a("s_waitcnt lgkmcnt(0)")
        gather_stage(a, QH[0])
        for i in range(3):
            if not v5 or i == 2: a(f"v_mov_b32 v{EP+i}, v{G+i}")
        list_reads(a, v5)
        a(f"v_add_u32 v{vTa}, 64, v{vTa}")
        a("s_waitcnt lgkmcnt(0)")
        gather_stage(a, QH[1])
        if v5: stamp(a, 5)
        a("s_waitcnt vmcnt(8)")
        ap_stage(a, vGS[0], v5, EP)
        if v5: ep_read(a)
        a(f"v_add_u32 v{vTe}, 512, v{vTe}")
        a("s_waitcnt lgkmcnt(0)")
        a.label(f"K2_LOOP{sfx}")
        for k in range(3):
            tile_body(a, k, v5, "K2_LOOP_DONE")
        a(f"s_branch K2_LOOP{sfx}")
        for blk in deferred: blk()
        deferred.clear()
    a.label("K2_LOOP_DONE")
    a("s_setprio 0")
    a("s_waitcnt vmcnt(0)")
    if "pstamp" not in OPT: stamp(a, 6)
    a("s_waitcnt lgkmcnt(0)")
    a("s_barrier")
    a(f"s_add_u32 s{sWIN}, s{sWIN}, {CAPE}")
    a(f"s_cmp_lt_u32 s{sWIN}, s{sTOT}")
    a("s_cbranch_scc0 K2_EPI")
    a("s_cmp_ge_u32 s28, 8")
    a("s_cbranch_scc1 K2_G_WINDOW")
    a(f"v_lshrrev_b32 v{vW}, 1, v0")
    a(f"v_lshlrev_b32 v{vOA}, 10, v{vW}")
    a(f"s_lshl_b32 s{sTMP}, s{sBIN}, 2")
    a(f"s_add_u32 s{sTMP}, s{sTMP}, {OFFS_OFF}")
    a(f"buffer_load_dword v{vOf}, v{vOA}, {sr(sWS,4)}, s{sTMP} offen")
    a(f"v_and_b32 v{vSub}, 1, v0")
    a(f"v_mul_u32_u24 v{vSg}, {CE}, v{vW}")
    a(f"v_cmp_gt_u32 vcc, 250, v{vW}")
    a(f"v_mov_b32 v{vPw}, v121")
    if not ECOPY: a(f"v_mul_u32_u24 v{vWb}, {CE*32}, v{vW}")
    a("s_waitcnt vmcnt(0)")
    a(f"v_lshrrev_b32 v{vC}, 16, v{vOf}")
    a(f"v_and_b32 v{vOf}, 0xffff, v{vOf}")
    a(f"v_cndmask_b32 v{vC}, 0, v{vC}, vcc")
    a(f"v_add_u32 v{vSg}, v{vSg}, v{vOf}")
    a(f"v_sub_u32 v{vKB}, s{sWIN}, v{vPw}")
    a(f"v_max_i32 v{vKB}, 0, v{vKB}")
    entry_addr()
    a(f"v_lshl_add_u32 v{vEA}, v{vKB}, 2, v{vEA}")
    a(f"v_lshl_add_u32 v{vEB}, v{vKB}, 2, v{vEB}")
    a(f"s_mov_b32 s{sTMP+4}, {ENT_OFF}")
    entry_loads(sTMP+4)
    a("s_waitcnt vmcnt(0)")
    a("s_branch K2_WINDOW")
    a.label("K2_EPI")
    a("v_cmp_gt_u32 vcc, 640, v0")
    a("s_and_saveexec_b64 s[54:55], vcc")
    a("s_cbranch_execz K2_EXIT")
    a("v_lshlrev_b32 v1, 6, v0")
    for i in range(4):
        a(f"ds_read_b128 {vr(32+4*i,4)}, v1 offset:{L_AGG+16*i}")
    a(f"s_mov_b32 s{sTMP}, {hex(C_2MK)}")
    a(f"s_mov_b32 s{sTMP+1}, {hex(NEG_LOG2E)}")
    a("s_waitcnt lgkmcnt(0)")
    for i in range(8):
        a(f"v_cvt_f32_f64 v{8+i}, v[{32+2*i}:{33+2*i}]")
    a(f"s_mov_b32 s{sTMP+2}, {hex(f2u(-1.4426950408889634 * 2.0**-KSH))}")
    a(f"s_mov_b32 s{sTMP+3}, {hex(f2u(-1.4426950408889634 * 2.0**-KSH))}")
    a(f"s_mov_b32 s{sTMP+1}, {hex(C_2MK)}")
    a(f"s_mov_b32 s{sTMP+4}, 1.0")
    a(f"s_mov_b32 s{sTMP+5}, 1.0")
    for i in range(4):
        a(f"v_pk_mul_f32 {P2(16+2*i)}, {P2(8+2*i)}, s[{sTMP+2}:{sTMP+3}]")
    for i in range(4):
        a(f"v_pk_mul_f32 {P2(8+2*i)}, {P2(8+2*i)}, s[{sTMP}:{sTMP+1}]")
    for i in range(8):
        a(f"v_exp_f32 v{16+i}, v{16+i}")
    for i in range(4):
        a(f"v_pk_add_f32 {P2(16+2*i)}, {P2(16+2*i)}, s[{sTMP+4}:{sTMP+5}]")
    for i in range(8):
        a(f"v_rcp_f32 v{16+i}, v{16+i}")
    a("s_nop 0")
    for i in range(4):
        a(f"v_pk_mul_f32 {P2(8+2*i)}, {P2(8+2*i)}, {P2(16+2*i)}")
    for i in range(4):
        a(f"v_cvt_pk_bf16_f32 v{24+i}, v{8+2*i}, v{9+2*i}")
    a("v_lshlrev_b32 v2, 4, v0")
    a(f"s_mul_i32 s{sTMP}, s{sBIN}, {NPB*256}")
    a(f"buffer_store_dwordx4 v[24:27], v2, {sr(sO,4)}, s{sTMP} offen" + ("" if "outplain" in OPT else " sc1"))
    if "diag" in OPT:
        a("s_waitcnt vmcnt(0)")
        diag_mark(a, 1, False, 0)
    if "stamp" in OPT:
        a("s_waitcnt vmcnt(0)")
        stamp(a, 7)
        a("s_memrealtime s[82:83]")
        a("s_waitcnt lgkmcnt(0)")
        stamp_out(a, 10)
    a.label("K2_EXIT")
    a("s_endpgm")

HEADER = f"""; EGC edge-gated message passing: out = silu(x@U + segsum_dst(sigmoid([x_dst,x_src,e]@G) * (x@V)[src]))
; @launch kernel=egc_prep_kernel grid=({K1_WGS},1,1) block=({K1_BLOCK},1,1) lds={K1_LDS}
; @launch kernel=egc_main_kernel grid=({NB},1,1) block=(1024,1,1) lds={K2_LDS}
.amdgcn_target "amdgcn-amd-amdhsa--gfx950"
.text
"""

def kd(name, vgpr, sgpr, denorm=False):
    extra = "  .amdhsa_float_denorm_mode_32 3\n" if denorm else ""
    return f""".amdhsa_kernel {name}
  .amdhsa_next_free_vgpr {vgpr}
  .amdhsa_next_free_sgpr {sgpr}
  .amdhsa_accum_offset {((vgpr+3)//4)*4}
  .amdhsa_group_segment_fixed_size 0
  .amdhsa_kernarg_size 80
  .amdhsa_user_sgpr_count 2
  .amdhsa_user_sgpr_kernarg_segment_ptr 1
  .amdhsa_system_sgpr_workgroup_id_x 1
{extra}.end_amdhsa_kernel
"""

def k3(a, which):
    a.raw(".globl egc_diag_kernel")
    a.raw(".p2align 8")
    a.raw(".type egc_diag_kernel,@function")
    a.label("egc_diag_kernel")
    a("s_cmp_ge_u32 s2, 1")
    a("s_cbranch_scc1 K3_END")
    a("s_load_dwordx2 s[4:5], s[0:1], 64")
    a("s_waitcnt lgkmcnt(0)")
    a("s_sub_u32 s4, s4, 1024")
    a("s_subb_u32 s5, s5, 0")
    a("s_load_dwordx2 s[6:7], s[4:5], 0")
    a("s_load_dwordx2 s[8:9], s[4:5], 512")
    a("s_memrealtime s[10:11]")
    a("s_waitcnt lgkmcnt(0)")
    a("s_not_b32 s6, s6")
    a("s_not_b32 s8, s8")
    if which == 1: a("s_sub_u32 s12, s7, s6")
    if which == 2: a("s_sub_u32 s12, s8, s7")
    if which == 3: a("s_sub_u32 s12, s9, s8")
    if which == 4: a("s_sub_u32 s12, s10, s9")
    if which == 0: a("s_mov_b32 s12, 0")
    a("s_lshl_b32 s12, s12, 2")
    a("s_min_u32 s12, s12, 20000")
    a.label("K3_SPIN")
    a("s_memrealtime s[14:15]")
    a("s_waitcnt lgkmcnt(0)")
    a("s_sub_u32 s14, s14, s10")
    a("s_cmp_lt_u32 s14, s12")
    a("s_cbranch_scc1 K3_SPIN")
    a.label("K3_END")
    a("s_endpgm")

def main():
    a = Asm()
    a.raw(".globl egc_prep_kernel")
    k1(a)
    a.raw(".globl egc_main_kernel")
    k2(a)
    hdr = HEADER
    which = [int(o[4:]) for o in OPT if o.startswith("dsel")]
    if which:
        k3(a, which[0])
        hdr = hdr.replace(".amdgcn_target", "; @launch kernel=egc_diag_kernel grid=(1,1,1) block=(64,1,1) lds=0\n.amdgcn_target", 1)
    out = hdr + a.text()
    out += '.section .rodata,"a"\n.p2align 6\n' + kd("egc_prep_kernel", 112, 96) + ".p2align 6\n" + kd("egc_main_kernel", 128, 96, True) + (".p2align 6\n" + kd("egc_diag_kernel", 8, 32) if which else "")
    path = sys.argv[1] if len(sys.argv) > 1 else f"cdna_kernels/{NAME}.s"
    open(path, "w").write(out)
    print("wrote", path, len(out), "bytes")

if __name__ == "__main__":
    main()
```
